```python
import torch

def _softmax(x, axis=-1):
    return torch.softmax(x, dim=axis)
def _gelu(x):
    return torch.nn.functional.gelu(x, approximate="tanh")
def _silu(x):
    return torch.nn.functional.silu(x)
def _sigmoid(x):
    return torch.sigmoid(x)
def _layernorm(x, axis=-1, eps=1e-5):
    m = x.mean(dim=axis, keepdim=True)
    v = x.var(dim=axis, keepdim=True, unbiased=False)
    return (x - m) / torch.sqrt(v + eps)
def _scatter_add(tgt, idx, src, axis=0):
    return tgt.clone().index_add_(axis, idx, src)
def _segment_sum(src, seg, n):
    out = torch.zeros((n,) + src.shape[1:], dtype=src.dtype)
    return out.index_add_(0, seg, src)
def _pad(x, pw):
    flat = tuple(v for pair in reversed(pw) for v in pair)
    return torch.nn.functional.pad(x, flat)

kernel_name = 'standalone__mha_block__prompt'

def setup_inputs():

    _w = (lambda a: (lambda t: t.to(torch.bfloat16) if t.is_floating_point() else t)(torch.as_tensor(a)))
    B, S, D, H = 1, 2048, 576, 32
    return {
        "x": _w((lambda *s: torch.randn(*s, dtype=torch.bfloat16) * 0.2)(B, S, D)),
        "wqkv": _w((lambda *s: torch.randn(*s, dtype=torch.bfloat16) * 0.2)(D, 3 * D)),
        "wo": _w((lambda *s: torch.randn(*s, dtype=torch.bfloat16) * 0.05)(D, D)),
    }

def reference(x, wqkv, wo):
    B, S, D = x.shape
    H = 32
    Dh = D // H
    qkv = (lambda x, *d: x.permute(*d))((x @ wqkv).reshape(B, S, 3, H, Dh), 2, 0, 3, 1, 4)
    q, k, v = qkv[0], qkv[1], qkv[2]
    scores = torch.einsum("bhqd,bhkd->bhqk", q, k) * (Dh ** -0.5)
    p = _softmax(scores, axis=-1)
    o = torch.einsum("bhqk,bhkd->bhqd", p, v)
    return (lambda x, *d: x.permute(*d))(o, 0, 2, 1, 3).reshape(B, S, D) @ wo
```

```python
import re
RV = re.compile(r'\b([vas])(\d+)\b|\b([vas])\[(\d+):(\d+)\]')
def regs(op):
    out = []
    op = op.strip()
    for m in RV.finditer(op):
        if m.group(1): out.append((m.group(1), int(m.group(2))))
        else: out += [(m.group(3), i) for i in range(int(m.group(4)), int(m.group(5))+1)]
    if re.search(r'\bvcc\b', op): out += [('s', 106), ('s', 107)]
    if re.search(r'\bvcc_lo\b', op): out += [('s', 106)]
    if re.search(r'\bvcc_hi\b', op): out += [('s', 107)]
    if re.search(r'\bm0\b', op): out += [('s', 124)]
    if re.search(r'\bexec(_lo|_hi)?\b', op): out += [('s', 126), ('s', 127)]
    return out
TRANS = ('v_exp_', 'v_log_', 'v_rcp_', 'v_rsq_', 'v_sqrt_', 'v_sin_', 'v_cos_')
def passes(mn):
    if '32x32x4_2b' in mn: return 16
    if '32x32' in mn: return 8
    if '16x16' in mn: return 4
    if '4x4x4' in mn: return 2
    raise ValueError(mn)
class I: pass
def parse(line):
    s = line.split(';')[0].strip()
    if not s or s.endswith(':') or s.startswith('.'): return None
    p = s.split(None, 1)
    i = I(); i.text = s; i.mn = p[0]
    ops = [o.strip() for o in (p[1].split(',') if len(p) > 1 else [])]
    i.ops = ops
    mn = i.mn
    i.mfma = 'mfma' in mn
    i.valu = mn.startswith('v_') and not i.mfma
    i.vmem = mn.startswith(('buffer_', 'global_'))
    i.ds = mn.startswith('ds_')
    i.salu = mn.startswith('s_')
    i.trans = mn.startswith(TRANS)
    i.w = set(); i.r = set(); i.srcc = set(); i.ab = set(); i.data = set()
    i.states = 1
    if mn == 's_nop': i.states = int(ops[0], 0) + 1
    if i.mfma:
        i.w = set(regs(ops[0])); i.ab = set(regs(ops[1])) | set(regs(ops[2]))
        if 'smfmac' in mn: i.srcc = set(i.w); i.ab |= set(regs(ops[3]))
        else: i.srcc = set(regs(ops[3]))
        i.r = i.ab | i.srcc; i.p = passes(mn)
    elif i.valu:
        i.w = set(regs(ops[0]))
        rest = ops[1:]
        if mn.startswith(('v_add_co', 'v_sub_co', 'v_addc_co', 'v_subb_co')):
            i.w |= set(regs(ops[1])); rest = ops[2:]
        for o in rest: i.r |= set(regs(o))
        if mn.startswith(('v_fmac', 'v_pk_fmac')) or 'UNUSED_PRESERVE' in s: i.r |= i.w
        if mn.startswith('v_permlane'):
            i.w |= set(regs(ops[1])); i.r |= i.w
        if mn.startswith('v_cmpx'): i.w |= {('s',126),('s',127)}
    elif i.vmem:
        lds = re.search(r'\blds\b', s) is not None
        i.lds = lds
        if 'load' in mn and not lds:
            i.w = set(regs(ops[0]))
            for o in ops[1:]: i.r |= set(regs(o))
        else:
            for o in ops: i.r |= set(regs(o))
            if lds: i.r.add(('s',124))
            if 'store' in mn:
                d = ops[0] if mn.startswith('buffer_') else ops[1]
                if 'x4' in mn or 'x3' in mn: i.data = set(regs(d))
            if 'atomic' in mn and 'sc0' in s: i.w = set(regs(ops[0]))
    elif i.ds:
        if mn.startswith('ds_read') or '_rtn' in mn or 'permute' in mn or 'swizzle' in mn:
            i.w = set(regs(ops[0]))
            for o in ops[1:]: i.r |= set(regs(o))
        else:
            for o in ops: i.r |= set(regs(o))
    elif i.salu:
        if mn.startswith(('s_cmp', 's_cbranch', 's_branch', 's_waitcnt', 's_nop', 's_barrier', 's_setprio', 's_sleep', 's_endpgm', 's_bitcmp', 's_setpc')):
            for o in ops: i.r |= set(regs(o))
        else:
            i.w = set(regs(ops[0])) if ops else set()
            for o in ops[1:]: i.r |= set(regs(o))
            if 'saveexec' in mn: i.w |= {('s',126),('s',127)}
    return i
def need(a, b):
    n = 0
    V = lambda st: {x for x in st if x[0] in 'va'}
    S = lambda st: {x for x in st if x[0] == 's'}
    if a.valu:
        if b.mfma and V(a.w) & b.r: n = max(n, 2)
        if b.mfma and ('s',126) in a.w: n = max(n, 4)
        if b.mn.startswith('v_permlane') and V(a.w) & b.r: n = max(n, 2)
        if b.valu and ('dpp' in b.text or 'row_' in b.text or 'quad_perm' in b.text) and V(a.w) & b.r: n = max(n, 2)
        if b.mn.startswith(('v_readfirstlane', 'v_readlane')) and V(a.w) & b.r: n = max(n, 1)
        if b.vmem and S(a.w) & b.r: n = max(n, 5)
        if b.valu and S(a.w) & b.r: n = max(n, 2)
        if b.mn.startswith(('v_readlane','v_writelane')) and S(a.w) & b.r: n = max(n, 4)
        if a.trans and b.valu and not b.trans and V(a.w) & b.r: n = max(n, 1)
        if ('sdwa' in a.mn or 'op_sel' in a.text) and b.valu and V(a.w) & (b.r | b.w): n = max(n, 1)
    if a.mfma:
        idx = {2:0, 4:1, 8:2, 16:3}[a.p]
        if b.mfma:
            if a.w & b.srcc:
                if a.w == b.srcc and a.mn == b.mn: n = max(n, [2,0,0,0][idx])
                else: n = max(n, [4,6,10,18][idx])
            if a.w & b.ab: n = max(n, [5,8,12,20][idx])
            if (a.w & b.w) and not (a.w & b.srcc): n = max(n, [5,8,12,20][idx] if a.p > b.p else 0)
        elif b.valu or b.vmem or b.ds:
            if a.w & (b.r | b.w): n = max(n, [5,8,12,20][idx])
            if b.valu and a.srcc & b.w: n = max(n, [1,3,7,15][idx])
    if a.vmem and a.data and (a.data & b.w): n = max(n, 2 if b.valu else 1)
    if a.salu and ('s',124) in a.w and b.vmem and getattr(b, 'lds', False): n = max(n, 1)
    return n
def lint(lines, window=24):
    ins = [(k, parse(l)) for k, l in enumerate(lines)]
    ins = [(k, i) for k, i in ins if i is not None]
    errs = []
    for x in range(len(ins)):
        a = ins[x][1]
        if a.mn in ('s_endpgm',): continue
        d = 0
        for y in range(x+1, min(len(ins), x+window)):
            b = ins[y][1]
            n = need(a, b)
            if n > d: errs.append("line %d '%s' -> line %d '%s': need %d have %d" % (ins[x][0]+1, a.text, ins[y][0]+1, b.text, n, d))
            d += b.states
            if d >= 20 or b.mn in ('s_endpgm', 's_branch', 's_setpc_b64'): break
    return errs
if __name__ == "__main__":
    import sys
    e = lint(open(sys.argv[1]).read().split("\n"))
    print("\n".join(e) if e else "no hazards found")
```

```python
import sys, struct, math
from hazard import lint

NAME = "standalone__mha_block__prompt"

PITCH = 221184
SEC = 73728
OBASE = 32 * PITCH
OTILE = 36864
WOBASE = OBASE + 64 * OTILE
FBASE = WOBASE + 36 * 4 * 4608
F01 = FBASE
FW = FBASE + 8192
FEPOCH = FBASE + 8192 + 512
FO = FBASE + 16384
WS_SIZE = FO + 32768
CHUNK = 4864
LDS_SPARE = 32 * CHUNK
LDS_TOTAL = 163840
SCALE = struct.unpack("<I", struct.pack("<f", math.log2(math.e) / math.sqrt(18.0)))[0]

sX, sW, sWO, sOUT, sWS, sDBG = 4, 8, 12, 16, 20, 24
sWAVE, sXCD, sJ = 28, 29, 30
sTAG = 31
sLINE, sG, sSEC = 32, 33, 34
sXOFF, sWOFF, sM0X, sM0W, sSCALE, sST = 35, 36, 37, 38, 39, 40
sHEAD, sQI, sKH, sP = 41, 42, 43, 44
sVMASK = 46
sDMASK = 48
sCH, sQOFF = 50, 51
sRT, sCB, sKQ, sRH = 52, 53, 54, 55
sFIVE = 56
sT0, sT1, sT2, sT3, sT4, sT5 = 60, 61, 62, 63, 64, 65
sRET = 66
sSPIN = 68
sWOF = 70
sOCOL = 76
sLOOP = 78
sSAVE = 80

def srd(s): return "s[%d:%d]" % (s, s + 3)
def vr(a, n=1): return "v%d" % a if n == 1 else "v[%d:%d]" % (a, a + n - 1)
def sr(a, n=1): return "s%d" % a if n == 1 else "s[%d:%d]" % (a, a + n - 1)

vLANE = 1
vQ = [2, 8]
vIDX = 14
vAK, vAR, vAV = 15, 16, 17
vDMA = 18
vQA, vQR = 22, 23
vT = 24
vXS = 24
vWS = 26
vWR = 27
vXR = 28
vSTA = 36
vACC = [48, 64]
vXF = [80, 96]
vWF = 112
vWO = 42
vV = 132
vK = 148
vKR = 156
vO = [160, 176]
vS = [192, 224]


class Asm:
    def __init__(self):
        self.l = []
        self.vm = []
        self.lg = []
        self.n = 0

    def __call__(self, *lines):
        for s in lines:
            if isinstance(s, (list, tuple)):
                self(*s)
            elif s.endswith(":") or s.startswith("."):
                self.l.append(s)
            else:
                self.l.append("    " + s)

    def uid(self, p):
        self.n += 1
        return "L_%s_%d" % (p, self.n)

    def vmem(self, s, tag):
        self(s); self.vm.append(tag)
        assert len(self.vm) <= 63

    def lds(self, s, tag=None):
        self(s); self.lg.append(tag)

    def _cnt(self, q, tags):
        if not isinstance(tags, (list, set)): tags = [tags]
        last = max([k for k, t in enumerate(q) if t in tags], default=-1)
        return None if last < 0 else len(q) - 1 - last

    def wait(self, vm=None, lg=None):
        parts = []
        if vm is not None:
            n = 0 if vm == "all" else self._cnt(self.vm, vm)
            if n is not None:
                parts.append("vmcnt(%d)" % n); self.vm = self.vm[len(self.vm) - n:]
        if lg is not None:
            n = 0 if lg == "all" else self._cnt(self.lg, lg)
            if n is not None:
                n = min(n, 15)
                parts.append("lgkmcnt(%d)" % n); self.lg = self.lg[len(self.lg) - n:]
        if parts: self("s_waitcnt " + " ".join(parts))


def prologue(a, endlabel):
    a("s_cmp_ge_u32 s2, 256", "s_cbranch_scc1 %s" % endlabel)
    for k, s in enumerate((sX, sW, sWO, sOUT, sDBG, sWS)):
        a("s_load_dwordx2 %s, s[0:1], %d" % (sr(s, 2), 8 * k))
    for s, n in ((sX, 2359296), (sW, 1990656), (sWO, 663552), (sOUT, 2359296), (sDBG, 256), (sWS, WS_SIZE)):
        a("s_mov_b32 s%d, %d" % (s + 2, n), "s_mov_b32 s%d, 0x00020000" % (s + 3))
    a("v_lshrrev_b32 v2, 6, v0", "v_and_b32 v%d, 63, v0" % vLANE, "v_readfirstlane_b32 s%d, v2" % sWAVE,
      "s_and_b32 s%d, s2, 7" % sXCD, "s_lshr_b32 s%d, s2, 3" % sJ)


def p1_roles(a, idle):
    a("s_lshr_b32 s%d, s%d, 2" % (sT0, sJ),
      "s_lshr_b32 s%d, s%d, 1" % (sT1, sXCD),
      "s_mul_i32 s%d, s%d, 7" % (sLINE, sT1),
      "s_add_u32 s%d, s%d, s%d" % (sLINE, sLINE, sT0),
      "s_cmp_ge_u32 s%d, 7" % sT0, "s_cbranch_scc1 %s" % idle,
      "s_cmp_ge_u32 s%d, 27" % sLINE, "s_cbranch_scc1 %s" % idle,
      "s_and_b32 s%d, s%d, 1" % (sG, sXCD), "s_lshl_b32 s%d, s%d, 2" % (sG, sG),
      "s_and_b32 s%d, s%d, 3" % (sT0, sJ), "s_add_u32 s%d, s%d, s%d" % (sG, sG, sT0))


XBASE = 65536
def xslot(s): return XBASE + 16384 * (s % 6)
def wslot(s): return 8192 * (s % 8)


def p1_body(a, isv, cfg, hooks):
    L = vLANE
    t0, t1, t2, t3 = 38, 39, 40, 41
    a("s_and_b32 s%d, s%d, 1" % (sT0, sWAVE), "s_lshr_b32 s%d, s%d, 1" % (sT1, sWAVE),
      "v_lshrrev_b32 v%d, 3, v%d" % (t0, L),
      "v_and_b32 v%d, 7, v%d" % (t1, L),
      "v_lshrrev_b32 v%d, 4, v%d" % (t2, L),
      "v_xor_b32 v%d, v%d, v%d" % (t2, t2, t1),
      "v_lshlrev_b32 v%d, 4, v%d" % (t2, t2))
    if isv:
        a("s_lshl_b32 s%d, s%d, 4" % (sT2, sWAVE), "v_add_u32 v%d, s%d, v%d" % (t3, sT2, t0))
        step = 8
    else:
        a("s_lshl_b32 s%d, s%d, 5" % (sT2, sT1), "s_add_u32 s%d, s%d, s%d" % (sT2, sT2, sT0),
          "v_lshl_add_u32 v%d, v%d, 1, s%d" % (t3, t0, sT2))
        step = 16
    a("v_mul_u32_u24 v%d, 1152, v%d" % (t3, t3),
      "v_add_u32 v%d, v%d, v%d" % (vXS, t3, t2),
      "v_xor_b32 v%d, 64, v%d" % (t2, t2),
      "v_add_u32 v%d, v%d, v%d" % (vXS + 1, t3, t2),
      "v_add_u32 v%d, %d, v%d" % (vXS + 1, step * 1152 - 1024, vXS + 1))
    a("s_lshl_b32 s%d, s%d, 3" % (sT2, sWAVE), "v_add_u32 v%d, s%d, v%d" % (t3, sT2, t0),
      "v_mul_u32_u24 v%d, 3456, v%d" % (t3, t3),
      "v_bfe_u32 v%d, v%d, 4, 1" % (t2, L), "v_lshlrev_b32 v%d, 2, v%d" % (t2, t2),
      "v_xor_b32 v%d, v%d, v%d" % (t2, t2, t1),
      "v_lshl_add_u32 v%d, v%d, 4, v%d" % (vWS, t2, t3))
    a("s_mul_i32 s%d, s%d, %d" % (sXOFF, sG, 128 * 1152),
      "s_lshl_b32 s%d, s%d, 7" % (sWOFF, sLINE),
      "s_lshl_b32 s%d, s%d, 11" % (sM0X, sWAVE),
      "s_lshl_b32 s%d, s%d, 10" % (sM0W, sWAVE))
    a("s_waitcnt lgkmcnt(0)")

    def issue(s):
        if s < 9:
            a("s_add_u32 m0, s%d, %d" % (sM0W, wslot(s)), "s_nop 0")
            a.vmem("buffer_load_dwordx4 v%d, %s, s%d offen lds" % (vWS, srd(sW), sWOFF), ("d", s))
            if s < 8: a("s_add_u32 s%d, s%d, %d" % (sWOFF, sWOFF, 64 * 3456))
        a("s_add_u32 m0, s%d, %d" % (sM0X, xslot(s)), "s_nop 0")
        a.vmem("buffer_load_dwordx4 v%d, %s, s%d offen lds" % (vXS, srd(sX), sXOFF), ("d", s))
        a.vmem("buffer_load_dwordx4 v%d, %s, s%d offen offset:1024 lds" % (vXS + 1, srd(sX), sXOFF), ("d", s))
        if s == 8: a("s_add_u32 s%d, s%d, %d" % (sXOFF, sXOFF, 1024 * 1152 - 8 * 128))
        elif s < 17: a("s_add_u32 s%d, s%d, 128" % (sXOFF, sXOFF))

    issue_at = cfg["issue_at"]
    for s in range(18):
        assert issue_at[s] < s and (s < 6 or issue_at[s] >= s - 5)
        if issue_at[s] < 0: issue(s)
    hooks.get("start", lambda: None)()

    a("s_and_b32 s%d, s%d, 3" % (sT0, sWAVE), "s_lshr_b32 s%d, s%d, 2" % (sT1, sWAVE),
      "s_lshl_b32 s%d, s%d, 12" % (sT2, sT0), "s_add_u32 s%d, s%d, %d" % (sT2, sT2, XBASE),
      "v_and_b32 v%d, 31, v%d" % (t0, L), "v_lshrrev_b32 v%d, 5, v%d" % (t1, L),
      "v_bfe_u32 v%d, v%d, 1, 3" % (t2, L), "v_xor_b32 v%d, v%d, v%d" % (t2, t2, t1),
      "v_lshlrev_b32 v%d, 4, v%d" % (t2, t2),
      "v_lshl_add_u32 v%d, v%d, 7, s%d" % (t3, t0, sT2))
    for m in range(4):
        a("v_xor_b32 v%d, %d, v%d" % (vXR + m, 32 * m, t2), "v_add_u32 v%d, v%d, v%d" % (vXR + m, vXR + m, t3),
          "v_add_u32 v%d, 0x10000, v%d" % (vXR + 4 + m, vXR + m))
    a("v_bfe_u32 v%d, v%d, 2, 2" % (t2, L), "v_lshl_add_u32 v%d, v%d, 3, v%d" % (t2, t1, t2),
      "v_lshlrev_b32 v%d, 7, v%d" % (vWR, t2),
      "v_bfe_u32 v%d, v%d, 3, 1" % (t2, L), "v_xor_b32 v%d, s%d, v%d" % (t2, sT1, t2),
      "v_lshl_add_u32 v%d, v%d, 6, v%d" % (vWR, t2, vWR),
      "v_bfe_u32 v%d, v%d, 4, 1" % (t2, L), "v_lshl_add_u32 v%d, v%d, 5, v%d" % (vWR, t2, vWR),
      "v_and_b32 v%d, 3, v%d" % (t2, L), "v_lshl_add_u32 v%d, v%d, 3, v%d" % (vWR, t2, vWR))
    a("s_lshl_b32 s%d, s%d, 1" % (sT2, sG), "s_lshr_b32 s%d, s%d, 1" % (sT3, sT0), "s_add_u32 s%d, s%d, s%d" % (sT2, sT2, sT3),
      "s_mul_i32 s%d, s%d, %d" % (sST, sT2, PITCH), "s_and_b32 s%d, s%d, 1" % (sT3, sT0))
    if isv:
        a("s_mul_i32 s%d, s%d, %d" % (sT3, sT3, 4 * 9216), "s_add_u32 s%d, s%d, s%d" % (sST, sST, sT3),
          "s_lshl_b32 s%d, s%d, 10" % (sT3, sLINE), "s_add_u32 s%d, s%d, s%d" % (sST, sST, sT3),
          "s_lshl_b32 s%d, s%d, 9" % (sT3, sT1), "s_add_u32 s%d, s%d, s%d" % (sST, sST, sT3),
          "s_add_u32 s%d, s%d, %d" % (sST, sST, 2 * SEC - 18 * 1024),
          "v_mul_u32_u24 v%d, 9216, v%d" % (vSTA, t1), "v_lshl_add_u32 v%d, v%d, 4, v%d" % (vSTA, t0, vSTA),
          "v_add_u32 v%d, 18432, v%d" % (vSTA + 1, vSTA))
    else:
        a("s_lshl_b32 s%d, s%d, 8" % (sT3, sT3), "s_add_u32 s%d, s%d, s%d" % (sST, sST, sT3),
          "s_lshl_b32 s%d, s%d, 13" % (sT3, sLINE), "s_add_u32 s%d, s%d, s%d" % (sST, sST, sT3),
          "s_lshl_b32 s%d, s%d, 12" % (sT3, sT1), "s_add_u32 s%d, s%d, s%d" % (sST, sST, sT3),
          "v_bfe_u32 v%d, v%d, 4, 1" % (t2, L), "v_lshl_add_u32 v%d, v%d, 1, v%d" % (t2, t2, t1),
          "v_and_b32 v%d, 15, v%d" % (t3, L), "v_lshlrev_b32 v%d, 4, v%d" % (t3, t3),
          "v_lshl_add_u32 v%d, v%d, 9, v%d" % (vSTA, t2, t3),
          "s_mov_b32 s%d, 0x%08x" % (sT3, SCALE), "s_cmp_lt_u32 s%d, 9" % sLINE,
          "s_cselect_b32 s%d, s%d, 1.0" % (sSCALE, sT3))
    hooks.get("setup", lambda: None)()

    def reads(s):
        sl = s % 6
        for m in range(4):
            if s < 9:
                for h in range(2):
                    a.lds("ds_read_b64_tr_b16 %s, v%d offset:%d" % (vr(vWF + 16 * s + 4 * m + 2 * h, 2), vWR, wslot(s) + (16 * m + 4 * h) * 128))
            a.lds("ds_read_b128 %s, v%d offset:%d" % (vr(vXF[s % 2] + 4 * m, 4), vXR + m + (4 if sl >= 4 else 0), 16384 * (sl % 4)))

    def mfmas(s):
        acc = vr(vACC[s // 9], 16)
        for m in range(4):
            w = vr(vWF + 16 * (s % 9) + 4 * m, 4); x = vr(vXF[s % 2] + 4 * m, 4)
            c = "0" if (s % 9 == 0 and m == 0) else acc
            a("v_mfma_f32_32x32x16_bf16 %s, %s, %s, %s" % ((acc, x, w, c) if isv else (acc, w, x, c)))

    def epilogue(r):
        acc = vACC[r]
        if not isv:
            for i in range(16): a("v_mul_f32 v%d, s%d, v%d" % (acc + i, sSCALE, acc + i))
        for i in range(8): a("v_cvt_pk_bf16_f32 v%d, v%d, v%d" % (acc + i, acc + 2 * i, acc + 2 * i + 1))
        sw = "v_permlane32_swap_b32" if isv else "v_permlane16_swap_b32"
        for n in range(2):
            a("%s v%d, v%d" % (sw, acc + 4 * n, acc + 4 * n + 2), "%s v%d, v%d" % (sw, acc + 4 * n + 1, acc + 4 * n + 3))
        for n in range(2):
            if isv: a.vmem("buffer_store_dwordx4 %s, v%d, %s, s%d offen sc1" % (vr(acc + 4 * n, 4), vSTA + n, srd(sWS), sST), ("st", r))
            else: a.vmem("buffer_store_dwordx4 %s, v%d, %s, s%d offen offset:%d sc1" % (vr(acc + 4 * n, 4), vSTA, srd(sWS), sST, 2048 * n), ("st", r))
        if r == 0: a("s_add_u32 s%d, s%d, %d" % (sST, sST, 16 * PITCH))

    for s in range(18):
        extra = hooks.get(("waitfor", s), [])
        a.wait(vm=[("d", s)] + extra, lg="all")
        a("s_barrier")
        reads(s)
        if s > 0: mfmas(s - 1)
        for s2 in range(18):
            if issue_at[s2] == s: issue(s2)
        if s == 9:
            a("s_nop 7")
            epilogue(0)
        hooks.get(("step", s), lambda: None)()
    a.wait(lg="all")
    mfmas(17)
    hooks.get("pre_epi1", lambda: None)()
    a("s_nop 11")
    epilogue(1)


def wo_role(a, skip):
    L = vLANE
    t0, t1, t2, t3 = 24, 25, 26, 27
    lab = a.uid("wo")
    a("s_lshl_b32 s%d, s%d, 2" % (sT0, sXCD), "s_and_b32 s%d, s%d, 3" % (sT1, sJ), "s_add_u32 s%d, s%d, s%d" % (sLINE, sT0, sT1),
      "s_cmp_ge_u32 s%d, 28" % sJ, "s_cbranch_scc1 %s" % lab,
      "s_add_u32 s%d, s%d, 8" % (sLINE, sLINE),
      "%s:" % lab,
      "s_waitcnt lgkmcnt(0)",
      "s_cmp_ge_u32 s%d, 36" % sLINE, "s_cbranch_scc1 %s" % skip)
    a("s_lshl_b32 s%d, s%d, 5" % (sT0, sWAVE), "v_lshrrev_b32 v%d, 1, v%d" % (t0, L), "v_add_u32 v%d, s%d, v%d" % (t0, sT0, t0),
      "v_mul_u32_u24 v%d, 1152, v%d" % (t0, t0), "v_and_b32 v%d, 1, v%d" % (t1, L), "v_lshl_add_u32 v%d, v%d, 4, v%d" % (t0, t1, t0),
      "s_lshl_b32 s%d, s%d, 5" % (sT1, sLINE), "s_lshl_b32 s%d, s%d, 10" % (sT2, sWAVE))
    for k in range(3):
        a("s_add_u32 m0, s%d, %d" % (sT2, 8192 * k), "s_nop 0")
        a.vmem("buffer_load_dwordx4 v%d, %s, s%d offen lds" % (t0, srd(sWO), sT1), "wo")
        if k < 2: a("s_add_u32 s%d, s%d, %d" % (sT1, sT1, 256 * 1152))
    a("s_and_b32 s%d, s%d, 3" % (sT0, sWAVE), "s_lshr_b32 s%d, s%d, 2" % (sT1, sWAVE),
      "s_mul_i32 s%d, s%d, 144" % (sT2, sT0), "s_mul_i32 s%d, s%d, 72" % (sT3, sT1), "s_add_u32 s%d, s%d, s%d" % (sT3, sT3, sT2),
      "v_lshrrev_b32 v%d, 5, v%d" % (t0, L), "v_mul_u32_u24 v%d, 18, v%d" % (t0, t0),
      "v_bfe_u32 v%d, v%d, 2, 3" % (t1, L),
      "v_add3_u32 v%d, v%d, v%d, s%d" % (t0, t0, t1, sT3),
      "v_and_b32 v%d, 3, v%d" % (t2, L), "v_lshlrev_b32 v%d, 3, v%d" % (t2, t2),
      "v_lshl_add_u32 v%d, v%d, 5, v%d" % (t0, t0, t2),
      "v_lshrrev_b32 v%d, 3, v%d" % (t1, L), "v_mul_u32_u24 v%d, 18, v%d" % (t1, t1),
      "v_bfe_u32 v%d, v%d, 2, 1" % (t3, L), "s_add_u32 s%d, s%d, 16" % (sT2, sT2),
      "v_add3_u32 v%d, v%d, v%d, s%d" % (t1, t1, t3, sT2),
      "v_lshl_add_u32 v%d, v%d, 5, v%d" % (t1, t1, t2))
    a("s_lshl_b32 s%d, s%d, 2" % (sT2, sLINE), "s_add_u32 s%d, s%d, s%d" % (sT2, sT2, sT0), "s_mul_i32 s%d, s%d, 4608" % (sT2, sT2),
      "s_add_u32 s%d, s%d, %d" % (sT2, sT2, WOBASE), "s_add_u32 s%d, s%d, 4096" % (sT4, sT2),
      "s_lshl_b32 s%d, s%d, 11" % (sT3, sT1), "s_add_u32 s%d, s%d, s%d" % (sT2, sT2, sT3),
      "v_lshlrev_b32 v%d, 4, v%d" % (t2, L), "v_lshlrev_b32 v%d, 3, v%d" % (t3, L))
    a.wait(vm="all"); a("s_barrier")
    for m in range(2):
        for h in range(2):
            a.lds("ds_read_b64_tr_b16 %s, v%d offset:%d" % (vr(48 + 4 * m + 2 * h, 2), t0, (36 * m + 8 * h) * 32))
    a.lds("ds_read_b64_tr_b16 v[56:57], v%d" % t1)
    a.wait(lg="all")
    for m in range(2):
        a.vmem("buffer_store_dwordx4 %s, v%d, %s, s%d offen offset:%d sc1" % (vr(48 + 4 * m, 4), t2, srd(sWS), sT2, 1024 * m), "st")
    a.vmem("buffer_store_dwordx2 v[56:57], v%d, %s, s%d offen sc1" % (t3, srd(sWS), sT4), "st")


def p2_setup(a):
    L = vLANE
    t0, t1, t2, t3 = 38, 39, 40, 41
    a("s_lshl_b32 s%d, s%d, 2" % (sHEAD, sXCD), "s_lshr_b32 s%d, s%d, 3" % (sT0, sJ), "s_add_u32 s%d, s%d, s%d" % (sHEAD, sHEAD, sT0),
      "s_and_b32 s%d, s%d, 7" % (sQI, sJ), "s_and_b32 s%d, s%d, 3" % (sP, sWAVE), "s_lshr_b32 s%d, s%d, 2" % (sKH, sWAVE),
      "s_mov_b32 s%d, 0x3ffff" % sVMASK, "s_mov_b32 s%d, 0x3ffff" % (sVMASK + 1),
      "s_mov_b32 s%d, -1" % sDMASK, "s_mov_b32 s%d, 0xffff" % (sDMASK + 1),
      "s_and_b32 s%d, s%d, 1" % (sT0, sHEAD),
      "s_lshr_b32 s%d, s%d, 1" % (sT1, sHEAD), "s_mul_i32 s%d, s%d, %d" % (sT1, sT1, 9 * 512))
    a("v_and_b32 v%d, 31, v%d" % (t0, L), "v_lshrrev_b32 v%d, 5, v%d" % (t1, L))
    a("s_lshl_b32 s%d, s%d, 11" % (sT2, sT0), "s_add_u32 s%d, s%d, s%d" % (sT2, sT2, sT1), "s_add_u32 s%d, s%d, %d" % (sT2, sT2, SEC),
      "v_lshl_add_u32 v%d, v%d, 4, s%d" % (vDMA, L, sT2),
      "s_mul_i32 s%d, s%d, 288" % (sT3, sHEAD))
    for k in (2, 3, 4):
        imm = 1024 * k if k < 4 else 0
        d = vDMA + k - 1
        a("v_add_u32 v%d, %d, v%d" % (t2, (64 * k - 160) & 0xffffffff, L))
        if k == 2: a("v_max_i32 v%d, 0, v%d" % (t2, t2))
        a("v_mul_u32_u24 v%d, 3641, v%d" % (t3, t2), "v_lshrrev_b32 v%d, 16, v%d" % (t3, t3),
          "v_mul_u32_u24 v%d, %d, v%d" % (t3, 9216 - 288, t3),
          "v_lshl_add_u32 v%d, v%d, 4, v%d" % (t3, t2, t3),
          "s_add_u32 s%d, s%d, %d" % (sT4, sT3, 2 * SEC - imm),
          "v_add_u32 v%d, s%d, v%d" % (d, sT4, t3))
        if k == 2:
            a("v_cmp_gt_u32 vcc, 32, v%d" % L, "s_nop 1", "v_cndmask_b32 v%d, v%d, v%d, vcc" % (d, d, vDMA))
    a("s_mul_i32 s%d, s%d, %d" % (sT2, sKH, CHUNK),
      "s_lshl_b32 s%d, s%d, 9" % (sT3, sT0), "s_add_u32 s%d, s%d, s%d" % (sT3, sT3, sT2),
      "v_lshlrev_b32 v%d, 10, v%d" % (t2, t1), "v_lshl_add_u32 v%d, v%d, 3, v%d" % (t2, t0, t2),
      "v_add_u32 v%d, s%d, v%d" % (vAK, sT3, t2),
      "s_mul_i32 s%d, s%d, %d" % (sT3, sT0, (4 - 2048) & 0xffffffff), "s_add_u32 s%d, s%d, 2048" % (sT3, sT3),
      "s_add_u32 s%d, s%d, s%d" % (sT3, sT3, sT2),
      "v_lshl_add_u32 v%d, v%d, 3, s%d" % (vAR, L, sT3),
      "s_add_u32 s%d, s%d, 2560" % (sT3, sT2),
      "v_mul_u32_u24 v%d, 288, v%d" % (t3, t1), "v_lshl_add_u32 v%d, v%d, 4, v%d" % (t3, t0, t3),
      "v_add_u32 v%d, s%d, v%d" % (vAV, sT3, t3))
    a("s_mul_i32 s%d, s%d, %d" % (sT3, sT0, 5 * 512), "s_add_u32 s%d, s%d, s%d" % (sT3, sT3, sT1),
      "v_add_u32 v%d, s%d, v%d" % (vQA, sT3, t2),
      "s_lshl_b32 s%d, s%d, 2" % (sT3, sT0), "s_add_u32 s%d, s%d, s%d" % (sT3, sT3, sT1), "s_add_u32 s%d, s%d, 2048" % (sT3, sT3),
      "v_lshl_add_u32 v%d, v%d, 3, s%d" % (vQR, t0, sT3),
      "s_lshl_b32 s%d, s%d, 1" % (sT3, sQI), "s_lshr_b32 s%d, s%d, 1" % (sT4, sP), "s_add_u32 s%d, s%d, s%d" % (sT3, sT3, sT4),
      "s_mul_i32 s%d, s%d, %d" % (sQOFF, sT3, PITCH), "s_and_b32 s%d, s%d, 1" % (sT4, sP), "s_lshl_b32 s%d, s%d, 8" % (sT4, sT4),
      "s_add_u32 s%d, s%d, s%d" % (sQOFF, sQOFF, sT4),
      "v_mov_b32 v%d, 0xdddddddd" % vIDX, "v_mov_b32 v%d, 0" % (vQ[0] + 5), "v_mov_b32 v%d, 0" % (vQ[1] + 5))


def q_load(a, part):
    so = sQOFF
    if part:
        a("s_add_u32 s%d, s%d, %d" % (sT0, sQOFF, 16 * PITCH)); so = sT0
    q = vQ[part]
    a.vmem("buffer_load_dwordx2 %s, v%d, %s, s%d offen sc1" % (vr(q, 2), vQA, srd(sWS), so), ("q", part))
    a.vmem("buffer_load_dwordx2 %s, v%d, %s, s%d offen offset:512 sc1" % (vr(q + 2, 2), vQA, srd(sWS), so), ("q", part))
    a.vmem("buffer_load_dword v%d, v%d, %s, s%d offen sc1" % (q + 4, vQR, srd(sWS), so), ("q", part))


def kv_dma(a, st):
    a("s_add_u32 s%d, s%d, %d" % (sT0, sWAVE, 8 * st), "s_mul_i32 s%d, s%d, %d" % (sCH, sT0, PITCH),
      "s_mul_i32 s%d, s%d, %d" % (sT0, sT0, CHUNK), "s_mov_b32 m0, s%d" % sT0, "s_add_u32 s%d, s%d, 4096" % (sT0, sT0))
    for k in range(4):
        a.vmem("buffer_load_dwordx4 v%d, %s, s%d offen offset:%d sc1 lds" % (vDMA + max(0, k - 1), srd(sWS), sCH, 1024 * k), ("kv", st))
    a("s_mov_b32 m0, s%d" % sT0, "s_mov_b64 exec, %s" % sr(sDMASK, 2))
    a.vmem("buffer_load_dwordx4 v%d, %s, s%d offen sc1 lds" % (vDMA + 3, srd(sWS), sCH), ("kv", st))
    a("s_mov_b64 exec, -1")


def v_consts(a, base, t):
    a("v_and_b32 v%d, 27, v%d" % (t, vLANE), "v_cmp_eq_u32 vcc, 18, v%d" % t, "v_mov_b32 v%d, 0x3f803f80" % t, "s_nop 0",
      "v_cndmask_b32 v%d, 0, v%d, vcc" % (base, t))
    for i in range(1, 16): a("v_mov_b32 v%d, v%d" % (base + i, base))


def p2_init(a):
    v_consts(a, vV, vT)
    a("v_mov_b32 v%d, 0" % (vKR + 1))
    for i in range(32): a("v_mov_b32 v%d, 0" % (vO[0] + i))


def p2_main(a, cfg, ev):
    ns = cfg["nsolo"]
    U = [(i, 0) for i in range(ns)] + [(i, q) for i in range(ns, 16) for q in range(2)] + [(i, 1) for i in range(ns)]
    N = len(U)
    base = {"k": 0, "r": 0, "v": 0}
    reg = {"k": vAK, "r": vAR, "v": vAV}
    seen = set()

    def off(kind, i):
        if i not in seen:
            seen.add(i)
            if ("pre", i) in ev: ev[("pre", i)]()
        want = (i // 6) * 6
        if base[kind] != want:
            a("v_add_u32 v%d, 0x%x, v%d" % (reg[kind], ((want - base[kind]) * 2 * CHUNK) & 0xffffffff, reg[kind]))
            base[kind] = want
        return (i - want) * 2 * CHUNK

    def rR(i):
        o = off("r", i); a.lds("ds_read_b32 v%d, v%d offset:%d" % (vKR, vAR, o), "R")
    def rK(i, t):
        o = off("k", i)
        for h in range(2): a.lds("ds_read_b64 %s, v%d offset:%d" % (vr(vK + 4 * t + 2 * h, 2), vAK, o + 256 * t + 512 * h), ("K", t))
    def rV(i, fs):
        o = off("v", i)
        a("s_mov_b64 exec, %s" % sr(sVMASK, 2))
        for f in fs: a.lds("ds_read_b128 %s, v%d offset:%d" % (vr(vV + 4 * f, 4), vAV, o + 576 * f), ("V", f // 2))
        a("s_mov_b64 exec, -1")
    def R(u):
        a.wait(lg="R")
        if U[u][1] == 1 and "ql" in ev: ev.pop("ql")()
        a("v_mfma_f32_32x32x4_2b_bf16 %s, %s, %s, 0" % (vr(vS[u % 2], 32), vr(vKR, 2), vr(vQ[U[u][1]] + 4, 2)))
    def M(u, t):
        a.wait(lg=("K", t))
        s = vr(vS[u % 2] + 16 * t, 16)
        a("v_mfma_f32_32x32x16_bf16 %s, %s, %s, %s" % (s, vr(vK + 4 * t, 4), vr(vQ[U[u][1]], 4), s))
    def P(u, f):
        a.wait(lg=("V", f // 2))
        a("v_smfmac_f32_32x32x32_bf16 %s, %s, %s, v%d" % (vr(vO[U[u][1]], 16), vr(vV + 4 * f, 4), vr(vS[u % 2] + 8 * f, 8), vIDX))
    ch = lambda u: U[u][0]
    newk = lambda u: u < N and ch(u) != ch(u - 1)

    rR(ch(0)); rK(ch(0), 0); rK(ch(0), 1); rV(ch(0), (0, 1, 2, 3))
    R(0)
    if newk(1): rR(ch(1))
    a("s_nop 15", "s_nop 1")
    M(0, 0)
    if newk(1): rK(ch(1), 0)
    M(0, 1)
    if newk(1): rK(ch(1), 1)
    a("s_nop 7")
    pos = cfg["pos"]
    for u in range(N):
        def op(j):
            if j == 0:
                if u > 0:
                    P(u - 1, 3)
                    if newk(u): rV(ch(u), (2, 3))
            elif j == 1:
                if u + 1 < N:
                    R(u + 1)
                    if newk(u + 2): rR(ch(u + 2))
            elif j == 2: P(u, 0)
            elif j == 3:
                P(u, 1)
                if newk(u + 1): rV(ch(u + 1), (0, 1))
            elif j == 4 or j == 6:
                if u + 1 < N:
                    M(u + 1, (j - 4) // 2)
                    if newk(u + 2): rK(ch(u + 2), (j - 4) // 2)
            elif j == 5: P(u, 2)
            if (u, j) in ev: ev[(u, j)]()
        for e in range(32):
            if e in pos: op(pos.index(e))
            a("v_exp_f32 v%d, v%d" % (vS[u % 2] + e, vS[u % 2] + e))
    a("s_nop 1")
    P(N - 1, 3)
    return U


SCR_E_MAIN, SCR_E_RES = LDS_SPARE, 12 * CHUNK
SCR_L_MAIN, SCR_L_RES = 16 * CHUNK, 18 * CHUNK


def send_partial(a, part):
    main, res = (SCR_L_MAIN, SCR_L_RES) if part else (SCR_E_MAIN, SCR_E_RES)
    o = vO[part]
    t = vT
    a("s_lshl_b32 s%d, s%d, 11" % (sT0, sP), "s_add_u32 s%d, s%d, %d" % (sT0, sT0, main),
      "v_lshl_add_u32 v%d, v%d, 4, s%d" % (t, vLANE, sT0),
      "s_lshl_b32 s%d, s%d, 10" % (sT0, sP), "s_add_u32 s%d, s%d, %d" % (sT0, sT0, res),
      "v_lshl_add_u32 v%d, v%d, 4, s%d" % (t + 1, vLANE, sT0))
    a("ds_write_b128 v%d, %s" % (t, vr(o, 4)), "ds_write_b128 v%d, %s offset:1024" % (t, vr(o + 4, 4)),
      "ds_write_b128 v%d, %s" % (t + 1, vr(o + 8, 4)))


def finalize(a, part, slow):
    main, res = (SCR_L_MAIN, SCR_L_RES) if part else (SCR_E_MAIN, SCR_E_RES)
    o = vO[part]
    t = vT
    d = vT + 2
    a("s_lshl_b32 s%d, s%d, 11" % (sT0, sP), "s_add_u32 s%d, s%d, %d" % (sT0, sT0, main),
      "v_lshl_add_u32 v%d, v%d, 4, s%d" % (t, vLANE, sT0),
      "s_lshl_b32 s%d, s%d, 10" % (sT0, sP), "s_add_u32 s%d, s%d, %d" % (sT0, sT0, res),
      "v_lshl_add_u32 v%d, v%d, 4, s%d" % (t + 1, vLANE, sT0))
    a("ds_read_b128 %s, v%d" % (vr(d + 8, 4), t + 1), "ds_read_b128 %s, v%d" % (vr(d, 4), t), "ds_read_b128 %s, v%d offset:1024" % (vr(d + 4, 4), t))
    a("s_lshl_b32 s%d, s%d, 2" % (sT0, sQI), "s_add_u32 s%d, s%d, s%d" % (sT0, sT0, sP), "s_mul_i32 s%d, s%d, %d" % (sT0, sT0, OTILE),
      "s_lshl_b32 s%d, s%d, 10" % (sT1, sHEAD), "s_add_u32 s%d, s%d, s%d" % (sT1, sT1, sT0), "s_add_u32 s%d, s%d, %d" % (sT1, sT1, OBASE + 32 * part * OTILE),
      "s_lshl_b32 s%d, s%d, 7" % (sT2, sHEAD), "s_add_u32 s%d, s%d, s%d" % (sT2, sT2, sT0), "s_add_u32 s%d, s%d, %d" % (sT2, sT2, OBASE + 32 * part * OTILE + 32768))
    a("s_waitcnt lgkmcnt(0)")
    for i in (10, 8, 9, 0, 1, 2, 3, 4, 5, 6, 7): a("v_add_f32 v%d, v%d, v%d" % (o + i, o + i, d + i))
    back = a.uid("norm")
    done = a.uid("normok")
    a("s_mov_b32 s%d, 0" % sT5)
    a("%s:" % back)
    a("v_rcp_f32 v%d, v%d" % (t, o + 10), "s_nop 0")
    for i in range(10): a("v_mul_f32 v%d, v%d, v%d" % (d + i, t, o + i))
    a("v_add_f32 v%d, v%d, v%d" % (t + 1, d, d + 1))
    for i in range(2, 10): a("v_add_f32 v%d, v%d, v%d" % (t + 1, t + 1, d + i))
    a("v_mov_b32 v%d, 0x37800000" % (d + 10), "v_mov_b32 v%d, 0x71800000" % (d + 11),
      "v_med3_f32 v%d, v%d, v%d, v%d" % (d + 10, o + 10, d + 10, d + 11),
      "v_fma_f32 v%d, v%d, 0, v%d" % (t + 1, t + 1, o + 10),
      "v_cmp_neq_f32 vcc, v%d, v%d" % (d + 10, t + 1))
    for i in range(5): a("v_cvt_pk_bf16_f32 v%d, v%d, v%d" % (d + i, d + 2 * i, d + 2 * i + 1))
    a("s_cbranch_vccz %s" % done,
      "s_cmp_lg_u32 s%d, 0" % sT5, "s_cbranch_scc1 %s" % done,
      "s_mov_b32 s%d, 1" % sT5)
    slow(part, back)
    a("%s:" % done)
    a("v_lshlrev_b32 v%d, 4, v%d" % (t, vLANE), "v_lshlrev_b32 v%d, 2, v%d" % (t + 1, vLANE))
    a("buffer_store_dwordx4 %s, v%d, %s, s%d offen sc1" % (vr(d, 4), t, srd(sWS), sT1))
    a("s_mov_b32 exec_hi, 0")
    a("buffer_store_dword v%d, v%d, %s, s%d offen sc1" % (d + 4, t + 1, srd(sWS), sT2))
    a("s_mov_b64 exec, -1")


def slow_path(a, part, label, back, after):
    S, K, KR, V, m, ar, av = 44, 76, 84, 88, 104, 105, 106
    q = vQ[part]; o = vO[part]
    a("%s:" % label)
    a("s_waitcnt vmcnt(0) lgkmcnt(0)")
    v_consts(a, V, m)
    a("v_mov_b32 v%d, 0" % (KR + 1))
    for i in range(16): a("v_mov_b32 v%d, 0" % (o + i))
    a("v_lshrrev_b32 v%d, 5, v%d" % (m, vLANE), "v_lshl_add_u32 v%d, v%d, 8, v%d" % (ar, m, vQR),
      "v_mul_u32_u24 v%d, 9216, v%d" % (av, m), "v_and_b32 v%d, 31, v%d" % (m, vLANE), "v_lshl_add_u32 v%d, v%d, 4, v%d" % (av, m, av),
      "s_mul_i32 s%d, s%d, 288" % (sT3, sHEAD), "s_add_u32 s%d, s%d, %d" % (sT3, sT3, SEC), "v_add_u32 v%d, s%d, v%d" % (av, sT3, av))
    for f in range(1, 4): a("v_add_u32 v%d, 18432, v%d" % (av + f, av + f - 1))
    a("v_mov_b32 v%d, 0xff800000" % m)
    for ps in range(2):
        lp = a.uid("slow")
        a("s_mov_b32 s%d, %d" % (sLOOP, SEC), "%s:" % lp)
        for t in range(2):
            for h in range(2):
                a("buffer_load_dwordx2 %s, v%d, %s, s%d offen offset:%d sc1" % (vr(K + 4 * t + 2 * h, 2), vQA, srd(sWS), sLOOP, 256 * t + 512 * h))
        a("buffer_load_dword v%d, v%d, %s, s%d offen sc1" % (KR, ar, srd(sWS), sLOOP))
        if ps:
            a("s_mov_b64 exec, %s" % sr(sVMASK, 2))
            for f in range(4): a("buffer_load_dwordx4 %s, v%d, %s, s%d offen sc1" % (vr(V + 4 * f, 4), av + f, srd(sWS), sLOOP))
            a("s_mov_b64 exec, -1")
        a("s_waitcnt vmcnt(0)",
          "v_mfma_f32_32x32x4_2b_bf16 %s, %s, %s, 0" % (vr(S, 32), vr(KR, 2), vr(q + 4, 2)), "s_nop 15", "s_nop 1")
        for t in range(2):
            a("v_mfma_f32_32x32x16_bf16 %s, %s, %s, %s" % (vr(S + 16 * t, 16), vr(K + 4 * t, 4), vr(q, 4), vr(S + 16 * t, 16)))
        a("s_nop 11")
        if ps == 0:
            for i in range(16): a("v_max3_f32 v%d, v%d, v%d, v%d" % (m, m, S + 2 * i, S + 2 * i + 1))
        else:
            for i in range(32): a("v_sub_f32 v%d, v%d, v%d" % (S + i, S + i, m))
            for i in range(32): a("v_exp_f32 v%d, v%d" % (S + i, S + i))
            a("s_nop 1")
            for f in range(4): a("v_smfmac_f32_32x32x32_bf16 %s, %s, %s, v%d" % (vr(o, 16), vr(V + 4 * f, 4), vr(S + 8 * f, 8), vIDX))
        a("s_add_u32 s%d, s%d, %d" % (sLOOP, sLOOP, PITCH), "s_cmp_lt_u32 s%d, %d" % (sLOOP, 32 * PITCH), "s_cbranch_scc1 %s" % lp)
        if ps == 0:
            a("v_mov_b32 v%d, v%d" % (S, m), "s_nop 1", "v_permlane32_swap_b32 v%d, v%d" % (S, m), "s_nop 1", "v_max_f32 v%d, v%d, v%d" % (m, m, S))
    a("s_nop 15")
    after()
    a("s_branch %s" % back)


def p3_setup(a):
    a("s_and_b32 s%d, s%d, 3" % (sRT, sJ), "s_lshr_b32 s%d, s%d, 2" % (sCB, sJ),
      "s_and_b32 s%d, s%d, 3" % (sKQ, sWAVE), "s_lshr_b32 s%d, s%d, 2" % (sRH, sWAVE),
      "s_and_b32 s%d, s%d, 1" % (sT0, sCB), "s_cmp_eq_u32 s%d, s%d" % (sT0, sRH), "s_cselect_b32 s%d, 1, 0" % sFIVE,
      "s_lshr_b32 s%d, s%d, 1" % (sT1, sCB), "s_mul_i32 s%d, s%d, 9" % (sT1, sT1),
      "s_mul_i32 s%d, s%d, 5" % (sT0, sT0), "s_add_u32 s%d, s%d, s%d" % (sT0, sT0, sT1),
      "s_add_u32 s%d, s%d, 4" % (sT1, sT1),
      "s_mul_i32 s%d, s%d, 4608" % (sT2, sKQ), "s_add_u32 s%d, s%d, %d" % (sT2, sT2, WOBASE))
    for t in range(4):
        a("s_add_u32 s%d, s%d, %d" % (sT3, sKQ, t), "s_and_b32 s%d, s%d, 3" % (sT3, sT3), "s_add_u32 s%d, s%d, s%d" % (sT3, sT3, sT0))
        if t == 0: a("s_lshl_b32 s%d, s%d, 5" % (sOCOL, sT3))
        a("s_mul_i32 s%d, s%d, %d" % (sT3, sT3, 4 * 4608), "s_add_u32 s%d, s%d, s%d" % (sWOF + t, sT3, sT2))
    a("s_lshl_b32 s%d, s%d, 5" % (sOCOL + 1, sT1),
      "s_mul_i32 s%d, s%d, %d" % (sT3, sT1, 4 * 4608), "s_add_u32 s%d, s%d, s%d" % (sWOF + 4, sT3, sT2))


def wo_load(a, tiles, t16, t8, track=True):
    em = a.vmem if track else (lambda s, tag: a(s))
    for t in tiles:
        for m in range(4):
            em("buffer_load_dwordx4 %s, v%d, %s, s%d offen offset:%d sc1" % (vr(vWO + 18 * t + 4 * m, 4), t16, srd(sWS), sWOF + t, 1024 * m), "wo")
        em("buffer_load_dwordx2 %s, v%d, %s, s%d offen sc1" % (vr(vWO + 18 * t + 16, 2), t8, srd(sWS), sWOF + t), "wo")


def o_load(a, part, of, t):
    main, res = of
    a("v_lshrrev_b32 v%d, 4, v%d" % (t + 1, vLANE), "v_and_b32 v%d, 15, v%d" % (res, vLANE),
      "v_lshlrev_b32 v%d, 9, v%d" % (t, t + 1), "v_lshl_add_u32 v%d, v%d, 4, v%d" % (t, res, t),
      "v_lshlrev_b32 v%d, 8, v%d" % (t + 1, t + 1), "v_lshl_add_u32 v%d, v%d, 2, v%d" % (t + 1, res, t + 1),
      "s_lshl_b32 s%d, s%d, 2" % (sT0, sXCD), "s_add_u32 s%d, s%d, s%d" % (sT0, sT0, sRT), "s_mul_i32 s%d, s%d, %d" % (sT0, sT0, OTILE),
      "s_lshl_b32 s%d, s%d, 13" % (sT1, sKQ), "s_lshl_b32 s%d, s%d, 8" % (sT2, sRH), "s_add_u32 s%d, s%d, s%d" % (sT1, sT1, sT2),
      "s_add_u32 s%d, s%d, s%d" % (sT1, sT1, sT0), "s_add_u32 s%d, s%d, %d" % (sT1, sT1, OBASE + 32 * part * OTILE),
      "s_add_u32 s%d, s%d, 4096" % (sT2, sT1),
      "s_lshl_b32 s%d, s%d, 10" % (sT3, sKQ), "s_lshl_b32 s%d, s%d, 6" % (sT4, sRH), "s_add_u32 s%d, s%d, s%d" % (sT3, sT3, sT4),
      "s_add_u32 s%d, s%d, s%d" % (sT3, sT3, sT0), "s_add_u32 s%d, s%d, %d" % (sT3, sT3, OBASE + 32 * part * OTILE + 32768))
    def go():
        for m in range(4):
            a.vmem("buffer_load_dwordx4 %s, v%d, %s, s%d offen offset:%d sc1" % (vr(main + 4 * m, 4), t, srd(sWS), sT1 + m // 2, 2048 * (m % 2)), ("o", part, m))
        for e in range(2):
            a.vmem("buffer_load_dword v%d, v%d, %s, s%d offen offset:%d sc1" % (res + e, t + 1, srd(sWS), sT3, 128 * e), ("o", part, 4))
    return go


def p3_mfma(a, part, of, acc):
    main, res = of
    for m in range(5):
        a.wait(vm=[("o", part, m), "wo"])
        if m == 4: a("s_nop 2")
        for t in range(4):
            c = "0" if m == 0 else vr(acc + 4 * t, 4)
            if m < 4: a("v_mfma_f32_16x16x32_bf16 %s, %s, %s, %s" % (vr(acc + 4 * t, 4), vr(vWO + 18 * t + 4 * m, 4), vr(main + 4 * m, 4), c))
            else: a("v_mfma_f32_16x16x16_bf16 %s, %s, %s, %s" % (vr(acc + 4 * t, 4), vr(vWO + 18 * t + 16, 2), vr(res, 2), c))
    skip = a.uid("no5")
    a("s_cmp_eq_u32 s%d, 0" % sFIVE, "s_cbranch_scc1 %s" % skip)
    for m in range(5):
        c = "0" if m == 0 else vr(acc + 16, 4)
        if m < 4: a("v_mfma_f32_16x16x32_bf16 %s, %s, %s, %s" % (vr(acc + 16, 4), vr(vWO + 72 + 4 * m, 4), vr(main + 4 * m, 4), c))
        else: a("s_nop 5", "v_mfma_f32_16x16x16_bf16 %s, %s, %s, %s" % (vr(acc + 16, 4), vr(vWO + 72 + 16, 2), vr(res, 2), c))
    a("%s:" % skip)


def p3_reduce(a, part, acc, scr, t, d):
    a("v_lshlrev_b32 v%d, 4, v%d" % (t, vLANE), "s_mul_i32 s%d, s%d, 12288" % (sT0, sRH), "s_add_u32 s%d, s%d, %d" % (sT0, sT0, scr))
    for k in range(1, 4):
        a("s_add_u32 s%d, s%d, %d" % (sT1, sKQ, k), "s_and_b32 s%d, s%d, 3" % (sT1, sT1), "s_mul_i32 s%d, s%d, 3072" % (sT1, sT1),
          "s_add_u32 s%d, s%d, s%d" % (sT1, sT1, sT0), "v_add_u32 v%d, s%d, v%d" % (t + 1, sT1, t),
          "ds_write_b128 v%d, %s offset:%d" % (t + 1, vr(acc + 4 * k, 4), 1024 * (k - 1)))
    skip = a.uid("no5w")
    a("s_cmp_eq_u32 s%d, 0" % sFIVE, "s_cbranch_scc1 %s" % skip,
      "s_lshl_b32 s%d, s%d, 10" % (sT1, sKQ), "s_add_u32 s%d, s%d, %d" % (sT1, sT1, scr + 24576), "v_add_u32 v%d, s%d, v%d" % (t + 1, sT1, t),
      "ds_write_b128 v%d, %s" % (t + 1, vr(acc + 16, 4)), "%s:" % skip)
    a("s_mul_i32 s%d, s%d, 3072" % (sT1, sKQ), "s_add_u32 s%d, s%d, s%d" % (sT1, sT1, sT0), "v_add_u32 v%d, s%d, v%d" % (t + 1, sT1, t),
      "v_and_b32 v%d, 15, v%d" % (t + 2, vLANE), "v_mul_u32_u24 v%d, 1152, v%d" % (t + 2, t + 2),
      "v_lshrrev_b32 v%d, 4, v%d" % (t + 3, vLANE), "v_lshl_add_u32 v%d, v%d, 3, v%d" % (t + 2, t + 3, t + 2),
      "s_lshl_b32 s%d, s%d, 3" % (sT1, sXCD), "s_lshl_b32 s%d, s%d, 1" % (sT2, sRT), "s_add_u32 s%d, s%d, s%d" % (sT1, sT1, sT2),
      "s_add_u32 s%d, s%d, s%d" % (sT1, sT1, sRH), "s_add_u32 s%d, s%d, %d" % (sT1, sT1, 64 * part), "s_mul_i32 s%d, s%d, %d" % (sT1, sT1, 16 * 1152),
      "s_add_u32 s%d, s%d, s%d" % (sT2, sT1, sOCOL + 1), "s_add_u32 s%d, s%d, s%d" % (sT1, sT1, sOCOL))
    a("s_waitcnt lgkmcnt(0)", "s_barrier")
    def fin(src, off, ac, so):
        for k in range(3): a("ds_read_b128 %s, v%d offset:%d" % (vr(d + 4 * k, 4), src, off + 1024 * k))
        for k in range(3):
            a("s_waitcnt lgkmcnt(%d)" % (2 - k))
            for i in range(4): a("v_add_f32 v%d, v%d, v%d" % (ac + i, ac + i, d + 4 * k + i))
        a("v_cvt_pk_bf16_f32 v%d, v%d, v%d" % (ac, ac, ac + 1), "v_cvt_pk_bf16_f32 v%d, v%d, v%d" % (ac + 1, ac + 2, ac + 3),
          "buffer_store_dwordx2 %s, v%d, %s, s%d offen" % (vr(ac, 2), t + 2, srd(sOUT), so))
    fin(t + 1, 0, acc, sT1)
    skip = a.uid("no5r")
    a("s_cmp_eq_u32 s%d, 0" % sFIVE, "s_cbranch_scc1 %s" % skip, "s_cmp_lg_u32 s%d, 0" % sKQ, "s_cbranch_scc1 %s" % skip,
      "v_add_u32 v%d, %d, v%d" % (t + 1, scr + 24576 + 1024, t))
    fin(t + 1, 0, acc + 16, sT2)
    a("%s:" % skip)


def kd(name, lds=False):
    return """.amdhsa_kernel %s
  .amdhsa_next_free_vgpr 256
  .amdhsa_next_free_sgpr 96
  .amdhsa_accum_offset 256
  .amdhsa_group_segment_fixed_size 0
  .amdhsa_kernarg_size 48
  .amdhsa_user_sgpr_count 2
  .amdhsa_user_sgpr_kernarg_segment_ptr 1
  .amdhsa_system_sgpr_workgroup_id_x 1
  .amdhsa_float_denorm_mode_32 3
.end_amdhsa_kernel""" % name


def head(a, name):
    a(".globl %s" % name, ".p2align 8", ".type %s,@function" % name, "%s:" % name)


DEF = dict(issue_at=[-1] * 6 + [s - 5 for s in range(6, 18)], nsolo=6, pos=[2, 6, 14, 18, 22, 26, 30])


def gen_split(cfg):
    a = Asm()
    names = ["proj_kernel", "attn_kernel", NAME + "_kernel"]
    head(a, names[0])
    prologue(a, "L_end1")
    p1_roles(a, "L_idle1")
    a("s_cmp_ge_u32 s%d, 18" % sLINE, "s_cbranch_scc1 L_p1v")
    p1_body(a, False, cfg, {}); a("s_endpgm"); a.vm = []; a.lg = []
    a("L_p1v:")
    p1_body(a, True, cfg, {}); a("s_endpgm"); a.vm = []; a.lg = []
    a("L_idle1:")
    wo_role(a, "L_end1")
    a("L_end1:", "s_endpgm"); a.vm = []; a.lg = []
    head(a, names[1])
    prologue(a, "L_end2")
    p2_setup(a)
    a("s_waitcnt lgkmcnt(0)")
    q_load(a, 0); kv_dma(a, 0); kv_dma(a, 1); q_load(a, 1); kv_dma(a, 2); kv_dma(a, 3)
    p2_init(a)
    slows = []
    def slow(part, back):
        lab = a.uid("slowp"); slows.append((part, lab, back)); a("s_branch %s" % lab)
    ev = {}
    def bar(tags):
        def f():
            a.wait(vm=tags); a("s_barrier")
        return f
    ev[("pre", 0)] = bar([("q", 0), ("kv", 0)])
    ev[("pre", 4)] = bar([("kv", 1), ("q", 1)])
    ev[("pre", 8)] = bar([("kv", 3)])
    ns = cfg["nsolo"]
    ue = 32 - ns - 1
    def send_e():
        l = a.uid("se")
        a("s_cmp_lg_u32 s%d, 0" % sKH, "s_cbranch_scc1 %s" % l); send_partial(a, 0); a("%s:" % l)
        a.wait(lg="all"); a("s_barrier")
        l = a.uid("fe")
        a("s_cmp_eq_u32 s%d, 0" % sKH, "s_cbranch_scc1 %s" % l); finalize(a, 0, slow); a("%s:" % l)
    ev[(ue, 3)] = send_e
    p2_main(a, cfg, ev)
    a("s_cmp_lg_u32 s%d, 0" % sKH, "s_cbranch_scc1 L_fl", "s_nop 5")
    send_partial(a, 1)
    a("s_waitcnt lgkmcnt(0)", "s_barrier", "s_endpgm", "L_fl:", "s_barrier")
    finalize(a, 1, slow)
    a("L_end2:", "s_endpgm")
    for part, lab, back in slows: slow_path(a, part, lab, back, lambda: None)
    a.vm = []; a.lg = []
    head(a, names[2])
    prologue(a, "L_end3")
    p3_setup(a)
    a("v_lshlrev_b32 v24, 4, v%d" % vLANE, "v_lshlrev_b32 v25, 3, v%d" % vLANE, "v_add_u32 v25, 4096, v25", "s_waitcnt lgkmcnt(0)")
    wo_load(a, range(5), 24, 25)
    ofs = [(160, 176), (180, 196)]
    o_load(a, 0, ofs[0], 26)(); o_load(a, 1, ofs[1], 28)()
    for part in range(2):
        p3_mfma(a, part, ofs[part], 200)
        p3_reduce(a, part, 200, 32768 * part, 30, 224)
        a.vm.append("st"); a.vm.append("st")
        if part == 0: a.wait(vm="all")
    a("L_end3:", "s_endpgm")
    hdr = ["; @launch kernel=%s grid=(256,1,1) block=(512,1,1) lds=%d" % (n, l) for n, l in zip(names, (LDS_TOTAL, LDS_TOTAL, 65536))]
    return finish(a, hdr, names)


def finish(a, hdr, names):
    errs = lint(a.l)
    for e in errs: print("HAZARD", e, file=sys.stderr)
    out = hdr + ['.amdgcn_target "amdgcn-amd-amdhsa--gfx950"', ".text"] + a.l + ['.section .rodata,"a"']
    for n in names: out += [".p2align 6", kd(n)]
    return "\n".join(out) + "\n"


if __name__ == "__main__":
    mode = sys.argv[1] if len(sys.argv) > 1 else "split"
    out = sys.argv[2] if len(sys.argv) > 2 else "cdna_kernels/%s.s" % NAME
    cfg = dict(DEF)
    txt = {"split": gen_split}[mode](cfg)
    open(out, "w").write(txt)
    print("wrote", out, len(txt.split("\n")), "lines")
```

```python
import sys, struct, math
from hazard import lint

NAME = "standalone__mha_block__prompt"

PITCH = 221184
SEC = 73728
OBASE = 32 * PITCH
OTILE = 36864
WOBASE = OBASE + 64 * OTILE
FBASE = WOBASE + 36 * 4 * 4608
F01 = FBASE
FW = FBASE + 8192
FEPOCH = FBASE + 8192 + 512
FO = FBASE + 16384
WS_SIZE = FO + 32768
CHUNK = 4864
LDS_SPARE = 32 * CHUNK
LDS_TOTAL = 163840
SCALE = struct.unpack("<I", struct.pack("<f", math.log2(math.e) / math.sqrt(18.0)))[0]

sX, sW, sWO, sOUT, sWS, sDBG = 4, 8, 12, 16, 20, 24
sWAVE, sXCD, sJ = 28, 29, 30
sTAG = 31
sLINE, sG, sSEC = 32, 33, 34
sXOFF, sWOFF, sM0X, sM0W, sSCALE, sST = 35, 36, 37, 38, 39, 40
sHEAD, sQI, sKH, sP = 41, 42, 43, 44
sVMASK = 46
sDMASK = 48
sCH, sQOFF = 50, 51
sRT, sCB, sKQ, sRH = 52, 53, 54, 55
sFIVE = 56
sT0, sT1, sT2, sT3, sT4, sT5 = 60, 61, 62, 63, 64, 65
sRET = 66
sSPIN = 68
sWOF = 70
sOCOL = 76
sLOOP = 78
sSAVE = 80

def srd(s): return "s[%d:%d]" % (s, s + 3)
def vr(a, n=1): return "v%d" % a if n == 1 else "v[%d:%d]" % (a, a + n - 1)
def sr(a, n=1): return "s%d" % a if n == 1 else "s[%d:%d]" % (a, a + n - 1)

vLANE = 1
vQ = [2, 8]
vIDX = 14
vAK, vAR, vAV = 15, 16, 17
vDMA = 18
vQA, vQR = 22, 23
vT = 24
vXS = 24
vWS = 26
vWR = 27
vXR = 28
vWR2 = 32
vSTA = 36
vACC = [48, 64]
vXF = [80, 96]
vWF = 112
vWO = 42
vV = 132
vK = 148
vKR = 156
vO = [160, 176]
vS = [192, 224]


class Asm:
    def __init__(self):
        self.l = []
        self.vm = []
        self.lg = []
        self.n = 0

    def __call__(self, *lines):
        for s in lines:
            if isinstance(s, (list, tuple)):
                self(*s)
            elif s.endswith(":") or s.startswith((".", ";")):
                self.l.append(s)
            else:
                self.l.append("    " + s)

    def uid(self, p):
        self.n += 1
        return "L_%s_%d" % (p, self.n)

    def vmem(self, s, tag):
        self(s); self.vm.append(tag)
        assert len(self.vm) <= 63

    def lds(self, s, tag=None):
        self(s); self.lg.append(tag)

    def _cnt(self, q, tags):
        if not isinstance(tags, (list, set)): tags = [tags]
        last = max([k for k, t in enumerate(q) if t in tags], default=-1)
        return None if last < 0 else len(q) - 1 - last

    def wait(self, vm=None, lg=None):
        parts = []
        if vm is not None:
            n = 0 if vm == "all" else self._cnt(self.vm, vm)
            if n is not None:
                parts.append("vmcnt(%d)" % n); self.vm = self.vm[len(self.vm) - n:]
        if lg is not None:
            n = 0 if lg == "all" else self._cnt(self.lg, lg)
            if n is not None:
                n = min(n, 15)
                parts.append("lgkmcnt(%d)" % n); self.lg = self.lg[len(self.lg) - n:]
        if parts: self("s_waitcnt " + " ".join(parts))


def prologue(a, endlabel):
    a("s_cmp_ge_u32 s2, 256", "s_cbranch_scc1 %s" % endlabel)
    for k, s in enumerate((sX, sW, sWO, sOUT, sDBG, sWS)):
        a("s_load_dwordx2 %s, s[0:1], %d" % (sr(s, 2), 8 * k))
    for s, n in ((sX, 2359296), (sW, 1990656), (sWO, 663552), (sOUT, 2359296), (sDBG, 256), (sWS, WS_SIZE)):
        a("s_mov_b32 s%d, %d" % (s + 2, n), "s_mov_b32 s%d, 0x00020000" % (s + 3))
    a("v_lshrrev_b32 v2, 6, v0", "v_and_b32 v%d, 63, v0" % vLANE, "v_readfirstlane_b32 s%d, v2" % sWAVE,
      "s_and_b32 s%d, s2, 7" % sXCD, "s_lshr_b32 s%d, s2, 3" % sJ)
    a(";STAMPINIT")


def p1_roles(a, idle):
    a("s_lshr_b32 s%d, s%d, 2" % (sT0, sJ),
      "s_lshr_b32 s%d, s%d, 1" % (sT1, sXCD),
      "s_mul_i32 s%d, s%d, 7" % (sLINE, sT1),
      "s_add_u32 s%d, s%d, s%d" % (sLINE, sLINE, sT0),
      "s_cmp_ge_u32 s%d, 7" % sT0, "s_cbranch_scc1 %s" % idle,
      "s_cmp_ge_u32 s%d, 27" % sLINE, "s_cbranch_scc1 %s" % idle,
      "s_and_b32 s%d, s%d, 1" % (sG, sXCD), "s_lshl_b32 s%d, s%d, 2" % (sG, sG),
      "s_and_b32 s%d, s%d, 3" % (sT0, sJ), "s_add_u32 s%d, s%d, s%d" % (sG, sG, sT0))


XBASE = 65536
def xslot(s): return XBASE + 16384 * (s % 6)
def wslot(s): return 8192 * (s % 8)


def p1_body(a, isv, cfg, hooks):
    L = vLANE
    t0, t1, t2, t3 = 38, 39, 40, 41
    a("s_and_b32 s%d, s%d, 1" % (sT0, sWAVE), "s_lshr_b32 s%d, s%d, 1" % (sT1, sWAVE),
      "v_lshrrev_b32 v%d, 3, v%d" % (t0, L),
      "v_and_b32 v%d, 7, v%d" % (t1, L),
      "v_lshrrev_b32 v%d, 4, v%d" % (t2, L),
      "v_xor_b32 v%d, v%d, v%d" % (t2, t2, t1),
      "v_lshlrev_b32 v%d, 4, v%d" % (t2, t2),
      "s_lshl_b32 s%d, s%d, 5" % (sT2, sT1))
    if isv:
        a("s_lshl_b32 s%d, s%d, 2" % (sT3, sT0), "s_add_u32 s%d, s%d, s%d" % (sT2, sT2, sT3),
          "v_and_b32 v%d, 4, v%d" % (t3, t0), "v_add3_u32 v%d, v%d, v%d, s%d" % (t3, t3, t0, sT2))
    else:
        a("s_add_u32 s%d, s%d, s%d" % (sT2, sT2, sT0), "v_lshl_add_u32 v%d, v%d, 1, s%d" % (t3, t0, sT2))
    a("v_mul_u32_u24 v%d, 1152, v%d" % (t3, t3),
      "v_add_u32 v%d, v%d, v%d" % (vXS, t3, t2),
      "v_xor_b32 v%d, 64, v%d" % (t2, t2),
      "v_add_u32 v%d, v%d, v%d" % (vXS + 1, t3, t2),
      "v_add_u32 v%d, %d, v%d" % (vXS + 1, 16 * 1152 - 1024, vXS + 1))
    a("s_lshl_b32 s%d, s%d, 3" % (sT2, sWAVE), "v_add_u32 v%d, s%d, v%d" % (t3, sT2, t0),
      "v_mul_u32_u24 v%d, 3456, v%d" % (t3, t3),
      "v_and_b32 v%d, 2, v%d" % (t2, t0), "s_lshl_b32 s%d, s%d, 2" % (sT3, sT0),
      "v_xor_b32 v%d, v%d, v%d" % (t2, t2, t1), "v_xor_b32 v%d, s%d, v%d" % (t2, sT3, t2),
      "v_lshl_add_u32 v%d, v%d, 4, v%d" % (vWS, t2, t3))
    a("s_mul_i32 s%d, s%d, %d" % (sXOFF, sG, 128 * 1152),
      "s_lshl_b32 s%d, s%d, 7" % (sWOFF, sLINE),
      "s_lshl_b32 s%d, s%d, 11" % (sM0X, sWAVE),
      "s_lshl_b32 s%d, s%d, 10" % (sM0W, sWAVE))
    a("s_waitcnt lgkmcnt(0)")

    def issue(s):
        r = []
        if s < 9:
            def fw():
                a("s_add_u32 m0, s%d, %d" % (sM0W, wslot(s)))
                a("s_add_u32 s%d, s%d, %d" % (sWOFF, sWOFF, 64 * 3456) if s else "s_nop 0")
                a.vmem("buffer_load_dwordx4 v%d, %s, s%d offen lds" % (vWS, srd(sW), sWOFF), ("d", s))
            r.append(fw)
        def f0():
            a("s_add_u32 m0, s%d, %d" % (sM0X, xslot(s)))
            a("s_add_u32 s%d, s%d, %d" % (sXOFF, sXOFF, 1024 * 1152 - 8 * 128 if s == 9 else 128) if s else "s_nop 0")
            a.vmem("buffer_load_dwordx4 v%d, %s, s%d offen lds" % (vXS, srd(sX), sXOFF), ("d", s))
        def f1():
            a.vmem("buffer_load_dwordx4 v%d, %s, s%d offen offset:1024 lds" % (vXS + 1, srd(sX), sXOFF), ("d", s))
        return r + [f0, f1]

    issue_at = cfg["issue_at"]
    for s in range(18):
        assert issue_at[s] < s and (s < 6 or issue_at[s] >= s - 5)
        if issue_at[s] < 0:
            for f in issue(s): f()
    hooks.get("start", lambda: None)()

    a("s_and_b32 s%d, s%d, 3" % (sT0, sWAVE), "s_lshr_b32 s%d, s%d, 2" % (sT1, sWAVE),
      "s_lshl_b32 s%d, s%d, 12" % (sT2, sT0), "s_add_u32 s%d, s%d, %d" % (sT2, sT2, XBASE),
      "v_and_b32 v%d, 15, v%d" % (t0, L), "v_lshrrev_b32 v%d, 4, v%d" % (t1, L),
      "v_bfe_u32 v%d, v%d, 1, 3" % (t2, L), "v_xor_b32 v%d, v%d, v%d" % (t2, t2, t1),
      "v_lshlrev_b32 v%d, 4, v%d" % (t2, t2),
      "v_lshl_add_u32 v%d, v%d, 7, s%d" % (t3, t0, sT2))
    for m in range(2):
        a("v_xor_b32 v%d, %d, v%d" % (vXR + m, 64 * m, t2), "v_add_u32 v%d, v%d, v%d" % (vXR + m, vXR + m, t3),
          "v_add_u32 v%d, 0x10000, v%d" % (vXR + 2 + m, vXR + m))
    a("v_bfe_u32 v%d, v%d, 2, 2" % (t2, L), "v_lshl_add_u32 v%d, v%d, 3, v%d" % (t2, t1, t2),
      "v_lshlrev_b32 v%d, 7, v%d" % (vWR, t2),
      "v_and_b32 v%d, 3, v%d" % (t2, L), "v_lshl_add_u32 v%d, v%d, 3, v%d" % (vWR, t2, vWR),
      "s_lshl_b32 s%d, s%d, 1" % (sT2, sT1),
      "v_bfe_u32 v%d, v%d, 3, 2" % (t2, L), "v_xor_b32 v%d, s%d, v%d" % (t2, sT2, t2),
      "v_lshl_add_u32 v%d, v%d, 5, v%d" % (vWR, t2, vWR),
      "v_xor_b32 v%d, 32, v%d" % (vWR2, vWR))
    a("s_lshl_b32 s%d, s%d, 1" % (sT2, sG), "s_lshr_b32 s%d, s%d, 1" % (sT3, sT0), "s_add_u32 s%d, s%d, s%d" % (sT2, sT2, sT3),
      "s_mul_i32 s%d, s%d, %d" % (sST, sT2, PITCH), "s_and_b32 s%d, s%d, 1" % (sT3, sT0),
      "v_lshlrev_b32 v%d, 4, v%d" % (t0, t0))
    if isv:
        a("s_mul_i32 s%d, s%d, %d" % (sT3, sT3, 4 * 9216), "s_add_u32 s%d, s%d, s%d" % (sST, sST, sT3),
          "s_lshl_b32 s%d, s%d, 10" % (sT3, sLINE), "s_add_u32 s%d, s%d, s%d" % (sST, sST, sT3),
          "s_lshl_b32 s%d, s%d, 9" % (sT3, sT1), "s_add_u32 s%d, s%d, s%d" % (sST, sST, sT3),
          "s_add_u32 s%d, s%d, %d" % (sST, sST, 2 * SEC - 18 * 1024),
          "v_mul_u32_u24 v%d, 9216, v%d" % (vSTA, t1), "v_add_u32 v%d, v%d, v%d" % (vSTA, t0, vSTA))
    else:
        a("s_lshl_b32 s%d, s%d, 8" % (sT3, sT3), "s_add_u32 s%d, s%d, s%d" % (sST, sST, sT3),
          "s_lshl_b32 s%d, s%d, 13" % (sT3, sLINE), "s_add_u32 s%d, s%d, s%d" % (sST, sST, sT3),
          "s_lshl_b32 s%d, s%d, 12" % (sT3, sT1), "s_add_u32 s%d, s%d, s%d" % (sST, sST, sT3),
          "v_lshl_add_u32 v%d, v%d, 9, v%d" % (vSTA, t1, t0),
          "s_mov_b32 s%d, 0x%08x" % (sT3, SCALE), "s_cmp_lt_u32 s%d, 9" % sLINE,
          "s_cselect_b32 s%d, s%d, 1.0" % (sSCALE, sT3))
    hooks.get("setup", lambda: None)()

    def reads(s):
        sl = s % 6
        r = []
        for m in range(2):
            for t in range(2):
                r.append("ds_read_b128 %s, v%d offset:%d" % (vr(vXF[s % 2] + 8 * m + 4 * t, 4), vXR + m + (2 if sl >= 4 else 0), 16384 * (sl % 4) + 2048 * t))
                if s < 9:
                    for h in range(2):
                        r.append("ds_read_b64_tr_b16 %s, v%d offset:%d" % (vr(vWF + 16 * s + 8 * m + 4 * t + 2 * h, 2), (vWR, vWR2)[t], wslot(s) + (32 * m + 4 * h) * 128))
        return [(lambda x=x: a.lds(x)) for x in r]

    def mfmas(s):
        r = []
        for m in range(2):
            for ft in range(2):
                for tt in range(2):
                    acc = vr(vACC[s // 9] + 8 * ft + 4 * tt, 4)
                    w = vr(vWF + 16 * (s % 9) + 8 * m + 4 * ft, 4); x = vr(vXF[s % 2] + 8 * m + 4 * tt, 4)
                    c = "0" if (s % 9 == 0 and m == 0) else acc
                    r.append("v_mfma_f32_16x16x32_bf16 %s, %s, %s, %s" % ((acc, x, w, c) if isv else (acc, w, x, c)))
        return r

    def epilogue(r):
        acc = vACC[r]
        for n in range(2):
            if not isv:
                for i in range(8 * n, 8 * n + 8): a("v_mul_f32 v%d, s%d, v%d" % (acc + i, sSCALE, acc + i))
            for i in range(4): a("v_cvt_pk_bf16_f32 v%d, v%d, v%d" % (acc + 8 * n + i, acc + 8 * n + 2 * i, acc + 8 * n + 2 * i + 1))
            a.vmem("buffer_store_dwordx4 %s, v%d, %s, s%d offen offset:%d sc1" % (vr(acc + 8 * n, 4), vSTA, srd(sWS), sST, (256 if isv else 2048) * n), ("st", r))
        if r == 0: a("s_add_u32 s%d, s%d, %d" % (sST, sST, 16 * PITCH))

    for s in range(18):
        extra = hooks.get(("waitfor", s), [])
        a.wait(vm=[("d", s)] + extra, lg="all")
        a("s_barrier")
        a(";STAMP %d" % (20 + s))
        hooks.get(("bar", s), lambda: None)()
        side = reads(s)
        for s2 in range(18):
            if issue_at[s2] == s: side += issue(s2)
        mm = mfmas(s - 1) if s > 0 else []
        per = cfg["per0"] if s < 9 else cfg["per1"]
        for x in mm:
            a(x)
            for f in side[:per]: f()
            side = side[per:]
        for f in side: f()
        if s == 9:
            a("s_nop 5")
            epilogue(0)
        hooks.get(("step", s), lambda: None)()
    a.wait(lg="all")
    a(mfmas(17))
    hooks.get("pre_epi1", lambda: None)()
    a("s_nop 5")
    epilogue(1)
    a(";STAMP 38")


def wo_role(a, skip):
    L = vLANE
    t0, t1, t2, t3 = 24, 25, 26, 27
    lab = a.uid("wo")
    a("s_lshl_b32 s%d, s%d, 2" % (sT0, sXCD), "s_and_b32 s%d, s%d, 3" % (sT1, sJ), "s_add_u32 s%d, s%d, s%d" % (sLINE, sT0, sT1),
      "s_cmp_ge_u32 s%d, 28" % sJ, "s_cbranch_scc1 %s" % lab,
      "s_add_u32 s%d, s%d, 8" % (sLINE, sLINE),
      "%s:" % lab,
      "s_waitcnt lgkmcnt(0)",
      "s_cmp_ge_u32 s%d, 36" % sLINE, "s_cbranch_scc1 %s" % skip)
    a("s_lshl_b32 s%d, s%d, 5" % (sT0, sWAVE), "v_lshrrev_b32 v%d, 1, v%d" % (t0, L), "v_add_u32 v%d, s%d, v%d" % (t0, sT0, t0),
      "v_mul_u32_u24 v%d, 1152, v%d" % (t0, t0), "v_and_b32 v%d, 1, v%d" % (t1, L), "v_lshl_add_u32 v%d, v%d, 4, v%d" % (t0, t1, t0),
      "s_lshl_b32 s%d, s%d, 5" % (sT1, sLINE), "s_lshl_b32 s%d, s%d, 10" % (sT2, sWAVE))
    for k in range(3):
        a("s_add_u32 m0, s%d, %d" % (sT2, 8192 * k), "s_nop 0")
        a.vmem("buffer_load_dwordx4 v%d, %s, s%d offen lds" % (t0, srd(sWO), sT1), "wo")
        if k < 2: a("s_add_u32 s%d, s%d, %d" % (sT1, sT1, 256 * 1152))
    a("s_and_b32 s%d, s%d, 3" % (sT0, sWAVE), "s_lshr_b32 s%d, s%d, 2" % (sT1, sWAVE),
      "s_mul_i32 s%d, s%d, 144" % (sT2, sT0), "s_mul_i32 s%d, s%d, 72" % (sT3, sT1), "s_add_u32 s%d, s%d, s%d" % (sT3, sT3, sT2),
      "v_lshrrev_b32 v%d, 5, v%d" % (t0, L), "v_mul_u32_u24 v%d, 18, v%d" % (t0, t0),
      "v_bfe_u32 v%d, v%d, 2, 3" % (t1, L),
      "v_add3_u32 v%d, v%d, v%d, s%d" % (t0, t0, t1, sT3),
      "v_and_b32 v%d, 3, v%d" % (t2, L), "v_lshlrev_b32 v%d, 3, v%d" % (t2, t2),
      "v_lshl_add_u32 v%d, v%d, 5, v%d" % (t0, t0, t2),
      "v_lshrrev_b32 v%d, 3, v%d" % (t1, L), "v_mul_u32_u24 v%d, 18, v%d" % (t1, t1),
      "v_bfe_u32 v%d, v%d, 2, 1" % (t3, L), "s_add_u32 s%d, s%d, 16" % (sT2, sT2),
      "v_add3_u32 v%d, v%d, v%d, s%d" % (t1, t1, t3, sT2),
      "v_lshl_add_u32 v%d, v%d, 5, v%d" % (t1, t1, t2))
    a("s_lshl_b32 s%d, s%d, 2" % (sT2, sLINE), "s_add_u32 s%d, s%d, s%d" % (sT2, sT2, sT0), "s_mul_i32 s%d, s%d, 4608" % (sT2, sT2),
      "s_add_u32 s%d, s%d, %d" % (sT2, sT2, WOBASE), "s_add_u32 s%d, s%d, 4096" % (sT4, sT2),
      "s_lshl_b32 s%d, s%d, 11" % (sT3, sT1), "s_add_u32 s%d, s%d, s%d" % (sT2, sT2, sT3),
      "v_lshlrev_b32 v%d, 4, v%d" % (t2, L), "v_lshlrev_b32 v%d, 3, v%d" % (t3, L))
    a.wait(vm="all"); a("s_barrier")
    for m in range(2):
        for h in range(2):
            a.lds("ds_read_b64_tr_b16 %s, v%d offset:%d" % (vr(48 + 4 * m + 2 * h, 2), t0, (36 * m + 8 * h) * 32))
    a.lds("ds_read_b64_tr_b16 v[56:57], v%d" % t1)
    a.wait(lg="all")
    for m in range(2):
        a.vmem("buffer_store_dwordx4 %s, v%d, %s, s%d offen offset:%d sc1" % (vr(48 + 4 * m, 4), t2, srd(sWS), sT2, 1024 * m), "st")
    a.vmem("buffer_store_dwordx2 v[56:57], v%d, %s, s%d offen sc1" % (t3, srd(sWS), sT4), "st")


def p2_setup(a):
    L = vLANE
    t0, t1, t2, t3 = 38, 39, 40, 41
    a("s_lshl_b32 s%d, s%d, 2" % (sHEAD, sXCD), "s_lshr_b32 s%d, s%d, 3" % (sT0, sJ), "s_add_u32 s%d, s%d, s%d" % (sHEAD, sHEAD, sT0),
      "s_and_b32 s%d, s%d, 7" % (sQI, sJ), "s_and_b32 s%d, s%d, 3" % (sP, sWAVE), "s_lshr_b32 s%d, s%d, 2" % (sKH, sWAVE),
      "s_mov_b32 s%d, 0x3ffff" % sVMASK, "s_mov_b32 s%d, 0x3ffff" % (sVMASK + 1),
      "s_mov_b32 s%d, -1" % sDMASK, "s_mov_b32 s%d, 0xffff" % (sDMASK + 1),
      "s_and_b32 s%d, s%d, 1" % (sT0, sHEAD),
      "s_lshr_b32 s%d, s%d, 1" % (sT1, sHEAD), "s_mul_i32 s%d, s%d, %d" % (sT1, sT1, 9 * 512))
    a("v_and_b32 v%d, 31, v%d" % (t0, L), "v_lshrrev_b32 v%d, 5, v%d" % (t1, L))
    a("s_lshl_b32 s%d, s%d, 11" % (sT2, sT0), "s_add_u32 s%d, s%d, s%d" % (sT2, sT2, sT1), "s_add_u32 s%d, s%d, %d" % (sT2, sT2, SEC),
      "v_lshl_add_u32 v%d, v%d, 4, s%d" % (vDMA, L, sT2),
      "s_mul_i32 s%d, s%d, 288" % (sT3, sHEAD))
    for k in (2, 3, 4):
        imm = 1024 * k if k < 4 else 0
        d = vDMA + k - 1
        a("v_add_u32 v%d, %d, v%d" % (t2, (64 * k - 160) & 0xffffffff, L))
        if k == 2: a("v_max_i32 v%d, 0, v%d" % (t2, t2))
        a("v_mul_u32_u24 v%d, 3641, v%d" % (t3, t2), "v_lshrrev_b32 v%d, 16, v%d" % (t3, t3),
          "v_mul_u32_u24 v%d, %d, v%d" % (t3, 9216 - 288, t3),
          "v_lshl_add_u32 v%d, v%d, 4, v%d" % (t3, t2, t3),
          "s_add_u32 s%d, s%d, %d" % (sT4, sT3, 2 * SEC - imm),
          "v_add_u32 v%d, s%d, v%d" % (d, sT4, t3))
        if k == 2:
            a("v_cmp_gt_u32 vcc, 32, v%d" % L, "s_nop 1", "v_cndmask_b32 v%d, v%d, v%d, vcc" % (d, d, vDMA))
    a("s_mul_i32 s%d, s%d, %d" % (sT2, sKH, CHUNK),
      "s_lshl_b32 s%d, s%d, 9" % (sT3, sT0), "s_add_u32 s%d, s%d, s%d" % (sT3, sT3, sT2),
      "v_lshlrev_b32 v%d, 10, v%d" % (t2, t1), "v_lshl_add_u32 v%d, v%d, 3, v%d" % (t2, t0, t2),
      "v_add_u32 v%d, s%d, v%d" % (vAK, sT3, t2),
      "s_mul_i32 s%d, s%d, %d" % (sT3, sT0, (4 - 2048) & 0xffffffff), "s_add_u32 s%d, s%d, 2048" % (sT3, sT3),
      "s_add_u32 s%d, s%d, s%d" % (sT3, sT3, sT2),
      "v_lshl_add_u32 v%d, v%d, 3, s%d" % (vAR, L, sT3),
      "s_add_u32 s%d, s%d, 2560" % (sT3, sT2),
      "v_mul_u32_u24 v%d, 288, v%d" % (t3, t1), "v_lshl_add_u32 v%d, v%d, 4, v%d" % (t3, t0, t3),
      "v_add_u32 v%d, s%d, v%d" % (vAV, sT3, t3))
    a("s_mul_i32 s%d, s%d, %d" % (sT3, sT0, 5 * 512), "s_add_u32 s%d, s%d, s%d" % (sT3, sT3, sT1),
      "v_add_u32 v%d, s%d, v%d" % (vQA, sT3, t2),
      "s_lshl_b32 s%d, s%d, 2" % (sT3, sT0), "s_add_u32 s%d, s%d, s%d" % (sT3, sT3, sT1), "s_add_u32 s%d, s%d, 2048" % (sT3, sT3),
      "v_lshl_add_u32 v%d, v%d, 3, s%d" % (vQR, t0, sT3),
      "s_lshl_b32 s%d, s%d, 1" % (sT3, sQI), "s_lshr_b32 s%d, s%d, 1" % (sT4, sP), "s_add_u32 s%d, s%d, s%d" % (sT3, sT3, sT4),
      "s_mul_i32 s%d, s%d, %d" % (sQOFF, sT3, PITCH), "s_and_b32 s%d, s%d, 1" % (sT4, sP), "s_lshl_b32 s%d, s%d, 8" % (sT4, sT4),
      "s_add_u32 s%d, s%d, s%d" % (sQOFF, sQOFF, sT4),
      "v_mov_b32 v%d, 0xdddddddd" % vIDX, "v_mov_b32 v%d, 0" % (vQ[0] + 5), "v_mov_b32 v%d, 0" % (vQ[1] + 5))


def q_load(a, part):
    so = sQOFF
    if part:
        a("s_add_u32 s%d, s%d, %d" % (sT0, sQOFF, 16 * PITCH)); so = sT0
    q = vQ[part]
    a.vmem("buffer_load_dwordx2 %s, v%d, %s, s%d offen sc1" % (vr(q, 2), vQA, srd(sWS), so), ("q", part))
    a.vmem("buffer_load_dwordx2 %s, v%d, %s, s%d offen offset:512 sc1" % (vr(q + 2, 2), vQA, srd(sWS), so), ("q", part))
    a.vmem("buffer_load_dword v%d, v%d, %s, s%d offen sc1" % (q + 4, vQR, srd(sWS), so), ("q", part))


def kv_dma(a, st):
    a("s_add_u32 s%d, s%d, %d" % (sT0, sWAVE, 8 * st), "s_mul_i32 s%d, s%d, %d" % (sCH, sT0, PITCH),
      "s_mul_i32 s%d, s%d, %d" % (sT0, sT0, CHUNK), "s_mov_b32 m0, s%d" % sT0, "s_add_u32 s%d, s%d, 4096" % (sT0, sT0))
    for k in range(4):
        a.vmem("buffer_load_dwordx4 v%d, %s, s%d offen offset:%d sc1 lds" % (vDMA + max(0, k - 1), srd(sWS), sCH, 1024 * k), ("kv", st))
    a("s_mov_b32 m0, s%d" % sT0, "s_mov_b64 exec, %s" % sr(sDMASK, 2))
    a.vmem("buffer_load_dwordx4 v%d, %s, s%d offen sc1 lds" % (vDMA + 3, srd(sWS), sCH), ("kv", st))
    a("s_mov_b64 exec, -1")


def v_consts(a, base, t):
    a("v_and_b32 v%d, 27, v%d" % (t, vLANE), "v_cmp_eq_u32 vcc, 18, v%d" % t, "v_mov_b32 v%d, 0x3f803f80" % t, "s_nop 0",
      "v_cndmask_b32 v%d, 0, v%d, vcc" % (base, t))
    a("v_mov_b32 v%d, v%d" % (base + 1, base))
    for i in range(1, 8): a("v_mov_b64 %s, %s" % (vr(base + 2 * i, 2), vr(base, 2)))


def p2_init(a):
    v_consts(a, vV, vV + 2)
    a("v_mov_b32 v%d, 0" % (vKR + 1))
    for i in range(16): a("v_mov_b64 %s, 0" % vr(vO[0] + 2 * i, 2))


def p2_main(a, cfg, ev):
    ns = cfg["nsolo"]
    U = [(i, 0) for i in range(ns)] + [(i, q) for i in range(ns, 16) for q in range(2)] + [(i, 1) for i in range(ns)]
    N = len(U)
    base = {"k": 0, "r": 0, "v": 0}
    reg = {"k": vAK, "r": vAR, "v": vAV}
    seen = set()

    def off(kind, i):
        if i not in seen:
            seen.add(i)
            if ("pre", i) in ev: ev[("pre", i)]()
        want = (i // 6) * 6
        if base[kind] != want:
            a("v_add_u32 v%d, 0x%x, v%d" % (reg[kind], ((want - base[kind]) * 2 * CHUNK) & 0xffffffff, reg[kind]))
            base[kind] = want
        return (i - want) * 2 * CHUNK

    def rR(i):
        o = off("r", i); a.lds("ds_read_b32 v%d, v%d offset:%d" % (vKR, vAR, o), "R")
    def rK(i, t):
        o = off("k", i)
        for h in range(2): a.lds("ds_read_b64 %s, v%d offset:%d" % (vr(vK + 4 * t + 2 * h, 2), vAK, o + 256 * t + 512 * h), ("K", t))
    def rV(i, fs):
        o = off("v", i)
        a("s_mov_b64 exec, %s" % sr(sVMASK, 2))
        for f in fs: a.lds("ds_read_b128 %s, v%d offset:%d" % (vr(vV + 4 * f, 4), vAV, o + 576 * f), ("V", f // 2))
        a("s_mov_b64 exec, -1")
    def R(u):
        a.wait(lg="R")
        if U[u][1] == 1 and "ql" in ev: ev.pop("ql")()
        a("v_mfma_f32_32x32x4_2b_bf16 %s, %s, %s, 0" % (vr(vS[u % 2], 32), vr(vKR, 2), vr(vQ[U[u][1]] + 4, 2)))
    def M(u, t):
        a.wait(lg=("K", t))
        s = vr(vS[u % 2] + 16 * t, 16)
        a("v_mfma_f32_32x32x16_bf16 %s, %s, %s, %s" % (s, vr(vK + 4 * t, 4), vr(vQ[U[u][1]], 4), s))
    def P(u, f):
        a.wait(lg=("V", f // 2))
        a("v_smfmac_f32_32x32x32_bf16 %s, %s, %s, v%d" % (vr(vO[U[u][1]], 16), vr(vV + 4 * f, 4), vr(vS[u % 2] + 8 * f, 8), vIDX))
    ch = lambda u: U[u][0]
    newk = lambda u: u < N and ch(u) != ch(u - 1)

    rR(ch(0)); rK(ch(0), 0); rK(ch(0), 1); rV(ch(0), (0, 1, 2, 3))
    R(0)
    if newk(1): rR(ch(1))
    a("s_nop 15", "s_nop 1")
    M(0, 0)
    if newk(1): rK(ch(1), 0)
    M(0, 1)
    if newk(1): rK(ch(1), 1)
    a("s_nop 7")
    pos = cfg["pos"]
    for u in range(N):
        def op(j):
            if j == 0:
                if u > 0:
                    P(u - 1, 3)
                    if newk(u): rV(ch(u), (2, 3))
            elif j == 1:
                if u + 1 < N:
                    R(u + 1)
                    if newk(u + 2): rR(ch(u + 2))
            elif j == 2: P(u, 0)
            elif j == 3:
                P(u, 1)
                if newk(u + 1): rV(ch(u + 1), (0, 1))
            elif j == 4 or j == 6:
                if u + 1 < N:
                    M(u + 1, (j - 4) // 2)
                    if newk(u + 2): rK(ch(u + 2), (j - 4) // 2)
            elif j == 5: P(u, 2)
            if (u, j) in cfg.get("prio", {}): a("s_setprio %d" % cfg["prio"][(u, j)])
            if (u, j) in ev: ev[(u, j)]()
        for e in range(32):
            if e in pos: op(pos.index(e))
            a("v_exp_f32 v%d, v%d" % (vS[u % 2] + e, vS[u % 2] + e))
    a("s_nop 1")
    P(N - 1, 3)
    return U


SCR_E_MAIN, SCR_E_RES = LDS_SPARE, 12 * CHUNK
SCR_L_MAIN, SCR_L_RES = 16 * CHUNK, 18 * CHUNK


def send_partial(a, part):
    main, res = (SCR_L_MAIN, SCR_L_RES) if part else (SCR_E_MAIN, SCR_E_RES)
    o = vO[part]
    t = vT
    a("s_lshl_b32 s%d, s%d, 11" % (sT0, sP), "s_add_u32 s%d, s%d, %d" % (sT0, sT0, main),
      "v_lshl_add_u32 v%d, v%d, 4, s%d" % (t, vLANE, sT0),
      "s_lshl_b32 s%d, s%d, 10" % (sT0, sP), "s_add_u32 s%d, s%d, %d" % (sT0, sT0, res),
      "v_lshl_add_u32 v%d, v%d, 4, s%d" % (t + 1, vLANE, sT0))
    a("ds_write_b128 v%d, %s" % (t, vr(o, 4)), "ds_write_b128 v%d, %s offset:1024" % (t, vr(o + 4, 4)),
      "ds_write_b128 v%d, %s" % (t + 1, vr(o + 8, 4)))


def finalize(a, part, slow):
    main, res = (SCR_L_MAIN, SCR_L_RES) if part else (SCR_E_MAIN, SCR_E_RES)
    o = vO[part]
    t = vT
    d = vT + 2
    a("s_lshl_b32 s%d, s%d, 11" % (sT0, sP), "s_add_u32 s%d, s%d, %d" % (sT0, sT0, main),
      "v_lshl_add_u32 v%d, v%d, 4, s%d" % (t, vLANE, sT0),
      "s_lshl_b32 s%d, s%d, 10" % (sT0, sP), "s_add_u32 s%d, s%d, %d" % (sT0, sT0, res),
      "v_lshl_add_u32 v%d, v%d, 4, s%d" % (t + 1, vLANE, sT0))
    a("ds_read_b128 %s, v%d" % (vr(d + 8, 4), t + 1), "ds_read_b128 %s, v%d" % (vr(d, 4), t), "ds_read_b128 %s, v%d offset:1024" % (vr(d + 4, 4), t))
    a("s_lshl_b32 s%d, s%d, 2" % (sT0, sQI), "s_add_u32 s%d, s%d, s%d" % (sT0, sT0, sP), "s_mul_i32 s%d, s%d, %d" % (sT0, sT0, OTILE),
      "s_lshl_b32 s%d, s%d, 10" % (sT1, sHEAD), "s_add_u32 s%d, s%d, s%d" % (sT1, sT1, sT0), "s_add_u32 s%d, s%d, %d" % (sT1, sT1, OBASE + 32 * part * OTILE),
      "s_lshl_b32 s%d, s%d, 7" % (sT2, sHEAD), "s_add_u32 s%d, s%d, s%d" % (sT2, sT2, sT0), "s_add_u32 s%d, s%d, %d" % (sT2, sT2, OBASE + 32 * part * OTILE + 32768))
    a("s_waitcnt lgkmcnt(0)")
    for i in (10, 8, 9, 0, 1, 2, 3, 4, 5, 6, 7): a("v_add_f32 v%d, v%d, v%d" % (o + i, o + i, d + i))
    back = a.uid("norm")
    done = a.uid("normok")
    a("s_mov_b32 s%d, 0" % sT5)
    a("%s:" % back)
    a("v_rcp_f32 v%d, v%d" % (t, o + 10), "s_nop 0")
    for i in range(10): a("v_mul_f32 v%d, v%d, v%d" % (d + i, t, o + i))
    a("v_add_f32 v%d, v%d, v%d" % (t + 1, d, d + 1))
    for i in range(2, 10): a("v_add_f32 v%d, v%d, v%d" % (t + 1, t + 1, d + i))
    a("v_mov_b32 v%d, 0x37800000" % (d + 10), "v_mov_b32 v%d, 0x71800000" % (d + 11),
      "v_med3_f32 v%d, v%d, v%d, v%d" % (d + 10, o + 10, d + 10, d + 11),
      "v_fma_f32 v%d, v%d, 0, v%d" % (t + 1, t + 1, o + 10),
      "v_cmp_neq_f32 vcc, v%d, v%d" % (d + 10, t + 1))
    for i in range(5): a("v_cvt_pk_bf16_f32 v%d, v%d, v%d" % (d + i, d + 2 * i, d + 2 * i + 1))
    a("s_cbranch_vccz %s" % done,
      "s_cmp_lg_u32 s%d, 0" % sT5, "s_cbranch_scc1 %s" % done,
      "s_mov_b32 s%d, 1" % sT5)
    slow(part, back)
    a("%s:" % done)
    a("v_lshlrev_b32 v%d, 4, v%d" % (t, vLANE), "v_lshlrev_b32 v%d, 2, v%d" % (t + 1, vLANE))
    a("buffer_store_dwordx4 %s, v%d, %s, s%d offen sc1" % (vr(d, 4), t, srd(sWS), sT1))
    a("s_mov_b32 exec_hi, 0")
    a("buffer_store_dword v%d, v%d, %s, s%d offen sc1" % (d + 4, t + 1, srd(sWS), sT2))
    a("s_mov_b64 exec, -1")


def slow_path(a, part, label, back, after):
    S, K, KR, V, m, ar, av = 44, 76, 84, 88, 104, 105, 106
    q = vQ[part]; o = vO[part]
    a("%s:" % label)
    a("s_waitcnt vmcnt(0) lgkmcnt(0)")
    v_consts(a, V, m)
    a("v_mov_b32 v%d, 0" % (KR + 1))
    for i in range(16): a("v_mov_b32 v%d, 0" % (o + i))
    a("v_lshrrev_b32 v%d, 5, v%d" % (m, vLANE), "v_lshl_add_u32 v%d, v%d, 8, v%d" % (ar, m, vQR),
      "v_mul_u32_u24 v%d, 9216, v%d" % (av, m), "v_and_b32 v%d, 31, v%d" % (m, vLANE), "v_lshl_add_u32 v%d, v%d, 4, v%d" % (av, m, av),
      "s_mul_i32 s%d, s%d, 288" % (sT3, sHEAD), "s_add_u32 s%d, s%d, %d" % (sT3, sT3, SEC), "v_add_u32 v%d, s%d, v%d" % (av, sT3, av))
    for f in range(1, 4): a("v_add_u32 v%d, 18432, v%d" % (av + f, av + f - 1))
    a("v_mov_b32 v%d, 0xff800000" % m)
    for ps in range(2):
        lp = a.uid("slow")
        a("s_mov_b32 s%d, %d" % (sLOOP, SEC), "%s:" % lp)
        for t in range(2):
            for h in range(2):
                a("buffer_load_dwordx2 %s, v%d, %s, s%d offen offset:%d sc1" % (vr(K + 4 * t + 2 * h, 2), vQA, srd(sWS), sLOOP, 256 * t + 512 * h))
        a("buffer_load_dword v%d, v%d, %s, s%d offen sc1" % (KR, ar, srd(sWS), sLOOP))
        if ps:
            a("s_mov_b64 exec, %s" % sr(sVMASK, 2))
            for f in range(4): a("buffer_load_dwordx4 %s, v%d, %s, s%d offen sc1" % (vr(V + 4 * f, 4), av + f, srd(sWS), sLOOP))
            a("s_mov_b64 exec, -1")
        a("s_waitcnt vmcnt(0)",
          "v_mfma_f32_32x32x4_2b_bf16 %s, %s, %s, 0" % (vr(S, 32), vr(KR, 2), vr(q + 4, 2)), "s_nop 15", "s_nop 1")
        for t in range(2):
            a("v_mfma_f32_32x32x16_bf16 %s, %s, %s, %s" % (vr(S + 16 * t, 16), vr(K + 4 * t, 4), vr(q, 4), vr(S + 16 * t, 16)))
        a("s_nop 11")
        if ps == 0:
            for i in range(16): a("v_max3_f32 v%d, v%d, v%d, v%d" % (m, m, S + 2 * i, S + 2 * i + 1))
        else:
            for i in range(32): a("v_sub_f32 v%d, v%d, v%d" % (S + i, S + i, m))
            for i in range(32): a("v_exp_f32 v%d, v%d" % (S + i, S + i))
            a("s_nop 1")
            for f in range(4): a("v_smfmac_f32_32x32x32_bf16 %s, %s, %s, v%d" % (vr(o, 16), vr(V + 4 * f, 4), vr(S + 8 * f, 8), vIDX))
        a("s_add_u32 s%d, s%d, %d" % (sLOOP, sLOOP, PITCH), "s_cmp_lt_u32 s%d, %d" % (sLOOP, 32 * PITCH), "s_cbranch_scc1 %s" % lp)
        if ps == 0:
            a("v_mov_b32 v%d, v%d" % (S, m), "s_nop 1", "v_permlane32_swap_b32 v%d, v%d" % (S, m), "s_nop 1", "v_max_f32 v%d, v%d, v%d" % (m, m, S))
    a("s_nop 15")
    after()
    a("s_branch %s" % back)


def p3_setup(a):
    a("s_and_b32 s%d, s%d, 3" % (sRT, sJ), "s_lshr_b32 s%d, s%d, 2" % (sCB, sJ),
      "s_and_b32 s%d, s%d, 3" % (sKQ, sWAVE), "s_lshr_b32 s%d, s%d, 2" % (sRH, sWAVE),
      "s_and_b32 s%d, s%d, 1" % (sT0, sCB), "s_cmp_eq_u32 s%d, s%d" % (sT0, sRH), "s_cselect_b32 s%d, 1, 0" % sFIVE,
      "s_lshr_b32 s%d, s%d, 1" % (sT1, sCB), "s_mul_i32 s%d, s%d, 9" % (sT1, sT1),
      "s_mul_i32 s%d, s%d, 5" % (sT0, sT0), "s_add_u32 s%d, s%d, s%d" % (sT0, sT0, sT1),
      "s_add_u32 s%d, s%d, 4" % (sT1, sT1),
      "s_mul_i32 s%d, s%d, 4608" % (sT2, sKQ), "s_add_u32 s%d, s%d, %d" % (sT2, sT2, WOBASE))
    for t in range(4):
        a("s_add_u32 s%d, s%d, %d" % (sT3, sKQ, t), "s_and_b32 s%d, s%d, 3" % (sT3, sT3), "s_add_u32 s%d, s%d, s%d" % (sT3, sT3, sT0))
        if t == 0: a("s_lshl_b32 s%d, s%d, 5" % (sOCOL, sT3))
        a("s_mul_i32 s%d, s%d, %d" % (sT3, sT3, 4 * 4608), "s_add_u32 s%d, s%d, s%d" % (sWOF + t, sT3, sT2))
    a("s_lshl_b32 s%d, s%d, 5" % (sOCOL + 1, sT1),
      "s_mul_i32 s%d, s%d, %d" % (sT3, sT1, 4 * 4608), "s_add_u32 s%d, s%d, s%d" % (sWOF + 4, sT3, sT2))


def wo_load(a, tiles, t16, t8, track=True):
    em = a.vmem if track else (lambda s, tag: a(s))
    for t in tiles:
        for m in range(4):
            em("buffer_load_dwordx4 %s, v%d, %s, s%d offen offset:%d sc1" % (vr(vWO + 18 * t + 4 * m, 4), t16, srd(sWS), sWOF + t, 1024 * m), "wo")
        em("buffer_load_dwordx2 %s, v%d, %s, s%d offen sc1" % (vr(vWO + 18 * t + 16, 2), t8, srd(sWS), sWOF + t), "wo")


def o_load(a, part, of, t):
    main, res = of
    a("v_lshrrev_b32 v%d, 4, v%d" % (t + 1, vLANE), "v_and_b32 v%d, 15, v%d" % (res, vLANE),
      "v_lshlrev_b32 v%d, 9, v%d" % (t, t + 1), "v_lshl_add_u32 v%d, v%d, 4, v%d" % (t, res, t),
      "v_lshlrev_b32 v%d, 8, v%d" % (t + 1, t + 1), "v_lshl_add_u32 v%d, v%d, 2, v%d" % (t + 1, res, t + 1),
      "s_lshl_b32 s%d, s%d, 2" % (sT0, sXCD), "s_add_u32 s%d, s%d, s%d" % (sT0, sT0, sRT), "s_mul_i32 s%d, s%d, %d" % (sT0, sT0, OTILE),
      "s_lshl_b32 s%d, s%d, 13" % (sT1, sKQ), "s_lshl_b32 s%d, s%d, 8" % (sT2, sRH), "s_add_u32 s%d, s%d, s%d" % (sT1, sT1, sT2),
      "s_add_u32 s%d, s%d, s%d" % (sT1, sT1, sT0), "s_add_u32 s%d, s%d, %d" % (sT1, sT1, OBASE + 32 * part * OTILE),
      "s_add_u32 s%d, s%d, 4096" % (sT2, sT1),
      "s_lshl_b32 s%d, s%d, 10" % (sT3, sKQ), "s_lshl_b32 s%d, s%d, 6" % (sT4, sRH), "s_add_u32 s%d, s%d, s%d" % (sT3, sT3, sT4),
      "s_add_u32 s%d, s%d, s%d" % (sT3, sT3, sT0), "s_add_u32 s%d, s%d, %d" % (sT3, sT3, OBASE + 32 * part * OTILE + 32768))
    def go():
        for m in range(4):
            a.vmem("buffer_load_dwordx4 %s, v%d, %s, s%d offen offset:%d sc1" % (vr(main + 4 * m, 4), t, srd(sWS), sT1 + m // 2, 2048 * (m % 2)), ("o", part, m))
        for e in range(2):
            a.vmem("buffer_load_dword v%d, v%d, %s, s%d offen offset:%d sc1" % (res + e, t + 1, srd(sWS), sT3, 128 * e), ("o", part, 4))
    return go


def p3_mfma(a, part, of, acc):
    main, res = of
    for m in range(5):
        a.wait(vm=[("o", part, m), "wo"])
        if m == 4: a("s_nop 2")
        for t in range(4):
            c = "0" if m == 0 else vr(acc + 4 * t, 4)
            if m < 4: a("v_mfma_f32_16x16x32_bf16 %s, %s, %s, %s" % (vr(acc + 4 * t, 4), vr(vWO + 18 * t + 4 * m, 4), vr(main + 4 * m, 4), c))
            else: a("v_mfma_f32_16x16x16_bf16 %s, %s, %s, %s" % (vr(acc + 4 * t, 4), vr(vWO + 18 * t + 16, 2), vr(res, 2), c))
    skip = a.uid("no5")
    a("s_cmp_eq_u32 s%d, 0" % sFIVE, "s_cbranch_scc1 %s" % skip)
    for m in range(5):
        c = "0" if m == 0 else vr(acc + 16, 4)
        if m < 4: a("v_mfma_f32_16x16x32_bf16 %s, %s, %s, %s" % (vr(acc + 16, 4), vr(vWO + 72 + 4 * m, 4), vr(main + 4 * m, 4), c))
        else: a("s_nop 5", "v_mfma_f32_16x16x16_bf16 %s, %s, %s, %s" % (vr(acc + 16, 4), vr(vWO + 72 + 16, 2), vr(res, 2), c))
    a("%s:" % skip)


def p3_reduce(a, part, acc, scr, t, d):
    a("v_lshlrev_b32 v%d, 4, v%d" % (t, vLANE), "s_mul_i32 s%d, s%d, 12288" % (sT0, sRH), "s_add_u32 s%d, s%d, %d" % (sT0, sT0, scr))
    for k in range(1, 4):
        a("s_add_u32 s%d, s%d, %d" % (sT1, sKQ, k), "s_and_b32 s%d, s%d, 3" % (sT1, sT1), "s_mul_i32 s%d, s%d, 3072" % (sT1, sT1),
          "s_add_u32 s%d, s%d, s%d" % (sT1, sT1, sT0), "v_add_u32 v%d, s%d, v%d" % (t + 1, sT1, t),
          "ds_write_b128 v%d, %s offset:%d" % (t + 1, vr(acc + 4 * k, 4), 1024 * (k - 1)))
    skip = a.uid("no5w")
    a("s_cmp_eq_u32 s%d, 0" % sFIVE, "s_cbranch_scc1 %s" % skip,
      "s_lshl_b32 s%d, s%d, 10" % (sT1, sKQ), "s_add_u32 s%d, s%d, %d" % (sT1, sT1, scr + 24576), "v_add_u32 v%d, s%d, v%d" % (t + 1, sT1, t),
      "ds_write_b128 v%d, %s" % (t + 1, vr(acc + 16, 4)), "%s:" % skip)
    a("s_mul_i32 s%d, s%d, 3072" % (sT1, sKQ), "s_add_u32 s%d, s%d, s%d" % (sT1, sT1, sT0), "v_add_u32 v%d, s%d, v%d" % (t + 1, sT1, t),
      "v_and_b32 v%d, 15, v%d" % (t + 2, vLANE), "v_mul_u32_u24 v%d, 1152, v%d" % (t + 2, t + 2),
      "v_lshrrev_b32 v%d, 4, v%d" % (t + 3, vLANE), "v_lshl_add_u32 v%d, v%d, 3, v%d" % (t + 2, t + 3, t + 2),
      "s_lshl_b32 s%d, s%d, 3" % (sT1, sXCD), "s_lshl_b32 s%d, s%d, 1" % (sT2, sRT), "s_add_u32 s%d, s%d, s%d" % (sT1, sT1, sT2),
      "s_add_u32 s%d, s%d, s%d" % (sT1, sT1, sRH), "s_add_u32 s%d, s%d, %d" % (sT1, sT1, 64 * part), "s_mul_i32 s%d, s%d, %d" % (sT1, sT1, 16 * 1152),
      "s_add_u32 s%d, s%d, s%d" % (sT2, sT1, sOCOL + 1), "s_add_u32 s%d, s%d, s%d" % (sT1, sT1, sOCOL))
    a("s_waitcnt lgkmcnt(0)", "s_barrier")
    def fin(src, off, ac, so):
        for k in range(3): a("ds_read_b128 %s, v%d offset:%d" % (vr(d + 4 * k, 4), src, off + 1024 * k))
        for k in range(3):
            a("s_waitcnt lgkmcnt(%d)" % (2 - k))
            for i in range(4): a("v_add_f32 v%d, v%d, v%d" % (ac + i, ac + i, d + 4 * k + i))
        a("v_cvt_pk_bf16_f32 v%d, v%d, v%d" % (ac, ac, ac + 1), "v_cvt_pk_bf16_f32 v%d, v%d, v%d" % (ac + 1, ac + 2, ac + 3),
          "buffer_store_dwordx2 %s, v%d, %s, s%d offen" % (vr(ac, 2), t + 2, srd(sOUT), so))
    fin(t + 1, 0, acc, sT1)
    skip = a.uid("no5r")
    a("s_cmp_eq_u32 s%d, 0" % sFIVE, "s_cbranch_scc1 %s" % skip, "s_cmp_lg_u32 s%d, 0" % sKQ, "s_cbranch_scc1 %s" % skip,
      "v_add_u32 v%d, %d, v%d" % (t + 1, scr + 24576 + 1024, t))
    fin(t + 1, 0, acc + 16, sT2)
    a("%s:" % skip)


def kd(name, lds=False):
    return """.amdhsa_kernel %s
  .amdhsa_next_free_vgpr 256
  .amdhsa_next_free_sgpr 96
  .amdhsa_accum_offset 256
  .amdhsa_group_segment_fixed_size 0
  .amdhsa_kernarg_size 48
  .amdhsa_user_sgpr_count 2
  .amdhsa_user_sgpr_kernarg_segment_ptr 1
  .amdhsa_system_sgpr_workgroup_id_x 1
  .amdhsa_float_denorm_mode_32 3
.end_amdhsa_kernel""" % name


def head(a, name):
    a(".globl %s" % name, ".p2align 8", ".type %s,@function" % name, "%s:" % name)


DEF = dict(issue_at=[-1] * 4 + [s - 4 for s in range(4, 18)], tag_step=6, flag_step=13, poll_step=16, pf_code=1, pf_x=1, idle_sleep=8,
           b1=("pre", 4), pollL=[(3, 2), (4, 2), (4, 5)], wo_slot=9, oflag=(27, 2), opoll=[(29, 2), (30, 2)], nsolo=6, prio={(0,0):3,(1,0):2,(1,4):1,(2,0):0,(2,1):3,(5,0):2,(7,0):1,(8,0):0,(8,1):3,(19,0):2,(23,0):1,(25,0):0,(25,3):3,(28,3):2,(30,3):1,(31,3):0}, per0=2, per1=1, pos=[2, 6, 14, 18, 22, 26, 30])


def gen_split(cfg):
    a = Asm()
    names = ["proj_kernel", "attn_kernel", NAME + "_kernel"]
    head(a, names[0])
    prologue(a, "L_end1x"); a(";STAMP 0")
    p1_roles(a, "L_idle1")
    a("s_cmp_ge_u32 s%d, 18" % sLINE, "s_cbranch_scc1 L_p1v")
    p1_body(a, False, cfg, {}); a("s_branch L_end1"); a.vm = []; a.lg = []
    a("L_p1v:")
    p1_body(a, True, cfg, {}); a("s_branch L_end1"); a.vm = []; a.lg = []
    a("L_idle1:")
    wo_role(a, "L_end1")
    a("L_end1:", "s_waitcnt vmcnt(0)", ";STAMP 1", ";STAMPEND", "L_end1x:", "s_endpgm"); a.vm = []; a.lg = []
    head(a, names[1])
    prologue(a, "L_end2x"); a(";STAMP 2")
    p2_setup(a)
    a("s_waitcnt lgkmcnt(0)")
    q_load(a, 0); kv_dma(a, 0); kv_dma(a, 1); q_load(a, 1); kv_dma(a, 2); kv_dma(a, 3)
    p2_init(a)
    slows = []
    def slow(part, back):
        lab = a.uid("slowp"); slows.append((part, lab, back)); a("s_branch %s" % lab)
    ev = {}
    def bar(tags):
        def f():
            a.wait(vm=tags); a("s_barrier")
        return f
    def b0():
        bar([("q", 0), ("kv", 0)])(); a(";STAMP 6")
    ev[("pre", 0)] = b0
    ev[("pre", 4)] = bar([("kv", 1), ("q", 1)])
    ev[("pre", 8)] = bar([("kv", 3)])
    ns = cfg["nsolo"]
    ue = 32 - ns - 1
    def send_e():
        l = a.uid("se")
        a("s_cmp_lg_u32 s%d, 0" % sKH, "s_cbranch_scc1 %s" % l); send_partial(a, 0); a("%s:" % l)
        a.wait(lg="all"); a("s_barrier")
        l = a.uid("fe")
        a("s_cmp_eq_u32 s%d, 0" % sKH, "s_cbranch_scc1 %s" % l); finalize(a, 0, slow); a("%s:" % l)
    ev[(ue, 3)] = send_e
    p2_main(a, cfg, ev)
    a(";STAMP 7")
    a("s_cmp_lg_u32 s%d, 0" % sKH, "s_cbranch_scc1 L_fl", "s_nop 5")
    send_partial(a, 1)
    a("s_waitcnt lgkmcnt(0)", "s_barrier", "s_branch L_end2", "L_fl:", "s_barrier")
    finalize(a, 1, slow)
    a("L_end2:", "s_waitcnt vmcnt(0)", ";STAMP 3", ";STAMPEND", "L_end2x:", "s_endpgm")
    for part, lab, back in slows: slow_path(a, part, lab, back, lambda: None)
    a.vm = []; a.lg = []
    head(a, names[2])
    prologue(a, "L_end3x"); a(";STAMP 4")
    p3_setup(a)
    a("v_lshlrev_b32 v24, 4, v%d" % vLANE, "v_lshlrev_b32 v25, 3, v%d" % vLANE, "v_add_u32 v25, 4096, v25", "s_waitcnt lgkmcnt(0)")
    wo_load(a, range(5), 24, 25)
    ofs = [(160, 176), (180, 196)]
    o_load(a, 0, ofs[0], 26)(); o_load(a, 1, ofs[1], 28)()
    for part in range(2):
        p3_mfma(a, part, ofs[part], 200)
        p3_reduce(a, part, 200, 32768 * part, 30, 224)
        a.vm.append("st"); a.vm.append("st")
        if part == 0: a.wait(vm="all")
    a("s_waitcnt vmcnt(0)", ";STAMP 5", ";STAMPEND", "L_end3x:", "s_endpgm")
    hdr = ["; @launch kernel=%s grid=(256,1,1) block=(512,1,1) lds=%d" % (n, l) for n, l in zip(names, (LDS_TOTAL, LDS_TOTAL, 65536))]
    return finish(a, hdr, names)


vPA, vPD, vL16, vL8 = 38, 39, 40, 41
sF0, sF1 = 57, 58
OOB = 0x7ffffff0
MASTER = 199


def spin_guard(a, out):
    a("s_add_u32 s%d, s%d, 1" % (sSPIN, sSPIN), "s_cmp_gt_u32 s%d, 0x20000" % sSPIN, "s_cbranch_scc1 %s" % out)


def tag_issue(a):
    a.vmem("buffer_load_dword v%d, off, %s, 0 sc1" % (vPD, srd(sDBG)), "tag")


def tag_check(a):
    ok = a.uid("tagok"); lp = a.uid("tag")
    a.wait(vm="tag")
    a("%s:" % lp, "v_readfirstlane_b32 s%d, v%d" % (sTAG, vPD), "s_cmp_lg_u32 s%d, 0" % sTAG, "s_cbranch_scc1 %s" % ok)
    spin_guard(a, ok)
    a("s_sleep 4", "buffer_load_dword v%d, off, %s, 0 sc1" % (vPD, srd(sDBG)), "s_waitcnt vmcnt(0)", "s_branch %s" % lp, "%s:" % ok)


def flag_store(a, soff, track=True):
    a("v_mov_b32 v%d, s%d" % (vPD, sTAG), "s_mov_b64 exec, 1")
    x = "buffer_store_dword v%d, off, %s, s%d sc1" % (vPD, srd(sWS), soff)
    if track: a.vmem(x, "flag")
    else: a(x)
    a("s_mov_b64 exec, -1")


def poll(a, va, imm=0, sleep=2):
    x = "buffer_load_dword v%d, v%d, %s, 0 offen offset:%d sc1" % (vPD, va, srd(sWS), imm)
    def issue(): a.vmem(x, "poll")
    def check():
        ok = a.uid("pok"); lp = a.uid("poll")
        a.wait(vm="poll")
        a("%s:" % lp, "v_cmp_ne_u32 vcc, s%d, v%d" % (sTAG, vPD), "s_cbranch_vccz %s" % ok)
        spin_guard(a, ok)
        if sleep: a("s_sleep %d" % sleep)
        a(x, "s_waitcnt vmcnt(0)", "s_branch %s" % lp, "%s:" % ok)
    return issue, check


def fused_setup(a):
    L = vLANE
    a("s_lshr_b32 s%d, s%d, 1" % (sT0, sHEAD), "s_mul_i32 s%d, s%d, 36" % (sT0, sT0), "s_and_b32 s%d, s%d, 1" % (sT1, sHEAD),
      "s_lshl_b32 s%d, s%d, 4" % (sT1, sT1), "s_add_u32 s%d, s%d, s%d" % (sT0, sT0, sT1),
      "v_min_u32 v%d, 47, v%d" % (vL16, L),
      "v_bfe_u32 v%d, v%d, 3, 1" % (vPA, vL16), "v_mul_u32_u24 v%d, 19, v%d" % (vPA, vPA), "v_add_u32 v%d, s%d, v%d" % (vPA, sT0, vPA),
      "v_lshrrev_b32 v%d, 6, v%d" % (vPA, vPA),
      "v_lshrrev_b32 v%d, 4, v%d" % (vL8, vL16), "v_mad_u32_u24 v%d, v%d, 9, v%d" % (vPA, vL8, vPA),
      "v_and_b32 v%d, 7, v%d" % (vL16, vL16), "v_mov_b32 v%d, s%d" % (vL8, sQI),
      "v_cmp_gt_u32 vcc, 16, v%d" % L, "v_lshlrev_b32 v%d, 7, v%d" % (vPA, vPA), "v_add_u32 v%d, %d, v%d" % (vPA, F01, vPA),
      "v_cndmask_b32 v%d, v%d, v%d, vcc" % (vL16, vL16, vL8),
      "v_lshl_add_u32 v%d, v%d, 2, v%d" % (vPA, vL16, vPA),
      "v_lshlrev_b32 v%d, 4, v%d" % (vL16, L), "v_lshlrev_b32 v%d, 3, v%d" % (vL8, L), "v_add_u32 v%d, 4096, v%d" % (vL8, vL8),
      "s_cmp_eq_u32 s%d, 0" % sFIVE, "s_cselect_b32 s%d, 0x%x, s%d" % (sWOF + 4, OOB - 8192, sWOF + 4))


def gen_fused(cfg):
    a = Asm()
    name = NAME + "_kernel"
    head(a, name)
    prologue(a, "L_exit"); a(";STAMP 0")
    a("s_mov_b32 s%d, 0" % sSPIN, "s_mov_b32 s%d, 0x%x" % (sF1, OOB))
    p1_roles(a, "L_idle")
    a("s_cmp_ge_u32 s%d, 18" % sLINE, "s_cbranch_scc1 L_p1v")
    sF, sPo = cfg["flag_step"], cfg["poll_step"]
    for isv in (False, True):
        if isv: a("L_p1v:")
        a.vm = []; a.lg = []
        hooks = {}
        def setup():
            p2_setup(a); p3_setup(a); fused_setup(a)
            a("s_lshl_b32 s%d, s%d, 7" % (sT0, sLINE), "s_lshl_b32 s%d, s%d, 2" % (sT1, sG), "s_add_u32 s%d, s%d, s%d" % (sT0, sT0, sT1),
              "s_add_u32 s%d, s%d, %d" % (sT0, sT0, F01), "s_add_u32 s%d, s%d, %d" % (sT1, sT0, 27 * 128),
              "s_cmp_eq_u32 s%d, 0" % sWAVE, "s_cselect_b32 s%d, s%d, s%d" % (sF0, sT0, sF1), "s_cselect_b32 s%d, s%d, s%d" % (sF1, sT1, sF1))
        hooks["setup"] = setup
        hooks[("step", cfg["tag_step"])] = lambda: tag_issue(a)
        hooks[("step", sF - 1)] = lambda: tag_check(a)
        hooks[("waitfor", sF)] = [("st", 0)]
        hooks[("bar", sF)] = lambda: flag_store(a, sF0)
        pi, pc = poll(a, vPA)
        def go():
            pc(); a(";STAMP 8"); q_load(a, 0); kv_dma(a, 0)
        def add(k, f):
            g = hooks.get(k)
            hooks[k] = f if g is None else (lambda: (g(), f()))
        add(("step", 14), lambda: p2_init(a))
        add(("step", sPo), pi)
        add(("step", sPo + 1) if sPo < 17 else "pre_epi1", go)
        p1_body(a, isv, cfg, hooks)
        kv_dma(a, 1)
        a.wait(vm=[("q", 0), ("kv", 0)])
        a("s_branch L_attn")
    a("L_idle:"); a.vm = []; a.lg = []
    a("s_waitcnt lgkmcnt(0)")
    a("s_cmp_lg_u32 s2, %d" % MASTER, "s_cbranch_scc1 L_nomaster", "s_cmp_lg_u32 s%d, 0" % sWAVE, "s_cbranch_scc1 L_nomaster",
      "s_mov_b32 s%d, %d" % (sT0, FEPOCH), "buffer_load_dword v2, off, %s, s%d sc1" % (srd(sWS), sT0), "s_waitcnt vmcnt(0)",
      "v_readfirstlane_b32 s%d, v2" % sT1, "s_mul_i32 s%d, s%d, 0x41c64e6d" % (sT1, sT1), "s_add_u32 s%d, s%d, 12345" % (sT1, sT1),
      "s_cmp_eq_u32 s%d, 0" % sT1, "s_cselect_b32 s%d, 12345, s%d" % (sT1, sT1), "v_mov_b32 v2, s%d" % sT1, "s_mov_b64 exec, 1",
      "buffer_store_dword v2, off, %s, 0 sc1" % srd(sDBG), "buffer_store_dword v2, off, %s, s%d sc1" % (srd(sWS), sT0), "s_mov_b64 exec, -1",
      "L_nomaster:")
    if cfg["pf_code"]:
        a("s_getpc_b64 s[%d:%d]" % (sRET, sRET + 1), "L_pc:", "s_sub_u32 s%d, s%d, L_pc-%s" % (sRET, sRET, name), "s_subb_u32 s%d, s%d, 0" % (sRET + 1, sRET + 1),
          "v_lshlrev_b32 v2, 7, v0", "v_min_u32 v2, L_codeend-%s-4, v2" % name, "global_load_dword v3, v2, s[%d:%d]" % (sRET, sRET + 1))
    if cfg["pf_x"]:
        a("s_and_b32 s%d, s%d, 1" % (sT0, sXCD), "s_lshl_b32 s%d, s%d, 2" % (sT0, sT0), "s_and_b32 s%d, s%d, 3" % (sT1, sJ), "s_add_u32 s%d, s%d, s%d" % (sT0, sT0, sT1),
          "s_add_u32 s%d, s%d, 8" % (sT0, sT0), "s_mul_i32 s%d, s%d, %d" % (sT0, sT0, 128 * 1152),
          "v_and_b32 v2, 127, v0", "v_mul_u32_u24 v2, 1152, v2", "v_and_b32 v4, 0x180, v0", "v_add_u32 v2, v2, v4",
          "buffer_load_dword v4, v2, %s, s%d offen" % (srd(sX), sT0), "buffer_load_dword v5, v2, %s, s%d offen offset:512" % (srd(sX), sT0),
          "s_cmp_ge_u32 s%d, 2" % sWAVE, "s_cselect_b32 s%d, 0x%x, s%d" % (sT0, OOB - 0x100000, sT0),
          "buffer_load_dword v6, v2, %s, s%d offen offset:1024" % (srd(sX), sT0))
    a("s_mov_b32 s%d, 0x%x" % (sF0, OOB))
    wo_role(a, "L_nowo")
    a("s_lshl_b32 s%d, s%d, 2" % (sT0, sLINE), "s_add_u32 s%d, s%d, %d" % (sT0, sT0, FW), "s_cmp_eq_u32 s%d, 0" % sWAVE, "s_cselect_b32 s%d, s%d, s%d" % (sF0, sT0, sF0))
    a("L_nowo:", "s_waitcnt vmcnt(0)"); a.vm = []; a.lg = []
    p2_setup(a); p3_setup(a); fused_setup(a); p2_init(a)
    tag_issue(a); tag_check(a)
    a("s_barrier")
    flag_store(a, sF0)
    pi, pc = poll(a, vPA, sleep=cfg["idle_sleep"])
    pi(); pc(); a(";STAMP 8"); q_load(a, 0); kv_dma(a, 0); kv_dma(a, 1)
    a.wait(vm=[("q", 0), ("kv", 0)])
    a("L_attn:"); a.vm = ["old"]; a.lg = []
    slows = []
    def slow(part, back):
        lab = a.uid("slowp"); slows.append((part, lab, back)); a("s_branch %s" % lab)
    ev = {}
    def at(k, f):
        g = ev.get(k)
        ev[k] = f if g is None else (lambda: (g(), f()))
    at(("pre", 0), lambda: a("s_barrier", ";STAMP 6"))
    def b1():
        a.wait(vm="old"); a("s_barrier"); flag_store(a, sF1)
    at(cfg["b1"], b1)
    pi, pc = poll(a, vPA, imm=27 * 128)
    at(cfg["pollL"][0], pi)
    at(cfg["pollL"][1], lambda: (pc(), a(";STAMP 9"), q_load(a, 1), kv_dma(a, 2)))
    at(cfg["pollL"][2], lambda: kv_dma(a, 3))
    ev["ql"] = lambda: a.wait(vm=("q", 1))
    def b2():
        a.wait(vm=[("kv", 2), ("kv", 3)]); a("s_barrier")
    at(("pre", 8), b2)
    pi2, pc2 = poll(a, vPA)
    u0 = cfg["wo_slot"]
    at((u0, 2), lambda: (a("v_min_u32 v%d, 35, v%d" % (vPA, vLANE), "v_lshlrev_b32 v%d, 2, v%d" % (vPA, vPA), "v_add_u32 v%d, %d, v%d" % (vPA, FW, vPA)), pi2()))
    at((u0 + 2, 2), pc2)
    for t in range(5): at((u0 + 2 + 2 * t, 5), lambda t=t: wo_load(a, [t], vL16, vL8))
    ns = cfg["nsolo"]
    ue = 32 - ns - 1
    def send_e():
        l = a.uid("se")
        a("s_cmp_lg_u32 s%d, 0" % sKH, "s_cbranch_scc1 %s" % l); send_partial(a, 0); a("%s:" % l)
        a.wait(lg="all"); a("s_barrier")
        l = a.uid("fe")
        a("s_cmp_eq_u32 s%d, 0" % sKH, "s_cbranch_scc1 %s" % l); finalize(a, 0, slow); a("%s:" % l)
    at((ue, 3), send_e)
    def oflag(part):
        l = a.uid("of")
        a("s_cmp_eq_u32 s%d, 0" % sKH, "s_cbranch_scc1 %s" % l,
          "s_lshl_b32 s%d, s%d, 2" % (sT0, sQI), "s_add_u32 s%d, s%d, s%d" % (sT0, sT0, sP), "s_lshl_b32 s%d, s%d, 2" % (sT0, sT0),
          "s_lshr_b32 s%d, s%d, 3" % (sT1, sHEAD), "s_add_u32 s%d, s%d, s%d" % (sT0, sT0, sT1), "s_lshl_b32 s%d, s%d, 7" % (sT0, sT0),
          "s_and_b32 s%d, s%d, 7" % (sT1, sHEAD), "s_lshl_b32 s%d, s%d, 2" % (sT1, sT1), "s_add_u32 s%d, s%d, s%d" % (sT0, sT0, sT1),
          "s_add_u32 s%d, s%d, %d" % (sT0, sT0, FO + 16384 * part), "s_waitcnt vmcnt(0)")
        flag_store(a, sT0, track=False)
        a("%s:" % l)
    at(cfg["oflag"], lambda: oflag(0))
    ofs = [(vO[0], vQ[0]), (vS[1], vS[1] + 16)]
    pi3, pc3 = poll(a, vPA)
    def opoll_addr():
        a("s_lshl_b32 s%d, s%d, 2" % (sT0, sXCD), "s_add_u32 s%d, s%d, s%d" % (sT0, sT0, sRT), "s_lshl_b32 s%d, s%d, 2" % (sT0, sT0),
          "s_add_u32 s%d, s%d, s%d" % (sT0, sT0, sKQ), "s_lshl_b32 s%d, s%d, 7" % (sT0, sT0), "s_add_u32 s%d, s%d, %d" % (sT0, sT0, FO),
          "v_and_b32 v%d, 7, v%d" % (vPA, vLANE), "v_lshl_add_u32 v%d, v%d, 2, s%d" % (vPA, vPA, sT0))
    at(cfg["opoll"][0], lambda: (opoll_addr(), pi3()))
    at(cfg["opoll"][1], lambda: (pc3(), o_load(a, 0, ofs[0], vT)()))
    p2_main(a, cfg, ev)
    a(";STAMP 7")
    a("s_cmp_lg_u32 s%d, 0" % sKH, "s_cbranch_scc1 L_fl", "s_nop 5")
    send_partial(a, 1)
    a("s_waitcnt lgkmcnt(0)", "s_barrier", "s_branch L_tail", "L_fl:", "s_setprio 3", "s_barrier")
    a.wait(vm="all")
    finalize(a, 1, slow)
    a("L_tail:", ";STAMP 10")
    acc = vS[0]
    l = a.uid("w0"); a("s_cmp_lg_u32 s%d, 0" % sKH, "s_cbranch_scc1 %s" % l, "s_waitcnt vmcnt(0)", "%s:" % l)
    p3_mfma(a, 0, ofs[0], acc)
    oflag(1)
    a(";STAMP 11")
    p3_reduce(a, 0, acc, 0, vT + 2, acc + 20)
    a("v_add_u32 v%d, 16384, v%d" % (vPA, vPA))
    go = o_load(a, 1, ofs[1], vT)
    pi4, pc4 = poll(a, vPA, sleep=0)
    a(";STAMP 12")
    pi4(); pc4(); a(";STAMP 13"); go()
    p3_mfma(a, 1, ofs[1], acc)
    a(";STAMP 14")
    p3_reduce(a, 1, acc, 32768, vT + 2, acc + 20)
    a(";STAMP 15", ";STAMPWAIT", ";STAMP 5", ";STAMPEND", "L_exit:", "s_endpgm")
    def reload():
        wo_load(a, range(5), vL16, vL8, track=False); a("s_waitcnt vmcnt(0)")
    for part, lab, back in slows: slow_path(a, part, lab, back, reload)
    a("L_codeend:")
    hdr = ["; @launch grid=(256,1,1) block=(512,1,1) lds=%d" % LDS_TOTAL]
    return finish(a, hdr, [name])


def finish(a, hdr, names):
    errs = lint(a.l)
    for e in errs: print("HAZARD", e, file=sys.stderr)
    out = hdr + ['.amdgcn_target "amdgcn-amd-amdhsa--gfx950"', ".text"] + a.l + ['.section .rodata,"a"']
    for n in names: out += [".p2align 6", kd(n)]
    return "\n".join(out) + "\n"


if __name__ == "__main__":
    mode = sys.argv[1] if len(sys.argv) > 1 else "split"
    out = sys.argv[2] if len(sys.argv) > 2 else "cdna_kernels/%s.s" % NAME
    cfg = dict(DEF)
    for kv in sys.argv[3:]:
        k, v = kv.split("=", 1); cfg[k] = eval(v)
    txt = {"split": gen_split, "fused": gen_fused}[mode](cfg)
    open(out, "w").write(txt)
    print("wrote", out, len(txt.split("\n")), "lines")
```

```python
import re, sys
import gen as G
STAMP = 0x1000000
REP = """.globl rep_kernel
.p2align 8
.type rep_kernel,@function
rep_kernel:
    s_cmp_ge_u32 s2, 1
    s_cbranch_scc1 L_rep_end
    s_load_dwordx2 s[4:5], s[0:1], 40
    s_load_dwordx2 s[12:13], s[0:1], 32
    s_mov_b32 s6, 0x2000000
    s_mov_b32 s7, 0x00020000
    s_mov_b32 s14, 256
    s_mov_b32 s15, 0x00020000
    v_lshlrev_b32 v1, 5, v0
    v_mov_b32 v2, 0
    v_mov_b32 v20, {initA}
    v_mov_b32 v21, {initB}
    ds_write_b64 v2, v[20:21]
    s_waitcnt lgkmcnt(0)
    s_barrier
    s_mov_b32 s8, {offA}
    s_mov_b32 s9, {offB}
    buffer_load_dwordx4 v[4:7], v1, s[4:7], s8 offen
    buffer_load_dwordx4 v[8:11], v1, s[4:7], s8 offen offset:16
    buffer_load_dwordx4 v[12:15], v1, s[4:7], s9 offen
    buffer_load_dwordx4 v[16:19], v1, s[4:7], s9 offen offset:16
    s_waitcnt vmcnt(0)
{red}
    s_waitcnt lgkmcnt(0)
    s_barrier
    ds_read_b64 v[20:21], v2
    s_memrealtime s[10:11]
    s_waitcnt lgkmcnt(0)
    v_sub_u32 v20, v21, v20
    s_nop 1
    v_readfirstlane_b32 s16, v20
    s_min_u32 s16, s16, 20000
    s_mul_i32 s16, s16, {mult}
L_rep_spin:
    s_memrealtime s[18:19]
    s_waitcnt lgkmcnt(0)
    s_sub_u32 s18, s18, s10
    s_cmp_lt_u32 s18, s16
    s_cbranch_scc1 L_rep_spin
L_rep_end:
    s_endpgm
"""
KD = """.p2align 6
.amdhsa_kernel rep_kernel
  .amdhsa_next_free_vgpr 32
  .amdhsa_next_free_sgpr 32
  .amdhsa_accum_offset 32
  .amdhsa_group_segment_fixed_size 0
  .amdhsa_kernarg_size 48
  .amdhsa_user_sgpr_count 2
  .amdhsa_user_sgpr_kernarg_segment_ptr 1
  .amdhsa_system_sgpr_workgroup_id_x 1
.end_amdhsa_kernel
"""
def instrument(txt, slots, mode="s_memrealtime"):
    assert len(slots) <= 9
    out = []
    used = set()
    for l in txt.split("\n"):
        m = re.match(r"\s*;STAMP (\d+)", l)
        if m:
            k = int(m.group(1))
            if k in slots:
                r = 84 + 2 * slots.index(k); out.append("    %s s[%d:%d]" % (mode, r, r + 1)); used.add(k)
        elif ";STAMPINIT" in l:
            out += ["    s_mov_b32 s%d, 0" % (84 + 2 * i) for i in range(len(slots))]; used = set()
        elif ";STAMPWAIT" in l: out.append("    s_waitcnt vmcnt(0)")
        elif ";STAMPEND" in l:
            out += ["    s_waitcnt lgkmcnt(0)", "    s_mov_b32 s22, 0x2000000", "    s_lshl_b32 s3, s2, 3", "    s_add_u32 s3, s3, s28", "    s_lshl_b32 s3, s3, 2", "    s_mov_b64 exec, 1"]
            for k in sorted(slots):
                out += ["    s_add_u32 s82, s3, %d" % (STAMP + k * 8192), "    v_mov_b32 v0, s%d" % (84 + 2 * slots.index(k)), "    buffer_store_dword v0, off, s[20:23], s82"]
        else: out.append(l)
    return "\n".join(out).replace("next_free_sgpr 96", "next_free_sgpr 102")
def with_report(txt, A, opA, B, opB, mult, waves=range(8)):
    txt = instrument(txt, sorted({A, B}))
    L = txt.split("\n")
    n = max(i for i, l in enumerate(L[:20]) if "@launch" in l)
    if "kernel=" not in L[n]: L[n] = L[n].replace("@launch ", "@launch kernel=%s_kernel " % G.NAME)
    L.insert(n + 1, "; @launch kernel=rep_kernel grid=(1,1,1) block=(256,1,1) lds=64")
    red = "\n".join("    ds_%s_u32 v2, v%d" % (opA, 4 + i) for i in waves) + "\n" + "\n".join("    ds_%s_u32 v2, v%d offset:4" % (opB, 12 + i) for i in waves)
    rep = REP.format(initA="-1" if opA == "min" else "0", initB="-1" if opB == "min" else "0", offA=STAMP + A * 8192, offB=STAMP + B * 8192, red=red, mult=mult)
    return "\n".join(L).replace('.section .rodata,"a"', rep + '.section .rodata,"a"\n' + KD)
```

```python
import sys; sys.path.insert(0,'gen')
from stamp import *
t = open(sys.argv[1]).read()
specs = [s.split(":") for s in sys.argv[2:]]
A,oa,B,ob = specs[0]
open('r0.s','w').write(with_report(t, int(A),oa,int(B),ob,0))
for i,(A,oa,B,ob) in enumerate(specs):
    open('r%d.s' % (i+1),'w').write(with_report(t, int(A),oa,int(B),ob,10))
```

```python
import sys, struct, math
from hazard import lint

NAME = "standalone__mha_block__prompt"

PITCH = 221184 + 128
SEC = 73728
OBASE = 32 * PITCH
OTILE = 36864 + 128
WOBASE = OBASE + 64 * OTILE
FBASE = WOBASE + 36 * 4 * 4608
F01 = FBASE
FRND = 27 * 8 * 128
FW = FBASE + 57344
FEPOCH = FW + 512
FO = FBASE + 65536
WS_SIZE = FO + 262144
CHUNK = 4864
LDS_SPARE = 32 * CHUNK
LDS_TOTAL = 163840
SCALE = struct.unpack("<I", struct.pack("<f", math.log2(math.e) / math.sqrt(18.0)))[0]

sX, sW, sWO, sOUT, sWS, sDBG = 4, 8, 12, 16, 20, 24
sWAVE, sXCD, sJ = 28, 29, 30
sTAG = 31
sLINE, sG, sSEC = 32, 33, 34
sXOFF, sWOFF, sM0X, sSCALE, sM0W, sST = 35, 36, 37, 38, 39, 40
sHEAD, sQI, sKH, sP = 41, 42, 43, 44
sVMASK = 46
sDMASK = 48
sCH, sQOFF = 50, 51
sCM = 45
sRT, sCB, sKQ, sRH = 52, 53, 54, 55
sFIVE = 56
sT0, sT1, sT2, sT3, sT4, sT5 = 60, 61, 62, 63, 64, 65
sRET = 66
sSPIN = 68
sWOF = 70
sOCOL = 75
sLOOP = 78
sSAVE = 80

def srd(s): return "s[%d:%d]" % (s, s + 3)
def vr(a, n=1): return "v%d" % a if n == 1 else "v[%d:%d]" % (a, a + n - 1)
def sr(a, n=1): return "s%d" % a if n == 1 else "s[%d:%d]" % (a, a + n - 1)

vLANE = 1
vQ = [2, 8]
vIDX = 14
vAK, vAR, vAV = 15, 16, 17
vDMA = 18
vQA, vQR = 22, 23
vT = 24
vPA, vPD, vL16, vL8 = 38, 39, 40, 41
vXS = 24
vWS = 26
vWR = 27
vXR = 28
vWR2 = 32
vSTA = 36
vACC = [48, 64]
vXF = [80, 96]
vWF = 112
vWO = 42
vV = 132
vK = 148
vKR = 156
vO = [160, 176]
vS = [192, 224]


class Asm:
    def __init__(self):
        self.l = []
        self.vm = []
        self.lg = []
        self.n = 0

    def __call__(self, *lines):
        for s in lines:
            if isinstance(s, (list, tuple)):
                self(*s)
            elif s.endswith(":") or s.startswith((".", ";")):
                self.l.append(s)
            else:
                self.l.append("    " + s)

    def uid(self, p):
        self.n += 1
        return "L_%s_%d" % (p, self.n)

    def vmem(self, s, tag):
        self(s); self.vm.append(tag)
        assert len(self.vm) <= 63

    def lds(self, s, tag=None):
        self(s); self.lg.append(tag)

    def _cnt(self, q, tags):
        if not isinstance(tags, (list, set)): tags = [tags]
        last = max([k for k, t in enumerate(q) if t in tags], default=-1)
        return None if last < 0 else len(q) - 1 - last

    def wait(self, vm=None, lg=None):
        parts = []
        if vm is not None:
            n = 0 if vm == "all" else self._cnt(self.vm, vm)
            if n is not None:
                parts.append("vmcnt(%d)" % n); self.vm = self.vm[len(self.vm) - n:]
        if lg is not None:
            n = 0 if lg == "all" else self._cnt(self.lg, lg)
            if n is not None:
                n = min(n, 15)
                parts.append("lgkmcnt(%d)" % n); self.lg = self.lg[len(self.lg) - n:]
        if parts: self("s_waitcnt " + " ".join(parts))


def prologue(a, endlabel):
    a("s_cmp_ge_u32 s2, 256", "s_cbranch_scc1 %s" % endlabel)
    for k, s in enumerate((sX, sW, sWO, sOUT, sDBG, sWS)):
        a("s_load_dwordx2 %s, s[0:1], %d" % (sr(s, 2), 8 * k))
    for s, n in ((sX, 2359296), (sW, 1990656), (sWO, 663552), (sOUT, 2359296), (sDBG, 256), (sWS, WS_SIZE)):
        a("s_mov_b32 s%d, %d" % (s + 2, n), "s_mov_b32 s%d, 0x00020000" % (s + 3))
    a("v_lshrrev_b32 v2, 6, v0", "v_and_b32 v%d, 63, v0" % vLANE, "v_readfirstlane_b32 s%d, v2" % sWAVE,
      "s_and_b32 s%d, s2, 7" % sXCD, "s_lshr_b32 s%d, s2, 3" % sJ)
    a(";STAMPINIT")


def p1_roles(a, idle):
    a("s_lshr_b32 s%d, s%d, 2" % (sT0, sJ),
      "s_lshr_b32 s%d, s%d, 1" % (sT1, sXCD),
      "s_mul_i32 s%d, s%d, 7" % (sLINE, sT1),
      "s_add_u32 s%d, s%d, s%d" % (sLINE, sLINE, sT0),
      "s_cmp_ge_u32 s%d, 7" % sT0, "s_cbranch_scc1 %s" % idle,
      "s_cmp_ge_u32 s%d, 27" % sLINE, "s_cbranch_scc1 %s" % idle,
      "s_and_b32 s%d, s%d, 1" % (sG, sXCD), "s_lshl_b32 s%d, s%d, 2" % (sG, sG),
      "s_and_b32 s%d, s%d, 3" % (sT0, sJ), "s_add_u32 s%d, s%d, s%d" % (sG, sG, sT0))


XBASE = 65536
def xslot(s): return XBASE + 16384 * (s % 6)
def wslot(s): return 8192 * (s % 8)


def rotation(a, d, t, extra=None):
    a("s_lshr_b32 s%d, s%d, 2" % (d, sJ), "s_and_b32 s%d, s%d, 3" % (t, sJ), "s_lshl1_add_u32 s%d, s%d, s%d" % (d, t, d),
      "s_and_b32 s%d, s%d, 6" % (t, sXCD), "s_cmp_ge_u32 s%d, 6" % t, "s_addc_u32 s%d, s%d, s%d" % (d, d, t))
    if extra is not None: a("s_add_u32 s%d, s%d, s%d" % (d, d, extra))
    for k in range(2): a("s_sub_u32 s%d, s%d, 9" % (t, d), "s_cselect_b32 s%d, s%d, s%d" % (d, d, t))


def p1_body(a, isv, cfg, hooks):
    L = vLANE
    t0, t1, t2, t3 = 38, 39, 40, 41
    a("s_and_b32 s%d, s%d, 1" % (sT0, sWAVE), "s_lshr_b32 s%d, s%d, 1" % (sT1, sWAVE),
      "v_lshrrev_b32 v%d, 3, v%d" % (t0, L),
      "v_and_b32 v%d, 7, v%d" % (t1, L),
      "v_lshrrev_b32 v%d, 4, v%d" % (t2, L),
      "v_xor_b32 v%d, v%d, v%d" % (t2, t2, t1),
      "v_lshlrev_b32 v%d, 4, v%d" % (t2, t2),
      "s_lshl_b32 s%d, s%d, 5" % (sT2, sT1))
    if isv:
        a("s_lshl_b32 s%d, s%d, 2" % (sT3, sT0), "s_add_u32 s%d, s%d, s%d" % (sT2, sT2, sT3),
          "v_and_b32 v%d, 4, v%d" % (t3, t0), "v_add3_u32 v%d, v%d, v%d, s%d" % (t3, t3, t0, sT2))
    else:
        a("s_add_u32 s%d, s%d, s%d" % (sT2, sT2, sT0), "v_lshl_add_u32 v%d, v%d, 1, s%d" % (t3, t0, sT2))
    a("v_mul_u32_u24 v%d, 1152, v%d" % (t3, t3),
      "v_add_u32 v%d, v%d, v%d" % (vXS, t3, t2),
      "v_xor_b32 v%d, 64, v%d" % (t2, t2),
      "v_add_u32 v%d, v%d, v%d" % (vXS + 1, t3, t2),
      "v_add_u32 v%d, %d, v%d" % (vXS + 1, 16 * 1152 - 1024, vXS + 1))
    a("s_lshl_b32 s%d, s%d, 3" % (sT2, sWAVE), "v_add_u32 v%d, s%d, v%d" % (t3, sT2, t0),
      "v_mul_u32_u24 v%d, 3456, v%d" % (t3, t3),
      "v_and_b32 v%d, 2, v%d" % (t2, t0), "s_lshl_b32 s%d, s%d, 2" % (sT3, sT0),
      "v_xor_b32 v%d, v%d, v%d" % (t2, t2, t1), "v_xor_b32 v%d, s%d, v%d" % (t2, sT3, t2),
      "v_lshl_add_u32 v%d, v%d, 4, v%d" % (vWS, t2, t3))
    a("s_mul_i32 s%d, s%d, %d" % (sT2, sG, 128 * 1152), "s_lshl_b32 s%d, s%d, 7" % (sT3, sLINE),
      "v_add_u32 v%d, s%d, v%d" % (vXS, sT2, vXS), "v_add_u32 v%d, s%d, v%d" % (vXS + 1, sT2, vXS + 1), "v_add_u32 v%d, s%d, v%d" % (vWS, sT3, vWS))
    if cfg["rot"]:
        rotation(a, sT2, sT3)
    else:
        a("s_mov_b32 s%d, 0" % sT2)
    a("s_lshl_b32 s%d, s%d, 7" % (sXOFF, sT2), "s_mul_i32 s%d, s%d, %d" % (sWOFF, sT2, 64 * 3456),
      "s_lshl_b32 s%d, s%d, 11" % (sM0X, sWAVE),
      "s_lshl_b32 s%d, s%d, 10" % (sM0W, sWAVE))
    a("s_waitcnt lgkmcnt(0)", ";STAMP 17")

    def issue(kind, s):
        if kind == "w":
            def fw():
                a("s_add_u32 m0, s%d, %d" % (sM0W, wslot(s)))
                if s: a("s_add_u32 s%d, s%d, %d" % (sWOFF, sWOFF, 64 * 3456), "s_cmp_eq_u32 s%d, %d" % (sWOFF, 576 * 3456), "s_cselect_b32 s%d, 0, s%d" % (sWOFF, sWOFF))
                else: a("s_nop 0")
                a.vmem("buffer_load_dwordx4 v%d, %s, s%d offen lds" % (vWS, srd(sW), sWOFF), ("d", s))
            return [fw]
        def f0():
            a("s_add_u32 m0, s%d, %d" % (sM0X, xslot(s)))
            if s: a("s_add_u32 s%d, s%d, 128" % (sXOFF, sXOFF), "s_cmpk_eq_u32 s%d, 1152" % sXOFF, "s_cselect_b32 s%d, 0, s%d" % (sXOFF, sXOFF))
            else: a("s_nop 0")
            if s == 9: a("v_add_u32 v%d, %d, v%d" % (vXS, 1024 * 1152, vXS), "v_add_u32 v%d, %d, v%d" % (vXS + 1, 1024 * 1152, vXS + 1))
            a.vmem("buffer_load_dwordx4 v%d, %s, s%d offen lds" % (vXS, srd(sX), sXOFF), ("d", s))
        def f1():
            a.vmem("buffer_load_dwordx4 v%d, %s, s%d offen offset:1024 lds" % (vXS + 1, srd(sX), sXOFF), ("d", s))
        return [f0, f1]

    plan = cfg["plan"]
    for b, kind, s in plan:
        assert b < s and (kind == "w" and (s < 8 or b >= s - 7) or kind == "x" and (s < 6 or b >= s - 5))
        if b < 0:
            for f in issue(kind, s): f()
    hooks.get("start", lambda: None)()

    a("s_and_b32 s%d, s%d, 3" % (sT0, sWAVE), "s_lshr_b32 s%d, s%d, 2" % (sT1, sWAVE),
      "s_lshl_b32 s%d, s%d, 12" % (sT2, sT0), "s_add_u32 s%d, s%d, %d" % (sT2, sT2, XBASE),
      "v_and_b32 v%d, 15, v%d" % (t0, L), "v_lshrrev_b32 v%d, 4, v%d" % (t1, L),
      "v_bfe_u32 v%d, v%d, 1, 3" % (t2, L), "v_xor_b32 v%d, v%d, v%d" % (t2, t2, t1),
      "v_lshlrev_b32 v%d, 4, v%d" % (t2, t2),
      "v_lshl_add_u32 v%d, v%d, 7, s%d" % (t3, t0, sT2))
    for m in range(2):
        a("v_xor_b32 v%d, %d, v%d" % (vXR + m, 64 * m, t2), "v_add_u32 v%d, v%d, v%d" % (vXR + m, vXR + m, t3),
          "v_add_u32 v%d, 0x10000, v%d" % (vXR + 2 + m, vXR + m))
    a("v_bfe_u32 v%d, v%d, 2, 2" % (t2, L), "v_lshl_add_u32 v%d, v%d, 3, v%d" % (t2, t1, t2),
      "v_lshlrev_b32 v%d, 7, v%d" % (vWR, t2),
      "v_and_b32 v%d, 3, v%d" % (t2, L), "v_lshl_add_u32 v%d, v%d, 3, v%d" % (vWR, t2, vWR),
      "s_lshl_b32 s%d, s%d, 1" % (sT2, sT1),
      "v_bfe_u32 v%d, v%d, 3, 2" % (t2, L), "v_xor_b32 v%d, s%d, v%d" % (t2, sT2, t2),
      "v_lshl_add_u32 v%d, v%d, 5, v%d" % (vWR, t2, vWR),
      "v_xor_b32 v%d, 32, v%d" % (vWR2, vWR))
    a("s_lshl_b32 s%d, s%d, 1" % (sT2, sG), "s_lshr_b32 s%d, s%d, 1" % (sT3, sT0), "s_add_u32 s%d, s%d, s%d" % (sT2, sT2, sT3),
      "s_mul_i32 s%d, s%d, %d" % (sST, sT2, PITCH), "s_and_b32 s%d, s%d, 1" % (sT3, sT0),
      "v_lshlrev_b32 v%d, 4, v%d" % (t0, t0))
    if isv:
        a("s_mul_i32 s%d, s%d, %d" % (sT3, sT3, 4 * 9216), "s_add_u32 s%d, s%d, s%d" % (sST, sST, sT3),
          "s_lshl_b32 s%d, s%d, 10" % (sT3, sLINE), "s_add_u32 s%d, s%d, s%d" % (sST, sST, sT3),
          "s_lshl_b32 s%d, s%d, 9" % (sT3, sT1), "s_add_u32 s%d, s%d, s%d" % (sST, sST, sT3),
          "s_add_u32 s%d, s%d, %d" % (sST, sST, 2 * SEC - 18 * 1024),
          "v_mul_u32_u24 v%d, 9216, v%d" % (vSTA, t1), "v_add_u32 v%d, v%d, v%d" % (vSTA, t0, vSTA))
    else:
        a("s_lshl_b32 s%d, s%d, 8" % (sT3, sT3), "s_add_u32 s%d, s%d, s%d" % (sST, sST, sT3),
          "s_lshl_b32 s%d, s%d, 13" % (sT3, sLINE), "s_add_u32 s%d, s%d, s%d" % (sST, sST, sT3),
          "s_lshl_b32 s%d, s%d, 12" % (sT3, sT1), "s_add_u32 s%d, s%d, s%d" % (sST, sST, sT3),
          "v_lshl_add_u32 v%d, v%d, 9, v%d" % (vSTA, t1, t0),
          "s_mov_b32 s%d, 0x%08x" % (sT3, SCALE), "s_cmp_lt_u32 s%d, 9" % sLINE,
          "s_cselect_b32 s%d, s%d, 1.0" % (sSCALE, sT3))
    hooks.get("setup", lambda: None)()

    def reads(s):
        sl = s % 6
        r = []
        for m in range(2):
            for t in range(2):
                r.append("ds_read_b128 %s, v%d offset:%d" % (vr(vXF[s % 2] + 8 * m + 4 * t, 4), vXR + m + (2 if sl >= 4 else 0), 16384 * (sl % 4) + 2048 * t))
                if s < 9:
                    for h in range(2):
                        r.append("ds_read_b64_tr_b16 %s, v%d offset:%d" % (vr(vWF + 16 * s + 8 * m + 4 * t + 2 * h, 2), (vWR, vWR2)[t], wslot(s) + (32 * m + 4 * h) * 128))
        return [(lambda x=x: a.lds(x)) for x in r]

    def mfmas(s):
        r = []
        for m in range(2):
            for ft in range(2):
                for tt in range(2):
                    acc = vr(vACC[s // 9] + 8 * ft + 4 * tt, 4)
                    w = vr(vWF + 16 * (s % 9) + 8 * m + 4 * ft, 4); x = vr(vXF[s % 2] + 8 * m + 4 * tt, 4)
                    c = "0" if (s % 9 == 0 and m == 0) else acc
                    r.append("v_mfma_f32_16x16x32_bf16 %s, %s, %s, %s" % ((acc, x, w, c) if isv else (acc, w, x, c)))
        return r

    def store(r, n):
        a.vmem("buffer_store_dwordx4 %s, v%d, %s, s%d offen offset:%d sc1" % (vr(vACC[r] + 8 * n, 4), vSTA, srd(sWS), sST, (256 if isv else 2048) * n), ("st", r))

    def epilogue(r):
        acc = vACC[r]
        mid = hooks.get("mid_epi1") if r else None
        for n in range(2):
            if not isv:
                for i in range(8 * n, 8 * n + 8, 2): a("v_pk_mul_f32 %s, %s, %s op_sel_hi:[1,0]" % (vr(acc + i, 2), vr(acc + i, 2), sr(sSCALE, 2)))
            for i in range(4): a("v_cvt_pk_bf16_f32 v%d, v%d, v%d" % (acc + 8 * n + i, acc + 8 * n + 2 * i, acc + 8 * n + 2 * i + 1))
            if not mid: store(r, n)
        if mid:
            mid(); store(r, 0); store(r, 1)
        if r == 0: a("s_add_u32 s%d, s%d, %d" % (sST, sST, 16 * PITCH))

    for s in range(18):
        extra = hooks.get(("waitfor", s), [])
        a.wait(vm=[("d", s)] + extra, lg="all")
        a("s_barrier")
        a(";STAMP %d" % (20 + s))
        hooks.get(("bar", s), lambda: None)()
        side = reads(s)
        for b, kind, s2 in plan:
            if b == s: side += issue(kind, s2)
        mm = mfmas(s - 1) if s > 0 else []
        if cfg["early0"] and s == 9: mm = []
        per = cfg["per0"] if s < 9 else cfg["per1"]
        for x in mm:
            a(x)
            for f in side[:per]: f()
            side = side[per:]
        for f in side: f()
        if cfg["early0"] and s == 8:
            a.wait(lg="all"); a(mfmas(8))
        if s == (8 if cfg["early0"] else 9):
            a("s_nop 5")
            epilogue(0)
            a(";STAMP 39")
        hooks.get(("step", s), lambda: None)()
    a.wait(lg="all")
    a(mfmas(17))
    hooks.get("pre_epi1", lambda: None)()
    a("s_nop 5")
    epilogue(1)
    a(";STAMP 38")
    hooks.get("post_epi1", lambda: None)()


def wo_role(a, skip):
    L = vLANE
    t0, t1, t2, t3 = 24, 25, 26, 27
    lab = a.uid("wo")
    a("s_lshl_b32 s%d, s%d, 2" % (sT0, sXCD), "s_and_b32 s%d, s%d, 3" % (sT5, sJ), "s_add_u32 s%d, s%d, s%d" % (sLINE, sT0, sT5),
      "s_cmp_ge_u32 s%d, 28" % sJ, "s_cbranch_scc1 %s" % lab,
      "s_add_u32 s%d, s%d, 8" % (sLINE, sLINE),
      "%s:" % lab,
      "s_waitcnt lgkmcnt(0)",
      "s_cmp_ge_u32 s%d, 36" % sLINE, "s_cbranch_scc1 %s" % skip)
    a("s_lshl_b32 s%d, s%d, 3" % (sT0, sWAVE), "v_lshrrev_b32 v%d, 3, v%d" % (t0, L), "v_add_u32 v%d, s%d, v%d" % (t0, sT0, t0),
      "v_mul_u32_u24 v%d, 1152, v%d" % (t0, t0), "v_and_b32 v%d, 7, v%d" % (t1, L), "v_lshl_add_u32 v%d, v%d, 4, v%d" % (t0, t1, t0),
      "s_lshr_b32 s%d, s%d, 2" % (sT4, sLINE), "s_lshl_b32 s%d, s%d, 7" % (sT1, sT4),
      "s_mul_i32 s%d, s%d, %d" % (sT2, sT5, 144 * 1152), "s_add_u32 s%d, s%d, s%d" % (sT1, sT1, sT2),
      "s_lshl_b32 s%d, s%d, 10" % (sT2, sWAVE))
    for k in range(3):
        a("s_add_u32 m0, s%d, %d" % (sT2, 8192 * k))
        if k == 2: a("s_cmp_ge_u32 s%d, 2" % sWAVE, "s_cselect_b32 s%d, 0x40000000, s%d" % (sT1, sT1))
        else: a("s_nop 0")
        a.vmem("buffer_load_dwordx4 v%d, %s, s%d offen lds" % (t0, srd(sWO), sT1), "wo")
        if k < 2: a("s_add_u32 s%d, s%d, %d" % (sT1, sT1, 64 * 1152))
    a("s_and_b32 s%d, s%d, 3" % (sT0, sWAVE), "s_lshr_b32 s%d, s%d, 2" % (sT1, sWAVE),
      "s_mul_i32 s%d, s%d, 72" % (sT3, sT1), "s_lshl_b32 s%d, s%d, 5" % (sT2, sT0),
      "v_lshrrev_b32 v%d, 5, v%d" % (t0, L), "v_mul_u32_u24 v%d, 18, v%d" % (t0, t0),
      "v_bfe_u32 v%d, v%d, 2, 3" % (t1, L),
      "v_add3_u32 v%d, v%d, v%d, s%d" % (t0, t0, t1, sT3),
      "v_and_b32 v%d, 3, v%d" % (t2, L), "v_lshl_add_u32 v%d, v%d, 3, s%d" % (t2, t2, sT2),
      "v_lshl_add_u32 v%d, v%d, 7, v%d" % (t0, t0, t2),
      "v_lshrrev_b32 v%d, 3, v%d" % (t1, L), "v_mul_u32_u24 v%d, 18, v%d" % (t1, t1),
      "v_bfe_u32 v%d, v%d, 2, 1" % (t3, L),
      "v_add3_u32 v%d, v%d, v%d, 16" % (t1, t1, t3),
      "v_lshl_add_u32 v%d, v%d, 7, v%d" % (t1, t1, t2))
    a("s_lshl_b32 s%d, s%d, 2" % (sT2, sT4), "s_add_u32 s%d, s%d, s%d" % (sT2, sT2, sT0), "s_lshl_b32 s%d, s%d, 2" % (sT2, sT2),
      "s_add_u32 s%d, s%d, s%d" % (sT2, sT2, sT5), "s_mul_i32 s%d, s%d, 4608" % (sT2, sT2),
      "s_add_u32 s%d, s%d, %d" % (sT2, sT2, WOBASE), "s_add_u32 s%d, s%d, 4096" % (sT4, sT2),
      "s_lshl_b32 s%d, s%d, 11" % (sT3, sT1), "s_add_u32 s%d, s%d, s%d" % (sT2, sT2, sT3),
      "v_lshlrev_b32 v%d, 4, v%d" % (t2, L), "v_lshlrev_b32 v%d, 3, v%d" % (t3, L))
    a.wait(vm="all"); a("s_barrier")
    for m in range(2):
        for h in range(2):
            a.lds("ds_read_b64_tr_b16 %s, v%d offset:%d" % (vr(48 + 4 * m + 2 * h, 2), t0, (36 * m + 8 * h) * 128))
    a.lds("ds_read_b64_tr_b16 v[56:57], v%d" % t1)
    a.wait(lg="all")
    for m in range(2):
        a.vmem("buffer_store_dwordx4 %s, v%d, %s, s%d offen offset:%d sc1" % (vr(48 + 4 * m, 4), t2, srd(sWS), sT2, 1024 * m), "st")
    a.vmem("buffer_store_dwordx2 v[56:57], v%d, %s, s%d offen sc1" % (t3, srd(sWS), sT4), "st")


def p2_setup(a):
    L = vLANE
    t0, t1, t2, t3 = 38, 39, 40, 41
    a("s_lshl_b32 s%d, s%d, 2" % (sHEAD, sXCD), "s_lshr_b32 s%d, s%d, 3" % (sT0, sJ), "s_add_u32 s%d, s%d, s%d" % (sHEAD, sHEAD, sT0),
      "s_and_b32 s%d, s%d, 7" % (sQI, sJ), "s_and_b32 s%d, s%d, 3" % (sP, sWAVE), "s_lshr_b32 s%d, s%d, 2" % (sKH, sWAVE),
      "s_mov_b32 s%d, 0x3ffff" % sVMASK, "s_mov_b32 s%d, 0x3ffff" % (sVMASK + 1),
      "s_mov_b32 s%d, -1" % sDMASK, "s_mov_b32 s%d, 0xffff" % (sDMASK + 1),
      "s_and_b32 s%d, s%d, 1" % (sT0, sHEAD),
      "s_lshr_b32 s%d, s%d, 1" % (sT1, sHEAD), "s_mul_i32 s%d, s%d, %d" % (sT1, sT1, 9 * 512))
    a("v_and_b32 v%d, 31, v%d" % (t0, L), "v_lshrrev_b32 v%d, 5, v%d" % (t1, L))
    a("s_lshl_b32 s%d, s%d, 11" % (sT2, sT0), "s_add_u32 s%d, s%d, s%d" % (sT2, sT2, sT1), "s_add_u32 s%d, s%d, %d" % (sT2, sT2, SEC),
      "v_lshl_add_u32 v%d, v%d, 4, s%d" % (vDMA, L, sT2),
      "s_mul_i32 s%d, s%d, 288" % (sT3, sHEAD))
    for k in (2, 3, 4):
        imm = 1024 * k if k < 4 else 0
        d = vDMA + k - 1
        a("v_add_u32 v%d, %d, v%d" % (t2, (64 * k - 160) & 0xffffffff, L))
        if k == 2: a("v_max_i32 v%d, 0, v%d" % (t2, t2))
        a("v_mul_u32_u24 v%d, 3641, v%d" % (t3, t2), "v_lshrrev_b32 v%d, 16, v%d" % (t3, t3),
          "v_mul_u32_u24 v%d, %d, v%d" % (t3, 9216 - 288, t3),
          "v_lshl_add_u32 v%d, v%d, 4, v%d" % (t3, t2, t3),
          "s_add_u32 s%d, s%d, %d" % (sT4, sT3, 2 * SEC - imm),
          "v_add_u32 v%d, s%d, v%d" % (d, sT4, t3))
        if k == 2:
            a("v_cmp_gt_u32 vcc, 32, v%d" % L, "s_nop 1", "v_cndmask_b32 v%d, v%d, v%d, vcc" % (d, d, vDMA))
    a("s_mul_i32 s%d, s%d, %d" % (sT2, sKH, CHUNK),
      "s_lshl_b32 s%d, s%d, 9" % (sT3, sT0), "s_add_u32 s%d, s%d, s%d" % (sT3, sT3, sT2),
      "v_lshlrev_b32 v%d, 10, v%d" % (t2, t1), "v_lshl_add_u32 v%d, v%d, 3, v%d" % (t2, t0, t2),
      "v_add_u32 v%d, s%d, v%d" % (vAK, sT3, t2),
      "s_mul_i32 s%d, s%d, %d" % (sT3, sT0, (4 - 2048) & 0xffffffff), "s_add_u32 s%d, s%d, 2048" % (sT3, sT3),
      "s_add_u32 s%d, s%d, s%d" % (sT3, sT3, sT2),
      "v_lshl_add_u32 v%d, v%d, 3, s%d" % (vAR, L, sT3),
      "s_add_u32 s%d, s%d, 2560" % (sT3, sT2),
      "v_mul_u32_u24 v%d, 288, v%d" % (t3, t1), "v_lshl_add_u32 v%d, v%d, 4, v%d" % (t3, t0, t3),
      "v_add_u32 v%d, s%d, v%d" % (vAV, sT3, t3))
    a("s_mul_i32 s%d, s%d, %d" % (sT3, sT0, 5 * 512), "s_add_u32 s%d, s%d, s%d" % (sT3, sT3, sT1),
      "v_add_u32 v%d, s%d, v%d" % (vQA, sT3, t2),
      "s_lshl_b32 s%d, s%d, 2" % (sT3, sT0), "s_add_u32 s%d, s%d, s%d" % (sT3, sT3, sT1), "s_add_u32 s%d, s%d, 2048" % (sT3, sT3),
      "v_lshl_add_u32 v%d, v%d, 3, s%d" % (vQR, t0, sT3),
      "s_lshl_b32 s%d, s%d, 1" % (sT3, sQI), "s_lshr_b32 s%d, s%d, 1" % (sT4, sP), "s_add_u32 s%d, s%d, s%d" % (sT3, sT3, sT4),
      "s_mul_i32 s%d, s%d, %d" % (sQOFF, sT3, PITCH), "s_and_b32 s%d, s%d, 1" % (sT4, sP), "s_lshl_b32 s%d, s%d, 8" % (sT4, sT4),
      "s_add_u32 s%d, s%d, s%d" % (sQOFF, sQOFF, sT4),
      "v_mov_b32 v%d, 0xdddddddd" % vIDX, "v_mov_b32 v%d, 0" % (vQ[0] + 5), "v_mov_b32 v%d, 0" % (vQ[1] + 5))


def q_load(a, part):
    so = sQOFF
    if part:
        a("s_add_u32 s%d, s%d, %d" % (sT0, sQOFF, 16 * PITCH)); so = sT0
    q = vQ[part]
    a.vmem("buffer_load_dwordx2 %s, v%d, %s, s%d offen sc1" % (vr(q, 2), vQA, srd(sWS), so), ("q", part))
    a.vmem("buffer_load_dwordx2 %s, v%d, %s, s%d offen offset:512 sc1" % (vr(q + 2, 2), vQA, srd(sWS), so), ("q", part))
    a.vmem("buffer_load_dword v%d, v%d, %s, s%d offen sc1" % (q + 4, vQR, srd(sWS), so), ("q", part))


def kv_dma(a, st, part="kv"):
    if "k" in part:
        a("s_lshl1_add_u32 s%d, s%d, s%d" % (sT0, sP, sKH), "s_add_u32 s%d, s%d, %d" % (sT0, sT0, 8 * st), "s_mul_i32 s%d, s%d, %d" % (sCM, sT0, CHUNK), "s_mov_b32 m0, s%d" % sCM,
          "s_mul_i32 s%d, s%d, %d" % (sCH, sT0, PITCH))
        for k in range(3):
            a.vmem("buffer_load_dwordx4 v%d, %s, s%d offen offset:%d sc1 lds" % (vDMA + max(0, k - 1), srd(sWS), sCH, 1024 * k), ("k", st))
    if "v" in part:
        if "k" not in part: a("s_mov_b32 m0, s%d" % sCM, "s_nop 0")
        a.vmem("buffer_load_dwordx4 v%d, %s, s%d offen offset:3072 sc1 lds" % (vDMA + 2, srd(sWS), sCH), ("kv", st))
        a("s_add_u32 m0, s%d, 4096" % sCM, "s_mov_b64 exec, %s" % sr(sDMASK, 2))
        a.vmem("buffer_load_dwordx4 v%d, %s, s%d offen sc1 lds" % (vDMA + 3, srd(sWS), sCH), ("kv", st))
        a("s_mov_b64 exec, -1")


def v_consts(a, base, t):
    a("v_and_b32 v%d, 27, v%d" % (t, vLANE), "v_cmp_eq_u32 vcc, 18, v%d" % t, "v_mov_b32 v%d, 0x3f803f80" % t, "s_nop 0",
      "v_cndmask_b32 v%d, 0, v%d, vcc" % (base, t))
    a("v_mov_b32 v%d, v%d" % (base + 1, base))
    for i in range(1, 8): a("v_mov_b64 %s, %s" % (vr(base + 2 * i, 2), vr(base, 2)))


def p2_init(a):
    word_setup(a)
    v_consts(a, vV, vV + 2)
    a("v_mov_b32 v%d, 0" % (vKR + 1))
    for i in range(16): a("v_mov_b64 %s, 0" % vr(vO[0] + 2 * i, 2))


def p2_main(a, cfg, ev):
    ns = cfg["nsolo"]
    U = [(i, 0) for i in range(ns)] + [(i, q) for i in range(ns, 16) for q in range(2)] + [(i, 1) for i in range(ns)]
    N = len(U)
    base = {"k": 0, "r": 0, "v": 0}
    reg = {"k": vAK, "r": vAR, "v": vAV}
    seen = set()

    def off(kind, i):
        if i not in seen:
            seen.add(i)
            if ("pre", i) in ev: ev[("pre", i)]()
        want = (i // 6) * 6
        if base[kind] != want:
            a("v_add_u32 v%d, 0x%x, v%d" % (reg[kind], ((want - base[kind]) * 2 * CHUNK) & 0xffffffff, reg[kind]))
            base[kind] = want
        return (i - want) * 2 * CHUNK

    def rR(i):
        o = off("r", i); a.lds("ds_read_b32 v%d, v%d offset:%d" % (vKR, vAR, o), "R")
    def rK(i, t):
        o = off("k", i)
        for h in range(2): a.lds("ds_read_b64 %s, v%d offset:%d" % (vr(vK + 4 * t + 2 * h, 2), vAK, o + 256 * t + 512 * h), ("K", t))
    def rV(i, fs):
        o = off("v", i)
        if not cfg.get("x_nomask"): a("s_mov_b64 exec, %s" % sr(sVMASK, 2))
        for f in fs: a.lds("ds_read_b128 %s, v%d offset:%d" % (vr(vV + 4 * f, 4), vAV, o + 576 * f), ("V", f // 2))
        if not cfg.get("x_nomask"): a("s_mov_b64 exec, -1")
    def R(u):
        a.wait(lg="R")
        if U[u][1] == 1 and "ql" in ev: ev.pop("ql")()
        a("v_mfma_f32_32x32x4_2b_bf16 %s, %s, %s, 0" % (vr(vS[u % 2], 32), vr(vKR, 2), vr(vQ[U[u][1]] + 4, 2)))
    def M(u, t):
        a.wait(lg=("K", t))
        s = vr(vS[u % 2] + 16 * t, 16)
        a("v_mfma_f32_32x32x16_bf16 %s, %s, %s, %s" % (s, vr(vK + 4 * t, 4), vr(vQ[U[u][1]], 4), s))
    def P(u, f):
        a.wait(lg=("V", f // 2))
        a("v_smfmac_f32_32x32x32_bf16 %s, %s, %s, v%d" % (vr(vO[U[u][1]], 16), vr(vV + 4 * f, 4), vr(vS[u % 2] + 8 * f, 8), vIDX))
    ch = lambda u: U[u][0]
    newk = lambda u: u < N and ch(u) != ch(u - 1)

    rR(ch(0)); rK(ch(0), 0); rK(ch(0), 1)
    if "v0" not in ev: rV(ch(0), (0, 1, 2, 3))
    R(0)
    if newk(1): rR(ch(1))
    a("s_nop 15", "s_nop 1")
    M(0, 0)
    if newk(1): rK(ch(1), 0)
    M(0, 1)
    if newk(1): rK(ch(1), 1)
    a("s_nop 7")
    pos = cfg["pos"]
    for u in range(N):
        def op(j):
            if j == 0:
                if u > 0:
                    P(u - 1, 3)
                    if newk(u): rV(ch(u), (2, 3))
            elif j == 1:
                if u + 1 < N:
                    R(u + 1)
                    if newk(u + 2): rR(ch(u + 2))
                    if u == 0 and "v0" in ev:
                        ev["v0"](); rV(ch(0), (0, 1, 2, 3))
            elif j == 2: P(u, 0)
            elif j == 3:
                P(u, 1)
                if newk(u + 1): rV(ch(u + 1), (0, 1))
            elif j == 4 or j == 6:
                if u + 1 < N:
                    M(u + 1, (j - 4) // 2)
                    if newk(u + 2): rK(ch(u + 2), (j - 4) // 2)
            elif j == 5: P(u, 2)
            if (u, j) in cfg.get("prio", {}): a("s_setprio %d" % cfg["prio"][(u, j)])
            if (u, j) in cfg.get("priox", {}):
                l = a.uid("px"); a("s_cmp_lg_u32 s%d, 0" % sKH, "s_cbranch_scc1 %s" % l, "s_setprio %d" % cfg["priox"][(u, j)], "%s:" % l)
            if (u, j) in ev: ev[(u, j)]()
        a(";STAMP %d" % (40 + u))
        for e in range(32):
            if e in pos: op(pos.index(e))
            a("v_exp_f32 v%d, v%d" % (vS[u % 2] + e, vS[u % 2] + e))
    a("s_nop 1")
    P(N - 1, 3)
    return U


SCR_RES, SCR_ROFF = 12 * CHUNK, (0, 2 * CHUNK)
SCR_MOFF = (0, 0)
P3_BASE, P3_OFF = 20 * CHUNK, (0, 28672)
vSA, vSB, vOA, vOB = 18, 19, 20, 21
sOA, sOR = 35, 36
sOL = 37
sPEND = 40


def late_setup(a):
    L = vLANE
    a("s_lshl_b32 s%d, s%d, 11" % (sT0, sP), "s_add_u32 s%d, s%d, %d" % (sT0, sT0, LDS_SPARE), "v_add_u32 v%d, s%d, v%d" % (vSA, sT0, vL16),
      "s_lshl_b32 s%d, s%d, 10" % (sT0, sP), "s_add_u32 s%d, s%d, %d" % (sT0, sT0, SCR_RES), "v_add_u32 v%d, s%d, v%d" % (vSB, sT0, vL16),
      "s_lshl2_add_u32 s%d, s%d, s%d" % (sT0, sQI, sP), "s_mul_i32 s%d, s%d, %d" % (sT0, sT0, OTILE), "s_add_u32 s%d, s%d, %d" % (sT0, sT0, OBASE),
      "s_cmp_eq_u32 s%d, 0" % sKH, "s_cselect_b32 s%d, 0x40000000, s%d" % (sT0, sT0),
      "s_lshl_b32 s%d, s%d, 10" % (sT1, sHEAD), "s_add_u32 s%d, s%d, s%d" % (sOA, sT1, sT0),
      "s_lshl_b32 s%d, s%d, 7" % (sT1, sHEAD), "s_add_u32 s%d, s%d, s%d" % (sOR, sT1, sT0), "s_add_u32 s%d, s%d, 32768" % (sOR, sOR),
      "v_lshrrev_b32 v%d, 4, v%d" % (vOB, L), "v_and_b32 v0, 15, v%d" % L,
      "v_lshlrev_b32 v%d, 9, v%d" % (vOA, vOB), "v_lshl_add_u32 v%d, v0, 4, v%d" % (vOA, vOA),
      "v_lshlrev_b32 v%d, 8, v%d" % (vOB, vOB), "v_lshl_add_u32 v%d, v0, 2, v%d" % (vOB, vOB),
      "s_lshl2_add_u32 s%d, s%d, s%d" % (sT0, sXCD, sRT), "s_mul_i32 s%d, s%d, %d" % (sT0, sT0, OTILE), "s_add_u32 s%d, s%d, %d" % (sT0, sT0, OBASE),
      "s_lshl_b32 s%d, s%d, 5" % (sT1, sKQ), "s_add_u32 s%d, s%d, s%d" % (sT1, sT1, sRH), "s_lshl_b32 s%d, s%d, 8" % (sT1, sT1),
      "s_add_u32 s%d, s%d, s%d" % (sOL, sT1, sT0), "s_add_u32 s%d, s%d, 4096" % (sOL + 1, sOL),
      "s_lshl4_add_u32 s%d, s%d, s%d" % (sT1, sKQ, sRH), "s_lshl_b32 s%d, s%d, 6" % (sT1, sT1),
      "s_add_u32 s%d, s%d, s%d" % (sOL + 2, sT1, sT0), "s_add_u32 s%d, s%d, 32768" % (sOL + 2, sOL + 2))


def o_store(a, d, t, part, em):
    sa, sb = sOA, sOR
    if part:
        a("s_add_u32 s%d, s%d, %d" % (sT1, sOA, 32 * OTILE), "s_add_u32 s%d, s%d, %d" % (sT2, sOR, 32 * OTILE)); sa, sb = sT1, sT2
    em("buffer_store_dwordx4 %s, v%d, %s, s%d offen sc1" % (vr(d, 4), vL16, srd(sWS), sa))
    a("s_mov_b32 exec_hi, 0")
    em("buffer_store_dword v%d, v%d, %s, s%d offen sc1" % (d + 4, t, srd(sWS), sb))
    a("s_mov_b64 exec, -1")


def poison(a):
    d = vT + 2
    a("v_mov_b64 %s, -1" % vr(d, 2), "v_mov_b64 %s, -1" % vr(d + 2, 2), "v_mov_b32 v%d, -1" % (d + 4), "v_lshlrev_b32 v%d, 2, v%d" % (vT, vLANE))
    for part in range(2): o_store(a, d, vT, part, lambda x: a.vmem(x, "poison"))


def send_partial(a, part):
    o = vO[part]
    a("v_mov_b32 v%d, s%d" % (o + 11, sTAG),
      "ds_write_b128 v%d, %s offset:%d" % (vSA, vr(o, 4), SCR_MOFF[part]), "ds_write_b128 v%d, %s offset:%d" % (vSA, vr(o + 4, 4), SCR_MOFF[part] + 1024),
      "ds_write_b128 v%d, %s offset:%d" % (vSB, vr(o + 8, 4), SCR_ROFF[part]))


def fin_reads(part):
    d = vT + 2
    return ["ds_read_b128 %s, v%d offset:%d" % (vr(d + 8, 4), vSB, SCR_ROFF[part]),
            "ds_read_b128 %s, v%d offset:%d" % (vr(d, 4), vSA, SCR_MOFF[part]), "ds_read_b128 %s, v%d offset:%d" % (vr(d + 4, 4), vSA, SCR_MOFF[part] + 1024)]


def finalize(a, part, slow, colds, prefetched=False):
    o = vO[part]
    t = vT
    d = vT + 2
    if not prefetched: a(fin_reads(part))
    again = a.uid("meet")
    a("s_mov_b32 s%d, 0" % sT5, "s_mov_b32 s%d, 0x37800000" % sT4, "v_lshlrev_b32 v0, 2, v%d" % vLANE,
      "%s:" % again, "s_waitcnt lgkmcnt(0)", "v_cmp_ne_u32 vcc, s%d, v%d" % (sTAG, d + 11), "s_cbranch_vccnz %s_r" % again, "%s_k:" % again)
    def cold():
        a("%s_r:" % again); spin_guard(a, again + "_k"); a("s_sleep 1", fin_reads(part), "s_branch %s" % again)
    colds.append(cold)
    pk = lambda op, x, y, z, m="": "v_pk_%s_f32 %s, %s, %s%s" % (op, vr(x, 2), vr(y, 2), vr(z, 2), m)
    a("v_add_f32 v%d, v%d, v%d" % (o + 10, o + 10, d + 10), pk("add", o + 8, o + 8, d + 8))
    for i in (0, 2, 4, 6): a(pk("add", o + i, o + i, d + i))
    back = a.uid("norm")
    done = a.uid("normok")
    a("%s:" % back)
    a("v_rcp_f32 v%d, v%d" % (t, o + 10), "v_mov_b32 v%d, 0x71800000" % (d + 11))
    for i in range(0, 10, 2): a(pk("mul", d + i, o + i, t, " op_sel_hi:[1,0]"))
    a("v_med3_f32 v%d, v%d, s%d, v%d" % (d + 10, o + 10, sT4, d + 11), pk("add", t, d, d + 2))
    for i in (4, 6, 8): a(pk("add", t, t, d + i))
    a("v_add_f32 v%d, v%d, v%d" % (t, t, t + 1),
      "v_fma_f32 v%d, v%d, 0, v%d" % (t, t, o + 10),
      "v_cmp_neq_f32 vcc, v%d, v%d" % (d + 10, t))
    for i in range(5): a("v_cvt_pk_bf16_f32 v%d, v%d, v%d" % (d + i, d + 2 * i, d + 2 * i + 1))
    a("s_cbranch_vccz %s" % done)
    slow(part, back, done)
    a("%s:" % done)
    o_store(a, d, 0, part, a)


def slow_path(a, part, label, back, done, after):
    S, K, KR, V, m, ar, av = 44, 76, 84, 88, 104, 105, 106
    q = vQ[part]; o = vO[part]
    a("%s:" % label, "s_cmp_eq_u32 s%d, 0" % sT5, "s_cbranch_scc1 %s_go" % label)
    for i in range(5): a("v_min_u32 v%d, -2, v%d" % (vT + 2 + i, vT + 2 + i))
    a("s_branch %s" % done, "%s_go:" % label, "s_mov_b32 s%d, 1" % sT5)
    a("s_waitcnt vmcnt(0) lgkmcnt(0)")
    v_consts(a, V, m)
    a("v_mov_b32 v%d, 0" % (KR + 1))
    for i in range(16): a("v_mov_b32 v%d, 0" % (o + i))
    a("v_lshrrev_b32 v%d, 5, v%d" % (m, vLANE), "v_lshl_add_u32 v%d, v%d, 8, v%d" % (ar, m, vQR),
      "v_mul_u32_u24 v%d, 9216, v%d" % (av, m), "v_and_b32 v%d, 31, v%d" % (m, vLANE), "v_lshl_add_u32 v%d, v%d, 4, v%d" % (av, m, av),
      "s_mul_i32 s%d, s%d, 288" % (sT3, sHEAD), "s_add_u32 s%d, s%d, %d" % (sT3, sT3, SEC), "v_add_u32 v%d, s%d, v%d" % (av, sT3, av))
    for f in range(1, 4): a("v_add_u32 v%d, 18432, v%d" % (av + f, av + f - 1))
    a("v_mov_b32 v%d, 0xff800000" % m)
    for ps in range(2):
        lp = a.uid("slow")
        a("s_mov_b32 s%d, %d" % (sLOOP, SEC), "%s:" % lp)
        for t in range(2):
            for h in range(2):
                a("buffer_load_dwordx2 %s, v%d, %s, s%d offen offset:%d sc1" % (vr(K + 4 * t + 2 * h, 2), vQA, srd(sWS), sLOOP, 256 * t + 512 * h))
        a("buffer_load_dword v%d, v%d, %s, s%d offen sc1" % (KR, ar, srd(sWS), sLOOP))
        if ps:
            a("s_mov_b64 exec, %s" % sr(sVMASK, 2))
            for f in range(4): a("buffer_load_dwordx4 %s, v%d, %s, s%d offen sc1" % (vr(V + 4 * f, 4), av + f, srd(sWS), sLOOP))
            a("s_mov_b64 exec, -1")
        a("s_waitcnt vmcnt(0)",
          "v_mfma_f32_32x32x4_2b_bf16 %s, %s, %s, 0" % (vr(S, 32), vr(KR, 2), vr(q + 4, 2)), "s_nop 15", "s_nop 1")
        for t in range(2):
            a("v_mfma_f32_32x32x16_bf16 %s, %s, %s, %s" % (vr(S + 16 * t, 16), vr(K + 4 * t, 4), vr(q, 4), vr(S + 16 * t, 16)))
        a("s_nop 11")
        if ps == 0:
            for i in range(16): a("v_max3_f32 v%d, v%d, v%d, v%d" % (m, m, S + 2 * i, S + 2 * i + 1))
        else:
            for i in range(32): a("v_sub_f32 v%d, v%d, v%d" % (S + i, S + i, m))
            for i in range(32): a("v_exp_f32 v%d, v%d" % (S + i, S + i))
            a("s_nop 1")
            for f in range(4): a("v_smfmac_f32_32x32x32_bf16 %s, %s, %s, v%d" % (vr(o, 16), vr(V + 4 * f, 4), vr(S + 8 * f, 8), vIDX))
        a("s_add_u32 s%d, s%d, %d" % (sLOOP, sLOOP, PITCH), "s_cmp_lt_u32 s%d, %d" % (sLOOP, 32 * PITCH), "s_cbranch_scc1 %s" % lp)
        if ps == 0:
            a("v_mov_b32 v%d, v%d" % (S, m), "s_nop 1", "v_permlane32_swap_b32 v%d, v%d" % (S, m), "s_nop 1", "v_max_f32 v%d, v%d, v%d" % (m, m, S))
    a("s_nop 15")
    after()
    a("s_branch %s" % back)


def p3_setup(a):
    a("s_and_b32 s%d, s%d, 3" % (sRT, sJ), "s_lshr_b32 s%d, s%d, 2" % (sCB, sJ),
      "s_lshr_b32 s%d, s%d, 2" % (sRH, sWAVE), "s_lshl1_add_u32 s%d, s%d, s%d" % (sKQ, sRH, sWAVE), "s_and_b32 s%d, s%d, 3" % (sKQ, sKQ),
      "s_and_b32 s%d, s%d, 1" % (sT0, sCB), "s_cmp_eq_u32 s%d, s%d" % (sT0, sRH), "s_cselect_b32 s%d, 1, 0" % sFIVE,
      "s_lshr_b32 s%d, s%d, 1" % (sT1, sCB), "s_mul_i32 s%d, s%d, 9" % (sT1, sT1),
      "s_mul_i32 s%d, s%d, 5" % (sT0, sT0), "s_add_u32 s%d, s%d, s%d" % (sT0, sT0, sT1),
      "s_add_u32 s%d, s%d, 4" % (sT1, sT1),
      "s_mul_i32 s%d, s%d, 4608" % (sT2, sKQ), "s_add_u32 s%d, s%d, %d" % (sT2, sT2, WOBASE))
    for t in range(4):
        a("s_add_u32 s%d, s%d, %d" % (sT3, sKQ, t), "s_and_b32 s%d, s%d, 3" % (sT3, sT3), "s_add_u32 s%d, s%d, s%d" % (sT3, sT3, sT0))
        if t == 0: a("s_lshl_b32 s%d, s%d, 5" % (sOCOL, sT3))
        a("s_mul_i32 s%d, s%d, %d" % (sT3, sT3, 4 * 4608), "s_add_u32 s%d, s%d, s%d" % (sWOF + t, sT3, sT2))
    a("s_lshl_b32 s%d, s%d, 5" % (sOCOL + 1, sT1),
      "s_mul_i32 s%d, s%d, %d" % (sT3, sT1, 4 * 4608), "s_add_u32 s%d, s%d, s%d" % (sWOF + 4, sT3, sT2))


def wo_load(a, tiles, t16, t8, track=True, only=None):
    em = a.vmem if track else (lambda s, tag: a(s))
    for t in tiles:
        for m in range(4):
            if only in (None, m): em("buffer_load_dwordx4 %s, v%d, %s, s%d offen offset:%d sc1" % (vr(vWO + 18 * t + 4 * m, 4), t16, srd(sWS), sWOF + t, 1024 * m), "wo")
        if only in (None, 4): em("buffer_load_dwordx2 %s, v%d, %s, s%d offen sc1" % (vr(vWO + 18 * t + 16, 2), t8, srd(sWS), sWOF + t), "wo")


def o_instr(of, g):
    main, res = of
    if g < 4: return ["buffer_load_dwordx4 %s, v%d, %s, s%d offen offset:%d sc1" % (vr(main + 4 * g, 4), vOA, srd(sWS), sOL + g // 2, 2048 * (g % 2))]
    return ["buffer_load_dword v%d, v%d, %s, s%d offen offset:%d sc1" % (res + e, vOB, srd(sWS), sOL + 2, 128 * e) for e in range(2)]


def o_load(a, of, tag):
    for g in range(5):
        for x in o_instr(of, g): a.vmem(x, tag)


def p3_mfma(a, of, acc, t, first_wait):
    main, res = of
    top = a.uid("opass"); out = a.uid("odone")
    a("s_mov_b32 s%d, 31" % sPEND)
    first_wait()
    a("%s:" % top)
    redo = []
    for g in range(5):
        skip = a.uid("oskip"); rd = a.uid("oredo")
        a("s_bitcmp0_b32 s%d, %d" % (sPEND, g), "s_cbranch_scc1 %s" % skip)
        if g < 4: a("v_max3_u32 v%d, v%d, v%d, v%d" % (t, main + 4 * g, main + 4 * g + 1, main + 4 * g + 2), "v_max_u32 v%d, v%d, v%d" % (t, t, main + 4 * g + 3))
        else: a("v_max_u32 v%d, v%d, v%d" % (t, res, res + 1))
        a("v_cmp_eq_u32 vcc, -1, v%d" % t, "s_cbranch_vccnz %s" % rd, "s_bitset0_b32 s%d, %d" % (sPEND, g))
        for k in range(5):
            c = vr(acc + 4 * k, 4)
            if g < 4: a("v_mfma_f32_16x16x32_bf16 %s, %s, %s, %s" % (c, vr(vWO + 18 * k + 4 * g, 4), vr(main + 4 * g, 4), c))
            else: a("v_mfma_f32_16x16x16_bf16 %s, %s, %s, %s" % (c, vr(vWO + 18 * k + 16, 2), vr(res, 2), c))
        a("%s:" % skip)
        redo.append((rd, skip, g))
    a("s_cmp_lg_u32 s%d, 0" % sPEND, "s_cbranch_scc1 %s_again" % top, "%s:" % out)
    def cold():
        for rd, skip, g in redo: a("%s:" % rd, o_instr(of, g), "s_branch %s" % skip)
        a("%s_again:" % top)
        spin_guard(a, out)
        a("s_waitcnt vmcnt(0)", "s_branch %s" % top)
    return cold


def p3_mfma_all(a, of, acc, t, colds):
    main, res = of
    top = a.uid("eall")
    a("%s:" % top, "v_max_u32 v%d, v%d, v%d" % (t, res, res + 1))
    for i in range(8): a("v_max3_u32 v%d, v%d, v%d, v%d" % (t, t, main + 2 * i, main + 2 * i + 1))
    a("v_cmp_eq_u32 vcc, -1, v%d" % t, "s_cbranch_vccnz %s_r" % top, "%s_k:" % top)
    def cold():
        a("%s_r:" % top); spin_guard(a, top + "_k"); a("s_sleep 2")
        for g in range(5): a(o_instr(of, g))
        a("s_waitcnt vmcnt(0)", "s_branch %s" % top)
    colds.append(cold)
    def mm(k, g):
        c = vr(acc + 4 * k, 4)
        if g < 4: a("v_mfma_f32_16x16x32_bf16 %s, %s, %s, %s" % (c, vr(vWO + 18 * k + 4 * g, 4), vr(main + 4 * g, 4), c))
        else: a("v_mfma_f32_16x16x16_bf16 %s, %s, %s, 0" % (c, vr(vWO + 18 * k + 16, 2), vr(res, 2)))
    for k in (1, 2, 3, 0, 4): mm(k, 4)
    a("s_cmp_eq_u32 s%d, 0" % sFIVE, "s_nop 0")
    for g in range(4):
        for k in (1, 2, 3, 0): mm(k, g)
    a("s_cbranch_scc1 %s_5" % top)
    for g in range(4): mm(4, g)
    a("%s_5:" % top)


def p3_addr(a, t):
    a("s_mul_i32 s%d, s%d, 12288" % (sT0, sRH), "s_add_u32 s%d, s%d, %d" % (sT0, sT0, P3_BASE))
    for k in range(1, 4):
        a("s_add_u32 s%d, s%d, %d" % (sT1, sKQ, k), "s_and_b32 s%d, s%d, 3" % (sT1, sT1), "s_mul_i32 s%d, s%d, 3072" % (sT1, sT1),
          "s_add_u32 s%d, s%d, s%d" % (sT1, sT1, sT0), "v_add_u32 v%d, s%d, v%d" % (t + k - 1, sT1, vL16))
    a("s_lshl_b32 s%d, s%d, 10" % (sT1, sKQ), "s_add_u32 s%d, s%d, %d" % (sT1, sT1, P3_BASE), "v_add_u32 v%d, s%d, v%d" % (t + 3, sT1, vL16),
      "s_mul_i32 s%d, s%d, 3072" % (sT1, sKQ), "s_add_u32 s%d, s%d, s%d" % (sT1, sT1, sT0), "v_add_u32 v%d, s%d, v%d" % (t + 4, sT1, vL16),
      "v_and_b32 v%d, 15, v%d" % (t + 5, vLANE), "v_mul_u32_u24 v%d, 1152, v%d" % (t + 5, t + 5),
      "v_lshrrev_b32 v0, 4, v%d" % vLANE, "v_lshl_add_u32 v%d, v0, 3, v%d" % (t + 5, t + 5),
      "s_lshl2_add_u32 s%d, s%d, s%d" % (sT1, sXCD, sRT), "s_lshl1_add_u32 s%d, s%d, s%d" % (sT1, sT1, sRH), "s_mul_i32 s%d, s%d, %d" % (sT1, sT1, 16 * 1152),
      "s_add_u32 s%d, s%d, s%d" % (sOCOL, sOCOL, sT1), "s_add_u32 s%d, s%d, s%d" % (sOCOL + 1, sOCOL + 1, sT1),
      "s_cmp_eq_u32 s%d, 0" % sKQ, "s_cselect_b32 s%d, s%d, 0" % (sOCOL + 2, sFIVE))


def p3_write(a, part, acc, t):
    scr = P3_OFF[part]
    skip = a.uid("no5w")
    a("s_cmp_eq_u32 s%d, 0" % sFIVE, "s_nop 3")
    for k in range(1, 4): a("ds_write_b128 v%d, %s offset:%d" % (t + k - 1, vr(acc + 4 * k, 4), scr + 1024 * (k - 1)))
    a("s_cbranch_scc1 %s" % skip, "ds_write_b128 v%d, %s offset:%d" % (t + 3, vr(acc + 16, 4), scr + 24576), "%s:" % skip)


def p3_finish(a, part, acc, t, d, mod):
    def fin(src, off, ac, so):
        for k in range(3): a("ds_read_b128 %s, v%d offset:%d" % (vr(d + 4 * k, 4), src, P3_OFF[part] + off + 1024 * k))
        for k in range(3):
            a("s_waitcnt lgkmcnt(%d)" % (2 - k))
            for i in (0, 2): a("v_pk_add_f32 %s, %s, %s" % (vr(ac + i, 2), vr(ac + i, 2), vr(d + 4 * k + i, 2)))
        a("v_cvt_pk_bf16_f32 v%d, v%d, v%d" % (ac, ac, ac + 1), "v_cvt_pk_bf16_f32 v%d, v%d, v%d" % (ac + 1, ac + 2, ac + 3),
          "buffer_store_dwordx2 %s, v%d, %s, s%d offen%s" % (vr(ac, 2), t + 5, srd(sOUT), so, mod))
    fin(t + 4, 0, acc, sOCOL)
    skip = a.uid("no5r")
    a("s_cmp_eq_u32 s%d, 0" % (sOCOL + 2), "s_cbranch_scc1 %s" % skip)
    fin(t + 3, 24576 + 1024, acc + 16, sOCOL + 1)
    a("%s:" % skip)
    if part == 0: a("v_add_u32 v%d, %d, v%d" % (t + 5, 1024 * 1152, t + 5))


def kd(name, lds=False):
    return """.amdhsa_kernel %s
  .amdhsa_next_free_vgpr 256
  .amdhsa_next_free_sgpr 96
  .amdhsa_accum_offset 256
  .amdhsa_group_segment_fixed_size 0
  .amdhsa_kernarg_size 48
  .amdhsa_user_sgpr_count 2
  .amdhsa_user_sgpr_kernarg_segment_ptr 1
  .amdhsa_system_sgpr_workgroup_id_x 1
  .amdhsa_float_denorm_mode_32 3
.end_amdhsa_kernel""" % name


def head(a, name):
    a(".globl %s" % name, ".p2align 8", ".type %s,@function" % name, "%s:" % name)


def mkplan(dx, dw, pre="w0 x0 w1 w2 x1", late=None):
    p = [(-1, t[0], int(t[1:])) for t in pre.split()]
    done = {(k, s) for _, k, s in p}
    for b in range(18):
        for k, d, n in (("x", dx, 18), ("w", dw, 9)):
            for s in range(n):
                if late and k == "x" and b >= late[0]: d = late[1]
                if (k, s) not in done and s - d <= b:
                    p.append((b, k, s)); done.add((k, s))
    return p


DEF = dict(plan=mkplan(3, 3), rot=1, early0=1, tlb=0, tag_step=6, flag_step=12, flag_pos='bar', poll_step=14, check_step=15,
           x_at=('bar', 16), y_at=('bar', 17), e_sleep=0, pf_code=1, pf_x=1, idle_sleep=8, per0=2, per1=1,
           nsolo=6, pos=[2, 6, 14, 18, 22, 26, 30],
           kv1=[(0, 1), (0, 2)], w1=[(1, 5), (2, 0)], pollL=[(3, 5), (5, 2)], kv2=[(5, 2), (5, 2)], w2=[(7, 2), (8, 0)],
           kv3=[(8, 2), (8, 5)], w3=[(13, 2), (16, 0)], wo=[(11, 2), (13, 3), 14], poison=[(9, 2), (10, 2), (25, 5)],
           opoll=[(30, 2), (30, 6), (30, 6)], hint=(30, 5), h_sleep=0, outmod='',
           prio={(3, 0): 2, (5, 3): 1, (6, 3): 3, (26, 0): 2, (30, 3): 1}, priox={(21, 0): 2})


sF0, sF1 = 57, 58
OOB = 0x7ffff000
MASTER = 199


def spin_guard(a, out):
    a("s_add_u32 s%d, s%d, 1" % (sSPIN, sSPIN), "s_cmp_gt_u32 s%d, 0x20000" % sSPIN, "s_cbranch_scc1 %s" % out)


def tag_issue(a):
    a.vmem("buffer_load_dword v%d, off, %s, 0 sc1" % (vPD, srd(sDBG)), "tag")


def tag_check(a):
    ok = a.uid("tagok"); lp = a.uid("tag")
    a.wait(vm="tag")
    a("%s:" % lp, "v_readfirstlane_b32 s%d, v%d" % (sTAG, vPD), "s_cmp_lg_u32 s%d, 0" % sTAG, "s_cbranch_scc1 %s" % ok)
    spin_guard(a, ok)
    a("s_sleep 4", "buffer_load_dword v%d, off, %s, 0 sc1" % (vPD, srd(sDBG)), "s_waitcnt vmcnt(0)", "s_branch %s" % lp, "%s:" % ok)


FLAGMODE = 1
def flag_store(a, soff, track=True, full=True):
    if full and FLAGMODE == 1:
        a("v_mov_b32 v0, s%d" % sTAG, "s_mov_b64 exec, 0xff")
        x = "buffer_store_dwordx4 v[0:3], v%d, %s, s%d offen sc1" % (vL16, srd(sWS), soff)
    elif full and FLAGMODE == 2:
        a("v_mov_b32 v0, s%d" % sTAG, "s_mov_b64 exec, 0xf")
        x = "buffer_store_dwordx4 v[0:3], v%d, %s, s%d offen sc1" % (vL16, srd(sWS), soff)
    else:
        a("v_mov_b32 v0, s%d" % sTAG, "s_mov_b64 exec, 1")
        x = "buffer_store_dword v0, off, %s, s%d sc1" % (srd(sWS), soff)
    if track: a.vmem(x, "flag")
    else: a(x)
    a("s_mov_b64 exec, -1")


def poll(a, va, sleep=2):
    x = "buffer_load_dword v%d, v%d, %s, 0 offen sc1" % (vPD, va, srd(sWS))
    def issue(): a.vmem(x, "poll")
    def check():
        ok = a.uid("pok"); lp = a.uid("poll")
        a.wait(vm="poll")
        a("%s:" % lp, "v_cmp_ne_u32 vcc, s%d, v%d" % (sTAG, vPD), "s_cbranch_vccz %s" % ok)
        spin_guard(a, ok)
        if sleep: a("s_sleep %d" % sleep)
        a(x, "s_waitcnt vmcnt(0)", "s_branch %s" % lp, "%s:" % ok)
    return issue, check


def fused_setup(a):
    L = vLANE
    a("s_lshr_b32 s%d, s%d, 1" % (sT0, sHEAD), "s_mul_i32 s%d, s%d, 36" % (sT0, sT0), "s_and_b32 s%d, s%d, 1" % (sT1, sHEAD),
      "s_lshl_b32 s%d, s%d, 4" % (sT1, sT1), "s_add_u32 s%d, s%d, s%d" % (sT0, sT0, sT1),
      "v_min_u32 v%d, 11, v%d" % (vL16, L),
      "v_and_b32 v%d, 1, v%d" % (vPA, vL16), "v_mul_u32_u24 v%d, 19, v%d" % (vPA, vPA), "v_add_u32 v%d, s%d, v%d" % (vPA, sT0, vPA),
      "v_lshrrev_b32 v%d, 6, v%d" % (vPA, vPA),
      "v_lshrrev_b32 v%d, 2, v%d" % (vL8, vL16), "v_sub_u32 v%d, 2, v%d" % (vL8, vL8), "v_mad_u32_u24 v%d, v%d, 9, v%d" % (vPA, vL8, vPA),
      "v_and_b32 v%d, 2, v%d" % (vL16, vL16), "v_lshl_add_u32 v%d, v%d, 1, s%d" % (vL16, vL16, sP), "v_mov_b32 v%d, s%d" % (vL8, sQI),
      "v_cmp_le_u32 vcc, 8, v%d" % L, "v_lshlrev_b32 v%d, 10, v%d" % (vPA, vPA), "v_add_u32 v%d, %d, v%d" % (vPA, F01, vPA),
      "v_cndmask_b32 v%d, v%d, v%d, vcc" % (vL16, vL16, vL8),
      "v_lshl_add_u32 v%d, v%d, 7, v%d" % (vPA, vL16, vPA),
      "v_lshlrev_b32 v%d, 4, v%d" % (vL16, L), "v_lshlrev_b32 v%d, 3, v%d" % (vL8, L), "v_add_u32 v%d, 4096, v%d" % (vL8, vL8),
      "s_cmp_eq_u32 s%d, 0" % sFIVE, "s_cselect_b32 s%d, 0x%x, s%d" % (sWOF + 4, OOB - 8192, sWOF + 4))


def tlb_touch(a, cfg):
    l = a.uid("tlb")
    a("s_cmp_lg_u32 s%d, 7" % sWAVE, "s_cbranch_scc1 %s" % l,
      "v_and_b32 v2, 7, v%d" % vLANE, "v_mul_u32_u24 v2, %d, v2" % (4 * PITCH), "v_add_u32 v2, %d, v2" % (PITCH - 128),
      "v_and_b32 v3, 3, v%d" % vLANE, "v_mul_u32_u24 v3, %d, v3" % (16 * OTILE), "v_add_u32 v3, %d, v3" % (OBASE + OTILE - 128),
      "v_cmp_gt_u32 vcc, 8, v%d" % vLANE, "v_mov_b32 v4, %d" % (FW + 1024), "v_cmp_gt_u32 s[%d:%d], 12, v%d" % (sSAVE, sSAVE + 1, vLANE),
      "v_cndmask_b32 v2, v3, v2, vcc", "s_nop 0", "v_cndmask_b32 v2, v4, v2, s[%d:%d]" % (sSAVE, sSAVE + 1),
      "buffer_load_dword v44, v2, %s, 0 offen" % srd(sWS),
      "v_and_b32 v2, 3, v%d" % vLANE, "v_mul_u32_u24 v2, %d, v2" % (786432 - 128),
      "buffer_load_dword v45, v2, %s, 0 offen" % srd(sOUT), "%s:" % l)


vWW, vWC = 158, 159


def word_setup(a):
    a("s_and_b32 s%d, s%d, 1" % (sT0, sHEAD), "s_mul_i32 s%d, s%d, %d" % (sT0, sT0, (-2052) & 0xffffffff), "s_add_u32 s%d, s%d, 2052" % (sT0, sT0),
      "s_lshl3_add_u32 s%d, s%d, s%d" % (sT1, sWAVE, sT0), "v_mov_b32 v%d, s%d" % (vWW, sT1),
      "s_lshl_b32 s%d, s%d, 5" % (sT1, sKH), "s_add_u32 s%d, s%d, s%d" % (sT1, sT1, sT0),
      "v_and_b32 v%d, 3, v%d" % (vWC, vLANE), "v_lshl_add_u32 v%d, v%d, 3, s%d" % (vWC, vWC, sT1))


def word_set(a, stage, track=True, twice=False):
    a("v_mov_b32 v0, s%d" % sTAG, "s_mov_b64 exec, 1")
    x = "ds_write_b32 v%d, v0 offset:%d" % (vWW, 64 * stage)
    if twice: x = "ds_write2_b32 v%d, v0, v0 offset0:%d offset1:%d" % (vWW, 16 * stage, 16 * stage + 16)
    if track: a.lds(x)
    else: a(x)
    a("s_mov_b64 exec, -1")


def word_check(a, offs, colds, t=vT):
    xs = ["ds_read_b32 v%d, v%d offset:%d" % (t + k, vWC, o) for k, o in enumerate(offs)]
    def issue():
        for x in xs: a.lds(x, "word")
    def check(track=True):
        l = a.uid("word")
        if track: a.wait(lg="word")
        a("%s:" % l)
        for k in range(len(offs)): a("v_cmp_ne_u32 vcc, s%d, v%d" % (sTAG, t + k), "s_cbranch_vccnz %s_r" % l)
        a("%s_k:" % l)
        def cold():
            a("%s_r:" % l); spin_guard(a, l + "_k"); a("s_sleep 1", xs, "s_waitcnt lgkmcnt(0)", "s_branch %s" % l)
        colds.append(cold)
    return issue, check, xs


def gen_fused(cfg):
    global FLAGMODE
    FLAGMODE = cfg.get("flagmode", 1)
    a = Asm()
    name = NAME + "_kernel"
    head(a, name)
    prologue(a, "L_exit"); a(";STAMP 0")
    a("s_mov_b32 s%d, 0" % sSPIN, "s_mov_b32 s%d, 0x%x" % (sF1, OOB))
    p1_roles(a, "L_idle")
    a("s_cmp_ge_u32 s%d, 18" % sLINE, "s_cbranch_scc1 L_p1v")
    sF, sPo = cfg["flag_step"], cfg["poll_step"]
    def first_loads(kh):
        l = a.uid("fl")
        a("s_cmp_lg_u32 s%d, %d" % (sKH, kh), "s_cbranch_scc1 %s" % l)
        keep = list(a.vm)
        q_load(a, 0); kv_dma(a, 0)
        a.vm = keep
        a("%s:" % l)
    for isv in (False, True):
        if isv: a("L_p1v:")
        a.vm = []; a.lg = []
        hooks = {}
        def setup():
            p2_setup(a); p3_setup(a); fused_setup(a)
            a("s_lshl_b32 s%d, s%d, 10" % (sT0, sLINE), "s_lshl_b32 s%d, s%d, 7" % (sT1, sG), "s_add_u32 s%d, s%d, s%d" % (sT0, sT0, sT1),
              "s_add_u32 s%d, s%d, %d" % (sT0, sT0, F01), "s_add_u32 s%d, s%d, %d" % (sT1, sT0, FRND),
              "s_cmp_eq_u32 s%d, 0" % sWAVE, "s_cselect_b32 s%d, s%d, s%d" % (sF0, sT0, sF1), "s_cselect_b32 s%d, s%d, s%d" % (sF1, sT1, sF1))
        hooks["setup"] = setup
        hooks[("step", cfg["tag_step"])] = lambda: tag_issue(a)
        hooks[("step", sF - 1)] = lambda: tag_check(a)
        hooks[("waitfor", sF)] = [("st", 0)]
        hooks[(cfg["flag_pos"], sF)] = lambda: flag_store(a, sF0)
        pi, pc = poll(a, vPA, sleep=cfg["e_sleep"])
        def add(k, f):
            g = hooks.get(k)
            hooks[k] = f if g is None else (lambda: (g(), f()))
        if cfg["tlb"]: hooks["start"] = lambda: tlb_touch(a, cfg)
        add(("step", sPo) if sPo < 18 else "pre_epi1", pi)
        add(("step", cfg["check_step"]), lambda: (pc(), a(";STAMP 8")))
        add(cfg["x_at"], lambda: first_loads(0))
        add(cfg["y_at"], lambda: first_loads(1))
        add("post_epi1", lambda: p2_init(a))
        p1_body(a, isv, cfg, hooks)
        a("s_branch L_attn")
    a("L_idle:"); a.vm = []; a.lg = []
    a("s_waitcnt lgkmcnt(0)")
    a("s_cmp_lg_u32 s2, %d" % MASTER, "s_cbranch_scc1 L_nomaster", "s_cmp_lg_u32 s%d, 0" % sWAVE, "s_cbranch_scc1 L_nomaster",
      "s_mov_b32 s%d, %d" % (sT0, FEPOCH), "buffer_load_dword v2, off, %s, s%d sc1" % (srd(sWS), sT0), "s_waitcnt vmcnt(0)",
      "v_readfirstlane_b32 s%d, v2" % sT1, "s_mul_i32 s%d, s%d, 0x41c64e6d" % (sT1, sT1), "s_add_u32 s%d, s%d, 12345" % (sT1, sT1),
      "s_cmp_eq_u32 s%d, 0" % sT1, "s_cselect_b32 s%d, 12345, s%d" % (sT1, sT1), "v_mov_b32 v2, s%d" % sT1, "s_mov_b64 exec, 1",
      "buffer_store_dword v2, off, %s, 0 sc1" % srd(sDBG), "buffer_store_dword v2, off, %s, s%d sc1" % (srd(sWS), sT0), "s_mov_b64 exec, -1",
      "L_nomaster:")
    if cfg["pf_code"]:
        a("s_getpc_b64 s[%d:%d]" % (sRET, sRET + 1), "L_pc:", "s_sub_u32 s%d, s%d, L_pc-%s" % (sRET, sRET, name), "s_subb_u32 s%d, s%d, 0" % (sRET + 1, sRET + 1),
          "s_cmp_lg_u32 s%d, 7" % sWAVE, "s_cbranch_scc1 L_nopf",
          "s_and_b32 s%d, s%d, 3" % (sT0, sJ), "v_lshl_add_u32 v2, v%d, 2, s%d" % (vLANE, sT0),
          "v_lshlrev_b32 v2, 7, v2", "v_min_u32 v2, L_codeend-%s-4, v2" % name, "global_load_dword v3, v2, s[%d:%d]" % (sRET, sRET + 1), "L_nopf:")
    if cfg["pf_x"]:
        a("s_and_b32 s%d, s%d, 1" % (sT0, sXCD), "s_and_b32 s%d, s%d, 3" % (sT1, sJ), "s_lshl2_add_u32 s%d, s%d, s%d" % (sT0, sT0, sT1),
          "s_lshr_b32 s%d, s%d, 2" % (sT1, sWAVE), "s_lshl3_add_u32 s%d, s%d, s%d" % (sT0, sT1, sT0),
          "s_mul_i32 s%d, s%d, %d" % (sT0, sT0, 128 * 1152),
          "v_and_b32 v2, 127, v0", "v_mul_u32_u24 v2, 1152, v2", "v_add_u32 v2, s%d, v2" % sT0,
          "s_bfe_u32 s%d, s%d, 0x10001" % (sT0, sWAVE))
        rotation(a, sT2, sT3, sT0)
        l = a.uid("pf")
        a("s_lshl_b32 s%d, s%d, 7" % (sT2, sT2), "s_cmp_eq_u32 s%d, 0" % sT1, "s_cbranch_scc1 %s" % l, "s_barrier", "%s:" % l,
          "buffer_load_dword v4, v2, %s, s%d offen" % (srd(sX), sT2), "s_cbranch_scc0 %sb" % l, "s_barrier", "%sb:" % l)
    a("s_mov_b32 s%d, 0x%x" % (sF0, OOB))
    wo_role(a, "L_nowo")
    a("s_lshl_b32 s%d, s%d, 2" % (sT0, sLINE), "s_add_u32 s%d, s%d, %d" % (sT0, sT0, FW), "s_cmp_eq_u32 s%d, 0" % sWAVE, "s_cselect_b32 s%d, s%d, s%d" % (sF0, sT0, sF0))
    a("L_nowo:", "s_waitcnt vmcnt(0)"); a.vm = []; a.lg = []
    p2_setup(a); p3_setup(a); fused_setup(a); p2_init(a)
    tag_issue(a); tag_check(a)
    a("s_barrier", ";STAMP 16")
    flag_store(a, sF0, full=False)
    pi, pc = poll(a, vPA, sleep=cfg["idle_sleep"])
    pi(); pc(); a(";STAMP 8", "s_barrier"); first_loads(0); a("s_barrier"); first_loads(1)
    for n in range(2): a("buffer_store_dword v0, off, %s, s%d" % (srd(sWS), sF1))
    a("L_attn:"); a.vm = ["old"]; a.lg = []
    slows = []; colds = []
    def slow(part, back, done):
        lab = a.uid("slowp"); slows.append((part, lab, back, done)); a("s_branch %s" % lab)
    ev = {}
    skip = cfg.get("skip", "")
    def at(k, f, name=None):
        if name and name in skip.split(): return
        g = ev.get(k)
        ev[k] = f if g is None else (lambda: (g(), f()))
    def b0():
        wi, wc, xs = word_check(a, [0], colds)
        a("s_cmp_lg_u32 s%d, 0" % sKH, "s_cbranch_scc1 L_b0y", "s_setprio 3", "s_waitcnt vmcnt(2)", "s_barrier", "L_b0x:", ";STAMP 6")
        def cold():
            a("L_b0y:", "s_barrier", "s_waitcnt vmcnt(0)"); word_set(a, 0, track=False)
            a(xs, "s_waitcnt lgkmcnt(0)"); wc(track=False); a("s_setprio 3", "s_branch L_b0x")
        colds.append(cold)
    at(("pre", 0), b0)
    def stage(st, pos_set, pos_rd, pos_chk, offs=None, after=None):
        wi, wc, xs = word_check(a, offs or [64 * st], colds)
        at(pos_set, lambda: a.wait(vm=("kv", st)), "kv")
        at(pos_set, lambda: word_set(a, st), "word")
        at(pos_rd, wi, "word")
        at(pos_chk, wc, "word")
        if after: at(pos_chk, after)
    def spread(pos, fs):
        for p_, f in zip(pos, fs): at(p_, f, "kv")
    spread(cfg["kv1"], [lambda: kv_dma(a, 1, "k"), lambda: kv_dma(a, 1, "v")])
    stage(1, cfg["w1"][0], cfg["w1"][1], ("pre", 4), offs=[64, 32], after=lambda: flag_store(a, sF1))
    pi, pc = poll(a, vPA)
    at(cfg["pollL"][0], lambda: (a("v_add_u32 v%d, %d, v%d" % (vPA, FRND, vPA)), pi()), "pollL")
    at(cfg["pollL"][1], pc, "pollL")
    at(cfg["pollL"][1], lambda: (a(";STAMP 9"), q_load(a, 1)))
    spread(cfg["kv2"], [lambda: kv_dma(a, 2, "k"), lambda: kv_dma(a, 2, "v")])
    ev["ql"] = lambda: a.wait(vm=("q", 1))
    stage(2, cfg["w2"][0], cfg["w2"][1], ("pre", 8))
    spread(cfg["kv3"], [lambda: kv_dma(a, 3, "k"), lambda: kv_dma(a, 3, "v")])
    assert cfg["w3"][0] >= (13, 0)
    stage(3, cfg["w3"][0], cfg["w3"][1], ("pre", 12))
    pi2, pc2 = poll(a, vPA)
    at(cfg["wo"][0], lambda: (a("v_min_u32 v%d, 35, v%d" % (vPA, vLANE), "v_lshlrev_b32 v%d, 2, v%d" % (vPA, vPA), "v_add_u32 v%d, %d, v%d" % (vPA, FW, vPA)), pi2()), "wo")
    at(cfg["wo"][1], pc2, "wo")
    u0 = cfg["wo"][2]
    k = 0
    for t in range(5):
        for m in range(5):
            at((u0 + k // 3, (2, 3, 5)[k % 3]), lambda t=t, m=m: wo_load(a, [t], vL16, vL8, only=m), "wo")
            k += 1
    ns = cfg["nsolo"]
    assert ns == 6
    ue = 32 - ns - 1
    at((ue - 1, 6), lambda: word_set(a, 4, twice=True))
    def send_e():
        l = a.uid("se")
        a("s_cmp_lg_u32 s%d, 0" % sKH, "s_cbranch_scc1 %s" % l); send_partial(a, 0); a("s_branch %s_e" % l, "%s:" % l)
        finalize(a, 0, slow, colds); a("%s_e:" % l)
        a("s_lshr_b32 s%d, s%d, 1" % (sT0, sP), "s_mul_i32 s%d, s%d, %d" % (sT0, sT0, 2 * CHUNK - 4096), "s_add_u32 s%d, s%d, %d" % (sT0, sT0, (16 * CHUNK - LDS_SPARE) & 0xffffffff),
          "v_add_u32 v%d, s%d, v%d" % (vSA, sT0, vSA))
    at((ue, 3), send_e, "fin")
    at(cfg["poison"][0], lambda: late_setup(a))
    at(cfg["poison"][1], lambda: poison(a), "fin")
    sPF = sF0
    def pflag():
        a("s_lshl2_add_u32 s%d, s%d, s%d" % (sT0, sQI, sP), "s_lshl_b32 s%d, s%d, 5" % (sT0, sT0),
          "s_add_u32 s%d, s%d, s%d" % (sT0, sT0, sHEAD), "s_lshl_b32 s%d, s%d, 7" % (sT0, sT0),
          "s_add_u32 s%d, s%d, %d" % (sT0, sT0, FO), "s_cmp_eq_u32 s%d, 0" % sKH, "s_cselect_b32 s%d, 0x40000000, s%d" % (sPF, sT0))
        a.wait(vm="poison")
        flag_store(a, sPF)
        a("s_add_u32 s%d, s%d, 131072" % (sPF, sPF))
    at(cfg["poison"][2], pflag)
    ofs = [(vO[0], vQ[0]), (vS[1], vS[1] + 16)]
    pi3, pc3 = poll(a, vPA)
    def opoll_addr():
        a("s_lshl2_add_u32 s%d, s%d, s%d" % (sT0, sXCD, sRT), "s_lshl2_add_u32 s%d, s%d, s%d" % (sT0, sT0, sKQ),
          "s_lshl_b32 s%d, s%d, 10" % (sT0, sT0), "s_add_u32 s%d, s%d, %d" % (sT0, sT0, FO),
          "v_min_u32 v%d, 7, v%d" % (vPA, vLANE), "v_lshl_add_u32 v%d, v%d, 7, s%d" % (vPA, vPA, sT0))
    at(cfg["opoll"][0], opoll_addr)
    at(cfg["opoll"][0], pi3, "opoll")
    at(cfg["opoll"][1], pc3, "opoll")
    at(cfg["opoll"][1], lambda: a("v_add_u32 v%d, 131072, v%d" % (vPA, vPA)))
    at(cfg["opoll"][2], lambda: o_load(a, ofs[0], "oe"))
    acc = [vV, vS[0]]
    ta = vK + 4
    at((31, 0), lambda: p3_addr(a, ta))
    at(cfg["hint"], lambda: flag_store(a, sPF))
    at((31, 5), lambda: [a.lds(x) for x in fin_reads(1)])
    p2_main(a, cfg, ev)
    a(";STAMP 7")
    wi, wc, xs = word_check(a, [256, 288], colds, t=vQ[0] + 2)
    wi()
    pi4, pc4 = poll(a, vPA, sleep=cfg["h_sleep"])
    n_oe = a._cnt(a.vm, "oe")
    a("s_cmp_lg_u32 s%d, 0" % sKH, "s_cbranch_scc1 L_fl", "s_nop 7")
    send_partial(a, 1)
    a("s_setprio 0", "s_waitcnt vmcnt(%d)" % n_oe, "s_branch L_tail", "L_fl:")
    pi4(); a("s_nop 0")
    finalize(a, 1, slow, colds, prefetched=True)
    a("s_waitcnt vmcnt(%d)" % (n_oe + 3))
    a("L_tail:", ";STAMP 10")
    p3_mfma_all(a, ofs[0], acc[0], vT, colds)
    for i in range(3): a("s_add_u32 s%d, s%d, %d" % (sOL + i, sOL + i, 32 * OTILE))
    a("s_waitcnt lgkmcnt(0)"); a.lg = []
    wc(track=False)
    p3_write(a, 0, acc[0], ta)
    word_set(a, 6)
    a(";STAMP 11")
    l = a.uid("xp")
    a("s_cmp_lg_u32 s%d, 0" % sKH, "s_cbranch_scc1 %s" % l)
    pi4(); a("s_waitcnt vmcnt(0)", "%s:" % l, "s_waitcnt vmcnt(2)"); a.vm = []
    pc4()
    a(";STAMP 13")
    wi, wc, xs = word_check(a, [384], colds)
    wi()
    o_load(a, ofs[1], "ol")
    wc()
    p3_finish(a, 0, acc[0], ta, vT + 2, cfg["outmod"])
    a("s_waitcnt vmcnt(1)")
    a(";STAMP 12")
    p3_mfma_all(a, ofs[1], acc[1], vT, colds)
    a(";STAMP 14")
    p3_write(a, 1, acc[1], ta)
    a("s_waitcnt lgkmcnt(0)", "s_barrier")
    p3_finish(a, 1, acc[1], ta, vT + 2, cfg["outmod"])
    a(";STAMP 15", ";STAMPWAIT", ";STAMP 5", ";STAMPEND", "L_exit:", "s_endpgm")
    k = 0
    while k < len(colds):
        colds[k](); k += 1
    def reload():
        wo_load(a, range(5), vL16, vL8, track=False); a("s_waitcnt vmcnt(0)")
    for part, lab, back, done in slows: slow_path(a, part, lab, back, done, reload)
    a("L_codeend:")
    hdr = ["; @launch grid=(256,1,1) block=(512,1,1) lds=%d" % LDS_TOTAL]
    return finish(a, hdr, [name])


def finish(a, hdr, names):
    errs = lint(a.l)
    for e in errs: print("HAZARD", e, file=sys.stderr)
    out = hdr + ['.amdgcn_target "amdgcn-amd-amdhsa--gfx950"', ".text"] + a.l + ['.section .rodata,"a"']
    for n in names: out += [".p2align 6", kd(n)]
    return "\n".join(out) + "\n"


if __name__ == "__main__":
    mode = sys.argv[1] if len(sys.argv) > 1 else "split"
    out = sys.argv[2] if len(sys.argv) > 2 else "cdna_kernels/%s.s" % NAME
    cfg = dict(DEF)
    for kv in sys.argv[3:]:
        k, v = kv.split("=", 1); cfg[k] = eval(v)
    txt = {"fused": gen_fused}[mode](cfg)
    open(out, "w").write(txt)
    print("wrote", out, len(txt.split("\n")), "lines")
```

```python
import sys, struct, math
from hazard import lint

NAME = "standalone__mha_block__prompt"

PITCH = 221184 + 128
SEC = 73728
OBASE = 32 * PITCH
OTILE = 36864 + 128
WOBASE = OBASE + 64 * OTILE
FBASE = WOBASE + 36 * 4 * 4608
F01 = FBASE
FRND = 27 * 8 * 128
FW = FBASE + 57344
FEPOCH = FW + 512
FO = FBASE + 65536
WS_SIZE = FO + 131072
CHUNK = 4864
LDS_SPARE = 32 * CHUNK
LDS_TOTAL = 163840
SCALE = struct.unpack("<I", struct.pack("<f", math.log2(math.e) / math.sqrt(18.0)))[0]

sX, sW, sWO, sOUT, sWS, sDBG = 4, 8, 12, 16, 20, 24
sWAVE, sXCD, sJ = 28, 29, 30
sTAG = 31
sLINE, sG, sSEC = 32, 33, 34
sXOFF, sWOFF, sM0X, sSCALE, sM0W, sST = 35, 36, 37, 38, 39, 40
sHEAD, sQI, sKH, sP = 41, 42, 43, 44
sVMASK = 46
sDMASK = 48
sCH, sQOFF = 50, 51
sCM = 45
sRT, sCB, sKQ, sRH = 52, 53, 54, 55
sFIVE = 56
sT0, sT1, sT2, sT3, sT4, sT5 = 60, 61, 62, 63, 64, 65
sRET = 66
sSPIN = 68
sWOF = 70
sOCOL = 75
sLOOP = 79
sSHF, sC272, sC80 = 69, 82, 59
sSAVE = 80

def srd(s): return "s[%d:%d]" % (s, s + 3)
def vr(a, n=1): return "v%d" % a if n == 1 else "v[%d:%d]" % (a, a + n - 1)
def sr(a, n=1): return "s%d" % a if n == 1 else "s[%d:%d]" % (a, a + n - 1)

vLANE = 1
vQ = [2, 8]
vIDX = 14
vAK, vAR, vAV = 15, 16, 17
vDMA = 18
vQA, vQR = 22, 23
vT = 24
vPA, vPD, vL16, vL8 = 38, 39, 40, 41
vXS = 24
vWS = 26
vWR = 27
vXR = 28
vWR2 = 32
vSTA = 36
vACC = [48, 64]
vXF = [80, 96]
vWF = 112
vWO = 42
vV = 132
vK = 148
vKR = 156
vO = [160, 176]
vS = [192, 224]


class Asm:
    def __init__(self):
        self.l = []
        self.vm = []
        self.lg = []
        self.n = 0

    def __call__(self, *lines):
        for s in lines:
            if isinstance(s, (list, tuple)):
                self(*s)
            elif s.endswith(":") or s.startswith((".", ";")):
                self.l.append(s)
            else:
                self.l.append("    " + s)

    def uid(self, p):
        self.n += 1
        return "L_%s_%d" % (p, self.n)

    def vmem(self, s, tag):
        self(s); self.vm.append(tag)
        assert len(self.vm) <= 63

    def lds(self, s, tag=None):
        self(s); self.lg.append(tag)

    def _cnt(self, q, tags):
        if not isinstance(tags, (list, set)): tags = [tags]
        last = max([k for k, t in enumerate(q) if t in tags], default=-1)
        return None if last < 0 else len(q) - 1 - last

    def wait(self, vm=None, lg=None):
        parts = []
        if vm is not None:
            n = 0 if vm == "all" else self._cnt(self.vm, vm)
            if n is not None:
                parts.append("vmcnt(%d)" % n); self.vm = self.vm[len(self.vm) - n:]
        if lg is not None:
            n = 0 if lg == "all" else self._cnt(self.lg, lg)
            if n is not None:
                n = min(n, 15)
                parts.append("lgkmcnt(%d)" % n); self.lg = self.lg[len(self.lg) - n:]
        if parts: self("s_waitcnt " + " ".join(parts))


def prologue(a, endlabel):
    a("s_cmp_ge_u32 s2, 256", "s_cbranch_scc1 %s" % endlabel)
    for k, s in enumerate((sX, sW, sWO, sOUT, sDBG, sWS)):
        a("s_load_dwordx2 %s, s[0:1], %d" % (sr(s, 2), 8 * k))
    for s, n in ((sX, 2359296), (sW, 1990656), (sWO, 663552), (sOUT, 2359296), (sDBG, 256), (sWS, WS_SIZE)):
        a("s_mov_b32 s%d, %d" % (s + 2, n), "s_mov_b32 s%d, 0x00020000" % (s + 3))
    a("v_lshrrev_b32 v2, 6, v0", "v_and_b32 v%d, 63, v0" % vLANE, "v_readfirstlane_b32 s%d, v2" % sWAVE,
      "s_and_b32 s%d, s2, 7" % sXCD, "s_lshr_b32 s%d, s2, 3" % sJ)
    a(";STAMPINIT")


def p1_roles(a, idle):
    a("s_lshr_b32 s%d, s%d, 2" % (sT0, sJ),
      "s_lshr_b32 s%d, s%d, 1" % (sT1, sXCD),
      "s_mul_i32 s%d, s%d, 7" % (sLINE, sT1),
      "s_add_u32 s%d, s%d, s%d" % (sLINE, sLINE, sT0),
      "s_cmp_ge_u32 s%d, 7" % sT0, "s_cbranch_scc1 %s" % idle,
      "s_cmp_ge_u32 s%d, 27" % sLINE, "s_cbranch_scc1 %s" % idle,
      "s_and_b32 s%d, s%d, 1" % (sG, sXCD), "s_lshl_b32 s%d, s%d, 2" % (sG, sG),
      "s_and_b32 s%d, s%d, 3" % (sT0, sJ), "s_add_u32 s%d, s%d, s%d" % (sG, sG, sT0))


XBASE = 65536
def xslot(s): return XBASE + 16384 * (s % 6)
def wslot(s): return 8192 * (s % 8)


def rotation(a, d, t, extra=None):
    a("s_lshr_b32 s%d, s%d, 2" % (d, sJ), "s_and_b32 s%d, s%d, 3" % (t, sJ), "s_lshl1_add_u32 s%d, s%d, s%d" % (d, t, d),
      "s_and_b32 s%d, s%d, 6" % (t, sXCD), "s_cmp_ge_u32 s%d, 6" % t, "s_addc_u32 s%d, s%d, s%d" % (d, d, t))
    if extra is not None: a("s_add_u32 s%d, s%d, s%d" % (d, d, extra))
    for k in range(2): a("s_sub_u32 s%d, s%d, 9" % (t, d), "s_cselect_b32 s%d, s%d, s%d" % (d, d, t))


def p1_body(a, isv, cfg, hooks):
    L = vLANE
    t0, t1, t2, t3 = 38, 39, 40, 41
    a("s_and_b32 s%d, s%d, 1" % (sT0, sWAVE), "s_lshr_b32 s%d, s%d, 1" % (sT1, sWAVE),
      "v_lshrrev_b32 v%d, 3, v%d" % (t0, L),
      "v_and_b32 v%d, 7, v%d" % (t1, L),
      "v_lshrrev_b32 v%d, 4, v%d" % (t2, L),
      "v_xor_b32 v%d, v%d, v%d" % (t2, t2, t1),
      "v_lshlrev_b32 v%d, 4, v%d" % (t2, t2),
      "s_lshl_b32 s%d, s%d, 5" % (sT2, sT1))
    if isv:
        a("s_lshl_b32 s%d, s%d, 2" % (sT3, sT0), "s_add_u32 s%d, s%d, s%d" % (sT2, sT2, sT3),
          "v_and_b32 v%d, 4, v%d" % (t3, t0), "v_add3_u32 v%d, v%d, v%d, s%d" % (t3, t3, t0, sT2))
    else:
        a("s_add_u32 s%d, s%d, s%d" % (sT2, sT2, sT0), "v_lshl_add_u32 v%d, v%d, 1, s%d" % (t3, t0, sT2))
    a("v_mul_u32_u24 v%d, 1152, v%d" % (t3, t3),
      "v_add_u32 v%d, v%d, v%d" % (vXS, t3, t2),
      "v_xor_b32 v%d, 64, v%d" % (t2, t2),
      "v_add_u32 v%d, v%d, v%d" % (vXS + 1, t3, t2),
      "v_add_u32 v%d, %d, v%d" % (vXS + 1, 16 * 1152 - 1024, vXS + 1))
    a("s_lshl_b32 s%d, s%d, 3" % (sT2, sWAVE), "v_add_u32 v%d, s%d, v%d" % (t3, sT2, t0),
      "v_mul_u32_u24 v%d, 3456, v%d" % (t3, t3),
      "v_and_b32 v%d, 2, v%d" % (t2, t0), "s_lshl_b32 s%d, s%d, 2" % (sT3, sT0),
      "v_xor_b32 v%d, v%d, v%d" % (t2, t2, t1), "v_xor_b32 v%d, s%d, v%d" % (t2, sT3, t2),
      "v_lshl_add_u32 v%d, v%d, 4, v%d" % (vWS, t2, t3))
    a("s_mul_i32 s%d, s%d, %d" % (sT2, sG, 128 * 1152), "s_lshl_b32 s%d, s%d, 7" % (sT3, sLINE),
      "v_add_u32 v%d, s%d, v%d" % (vXS, sT2, vXS), "v_add_u32 v%d, s%d, v%d" % (vXS + 1, sT2, vXS + 1), "v_add_u32 v%d, s%d, v%d" % (vWS, sT3, vWS))
    if cfg["rot"]:
        rotation(a, sT2, sT3)
    else:
        a("s_mov_b32 s%d, 0" % sT2)
    a("s_lshl_b32 s%d, s%d, 7" % (sXOFF, sT2), "s_mul_i32 s%d, s%d, %d" % (sWOFF, sT2, 64 * 3456),
      "s_lshl_b32 s%d, s%d, 11" % (sM0X, sWAVE),
      "s_lshl_b32 s%d, s%d, 10" % (sM0W, sWAVE))
    a("s_waitcnt lgkmcnt(0)", ";STAMP 17")

    def issue(kind, s):
        if kind == "w":
            def fw():
                a("s_add_u32 m0, s%d, %d" % (sM0W, wslot(s)))
                if s: a("s_add_u32 s%d, s%d, %d" % (sWOFF, sWOFF, 64 * 3456), "s_cmp_eq_u32 s%d, %d" % (sWOFF, 576 * 3456), "s_cselect_b32 s%d, 0, s%d" % (sWOFF, sWOFF))
                else: a("s_nop 0")
                a.vmem("buffer_load_dwordx4 v%d, %s, s%d offen lds" % (vWS, srd(sW), sWOFF), ("d", s))
            return [fw]
        def f0():
            a("s_add_u32 m0, s%d, %d" % (sM0X, xslot(s)))
            if s: a("s_add_u32 s%d, s%d, 128" % (sXOFF, sXOFF), "s_cmpk_eq_u32 s%d, 1152" % sXOFF, "s_cselect_b32 s%d, 0, s%d" % (sXOFF, sXOFF))
            else: a("s_nop 0")
            if s == 9: a("v_add_u32 v%d, %d, v%d" % (vXS, 1024 * 1152, vXS), "v_add_u32 v%d, %d, v%d" % (vXS + 1, 1024 * 1152, vXS + 1))
            a.vmem("buffer_load_dwordx4 v%d, %s, s%d offen lds" % (vXS, srd(sX), sXOFF), ("d", s))
        def f1():
            a.vmem("buffer_load_dwordx4 v%d, %s, s%d offen offset:1024 lds" % (vXS + 1, srd(sX), sXOFF), ("d", s))
        return [f0, f1]

    plan = cfg["plan"]
    for b, kind, s in plan:
        assert b < s and (kind == "w" and (s < 8 or b >= s - 7) or kind == "x" and (s < 6 or b >= s - 5))
        if b < 0:
            for f in issue(kind, s): f()
    hooks.get("start", lambda: None)()

    a("s_and_b32 s%d, s%d, 3" % (sT0, sWAVE), "s_lshr_b32 s%d, s%d, 2" % (sT1, sWAVE),
      "s_lshl_b32 s%d, s%d, 12" % (sT2, sT0), "s_add_u32 s%d, s%d, %d" % (sT2, sT2, XBASE),
      "v_and_b32 v%d, 15, v%d" % (t0, L), "v_lshrrev_b32 v%d, 4, v%d" % (t1, L),
      "v_bfe_u32 v%d, v%d, 1, 3" % (t2, L), "v_xor_b32 v%d, v%d, v%d" % (t2, t2, t1),
      "v_lshlrev_b32 v%d, 4, v%d" % (t2, t2),
      "v_lshl_add_u32 v%d, v%d, 7, s%d" % (t3, t0, sT2))
    for m in range(2):
        a("v_xor_b32 v%d, %d, v%d" % (vXR + m, 64 * m, t2), "v_add_u32 v%d, v%d, v%d" % (vXR + m, vXR + m, t3),
          "v_add_u32 v%d, 0x10000, v%d" % (vXR + 2 + m, vXR + m))
    a("v_bfe_u32 v%d, v%d, 2, 2" % (t2, L), "v_lshl_add_u32 v%d, v%d, 3, v%d" % (t2, t1, t2),
      "v_lshlrev_b32 v%d, 7, v%d" % (vWR, t2),
      "v_and_b32 v%d, 3, v%d" % (t2, L), "v_lshl_add_u32 v%d, v%d, 3, v%d" % (vWR, t2, vWR),
      "s_lshl_b32 s%d, s%d, 1" % (sT2, sT1),
      "v_bfe_u32 v%d, v%d, 3, 2" % (t2, L), "v_xor_b32 v%d, s%d, v%d" % (t2, sT2, t2),
      "v_lshl_add_u32 v%d, v%d, 5, v%d" % (vWR, t2, vWR),
      "v_xor_b32 v%d, 32, v%d" % (vWR2, vWR))
    a("s_lshl_b32 s%d, s%d, 1" % (sT2, sG), "s_lshr_b32 s%d, s%d, 1" % (sT3, sT0), "s_add_u32 s%d, s%d, s%d" % (sT2, sT2, sT3),
      "s_mul_i32 s%d, s%d, %d" % (sST, sT2, PITCH), "s_and_b32 s%d, s%d, 1" % (sT3, sT0),
      "v_lshlrev_b32 v%d, 4, v%d" % (t0, t0))
    if isv:
        a("s_mul_i32 s%d, s%d, %d" % (sT3, sT3, 4 * 9216), "s_add_u32 s%d, s%d, s%d" % (sST, sST, sT3),
          "s_lshl_b32 s%d, s%d, 10" % (sT3, sLINE), "s_add_u32 s%d, s%d, s%d" % (sST, sST, sT3),
          "s_lshl_b32 s%d, s%d, 9" % (sT3, sT1), "s_add_u32 s%d, s%d, s%d" % (sST, sST, sT3),
          "s_add_u32 s%d, s%d, %d" % (sST, sST, 2 * SEC - 18 * 1024),
          "v_mul_u32_u24 v%d, 9216, v%d" % (vSTA, t1), "v_add_u32 v%d, v%d, v%d" % (vSTA, t0, vSTA))
    else:
        a("s_lshl_b32 s%d, s%d, 8" % (sT3, sT3), "s_add_u32 s%d, s%d, s%d" % (sST, sST, sT3),
          "s_lshl_b32 s%d, s%d, 13" % (sT3, sLINE), "s_add_u32 s%d, s%d, s%d" % (sST, sST, sT3),
          "s_lshl_b32 s%d, s%d, 12" % (sT3, sT1), "s_add_u32 s%d, s%d, s%d" % (sST, sST, sT3),
          "v_lshl_add_u32 v%d, v%d, 9, v%d" % (vSTA, t1, t0),
          "s_mov_b32 s%d, 0x%08x" % (sT3, SCALE), "s_cmp_lt_u32 s%d, 9" % sLINE,
          "s_cselect_b32 s%d, s%d, 1.0" % (sSCALE, sT3))
    hooks.get("setup", lambda: None)()

    def reads(s):
        sl = s % 6
        r = []
        for m in range(2):
            for t in range(2):
                r.append("ds_read_b128 %s, v%d offset:%d" % (vr(vXF[s % 2] + 8 * m + 4 * t, 4), vXR + m + (2 if sl >= 4 else 0), 16384 * (sl % 4) + 2048 * t))
                if s < 9:
                    for h in range(2):
                        r.append("ds_read_b64_tr_b16 %s, v%d offset:%d" % (vr(vWF + 16 * s + 8 * m + 4 * t + 2 * h, 2), (vWR, vWR2)[t], wslot(s) + (32 * m + 4 * h) * 128))
        return [(lambda x=x: a.lds(x)) for x in r]

    def mfmas(s):
        r = []
        for m in range(2):
            for ft in range(2):
                for tt in range(2):
                    acc = vr(vACC[s // 9] + 8 * ft + 4 * tt, 4)
                    w = vr(vWF + 16 * (s % 9) + 8 * m + 4 * ft, 4); x = vr(vXF[s % 2] + 8 * m + 4 * tt, 4)
                    c = "0" if (s % 9 == 0 and m == 0) else acc
                    r.append("v_mfma_f32_16x16x32_bf16 %s, %s, %s, %s" % ((acc, x, w, c) if isv else (acc, w, x, c)))
        return r

    def store(r, n):
        a.vmem("buffer_store_dwordx4 %s, v%d, %s, s%d offen offset:%d sc1" % (vr(vACC[r] + 8 * n, 4), vSTA, srd(sWS), sST, (256 if isv else 2048) * n), ("st", r))

    def epilogue(r):
        acc = vACC[r]
        mid = hooks.get("mid_epi1") if r else None
        for n in range(2):
            if not isv:
                for i in range(8 * n, 8 * n + 8, 2): a("v_pk_mul_f32 %s, %s, %s op_sel_hi:[1,0]" % (vr(acc + i, 2), vr(acc + i, 2), sr(sSCALE, 2)))
            for i in range(4): a("v_cvt_pk_bf16_f32 v%d, v%d, v%d" % (acc + 8 * n + i, acc + 8 * n + 2 * i, acc + 8 * n + 2 * i + 1))
            if not mid: store(r, n)
        if mid:
            mid(); store(r, 0); store(r, 1)
        if r == 0: a("s_add_u32 s%d, s%d, %d" % (sST, sST, 16 * PITCH))

    for s in range(18):
        extra = hooks.get(("waitfor", s), [])
        a.wait(vm=[("d", s)] + extra, lg="all")
        a("s_barrier")
        a(";STAMP %d" % (20 + s))
        hooks.get(("bar", s), lambda: None)()
        side = reads(s)
        for b, kind, s2 in plan:
            if b == s: side += issue(kind, s2)
        mm = mfmas(s - 1) if s > 0 else []
        if cfg["early0"] and s == 9: mm = []
        per = cfg["per0"] if s < 9 else cfg["per1"]
        for x in mm:
            a(x)
            for f in side[:per]: f()
            side = side[per:]
        for f in side: f()
        if cfg["early0"] and s == 8:
            a.wait(lg="all"); a(mfmas(8))
        if s == (8 if cfg["early0"] else 9):
            a("s_nop 5")
            epilogue(0)
            a(";STAMP 39")
        hooks.get(("step", s), lambda: None)()
    a.wait(lg="all")
    a(mfmas(17))
    hooks.get("pre_epi1", lambda: None)()
    a("s_nop 5")
    epilogue(1)
    a(";STAMP 38")
    hooks.get("post_epi1", lambda: None)()


def wo_role(a, skip):
    L = vLANE
    t0, t1, t2, t3 = 24, 25, 26, 27
    lab = a.uid("wo")
    a("s_lshl_b32 s%d, s%d, 2" % (sT0, sXCD), "s_and_b32 s%d, s%d, 3" % (sT5, sJ), "s_add_u32 s%d, s%d, s%d" % (sLINE, sT0, sT5),
      "s_cmp_ge_u32 s%d, 28" % sJ, "s_cbranch_scc1 %s" % lab,
      "s_add_u32 s%d, s%d, 8" % (sLINE, sLINE),
      "%s:" % lab,
      "s_waitcnt lgkmcnt(0)",
      "s_cmp_ge_u32 s%d, 36" % sLINE, "s_cbranch_scc1 %s" % skip)
    a("s_lshl_b32 s%d, s%d, 3" % (sT0, sWAVE), "v_lshrrev_b32 v%d, 3, v%d" % (t0, L), "v_add_u32 v%d, s%d, v%d" % (t0, sT0, t0),
      "v_mul_u32_u24 v%d, 1152, v%d" % (t0, t0), "v_and_b32 v%d, 7, v%d" % (t1, L), "v_lshl_add_u32 v%d, v%d, 4, v%d" % (t0, t1, t0),
      "s_lshr_b32 s%d, s%d, 2" % (sT4, sLINE), "s_lshl_b32 s%d, s%d, 7" % (sT1, sT4),
      "s_mul_i32 s%d, s%d, %d" % (sT2, sT5, 144 * 1152), "s_add_u32 s%d, s%d, s%d" % (sT1, sT1, sT2),
      "s_lshl_b32 s%d, s%d, 10" % (sT2, sWAVE))
    for k in range(3):
        a("s_add_u32 m0, s%d, %d" % (sT2, 8192 * k))
        if k == 2: a("s_cmp_ge_u32 s%d, 2" % sWAVE, "s_cselect_b32 s%d, 0x40000000, s%d" % (sT1, sT1))
        else: a("s_nop 0")
        a.vmem("buffer_load_dwordx4 v%d, %s, s%d offen lds" % (t0, srd(sWO), sT1), "wo")
        if k < 2: a("s_add_u32 s%d, s%d, %d" % (sT1, sT1, 64 * 1152))
    a("s_and_b32 s%d, s%d, 3" % (sT0, sWAVE), "s_lshr_b32 s%d, s%d, 2" % (sT1, sWAVE),
      "s_mul_i32 s%d, s%d, 72" % (sT3, sT1), "s_lshl_b32 s%d, s%d, 5" % (sT2, sT0),
      "v_lshrrev_b32 v%d, 5, v%d" % (t0, L), "v_mul_u32_u24 v%d, 18, v%d" % (t0, t0),
      "v_bfe_u32 v%d, v%d, 2, 3" % (t1, L),
      "v_add3_u32 v%d, v%d, v%d, s%d" % (t0, t0, t1, sT3),
      "v_and_b32 v%d, 3, v%d" % (t2, L), "v_lshl_add_u32 v%d, v%d, 3, s%d" % (t2, t2, sT2),
      "v_lshl_add_u32 v%d, v%d, 7, v%d" % (t0, t0, t2),
      "v_lshrrev_b32 v%d, 3, v%d" % (t1, L), "v_mul_u32_u24 v%d, 18, v%d" % (t1, t1),
      "v_bfe_u32 v%d, v%d, 2, 1" % (t3, L),
      "v_add3_u32 v%d, v%d, v%d, 16" % (t1, t1, t3),
      "v_lshl_add_u32 v%d, v%d, 7, v%d" % (t1, t1, t2))
    a("s_lshl_b32 s%d, s%d, 2" % (sT2, sT4), "s_add_u32 s%d, s%d, s%d" % (sT2, sT2, sT0), "s_lshl_b32 s%d, s%d, 2" % (sT2, sT2),
      "s_add_u32 s%d, s%d, s%d" % (sT2, sT2, sT5), "s_mul_i32 s%d, s%d, 4608" % (sT2, sT2),
      "s_add_u32 s%d, s%d, %d" % (sT2, sT2, WOBASE), "s_add_u32 s%d, s%d, 4096" % (sT4, sT2),
      "s_lshl_b32 s%d, s%d, 11" % (sT3, sT1), "s_add_u32 s%d, s%d, s%d" % (sT2, sT2, sT3),
      "v_lshlrev_b32 v%d, 4, v%d" % (t2, L), "v_lshlrev_b32 v%d, 3, v%d" % (t3, L))
    a.wait(vm="all"); a("s_barrier")
    for m in range(2):
        for h in range(2):
            a.lds("ds_read_b64_tr_b16 %s, v%d offset:%d" % (vr(48 + 4 * m + 2 * h, 2), t0, (36 * m + 8 * h) * 128))
    a.lds("ds_read_b64_tr_b16 v[56:57], v%d" % t1)
    a.wait(lg="all")
    for m in range(2):
        a.vmem("buffer_store_dwordx4 %s, v%d, %s, s%d offen offset:%d sc1" % (vr(48 + 4 * m, 4), t2, srd(sWS), sT2, 1024 * m), "st")
    a.vmem("buffer_store_dwordx2 v[56:57], v%d, %s, s%d offen sc1" % (t3, srd(sWS), sT4), "st")


def p2_setup(a):
    L = vLANE
    t0, t1, t2, t3 = 38, 39, 40, 41
    a("s_lshl_b32 s%d, s%d, 2" % (sHEAD, sXCD), "s_lshr_b32 s%d, s%d, 3" % (sT0, sJ), "s_add_u32 s%d, s%d, s%d" % (sHEAD, sHEAD, sT0),
      "s_and_b32 s%d, s%d, 7" % (sQI, sJ), "s_and_b32 s%d, s%d, 3" % (sP, sWAVE), "s_lshr_b32 s%d, s%d, 2" % (sKH, sWAVE),
      "s_mov_b32 s%d, 0x3ffff" % sVMASK, "s_mov_b32 s%d, 0x3ffff" % (sVMASK + 1),
      "s_mov_b32 s%d, -1" % sDMASK, "s_mov_b32 s%d, 0xffff" % (sDMASK + 1),
      "s_and_b32 s%d, s%d, 1" % (sT0, sHEAD),
      "s_lshr_b32 s%d, s%d, 1" % (sT1, sHEAD), "s_mul_i32 s%d, s%d, %d" % (sT1, sT1, 9 * 512))
    a("v_and_b32 v%d, 31, v%d" % (t0, L), "v_lshrrev_b32 v%d, 5, v%d" % (t1, L))
    a("s_lshl_b32 s%d, s%d, 11" % (sT2, sT0), "s_add_u32 s%d, s%d, s%d" % (sT2, sT2, sT1), "s_add_u32 s%d, s%d, %d" % (sT2, sT2, SEC),
      "v_lshl_add_u32 v%d, v%d, 4, s%d" % (vDMA, L, sT2),
      "s_mul_i32 s%d, s%d, 288" % (sT3, sHEAD))
    for k in (2, 3, 4):
        imm = 1024 * k if k < 4 else 0
        d = vDMA + k - 1
        a("v_add_u32 v%d, %d, v%d" % (t2, (64 * k - 160) & 0xffffffff, L))
        if k == 2: a("v_max_i32 v%d, 0, v%d" % (t2, t2))
        a("v_mul_u32_u24 v%d, 3641, v%d" % (t3, t2), "v_lshrrev_b32 v%d, 16, v%d" % (t3, t3),
          "v_mul_u32_u24 v%d, %d, v%d" % (t3, 9216 - 288, t3),
          "v_lshl_add_u32 v%d, v%d, 4, v%d" % (t3, t2, t3),
          "s_add_u32 s%d, s%d, %d" % (sT4, sT3, 2 * SEC - imm),
          "v_add_u32 v%d, s%d, v%d" % (d, sT4, t3))
        if k == 2:
            a("v_cmp_gt_u32 vcc, 32, v%d" % L, "s_nop 1", "v_cndmask_b32 v%d, v%d, v%d, vcc" % (d, d, vDMA))
    a("s_mul_i32 s%d, s%d, %d" % (sT2, sKH, CHUNK),
      "s_lshl_b32 s%d, s%d, 9" % (sT3, sT0), "s_add_u32 s%d, s%d, s%d" % (sT3, sT3, sT2),
      "v_lshlrev_b32 v%d, 10, v%d" % (t2, t1), "v_lshl_add_u32 v%d, v%d, 3, v%d" % (t2, t0, t2),
      "v_add_u32 v%d, s%d, v%d" % (vAK, sT3, t2),
      "s_mul_i32 s%d, s%d, %d" % (sT3, sT0, (4 - 2048) & 0xffffffff), "s_add_u32 s%d, s%d, 2048" % (sT3, sT3),
      "s_add_u32 s%d, s%d, s%d" % (sT3, sT3, sT2),
      "v_lshl_add_u32 v%d, v%d, 3, s%d" % (vAR, L, sT3),
      "s_add_u32 s%d, s%d, 2560" % (sT3, sT2),
      "v_mul_u32_u24 v%d, 288, v%d" % (t3, t1), "v_lshl_add_u32 v%d, v%d, 4, v%d" % (t3, t0, t3),
      "v_add_u32 v%d, s%d, v%d" % (vAV, sT3, t3))
    a("s_mul_i32 s%d, s%d, %d" % (sT3, sT0, 5 * 512), "s_add_u32 s%d, s%d, s%d" % (sT3, sT3, sT1),
      "v_add_u32 v%d, s%d, v%d" % (vQA, sT3, t2),
      "s_lshl_b32 s%d, s%d, 2" % (sT3, sT0), "s_add_u32 s%d, s%d, s%d" % (sT3, sT3, sT1), "s_add_u32 s%d, s%d, 2048" % (sT3, sT3),
      "v_lshl_add_u32 v%d, v%d, 3, s%d" % (vQR, t0, sT3),
      "s_lshl_b32 s%d, s%d, 1" % (sT3, sQI), "s_lshr_b32 s%d, s%d, 1" % (sT4, sP), "s_add_u32 s%d, s%d, s%d" % (sT3, sT3, sT4),
      "s_mul_i32 s%d, s%d, %d" % (sQOFF, sT3, PITCH), "s_and_b32 s%d, s%d, 1" % (sT4, sP), "s_lshl_b32 s%d, s%d, 8" % (sT4, sT4),
      "s_add_u32 s%d, s%d, s%d" % (sQOFF, sQOFF, sT4),
      "v_mov_b32 v%d, 0xdddddddd" % vIDX, "v_mov_b32 v%d, 0" % (vQ[0] + 5), "v_mov_b32 v%d, 0" % (vQ[1] + 5))


def q_load(a, part):
    so = sQOFF
    if part:
        a("s_add_u32 s%d, s%d, %d" % (sT0, sQOFF, 16 * PITCH)); so = sT0
    q = vQ[part]
    a.vmem("buffer_load_dwordx2 %s, v%d, %s, s%d offen sc1" % (vr(q, 2), vQA, srd(sWS), so), ("q", part))
    a.vmem("buffer_load_dwordx2 %s, v%d, %s, s%d offen offset:512 sc1" % (vr(q + 2, 2), vQA, srd(sWS), so), ("q", part))
    a.vmem("buffer_load_dword v%d, v%d, %s, s%d offen sc1" % (q + 4, vQR, srd(sWS), so), ("q", part))


def kv_dma(a, st, part="kv"):
    if "k" in part:
        a("s_lshl1_add_u32 s%d, s%d, s%d" % (sT0, sP, sKH), "s_add_u32 s%d, s%d, %d" % (sT0, sT0, 8 * st), "s_mul_i32 s%d, s%d, %d" % (sCM, sT0, CHUNK), "s_mov_b32 m0, s%d" % sCM,
          "s_mul_i32 s%d, s%d, %d" % (sCH, sT0, PITCH))
        for k in range(3):
            a.vmem("buffer_load_dwordx4 v%d, %s, s%d offen offset:%d sc1 lds" % (vDMA + max(0, k - 1), srd(sWS), sCH, 1024 * k), ("k", st))
    if "v" in part:
        if "k" not in part: a("s_mov_b32 m0, s%d" % sCM, "s_nop 0")
        a.vmem("buffer_load_dwordx4 v%d, %s, s%d offen offset:3072 sc1 lds" % (vDMA + 2, srd(sWS), sCH), ("kv", st))
        a("s_add_u32 m0, s%d, 4096" % sCM, "s_mov_b64 exec, %s" % sr(sDMASK, 2))
        a.vmem("buffer_load_dwordx4 v%d, %s, s%d offen sc1 lds" % (vDMA + 3, srd(sWS), sCH), ("kv", st))
        a("s_mov_b64 exec, -1")


def v_consts(a, base, t):
    a("v_and_b32 v%d, 27, v%d" % (t, vLANE), "v_cmp_eq_u32 vcc, 18, v%d" % t, "v_mov_b32 v%d, 0x3f803f80" % t, "s_nop 0",
      "v_cndmask_b32 v%d, 0, v%d, vcc" % (base, t))
    a("v_mov_b32 v%d, v%d" % (base + 1, base))
    for i in range(1, 8): a("v_mov_b64 %s, %s" % (vr(base + 2 * i, 2), vr(base, 2)))


def p2_init(a):
    word_setup(a)
    v_consts(a, vV, vV + 2)
    a("v_mov_b32 v%d, 0" % (vKR + 1))
    for i in range(16): a("v_mov_b64 %s, 0" % vr(vO[0] + 2 * i, 2))


def p2_main(a, cfg, ev):
    ns = cfg["nsolo"]
    U = [(i, 0) for i in range(ns)] + [(i, q) for i in range(ns, 16) for q in range(2)] + [(i, 1) for i in range(ns)]
    N = len(U)
    base = {"k": 0, "r": 0, "v": 0}
    reg = {"k": vAK, "r": vAR, "v": vAV}
    seen = set()

    def off(kind, i):
        if i not in seen:
            seen.add(i)
            if ("pre", i) in ev: ev[("pre", i)]()
        want = (i // 6) * 6
        if base[kind] != want:
            a("v_add_u32 v%d, 0x%x, v%d" % (reg[kind], ((want - base[kind]) * 2 * CHUNK) & 0xffffffff, reg[kind]))
            base[kind] = want
        return (i - want) * 2 * CHUNK

    def rR(i):
        o = off("r", i); a.lds("ds_read_b32 v%d, v%d offset:%d" % (vKR, vAR, o), "R")
    def rK(i, t):
        o = off("k", i)
        for h in range(2): a.lds("ds_read_b64 %s, v%d offset:%d" % (vr(vK + 4 * t + 2 * h, 2), vAK, o + 256 * t + 512 * h), ("K", t))
    def rV(i, fs):
        o = off("v", i)
        if not cfg.get("x_nomask"): a("s_mov_b64 exec, %s" % sr(sVMASK, 2))
        for f in fs: a.lds("ds_read_b128 %s, v%d offset:%d" % (vr(vV + 4 * f, 4), vAV, o + 576 * f), ("V", f // 2))
        if not cfg.get("x_nomask"): a("s_mov_b64 exec, -1")
    def R(u):
        a.wait(lg="R")
        if U[u][1] == 1 and "ql" in ev: ev.pop("ql")()
        a("v_mfma_f32_32x32x4_2b_bf16 %s, %s, %s, 0" % (vr(vS[u % 2], 32), vr(vKR, 2), vr(vQ[U[u][1]] + 4, 2)))
    def M(u, t):
        a.wait(lg=("K", t))
        s = vr(vS[u % 2] + 16 * t, 16)
        a("v_mfma_f32_32x32x16_bf16 %s, %s, %s, %s" % (s, vr(vK + 4 * t, 4), vr(vQ[U[u][1]], 4), s))
    def P(u, f):
        a.wait(lg=("V", f // 2))
        a("v_smfmac_f32_32x32x32_bf16 %s, %s, %s, v%d" % (vr(vO[U[u][1]], 16), vr(vV + 4 * f, 4), vr(vS[u % 2] + 8 * f, 8), vIDX))
    ch = lambda u: U[u][0]
    newk = lambda u: u < N and ch(u) != ch(u - 1)

    rR(ch(0)); rK(ch(0), 0); rK(ch(0), 1)
    if "v0" not in ev: rV(ch(0), (0, 1, 2, 3))
    R(0)
    if newk(1): rR(ch(1))
    a("s_nop 15", "s_nop 1")
    M(0, 0)
    if newk(1): rK(ch(1), 0)
    M(0, 1)
    if newk(1): rK(ch(1), 1)
    a("s_nop 7")
    pos = cfg["pos"]
    for u in range(N):
        def op(j):
            if j == 0:
                if u > 0:
                    P(u - 1, 3)
                    if newk(u): rV(ch(u), (2, 3))
            elif j == 1:
                if u + 1 < N:
                    R(u + 1)
                    if newk(u + 2): rR(ch(u + 2))
                    if u == 0 and "v0" in ev:
                        ev["v0"](); rV(ch(0), (0, 1, 2, 3))
            elif j == 2: P(u, 0)
            elif j == 3:
                P(u, 1)
                if newk(u + 1): rV(ch(u + 1), (0, 1))
            elif j == 4 or j == 6:
                if u + 1 < N:
                    M(u + 1, (j - 4) // 2)
                    if newk(u + 2): rK(ch(u + 2), (j - 4) // 2)
            elif j == 5: P(u, 2)
            if (u, j) in cfg.get("prio", {}): a("s_setprio %d" % cfg["prio"][(u, j)])
            if (u, j) in cfg.get("priox", {}):
                l = a.uid("px"); a("s_cmp_lg_u32 s%d, 0" % sKH, "s_cbranch_scc1 %s" % l, "s_setprio %d" % cfg["priox"][(u, j)], "%s:" % l)
            if (u, j) in ev: ev[(u, j)]()
        a(";STAMP %d" % (40 + u))
        for e in range(32):
            if e in pos: op(pos.index(e))
            a("v_exp_f32 v%d, v%d" % (vS[u % 2] + e, vS[u % 2] + e))
    a("s_nop 1")
    P(N - 1, 3)
    return U


SCR_RES, SCR_ROFF = 12 * CHUNK, (0, 2 * CHUNK)
SCR_MOFF = (0, 0)
P3_BASE, P3_OFF = 15 * CHUNK, (0, 39936)
vSA, vSB, vOA, vOB = 18, 19, 20, 21
sOA, sOR = 35, 36
sOL = 37
sPEND = 40


def late_setup(a):
    L = vLANE
    a("s_lshl_b32 s%d, s%d, 11" % (sT0, sP), "s_add_u32 s%d, s%d, %d" % (sT0, sT0, LDS_SPARE), "v_add_u32 v%d, s%d, v%d" % (vSA, sT0, vL16),
      "s_lshl_b32 s%d, s%d, 10" % (sT0, sP), "s_add_u32 s%d, s%d, %d" % (sT0, sT0, SCR_RES), "v_add_u32 v%d, s%d, v%d" % (vSB, sT0, vL16),
      "s_lshl2_add_u32 s%d, s%d, s%d" % (sT0, sQI, sP), "s_mul_i32 s%d, s%d, %d" % (sT0, sT0, OTILE), "s_add_u32 s%d, s%d, %d" % (sT0, sT0, OBASE),
      "s_cmp_eq_u32 s%d, 0" % sKH, "s_cselect_b32 s%d, 0x40000000, s%d" % (sT0, sT0),
      "s_lshl_b32 s%d, s%d, 10" % (sT1, sHEAD), "s_add_u32 s%d, s%d, s%d" % (sOA, sT1, sT0),
      "s_lshl_b32 s%d, s%d, 7" % (sT1, sHEAD), "s_add_u32 s%d, s%d, s%d" % (sOR, sT1, sT0), "s_add_u32 s%d, s%d, 32768" % (sOR, sOR),
      "v_lshrrev_b32 v%d, 4, v%d" % (vOB, L), "v_and_b32 v0, 15, v%d" % L,
      "v_lshlrev_b32 v%d, 9, v%d" % (vOA, vOB), "v_lshl_add_u32 v%d, v0, 4, v%d" % (vOA, vOA),
      "v_lshlrev_b32 v%d, 8, v%d" % (vOB, vOB), "v_lshl_add_u32 v%d, v0, 2, v%d" % (vOB, vOB),
      "s_lshl2_add_u32 s%d, s%d, s%d" % (sT0, sXCD, sRT), "s_mul_i32 s%d, s%d, %d" % (sT0, sT0, OTILE), "s_add_u32 s%d, s%d, %d" % (sT0, sT0, OBASE),
      "s_lshl_b32 s%d, s%d, 5" % (sT1, sKQ), "s_add_u32 s%d, s%d, s%d" % (sT1, sT1, sRH), "s_lshl_b32 s%d, s%d, 8" % (sT1, sT1),
      "s_add_u32 s%d, s%d, s%d" % (sOL, sT1, sT0), "s_add_u32 s%d, s%d, 4096" % (sOL + 1, sOL),
      "s_lshl4_add_u32 s%d, s%d, s%d" % (sT1, sKQ, sRH), "s_lshl_b32 s%d, s%d, 6" % (sT1, sT1),
      "s_add_u32 s%d, s%d, s%d" % (sOL + 2, sT1, sT0), "s_add_u32 s%d, s%d, 32768" % (sOL + 2, sOL + 2))


def o_store(a, d, t, part, em):
    sa, sb = sOA, sOR
    if part:
        a("s_add_u32 s%d, s%d, %d" % (sT1, sOA, 32 * OTILE), "s_add_u32 s%d, s%d, %d" % (sT2, sOR, 32 * OTILE)); sa, sb = sT1, sT2
    em("buffer_store_dwordx4 %s, v%d, %s, s%d offen sc1" % (vr(d, 4), vL16, srd(sWS), sa))
    a("s_mov_b32 exec_hi, 0")
    em("buffer_store_dword v%d, v%d, %s, s%d offen sc1" % (d + 4, t, srd(sWS), sb))
    a("s_mov_b64 exec, -1")


def poison(a):
    d = vT + 2
    a("v_mov_b64 %s, -1" % vr(d, 2), "v_mov_b64 %s, -1" % vr(d + 2, 2), "v_mov_b32 v%d, -1" % (d + 4), "v_lshlrev_b32 v%d, 2, v%d" % (vT, vLANE))
    for part in range(2): o_store(a, d, vT, part, lambda x: a.vmem(x, "poison"))


def send_partial(a, part):
    o = vO[part]
    a("v_mov_b32 v%d, s%d" % (o + 11, sTAG),
      "ds_write_b128 v%d, %s offset:%d" % (vSA, vr(o, 4), SCR_MOFF[part]), "ds_write_b128 v%d, %s offset:%d" % (vSA, vr(o + 4, 4), SCR_MOFF[part] + 1024),
      "ds_write_b128 v%d, %s offset:%d" % (vSB, vr(o + 8, 4), SCR_ROFF[part]))


def fin_reads(part):
    d = vT + 2
    return ["ds_read_b128 %s, v%d offset:%d" % (vr(d + 8, 4), vSB, SCR_ROFF[part]),
            "ds_read_b128 %s, v%d offset:%d" % (vr(d, 4), vSA, SCR_MOFF[part]), "ds_read_b128 %s, v%d offset:%d" % (vr(d + 4, 4), vSA, SCR_MOFF[part] + 1024)]


def finalize(a, part, slow, colds, prefetched=False):
    o = vO[part]
    t = vT
    d = vT + 2
    if not prefetched: a(fin_reads(part))
    again = a.uid("meet")
    a("s_mov_b32 s%d, 0" % sT5, "s_mov_b32 s%d, 0x37800000" % sT4, "v_lshlrev_b32 v0, 2, v%d" % vLANE,
      "%s:" % again, "s_waitcnt lgkmcnt(0)", "v_cmp_ne_u32 vcc, s%d, v%d" % (sTAG, d + 11), "s_cbranch_vccnz %s_r" % again, "%s_k:" % again)
    def cold():
        a("%s_r:" % again); spin_guard(a, again + "_k"); a("s_sleep 1", fin_reads(part), "s_branch %s" % again)
    colds.append(cold)
    pk = lambda op, x, y, z, m="": "v_pk_%s_f32 %s, %s, %s%s" % (op, vr(x, 2), vr(y, 2), vr(z, 2), m)
    a("v_add_f32 v%d, v%d, v%d" % (o + 10, o + 10, d + 10), pk("add", o + 8, o + 8, d + 8))
    for i in (0, 2, 4, 6): a(pk("add", o + i, o + i, d + i))
    back = a.uid("norm")
    done = a.uid("normok")
    a("%s:" % back)
    a("v_rcp_f32 v%d, v%d" % (t, o + 10), "v_mov_b32 v%d, 0x71800000" % (d + 11))
    for i in range(0, 10, 2): a(pk("mul", d + i, o + i, t, " op_sel_hi:[1,0]"))
    a("v_med3_f32 v%d, v%d, s%d, v%d" % (d + 10, o + 10, sT4, d + 11), pk("add", t, d, d + 2))
    for i in (4, 6, 8): a(pk("add", t, t, d + i))
    a("v_add_f32 v%d, v%d, v%d" % (t, t, t + 1),
      "v_fma_f32 v%d, v%d, 0, v%d" % (t, t, o + 10),
      "v_cmp_neq_f32 vcc, v%d, v%d" % (d + 10, t))
    for i in range(5): a("v_cvt_pk_bf16_f32 v%d, v%d, v%d" % (d + i, d + 2 * i, d + 2 * i + 1))
    a("s_cbranch_vccz %s" % done)
    slow(part, back, done)
    a("%s:" % done)
    o_store(a, d, 0, part, a)


def slow_path(a, part, label, back, done, after):
    S, K, KR, V, m, ar, av = 44, 76, 84, 88, 104, 105, 106
    q = vQ[part]; o = vO[part]
    a("%s:" % label, "s_cmp_eq_u32 s%d, 0" % sT5, "s_cbranch_scc1 %s_go" % label)
    for i in range(5): a("v_min_u32 v%d, -2, v%d" % (vT + 2 + i, vT + 2 + i))
    a("s_branch %s" % done, "%s_go:" % label, "s_mov_b32 s%d, 1" % sT5)
    a("s_waitcnt vmcnt(0) lgkmcnt(0)")
    v_consts(a, V, m)
    a("v_mov_b32 v%d, 0" % (KR + 1))
    for i in range(16): a("v_mov_b32 v%d, 0" % (o + i))
    a("v_lshrrev_b32 v%d, 5, v%d" % (m, vLANE), "v_lshl_add_u32 v%d, v%d, 8, v%d" % (ar, m, vQR),
      "v_mul_u32_u24 v%d, 9216, v%d" % (av, m), "v_and_b32 v%d, 31, v%d" % (m, vLANE), "v_lshl_add_u32 v%d, v%d, 4, v%d" % (av, m, av),
      "s_mul_i32 s%d, s%d, 288" % (sT3, sHEAD), "s_add_u32 s%d, s%d, %d" % (sT3, sT3, SEC), "v_add_u32 v%d, s%d, v%d" % (av, sT3, av))
    for f in range(1, 4): a("v_add_u32 v%d, 18432, v%d" % (av + f, av + f - 1))
    a("v_mov_b32 v%d, 0xff800000" % m)
    for ps in range(2):
        lp = a.uid("slow")
        a("s_mov_b32 s%d, %d" % (sLOOP, SEC), "%s:" % lp)
        for t in range(2):
            for h in range(2):
                a("buffer_load_dwordx2 %s, v%d, %s, s%d offen offset:%d sc1" % (vr(K + 4 * t + 2 * h, 2), vQA, srd(sWS), sLOOP, 256 * t + 512 * h))
        a("buffer_load_dword v%d, v%d, %s, s%d offen sc1" % (KR, ar, srd(sWS), sLOOP))
        if ps:
            a("s_mov_b64 exec, %s" % sr(sVMASK, 2))
            for f in range(4): a("buffer_load_dwordx4 %s, v%d, %s, s%d offen sc1" % (vr(V + 4 * f, 4), av + f, srd(sWS), sLOOP))
            a("s_mov_b64 exec, -1")
        a("s_waitcnt vmcnt(0)",
          "v_mfma_f32_32x32x4_2b_bf16 %s, %s, %s, 0" % (vr(S, 32), vr(KR, 2), vr(q + 4, 2)), "s_nop 15", "s_nop 1")
        for t in range(2):
            a("v_mfma_f32_32x32x16_bf16 %s, %s, %s, %s" % (vr(S + 16 * t, 16), vr(K + 4 * t, 4), vr(q, 4), vr(S + 16 * t, 16)))
        a("s_nop 11")
        if ps == 0:
            for i in range(16): a("v_max3_f32 v%d, v%d, v%d, v%d" % (m, m, S + 2 * i, S + 2 * i + 1))
        else:
            for i in range(32): a("v_sub_f32 v%d, v%d, v%d" % (S + i, S + i, m))
            for i in range(32): a("v_exp_f32 v%d, v%d" % (S + i, S + i))
            a("s_nop 1")
            for f in range(4): a("v_smfmac_f32_32x32x32_bf16 %s, %s, %s, v%d" % (vr(o, 16), vr(V + 4 * f, 4), vr(S + 8 * f, 8), vIDX))
        a("s_add_u32 s%d, s%d, %d" % (sLOOP, sLOOP, PITCH), "s_cmp_lt_u32 s%d, %d" % (sLOOP, 32 * PITCH), "s_cbranch_scc1 %s" % lp)
        if ps == 0:
            a("v_mov_b32 v%d, v%d" % (S, m), "s_nop 1", "v_permlane32_swap_b32 v%d, v%d" % (S, m), "s_nop 1", "v_max_f32 v%d, v%d, v%d" % (m, m, S))
    a("s_nop 15")
    after()
    a("s_branch %s" % back)


def p3_setup(a):
    a("s_and_b32 s%d, s%d, 3" % (sRT, sJ), "s_lshr_b32 s%d, s%d, 2" % (sCB, sJ),
      "s_lshr_b32 s%d, s%d, 2" % (sRH, sWAVE), "s_lshl1_add_u32 s%d, s%d, s%d" % (sKQ, sRH, sWAVE), "s_and_b32 s%d, s%d, 3" % (sKQ, sKQ),
      "s_and_b32 s%d, s%d, 1" % (sT0, sCB), "s_cmp_eq_u32 s%d, s%d" % (sT0, sRH), "s_cselect_b32 s%d, 1, 0" % sFIVE,
      "s_lshr_b32 s%d, s%d, 1" % (sT1, sCB), "s_mul_i32 s%d, s%d, 9" % (sT1, sT1),
      "s_mul_i32 s%d, s%d, 5" % (sT0, sT0), "s_add_u32 s%d, s%d, s%d" % (sT0, sT0, sT1),
      "s_add_u32 s%d, s%d, 4" % (sT1, sT1),
      "s_mul_i32 s%d, s%d, 4608" % (sT2, sKQ), "s_add_u32 s%d, s%d, %d" % (sT2, sT2, WOBASE),
      "s_mul_i32 s%d, s%d, %d" % (sT3, sT0, 4 * 4608), "s_add_u32 s%d, s%d, s%d" % (sWOF, sT3, sT2))
    for t in range(1, 4): a("s_add_u32 s%d, s%d, %d" % (sWOF + t, sWOF, 4 * 4608 * t))
    a("s_mul_i32 s%d, s%d, %d" % (sT3, sT1, 4 * 4608), "s_add_u32 s%d, s%d, s%d" % (sWOF + 4, sT3, sT2),
      "s_lshl2_add_u32 s%d, s%d, s%d" % (sT2, sXCD, sRT), "s_lshl1_add_u32 s%d, s%d, s%d" % (sT2, sT2, sRH),
      "s_mul_i32 s%d, s%d, %d" % (sT3, sT2, 16 * 1152), "s_lshl_b32 s%d, s%d, 5" % (sT1, sT1), "s_add_u32 s%d, s%d, s%d" % (sOCOL + 1, sT1, sT3),
      "s_lshl2_add_u32 s%d, s%d, s%d" % (sT2, sT2, sKQ), "s_mul_i32 s%d, s%d, %d" % (sT3, sT2, 4 * 1152),
      "s_lshl_b32 s%d, s%d, 5" % (sT0, sT0), "s_add_u32 s%d, s%d, s%d" % (sOCOL, sT0, sT3),
      "s_add_u32 s%d, s%d, %d" % (sOCOL + 2, sOCOL, 1024 * 1152), "s_add_u32 s%d, s%d, %d" % (sOCOL + 3, sOCOL + 1, 1024 * 1152),
      "s_cmp_eq_u32 s%d, 0" % sKQ, "s_cselect_b32 s%d, s%d, 0" % (sSHF, sFIVE),
      "s_movk_i32 s%d, 272" % sC272, "s_movk_i32 s%d, 80" % sC80)


def wo_load(a, tiles, t16, t8, track=True, only=None):
    em = a.vmem if track else (lambda s, tag: a(s))
    for t in tiles:
        for m in range(4):
            if only in (None, m): em("buffer_load_dwordx4 %s, v%d, %s, s%d offen offset:%d sc1" % (vr(vWO + 18 * t + 4 * m, 4), t16, srd(sWS), sWOF + t, 1024 * m), "wo")
        if only in (None, 4): em("buffer_load_dwordx2 %s, v%d, %s, s%d offen sc1" % (vr(vWO + 18 * t + 16, 2), t8, srd(sWS), sWOF + t), "wo")


def o_instr(of, g):
    main, res = of
    if g < 4: return ["buffer_load_dwordx4 %s, v%d, %s, s%d offen offset:%d sc1" % (vr(main + 4 * g, 4), vOA, srd(sWS), sOL + g // 2, 2048 * (g % 2))]
    return ["buffer_load_dword v%d, v%d, %s, s%d offen offset:%d sc1" % (res + e, vOB, srd(sWS), sOL + 2, 128 * e) for e in range(2)]


def o_load(a, of, tag):
    for g in range(5):
        for x in o_instr(of, g): a.vmem(x, tag)


def p3_mfma(a, of, acc, t, first_wait):
    main, res = of
    top = a.uid("opass"); out = a.uid("odone")
    a("s_mov_b32 s%d, 31" % sPEND)
    first_wait()
    a("%s:" % top)
    redo = []
    for g in range(5):
        skip = a.uid("oskip"); rd = a.uid("oredo")
        a("s_bitcmp0_b32 s%d, %d" % (sPEND, g), "s_cbranch_scc1 %s" % skip)
        if g < 4: a("v_max3_u32 v%d, v%d, v%d, v%d" % (t, main + 4 * g, main + 4 * g + 1, main + 4 * g + 2), "v_max_u32 v%d, v%d, v%d" % (t, t, main + 4 * g + 3))
        else: a("v_max_u32 v%d, v%d, v%d" % (t, res, res + 1))
        a("v_cmp_eq_u32 vcc, -1, v%d" % t, "s_cbranch_vccnz %s" % rd, "s_bitset0_b32 s%d, %d" % (sPEND, g))
        for k in range(5):
            c = vr(acc + 4 * k, 4)
            if g < 4: a("v_mfma_f32_16x16x32_bf16 %s, %s, %s, %s" % (c, vr(vWO + 18 * k + 4 * g, 4), vr(main + 4 * g, 4), c))
            else: a("v_mfma_f32_16x16x16_bf16 %s, %s, %s, %s" % (c, vr(vWO + 18 * k + 16, 2), vr(res, 2), c))
        a("%s:" % skip)
        redo.append((rd, skip, g))
    a("s_cmp_lg_u32 s%d, 0" % sPEND, "s_cbranch_scc1 %s_again" % top, "%s:" % out)
    def cold():
        for rd, skip, g in redo: a("%s:" % rd, o_instr(of, g), "s_branch %s" % skip)
        a("%s_again:" % top)
        spin_guard(a, out)
        a("s_waitcnt vmcnt(0)", "s_branch %s" % top)
    return cold


def p3_mfma_all(a, of, acc, t, colds, part, ta):
    main, res = of
    top = a.uid("eall")
    a("%s:" % top, "v_max_u32 v%d, v%d, v%d" % (t, res, res + 1))
    for i in range(8): a("v_max3_u32 v%d, v%d, v%d, v%d" % (t, t, main + 2 * i, main + 2 * i + 1))
    a("v_cmp_eq_u32 vcc, -1, v%d" % t, "s_cbranch_vccnz %s_r" % top, "%s_k:" % top)
    def cold():
        a("%s_r:" % top); spin_guard(a, top + "_k"); a("s_sleep 2")
        for g in range(5): a(o_instr(of, g))
        a("s_waitcnt vmcnt(0)", "s_branch %s" % top)
    colds.append(cold)
    def mm(k, g):
        c = vr(acc + 4 * k, 4)
        if g < 4: a("v_mfma_f32_16x16x32_bf16 %s, %s, %s, %s" % (c, vr(vWO + 18 * k + 4 * g, 4), vr(main + 4 * g, 4), c))
        else: a("v_mfma_f32_16x16x16_bf16 %s, %s, %s, 0" % (c, vr(vWO + 18 * k + 16, 2), vr(res, 2)))
    scr = P3_OFF[part]
    wr = lambda k: a("ds_write_b128 v%d, %s offset:%d" % (ta + (k // 4), vr(acc + 4 * k, 4), scr + (64 * k if k < 4 else 0)))
    for k in (4, 0, 1, 2, 3): mm(k, 4)
    a("s_cmp_eq_u32 s%d, 0" % sFIVE, "s_nop 0", "s_cbranch_scc1 %s_5" % top)
    for g in range(4): mm(4, g)
    a("%s_5:" % top)
    for k in (0, 1):
        for g in range(4): mm(k, g)
    a("s_cbranch_scc1 %s_6" % top); wr(4); a("%s_6:" % top)
    for g in range(4): mm(2, g)
    wr(0)
    for g in range(3): mm(3, g)
    wr(1)
    mm(3, 3)
    a("s_nop 1"); wr(2); a("s_nop 4"); wr(3)


P3_ROW, P3_PART = 272, 16 * 272
P3_SH = 8 * P3_PART


def p3_addr(a, t):
    L = vLANE
    a("v_and_b32 v0, 15, v%d" % L, "v_lshrrev_b32 v%d, 4, v%d" % (t + 5, L),
      "s_lshl2_add_u32 s%d, s%d, s%d" % (sT0, sRH, sKQ), "s_mul_i32 s%d, s%d, %d" % (sT0, sT0, P3_PART), "s_add_u32 s%d, s%d, %d" % (sT0, sT0, P3_BASE),
      "v_lshl_add_u32 v%d, v%d, 4, s%d" % (t, t + 5, sT0), "v_mad_u32_u24 v%d, v0, s%d, v%d" % (t, sC272, t),
      "s_mul_i32 s%d, s%d, 1280" % (sT0, sKQ), "s_add_u32 s%d, s%d, %d" % (sT0, sT0, P3_BASE + P3_SH),
      "v_lshl_add_u32 v%d, v%d, 4, s%d" % (t + 1, t + 5, sT0), "v_mad_u32_u24 v%d, v0, s%d, v%d" % (t + 1, sC80, t + 1),
      "s_lshl4_add_u32 s%d, s%d, s%d" % (sT0, sRH, sKQ), "s_mul_i32 s%d, s%d, %d" % (sT0, sT0, 4 * P3_ROW), "s_add_u32 s%d, s%d, %d" % (sT0, sT0, P3_BASE),
      "v_lshl_add_u32 v%d, v0, 4, s%d" % (t + 2, sT0), "v_mad_u32_u24 v%d, v%d, s%d, v%d" % (t + 2, t + 5, sC272, t + 2),
      "v_mul_u32_u24 v%d, 1152, v%d" % (t + 4, t + 5), "v_lshl_add_u32 v%d, v0, 3, v%d" % (t + 4, t + 4),
      "v_lshrrev_b32 v0, 2, v%d" % L, "v_and_b32 v%d, 3, v%d" % (t + 5, L),
      "v_mul_u32_u24 v%d, 80, v0" % (t + 3), "v_lshl_add_u32 v%d, v%d, 4, v%d" % (t + 3, t + 5, t + 3), "v_add_u32 v%d, %d, v%d" % (t + 3, P3_BASE + P3_SH, t + 3),
      "v_mul_u32_u24 v0, 1152, v0", "v_lshl_add_u32 v%d, v%d, 3, v0" % (t + 5, t + 5))


def p3_finish(a, parts, t, d, mod):
    def fin(src, step, va, so):
        for p_ in parts:
            for k in range(4): a("ds_read_b128 %s, v%d offset:%d" % (vr(d[p_] + 4 * k, 4), src, P3_OFF[p_] + step * k))
        n = 4 * len(parts)
        for p_ in parts:
            x = d[p_]
            for k in range(1, 4):
                a("s_waitcnt lgkmcnt(%d)" % (n - k - 1))
                for i in (0, 2): a("v_pk_add_f32 %s, %s, %s" % (vr(x + i, 2), vr(x + i, 2), vr(x + 4 * k + i, 2)))
            n -= 4
            a("v_cvt_pk_bf16_f32 v%d, v%d, v%d" % (x, x, x + 1), "v_cvt_pk_bf16_f32 v%d, v%d, v%d" % (x + 1, x + 2, x + 3),
              "buffer_store_dwordx2 %s, v%d, %s, s%d offen%s" % (vr(x, 2), va, srd(sOUT), so + 2 * p_, mod))
    fin(t + 2, P3_PART, t + 4, sOCOL)
    skip = a.uid("no5r")
    a("s_cmp_eq_u32 s%d, 0" % sSHF, "s_cbranch_scc1 %s" % skip)
    d = [x + 16 * len(parts) for x in d]
    fin(t + 3, 1280, t + 5, sOCOL + 1)
    a("%s:" % skip)


def kd(name, lds=False):
    return """.amdhsa_kernel %s
  .amdhsa_next_free_vgpr 256
  .amdhsa_next_free_sgpr 96
  .amdhsa_accum_offset 256
  .amdhsa_group_segment_fixed_size 0
  .amdhsa_kernarg_size 48
  .amdhsa_user_sgpr_count 2
  .amdhsa_user_sgpr_kernarg_segment_ptr 1
  .amdhsa_system_sgpr_workgroup_id_x 1
  .amdhsa_float_denorm_mode_32 3
.end_amdhsa_kernel""" % name


def head(a, name):
    a(".globl %s" % name, ".p2align 8", ".type %s,@function" % name, "%s:" % name)


def mkplan(dx, dw, pre="w0 x0 w1 w2 x1", late=None):
    p = [(-1, t[0], int(t[1:])) for t in pre.split()]
    done = {(k, s) for _, k, s in p}
    for b in range(18):
        for k, d, n in (("x", dx, 18), ("w", dw, 9)):
            for s in range(n):
                if late and k == "x" and b >= late[0]: d = late[1]
                if (k, s) not in done and s - d <= b:
                    p.append((b, k, s)); done.add((k, s))
    return p


DEF = dict(plan=mkplan(3, 3), rot=1, early0=1, tlb=0, tag_step=6, flag_step=12, flag_pos='bar', poll_step=14, check_step=15,
           x_at=('bar', 16), y_at='pre_epi1', init_at=('step', 15), e_sleep=0, pf_code=1, pf_x=1, idle_sleep=8, per0=2, per1=1,
           nsolo=6, pos=[2, 6, 14, 18, 22, 26, 30],
           kv1=[(0, 1), (0, 2)], w1=[(1, 5), (2, 0)], pollL=[(3, 5), (5, 2)], kv2=[(5, 2), (5, 2)], w2=[(7, 2), (8, 0)],
           kv3=[(8, 2), (8, 5)], w3=[(13, 2), (16, 0)], wo=[(11, 2), (13, 3), 14], poison=[(9, 2), (10, 2), (25, 5)],
           opoll=[(26, 2), [(30, 3), (30, 6)], [(27, 3), (29, 0)]], hint=(31, 3), h_sleep=0, e_pipe=0, i_pipe=0, h_pipe=0, warm=1, xlow=1, efin=1, outmod='',
           prio={(3, 0): 2, (5, 3): 1, (6, 3): 3, (26, 0): 2, (30, 3): 1}, priox={(21, 0): 2})


sF0, sF1 = 57, 58
OOB = 0x7ffff000
MASTER = 199


def spin_guard(a, out):
    a("s_add_u32 s%d, s%d, 1" % (sSPIN, sSPIN), "s_cmp_gt_u32 s%d, 0x80000" % sSPIN, "s_cbranch_scc1 %s" % out)


def tag_issue(a):
    a.vmem("buffer_load_dword v%d, off, %s, 0 sc1" % (vPD, srd(sDBG)), "tag")


def tag_check(a):
    ok = a.uid("tagok"); lp = a.uid("tag")
    a.wait(vm="tag")
    a("%s:" % lp, "v_readfirstlane_b32 s%d, v%d" % (sTAG, vPD), "s_cmp_lg_u32 s%d, 0" % sTAG, "s_cbranch_scc1 %s" % ok)
    spin_guard(a, ok)
    a("s_sleep 4", "buffer_load_dword v%d, off, %s, 0 sc1" % (vPD, srd(sDBG)), "s_waitcnt vmcnt(0)", "s_branch %s" % lp, "%s:" % ok)


def flag_store(a, soff, level, track=True):
    if level is None:
        a("v_mov_b32 v0, s%d" % sTAG, "s_mov_b64 exec, 1")
        x = "buffer_store_dword v0, off, %s, s%d sc1" % (srd(sWS), soff)
    else:
        if level < 2: a("v_mov_b32 v0, 0")
        if level == 1: a("s_mov_b64 exec, 1")
        if level > 0: a("v_mov_b32 v0, s%d" % sTAG)
        a("s_mov_b64 exec, 0xff")
        x = "buffer_store_dwordx4 v[0:3], v%d, %s, s%d offen sc1" % (vL16, srd(sWS), soff)
    if track: a.vmem(x, "flag")
    else: a(x)
    a("s_mov_b64 exec, -1")


def poll(a, va, sleep=2, pipe=0, off=0):
    x = "buffer_load_dword v%d, v%d, %s, 0 offen offset:%d sc1" % (vPD, va, srd(sWS), off)
    def issue(): a.vmem(x, "poll")
    def check():
        ok = a.uid("pok"); lp = a.uid("poll")
        a.wait(vm="poll")
        a("%s:" % lp, "v_cmp_ne_u32 vcc, s%d, v%d" % (sTAG, vPD), "s_cbranch_vccz %s" % ok)
        spin_guard(a, ok)
        if pipe:
            a(x, "s_sleep %d" % pipe, "s_waitcnt vmcnt(12)", "s_branch %s" % lp, "%s:" % ok)
        else:
            if sleep: a("s_sleep %d" % sleep)
            a(x, "s_waitcnt vmcnt(0)", "s_branch %s" % lp, "%s:" % ok)
    return issue, check


def fused_setup(a):
    L = vLANE
    a("s_lshr_b32 s%d, s%d, 1" % (sT0, sHEAD), "s_mul_i32 s%d, s%d, 36" % (sT0, sT0), "s_and_b32 s%d, s%d, 1" % (sT1, sHEAD),
      "s_lshl_b32 s%d, s%d, 4" % (sT1, sT1), "s_add_u32 s%d, s%d, s%d" % (sT0, sT0, sT1),
      "v_min_u32 v%d, 11, v%d" % (vL16, L),
      "v_and_b32 v%d, 1, v%d" % (vPA, vL16), "v_mul_u32_u24 v%d, 19, v%d" % (vPA, vPA), "v_add_u32 v%d, s%d, v%d" % (vPA, sT0, vPA),
      "v_lshrrev_b32 v%d, 6, v%d" % (vPA, vPA),
      "v_lshrrev_b32 v%d, 2, v%d" % (vL8, vL16), "v_sub_u32 v%d, 2, v%d" % (vL8, vL8), "v_mad_u32_u24 v%d, v%d, 9, v%d" % (vPA, vL8, vPA),
      "v_and_b32 v%d, 2, v%d" % (vL16, vL16), "v_lshl_add_u32 v%d, v%d, 1, s%d" % (vL16, vL16, sP), "v_mov_b32 v%d, s%d" % (vL8, sQI),
      "v_cmp_le_u32 vcc, 8, v%d" % L, "v_lshlrev_b32 v%d, 10, v%d" % (vPA, vPA), "v_add_u32 v%d, %d, v%d" % (vPA, F01, vPA),
      "v_cndmask_b32 v%d, v%d, v%d, vcc" % (vL16, vL16, vL8),
      "v_lshl_add_u32 v%d, v%d, 7, v%d" % (vPA, vL16, vPA),
      "v_lshlrev_b32 v%d, 4, v%d" % (vL16, L), "v_lshlrev_b32 v%d, 3, v%d" % (vL8, L), "v_add_u32 v%d, 4096, v%d" % (vL8, vL8),
      "s_cmp_eq_u32 s%d, 0" % sFIVE, "s_cselect_b32 s%d, 0x%x, s%d" % (sWOF + 4, OOB - 8192, sWOF + 4))


def tlb_touch(a, cfg):
    l = a.uid("tlb")
    a("s_cmp_lg_u32 s%d, 7" % sWAVE, "s_cbranch_scc1 %s" % l,
      "v_and_b32 v2, 7, v%d" % vLANE, "v_mul_u32_u24 v2, %d, v2" % (4 * PITCH), "v_add_u32 v2, %d, v2" % (PITCH - 128),
      "v_and_b32 v3, 3, v%d" % vLANE, "v_mul_u32_u24 v3, %d, v3" % (16 * OTILE), "v_add_u32 v3, %d, v3" % (OBASE + OTILE - 128),
      "v_cmp_gt_u32 vcc, 8, v%d" % vLANE, "v_mov_b32 v4, %d" % (FW + 1024), "v_cmp_gt_u32 s[%d:%d], 12, v%d" % (sSAVE, sSAVE + 1, vLANE),
      "v_cndmask_b32 v2, v3, v2, vcc", "s_nop 0", "v_cndmask_b32 v2, v4, v2, s[%d:%d]" % (sSAVE, sSAVE + 1),
      "buffer_load_dword v44, v2, %s, 0 offen" % srd(sWS),
      "v_and_b32 v2, 3, v%d" % vLANE, "v_mul_u32_u24 v2, %d, v2" % (786432 - 128),
      "buffer_load_dword v45, v2, %s, 0 offen" % srd(sOUT), "%s:" % l)


vWW, vWC = 158, 159


def word_setup(a):
    a("s_and_b32 s%d, s%d, 1" % (sT0, sHEAD), "s_mul_i32 s%d, s%d, %d" % (sT0, sT0, (-2052) & 0xffffffff), "s_add_u32 s%d, s%d, 2052" % (sT0, sT0),
      "s_lshl3_add_u32 s%d, s%d, s%d" % (sT1, sWAVE, sT0), "v_mov_b32 v%d, s%d" % (vWW, sT1),
      "s_lshl_b32 s%d, s%d, 5" % (sT1, sKH), "s_add_u32 s%d, s%d, s%d" % (sT1, sT1, sT0),
      "v_and_b32 v%d, 3, v%d" % (vWC, vLANE), "v_lshl_add_u32 v%d, v%d, 3, s%d" % (vWC, vWC, sT1))


def word_set(a, stage, track=True, twice=False):
    a("v_mov_b32 v0, s%d" % sTAG, "s_mov_b64 exec, 1")
    x = "ds_write_b32 v%d, v0 offset:%d" % (vWW, 64 * stage)
    if twice: x = "ds_write2_b32 v%d, v0, v0 offset0:%d offset1:%d" % (vWW, 16 * stage, 16 * stage + 16)
    if track: a.lds(x)
    else: a(x)
    a("s_mov_b64 exec, -1")


def word_check(a, offs, colds, t=vT):
    xs = ["ds_read_b32 v%d, v%d offset:%d" % (t + k, vWC, o) for k, o in enumerate(offs)]
    def issue():
        for x in xs: a.lds(x, "word")
    def check(track=True):
        l = a.uid("word")
        if track: a.wait(lg="word")
        a("%s:" % l)
        for k in range(len(offs)): a("v_cmp_ne_u32 vcc, s%d, v%d" % (sTAG, t + k), "s_cbranch_vccnz %s_r" % l)
        a("%s_k:" % l)
        def cold():
            a("%s_r:" % l); spin_guard(a, l + "_k"); a("s_sleep 1", xs, "s_waitcnt lgkmcnt(0)", "s_branch %s" % l)
        colds.append(cold)
    return issue, check, xs


def gen_fused(cfg):
    a = Asm()
    name = NAME + "_kernel"
    head(a, name)
    prologue(a, "L_exit"); a(";STAMP 0")
    a("s_mov_b32 s%d, 0" % sSPIN, "s_mov_b32 s%d, 0x%x" % (sF1, OOB))
    p1_roles(a, "L_idle")
    a("s_cmp_ge_u32 s%d, 18" % sLINE, "s_cbranch_scc1 L_p1v")
    sF, sPo = cfg["flag_step"], cfg["poll_step"]
    def first_loads(kh):
        l = a.uid("fl")
        a("s_cmp_lg_u32 s%d, %d" % (sKH, kh), "s_cbranch_scc1 %s" % l)
        keep = list(a.vm)
        q_load(a, 0); kv_dma(a, 0)
        a.vm = keep
        a("%s:" % l)
    for isv in (False, True):
        if isv: a("L_p1v:")
        a.vm = []; a.lg = []
        hooks = {}
        def setup():
            p2_setup(a); p3_setup(a); fused_setup(a)
            a("s_lshl_b32 s%d, s%d, 10" % (sT0, sLINE), "s_lshl_b32 s%d, s%d, 7" % (sT1, sG), "s_add_u32 s%d, s%d, s%d" % (sT0, sT0, sT1),
              "s_add_u32 s%d, s%d, %d" % (sT0, sT0, F01),
              "s_cmp_eq_u32 s%d, 0" % sWAVE, "s_cselect_b32 s%d, s%d, s%d" % (sF1, sT0, sF1))
            if cfg["warm"]: flag_store(a, sF1, 0)
        hooks["setup"] = setup
        hooks[("step", cfg["tag_step"])] = lambda: tag_issue(a)
        hooks[("step", sF - 1)] = lambda: tag_check(a)
        hooks[("waitfor", sF)] = [("st", 0)]
        hooks[(cfg["flag_pos"], sF)] = lambda: flag_store(a, sF1, 1)
        pi, pc = poll(a, vPA, sleep=cfg["e_sleep"], pipe=cfg["e_pipe"])
        def add(k, f):
            g = hooks.get(k)
            hooks[k] = f if g is None else (lambda: (g(), f()))
        if cfg["tlb"]: hooks["start"] = lambda: tlb_touch(a, cfg)
        add(("step", sPo) if sPo < 18 else "pre_epi1", pi)
        add(cfg["init_at"], lambda: p2_init(a))
        add(("step", cfg["check_step"]), lambda: (pc(), a(";STAMP 8")))
        add(cfg["x_at"], lambda: first_loads(0))
        add(cfg["y_at"], lambda: first_loads(1))
        p1_body(a, isv, cfg, hooks)
        a("s_branch L_attn")
    a("L_idle:"); a.vm = []; a.lg = []
    a("s_waitcnt lgkmcnt(0)")
    a("s_cmp_lg_u32 s2, %d" % MASTER, "s_cbranch_scc1 L_nomaster", "s_cmp_lg_u32 s%d, 0" % sWAVE, "s_cbranch_scc1 L_nomaster",
      "s_mov_b32 s%d, %d" % (sT0, FEPOCH), "buffer_load_dword v2, off, %s, s%d sc1" % (srd(sWS), sT0), "s_waitcnt vmcnt(0)",
      "v_readfirstlane_b32 s%d, v2" % sT1, "s_mul_i32 s%d, s%d, 0x41c64e6d" % (sT1, sT1), "s_add_u32 s%d, s%d, 12345" % (sT1, sT1),
      "s_cmp_eq_u32 s%d, 0" % sT1, "s_cselect_b32 s%d, 12345, s%d" % (sT1, sT1), "v_mov_b32 v2, s%d" % sT1, "s_mov_b64 exec, 1",
      "buffer_store_dword v2, off, %s, 0 sc1" % srd(sDBG), "buffer_store_dword v2, off, %s, s%d sc1" % (srd(sWS), sT0), "s_mov_b64 exec, -1",
      "L_nomaster:")
    if cfg["pf_code"]:
        a("s_getpc_b64 s[%d:%d]" % (sRET, sRET + 1), "L_pc:", "s_sub_u32 s%d, s%d, L_pc-%s" % (sRET, sRET, name), "s_subb_u32 s%d, s%d, 0" % (sRET + 1, sRET + 1),
          "s_cmp_lg_u32 s%d, 7" % sWAVE, "s_cbranch_scc1 L_nopf",
          "s_and_b32 s%d, s%d, 3" % (sT0, sJ), "v_lshl_add_u32 v2, v%d, 2, s%d" % (vLANE, sT0),
          "v_lshlrev_b32 v2, 7, v2", "v_min_u32 v2, L_codeend-%s-4, v2" % name, "global_load_dword v3, v2, s[%d:%d]" % (sRET, sRET + 1), "L_nopf:")
    if cfg["pf_x"]:
        a("s_and_b32 s%d, s%d, 1" % (sT0, sXCD), "s_and_b32 s%d, s%d, 3" % (sT1, sJ), "s_lshl2_add_u32 s%d, s%d, s%d" % (sT0, sT0, sT1),
          "s_lshr_b32 s%d, s%d, 2" % (sT1, sWAVE), "s_lshl3_add_u32 s%d, s%d, s%d" % (sT0, sT1, sT0),
          "s_mul_i32 s%d, s%d, %d" % (sT0, sT0, 128 * 1152),
          "v_and_b32 v2, 127, v0", "v_mul_u32_u24 v2, 1152, v2", "v_add_u32 v2, s%d, v2" % sT0,
          "s_bfe_u32 s%d, s%d, 0x10001" % (sT0, sWAVE))
        rotation(a, sT2, sT3, sT0)
        l = a.uid("pf")
        a("s_lshl_b32 s%d, s%d, 7" % (sT2, sT2), "s_cmp_eq_u32 s%d, 0" % sT1, "s_cbranch_scc1 %s" % l, "s_barrier", "%s:" % l,
          "buffer_load_dword v4, v2, %s, s%d offen" % (srd(sX), sT2), "s_cbranch_scc0 %sb" % l, "s_barrier", "%sb:" % l)
    a("s_mov_b32 s%d, 0x%x" % (sF0, OOB))
    wo_role(a, "L_nowo")
    a("s_lshl_b32 s%d, s%d, 2" % (sT0, sLINE), "s_add_u32 s%d, s%d, %d" % (sT0, sT0, FW), "s_cmp_eq_u32 s%d, 0" % sWAVE, "s_cselect_b32 s%d, s%d, s%d" % (sF0, sT0, sF0))
    a("L_nowo:", "s_waitcnt vmcnt(0)"); a.vm = []; a.lg = []
    p2_setup(a); p3_setup(a); fused_setup(a); p2_init(a)
    tag_issue(a); tag_check(a)
    a("s_barrier", ";STAMP 16")
    flag_store(a, sF0, None)
    pi, pc = poll(a, vPA, sleep=cfg["idle_sleep"], pipe=cfg["i_pipe"])
    pi(); pc(); a(";STAMP 8", "s_barrier"); first_loads(0); a("s_barrier"); first_loads(1)
    for n in range(2): a("buffer_store_dword v0, off, %s, s%d" % (srd(sWS), sF1))
    a("L_attn:"); a.vm = ["old"]; a.lg = []
    slows = []; colds = []
    def slow(part, back, done):
        lab = a.uid("slowp"); slows.append((part, lab, back, done)); a("s_branch %s" % lab)
    ev = {}
    skip = cfg.get("skip", "")
    def at(k, f, name=None):
        if name and name in skip.split(): return
        g = ev.get(k)
        ev[k] = f if g is None else (lambda: (g(), f()))
    def b0():
        wi, wc, xs = word_check(a, [0], colds)
        a("s_cmp_lg_u32 s%d, 0" % sKH, "s_cbranch_scc1 L_b0y", "s_setprio 3", "s_waitcnt vmcnt(2)", "s_barrier", "L_b0x:", ";STAMP 6")
        def cold():
            a("L_b0y:", "s_barrier", "s_waitcnt vmcnt(0)"); word_set(a, 0, track=False)
            a(xs, "s_waitcnt lgkmcnt(0)"); wc(track=False); a("s_setprio 3", "s_branch L_b0x")
        colds.append(cold)
    at(("pre", 0), b0)
    def stage(st, pos_set, pos_rd, pos_chk, offs=None, after=None):
        wi, wc, xs = word_check(a, offs or [64 * st], colds)
        at(pos_set, lambda: a.wait(vm=("kv", st)), "kv")
        at(pos_set, lambda: word_set(a, st), "word")
        at(pos_rd, wi, "word")
        at(pos_chk, wc, "word")
        if after: at(pos_chk, after)
    def spread(pos, fs):
        for p_, f in zip(pos, fs): at(p_, f, "kv")
    spread(cfg["kv1"], [lambda: kv_dma(a, 1, "k"), lambda: kv_dma(a, 1, "v")])
    stage(1, cfg["w1"][0], cfg["w1"][1], ("pre", 4), offs=[64, 32], after=lambda: flag_store(a, sF1, 2))
    pi, pc = poll(a, vPA, off=16)
    at(cfg["pollL"][0], pi, "pollL")
    at(cfg["pollL"][1], pc, "pollL")
    at(cfg["pollL"][1], lambda: (a(";STAMP 9"), q_load(a, 1)))
    spread(cfg["kv2"], [lambda: kv_dma(a, 2, "k"), lambda: kv_dma(a, 2, "v")])
    ev["ql"] = lambda: a.wait(vm=("q", 1))
    stage(2, cfg["w2"][0], cfg["w2"][1], ("pre", 8))
    spread(cfg["kv3"], [lambda: kv_dma(a, 3, "k"), lambda: kv_dma(a, 3, "v")])
    assert cfg["w3"][0] >= (13, 0)
    stage(3, cfg["w3"][0], cfg["w3"][1], ("pre", 12))
    pi2, pc2 = poll(a, vPA)
    at(cfg["wo"][0], lambda: (a("v_min_u32 v%d, 35, v%d" % (vPA, vLANE), "v_lshlrev_b32 v%d, 2, v%d" % (vPA, vPA), "v_add_u32 v%d, %d, v%d" % (vPA, FW, vPA)), pi2()), "wo")
    at(cfg["wo"][1], pc2, "wo")
    u0 = cfg["wo"][2]
    k = 0
    for t in range(5):
        for m in range(5):
            at((u0 + k // 3, (2, 3, 5)[k % 3]), lambda t=t, m=m: wo_load(a, [t], vL16, vL8, only=m), "wo")
            k += 1
    ns = cfg["nsolo"]
    assert ns == 6
    ue = 32 - ns - 1
    def send_e():
        l = a.uid("se")
        a("s_cmp_lg_u32 s%d, 0" % sKH, "s_cbranch_scc1 %s" % l); send_partial(a, 0); a("s_branch %s_e" % l, "%s:" % l)
        finalize(a, 0, slow, colds); a("%s_e:" % l)
        a("v_subrev_u32 v%d, %d, v%d" % (vSA, LDS_SPARE - 12 * CHUNK, vSA))
        word_set(a, 4, twice=True)
    at((ue, 3), send_e, "fin")
    at(cfg["poison"][0], lambda: late_setup(a))
    at(cfg["poison"][1], lambda: poison(a), "fin")
    sPF = sF0
    def pflag0():
        a("s_lshl2_add_u32 s%d, s%d, s%d" % (sT0, sQI, sP), "s_lshl_b32 s%d, s%d, 5" % (sT0, sT0),
          "s_add_u32 s%d, s%d, s%d" % (sT0, sT0, sHEAD), "s_lshl_b32 s%d, s%d, 7" % (sT0, sT0),
          "s_add_u32 s%d, s%d, %d" % (sT0, sT0, FO), "s_cmp_eq_u32 s%d, 0" % sKH, "s_cselect_b32 s%d, 0x40000000, s%d" % (sPF, sT0))
        if cfg["warm"]: flag_store(a, sPF, 0)
    at(cfg["poison"][1], pflag0)
    at(cfg["poison"][2], lambda: (a.wait(vm="poison"), flag_store(a, sPF, 1)))
    ofs = [(vO[0], vQ[0]), (vS[1], vS[1] + 16)]
    pi3, pc3 = poll(a, vPA)
    def opoll_addr():
        a("s_lshl2_add_u32 s%d, s%d, s%d" % (sT0, sXCD, sRT), "s_lshl2_add_u32 s%d, s%d, s%d" % (sT0, sT0, sKQ),
          "s_lshl_b32 s%d, s%d, 10" % (sT0, sT0), "s_add_u32 s%d, s%d, %d" % (sT0, sT0, FO),
          "v_min_u32 v%d, 7, v%d" % (vPA, vLANE), "v_lshl_add_u32 v%d, v%d, 7, s%d" % (vPA, vPA, sT0))
    def role(kh, f):
        def g():
            l = a.uid("role")
            a("s_cmp_lg_u32 s%d, %d" % (sKH, kh), "s_cbranch_scc1 %s" % l)
            keep = list(a.vm); f(); a.vm = keep
            a("%s:" % l)
        return g
    at(cfg["opoll"][0], opoll_addr)
    for kh in range(2):
        at(cfg["opoll"][1 + kh][0], role(kh, pi3))
        at(cfg["opoll"][1 + kh][1], role(kh, lambda: (a("s_waitcnt vmcnt(0)"), pc3(), o_load(a, ofs[0], "oe"))))
    assert cfg["hint"] > cfg["opoll"][2][1]
    acc = [vV, vS[0]]
    ta = vK + 4
    at((31, 0), lambda: p3_addr(a, ta))
    at(cfg["hint"], lambda: flag_store(a, sPF, 2))
    wi, wc, xs = word_check(a, [256, 288], colds, t=vQ[0] + 2)
    at((31, 3), wi)
    at((31, 5), lambda: [a.lds(x) for x in fin_reads(1)])
    p2_main(a, cfg, ev)
    a(";STAMP 7")
    if cfg["hint"] == (32, 0): flag_store(a, sPF, 2)
    wc()
    pi4, pc4 = poll(a, vPA, sleep=cfg["h_sleep"], pipe=cfg["h_pipe"], off=16)
    a("s_cmp_lg_u32 s%d, 0" % sKH, "s_cbranch_scc1 L_fl", "s_nop 5")
    send_partial(a, 1)
    if cfg["xlow"]: a("s_setprio 0")
    a("s_waitcnt vmcnt(0)", "s_branch L_tail", "L_fl:")
    finalize(a, 1, slow, colds, prefetched=True)
    if cfg["hint"] == (33, 0): flag_store(a, sPF, 2)
    a("s_waitcnt vmcnt(3)")
    a("L_tail:", ";STAMP 10")
    p3_mfma_all(a, ofs[0], acc[0], vT, colds, 0, ta)
    for i in range(3): a("s_add_u32 s%d, s%d, %d" % (sOL + i, sOL + i, 32 * OTILE))
    if cfg["efin"]: word_set(a, 6)
    a(";STAMP 11")
    a.vm = []; a.lg = []
    a("s_cmp_lg_u32 s%d, 0" % sKH, "s_cbranch_scc1 L_hy", "s_setprio 0")
    pi4(); pc4(); word_set(a, 7)
    a("s_branch L_hx", "L_hy:", "v_xor_b32 v%d, 48, v%d" % (vT + 1, vWW), "L_hy2:", "ds_read_b32 v%d, v%d offset:448" % (vT, vT + 1), "s_waitcnt lgkmcnt(0)",
      "v_cmp_ne_u32 vcc, s%d, v%d" % (sTAG, vT), "s_cbranch_vccnz L_hy3", "L_hx:")
    colds.append(lambda: (a("L_hy3:"), spin_guard(a, "L_hx"), a("s_sleep 1", "s_branch L_hy2")))
    a(";STAMP 13")
    a.vm = []; a.lg = []
    dd = [vO[0], vO[0] + 16]
    if cfg["efin"]:
        wi, wc, xs = word_check(a, [384], colds)
        wi()
        o_load(a, ofs[1], "ol")
        wc()
        p3_finish(a, [0], ta, dd, cfg["outmod"])
        a("s_waitcnt vmcnt(1)")
    else:
        o_load(a, ofs[1], "ol")
        a("s_waitcnt vmcnt(0)")
    a(";STAMP 12")
    p3_mfma_all(a, ofs[1], acc[1], vT, colds, 1, ta)
    a(";STAMP 14")
    a("s_waitcnt lgkmcnt(0)", "s_barrier")
    p3_finish(a, [1] if cfg["efin"] else [1, 0], ta, [vWO + 2, vWO + 18], cfg["outmod"])
    a(";STAMP 15", ";STAMPWAIT", ";STAMP 5", ";STAMPEND", "L_exit:", "s_endpgm")
    k = 0
    while k < len(colds):
        colds[k](); k += 1
    def reload():
        wo_load(a, range(5), vL16, vL8, track=False); a("s_waitcnt vmcnt(0)")
    for part, lab, back, done in slows: slow_path(a, part, lab, back, done, reload)
    a("L_codeend:")
    hdr = ["; @launch grid=(256,1,1) block=(512,1,1) lds=%d" % LDS_TOTAL]
    return finish(a, hdr, [name])


def finish(a, hdr, names):
    errs = lint(a.l)
    for e in errs: print("HAZARD", e, file=sys.stderr)
    out = hdr + ['.amdgcn_target "amdgcn-amd-amdhsa--gfx950"', ".text"] + a.l + ['.section .rodata,"a"']
    for n in names: out += [".p2align 6", kd(n)]
    return "\n".join(out) + "\n"


if __name__ == "__main__":
    mode = sys.argv[1] if len(sys.argv) > 1 else "split"
    out = sys.argv[2] if len(sys.argv) > 2 else "cdna_kernels/%s.s" % NAME
    cfg = dict(DEF)
    for kv in sys.argv[3:]:
        k, v = kv.split("=", 1); cfg[k] = eval(v)
    txt = {"fused": gen_fused}[mode](cfg)
    open(out, "w").write(txt)
    print("wrote", out, len(txt.split("\n")), "lines")
```

```python
import sys, struct, math
from hazard import lint

NAME = "standalone__mha_block__prompt"

PITCH = 221184 + 128
SEC = 73728
OBASE = 32 * PITCH
OTILE = 36864 + 128
WOBASE = OBASE + 64 * OTILE
FBASE = WOBASE + 36 * 4 * 4608
F01 = FBASE
FRND = 27 * 8 * 128
FW = FBASE + 57344
FEPOCH = FW + 512
FO = FBASE + 65536
WS_SIZE = FO + 131072
CHUNK = 4864
LDS_SPARE = 32 * CHUNK
LDS_TOTAL = 163840
SCALE = struct.unpack("<I", struct.pack("<f", math.log2(math.e) / math.sqrt(18.0)))[0]

sX, sW, sWO, sOUT, sWS, sDBG = 4, 8, 12, 16, 20, 24
sWAVE, sXCD, sJ = 28, 29, 30
sTAG = 31
sLINE, sG, sSEC = 32, 33, 34
sXOFF, sWOFF, sM0X, sSCALE, sM0W, sST = 35, 36, 37, 38, 39, 40
sHEAD, sQI, sKH, sP = 41, 42, 43, 44
sVMASK = 46
sDMASK = 48
sCH, sQOFF = 50, 51
sCM = 45
sST2 = 39
sRT, sCB, sKQ, sRH = 52, 53, 54, 55
sFIVE = 56
sT0, sT1, sT2, sT3, sT4, sT5 = 60, 61, 62, 63, 64, 65
sRET = 66
sSPIN = 68
sWOF = 70
sOCOL = 75
sLOOP = 79
sSHF, sC272, sC80 = 69, 82, 59
sSAVE = 80

def srd(s): return "s[%d:%d]" % (s, s + 3)
def vr(a, n=1): return "v%d" % a if n == 1 else "v[%d:%d]" % (a, a + n - 1)
def sr(a, n=1): return "s%d" % a if n == 1 else "s[%d:%d]" % (a, a + n - 1)

vLANE = 1
vQ = [2, 8]
vIDX = 14
vAK, vAR, vAV = 15, 16, 17
vDMA = 18
vQA, vQR = 22, 23
vT = 24
vSA, vSB, vOA, vOB = 26, 27, 28, 29
vP3 = 30
vPW, vPO = 36, 37
vPA, vPD, vL16, vL8 = 38, 39, 40, 41
vTAG = 0
vXS = 8
vWS = 9
vXR = 11
vWR = 42
vSTA = 46
vACC = [48, 64]
vXF = [80, 96]
vWF = 112
vWO = 42
vV = 132
vK = 148
vKR = 156
vO = [160, 176]
vS = [192, 224]


class Asm:
    def __init__(self):
        self.l = []
        self.vm = []
        self.lg = []
        self.n = 0

    def __call__(self, *lines):
        for s in lines:
            if isinstance(s, (list, tuple)):
                self(*s)
            elif s.endswith(":") or s.startswith((".", ";")):
                self.l.append(s)
            else:
                self.l.append("    " + s)

    def uid(self, p):
        self.n += 1
        return "L_%s_%d" % (p, self.n)

    def vmem(self, s, tag):
        self(s); self.vm.append(tag)
        assert len(self.vm) <= 63

    def lds(self, s, tag=None):
        self(s); self.lg.append(tag)

    def _cnt(self, q, tags):
        if not isinstance(tags, (list, set)): tags = [tags]
        last = max([k for k, t in enumerate(q) if t in tags], default=-1)
        return None if last < 0 else len(q) - 1 - last

    def wait(self, vm=None, lg=None):
        parts = []
        if vm is not None:
            n = 0 if vm == "all" else self._cnt(self.vm, vm)
            if n is not None:
                parts.append("vmcnt(%d)" % n); self.vm = self.vm[len(self.vm) - n:]
        if lg is not None:
            n = 0 if lg == "all" else self._cnt(self.lg, lg)
            if n is not None:
                n = min(n, 15)
                parts.append("lgkmcnt(%d)" % n); self.lg = self.lg[len(self.lg) - n:]
        if parts: self("s_waitcnt " + " ".join(parts))


def prologue(a, endlabel):
    a("s_cmp_ge_u32 s2, 256", "s_cbranch_scc1 %s" % endlabel)
    for k, s in enumerate((sX, sW, sWO, sOUT, sDBG, sWS)):
        a("s_load_dwordx2 %s, s[0:1], %d" % (sr(s, 2), 8 * k))
    for s, n in ((sX, 2359296), (sW, 1990656), (sWO, 663552), (sOUT, 2359296), (sDBG, 256), (sWS, WS_SIZE)):
        a("s_mov_b32 s%d, %d" % (s + 2, n), "s_mov_b32 s%d, 0x00020000" % (s + 3))
    a("v_lshrrev_b32 v2, 6, v0", "v_and_b32 v%d, 63, v0" % vLANE, "v_readfirstlane_b32 s%d, v2" % sWAVE,
      "s_and_b32 s%d, s2, 7" % sXCD, "s_lshr_b32 s%d, s2, 3" % sJ)
    a(";STAMPINIT")


def p1_roles(a, idle):
    a("s_cmp_ge_u32 s%d, 28" % sJ, "s_cbranch_scc1 %s" % idle,
      "s_lshr_b32 s%d, s%d, 1" % (sT1, sXCD), "s_mul_i32 s%d, s%d, 28" % (sT1, sT1), "s_add_u32 s%d, s%d, s%d" % (sT1, sT1, sJ),
      "s_lshr_b32 s%d, s%d, 3" % (sLINE, sT1), "s_and_b32 s%d, s%d, 7" % (sT5, sT1),
      "s_and_b32 s%d, s%d, 1" % (sG, sXCD), "s_lshl3_add_u32 s%d, s%d, s%d" % (sG, sG, sT5))


XBASE = 98304
def xslot(s): return XBASE + 8192 * (s % 8)
def wslot(s): return 16384 * (s % 6)


def mod9(a, d, t):
    a("s_mul_i32 s%d, s%d, 57" % (t, d), "s_lshr_b32 s%d, s%d, 9" % (t, t), "s_mul_i32 s%d, s%d, 9" % (t, t), "s_sub_u32 s%d, s%d, s%d" % (d, d, t))


def p1_issue(a, kind, s):
    if kind == "w":
        def f0():
            a("s_add_u32 m0, s%d, %d" % (sM0W, wslot(s)))
            if s: a("s_add_u32 s%d, s%d, %d" % (sWOFF, sWOFF, 64 * 3456), "s_cmp_eq_u32 s%d, %d" % (sWOFF, 576 * 3456), "s_cselect_b32 s%d, 0, s%d" % (sWOFF, sWOFF))
            else: a("s_nop 0")
            a.vmem("buffer_load_dwordx4 v%d, %s, s%d offen lds" % (vWS, srd(sW), sWOFF), ("w", s))
        def f1():
            a.vmem("buffer_load_dwordx4 v%d, %s, s%d offen offset:1024 lds" % (vWS + 1, srd(sW), sWOFF), ("w", s))
        return [f0, f1]
    def fx():
        a("s_add_u32 m0, s%d, %d" % (sM0X, xslot(s)))
        if s: a("s_add_u32 s%d, s%d, 128" % (sXOFF, sXOFF), "s_cmpk_eq_u32 s%d, 1152" % sXOFF, "s_cselect_b32 s%d, 0, s%d" % (sXOFF, sXOFF))
        else: a("s_nop 0")
        if s == 9: a("v_add_u32 v%d, %d, v%d" % (vXS, 1024 * 1152, vXS))
        a.vmem("buffer_load_dwordx4 v%d, %s, s%d offen lds" % (vXS, srd(sX), sXOFF), ("d", s))
    return [fx]


def p1_head(a, cfg, hooks):
    L = vLANE
    t0, t1, t2, t3 = 38, 39, 40, 41
    a("s_and_b32 s%d, s%d, 1" % (sT0, sWAVE), "s_lshl_b32 s%d, s%d, 2" % (sT1, sT0),
      "v_lshrrev_b32 v%d, 4, v%d" % (t0, L), "v_add_u32 v%d, s%d, v%d" % (t1, sT1, t0),
      "v_and_b32 v%d, 15, v%d" % (t2, L), "v_lshlrev_b32 v%d, 1, v%d" % (t3, t1), "v_xor_b32 v%d, v%d, v%d" % (t2, t2, t3),
      "s_mul_i32 s%d, s%d, %d" % (sT2, sWAVE, 8 * 3456), "s_lshl_b32 s%d, s%d, 8" % (sT3, sLINE), "s_add_u32 s%d, s%d, s%d" % (sT2, sT2, sT3),
      "v_mul_u32_u24 v%d, 3456, v%d" % (t0, t0), "v_lshl_add_u32 v%d, v%d, 4, s%d" % (vWS, t2, sT2),
      "s_cmp_eq_u32 s%d, 13" % sLINE, "s_cselect_b32 s%d, 8, 0" % sT3, "v_and_b32 v%d, s%d, v%d" % (t2, sT3, t2),
      "v_lshl_add_u32 v%d, v%d, 26, v%d" % (t0, t2, t0), "v_add_u32 v%d, v%d, v%d" % (vWS, vWS, t0),
      "v_add_u32 v%d, %d, v%d" % (vWS + 1, 4 * 3456 - 1024, vWS))
    a("s_mul_i32 s%d, s%d, 3" % (sT2, sLINE), "s_add_u32 s%d, s%d, s%d" % (sT2, sT2, sT5))
    mod9(a, sT2, sT3)
    a("s_lshl_b32 s%d, s%d, 7" % (sXOFF, sT2), "s_mul_i32 s%d, s%d, %d" % (sWOFF, sT2, 64 * 3456),
      "s_lshl_b32 s%d, s%d, 10" % (sM0X, sWAVE), "s_lshl_b32 s%d, s%d, 11" % (sM0W, sWAVE))
    a("v_lshrrev_b32 v%d, 3, v%d" % (t0, L), "v_and_b32 v%d, 7, v%d" % (t2, L), "v_xor_b32 v%d, v%d, v%d" % (t2, t2, t1),
      "s_cmp_ge_u32 s%d, 9" % sLINE, "s_cselect_b32 s%d, 2, 0" % sT3, "s_cselect_b32 s%d, 4, 7" % sT4,
      "s_bfe_u32 s%d, s%d, 0x10001" % (sT1, sWAVE), "s_lshl_b32 s%d, s%d, s%d" % (sT1, sT1, sT3),
      "s_lshl4_add_u32 s%d, s%d, s%d" % (sT1, sT0, sT1), "s_and_b32 s%d, s%d, 4" % (sT2, sWAVE), "s_lshl3_add_u32 s%d, s%d, s%d" % (sT1, sT2, sT1),
      "s_lshl_b32 s%d, s%d, 6" % (sT2, sG), "s_add_u32 s%d, s%d, s%d" % (sT1, sT1, sT2),
      "v_and_b32 v%d, s%d, v%d" % (t3, sT4, t0), "v_add3_u32 v%d, v%d, v%d, s%d" % (t3, t3, t0, sT1),
      "v_mul_u32_u24 v%d, 1152, v%d" % (t3, t3), "v_lshl_add_u32 v%d, v%d, 4, v%d" % (vXS, t2, t3))
    a("s_waitcnt lgkmcnt(0)", ";STAMP 17")

    issue = lambda kind, s: p1_issue(a, kind, s)
    plan = cfg["plan"]
    assert sorted((k, s) for _, k, s in plan) == sorted([("w", s) for s in range(9)] + [("x", s) for s in range(18)])
    for b, kind, s in plan:
        assert b < s and (kind == "w" and (s < 6 or b >= s - 5) or kind == "x" and (s < 8 or b >= s - 7))
    pre = [(kind, s) for b, kind, s in plan if b < 0]
    for kind, s in pre[:cfg["npre"]]:
        for f in issue(kind, s): f()
    t0, t1, t2, t3 = 48, 49, 50, 51
    hooks["setup"]()

    a("s_lshr_b32 s%d, s%d, 2" % (sT0, sWAVE), "s_and_b32 s%d, s%d, 3" % (sT1, sWAVE),
      "s_lshl_b32 s%d, s%d, 12" % (sT2, sT0), "s_add_u32 s%d, s%d, %d" % (sT2, sT2, XBASE),
      "v_and_b32 v%d, 15, v%d" % (t0, L), "v_lshrrev_b32 v%d, 4, v%d" % (t1, L),
      "v_bfe_u32 v%d, v%d, 1, 3" % (t2, L), "v_xor_b32 v%d, v%d, v%d" % (t2, t2, t1),
      "v_lshlrev_b32 v%d, 4, v%d" % (t2, t2),
      "v_lshl_add_u32 v%d, v%d, 7, s%d" % (t3, t0, sT2),
      "v_add_u32 v%d, v%d, v%d" % (vXR, t2, t3), "v_xor_b32 v%d, 64, v%d" % (vXR + 1, vXR))
    a("v_bfe_u32 v%d, v%d, 2, 2" % (t2, L), "v_lshl_add_u32 v%d, v%d, 3, v%d" % (t2, t1, t2),
      "v_lshlrev_b32 v%d, 8, v%d" % (vWR, t2),
      "v_and_b32 v%d, 3, v%d" % (t2, L), "v_lshl_add_u32 v%d, v%d, 3, v%d" % (vWR, t2, vWR),
      "s_lshl_b32 s%d, s%d, 1" % (sT2, sT1),
      "v_bfe_u32 v%d, v%d, 2, 3" % (t2, L), "v_xor_b32 v%d, s%d, v%d" % (t2, sT2, t2),
      "v_lshl_add_u32 v%d, v%d, 5, v%d" % (vWR, t2, vWR),
      "v_xor_b32 v%d, 32, v%d" % (vWR + 1, vWR),
      "v_add_u32 v%d, 0x10000, v%d" % (vWR + 2, vWR), "v_add_u32 v%d, 0x10000, v%d" % (vWR + 3, vWR + 1))
    a("s_mul_i32 s%d, s%d, %d" % (sST, sG, PITCH), "v_lshlrev_b32 v%d, 4, v%d" % (t0, t0),
      "s_lshl2_add_u32 s%d, s%d, s%d" % (sT2, sLINE, sT1),
      "s_cmp_ge_u32 s%d, 54" % sT2, "s_cselect_b32 s%d, 0x40000000, s%d" % (sST, sST),
      "s_mov_b32 s%d, 0x%08x" % (sT4, SCALE), "s_cmp_lt_u32 s%d, 18" % sT2, "s_cselect_b32 s%d, s%d, 1.0" % (sSCALE, sT4),
      "s_movk_i32 s%d, 256" % sT4, "s_movk_i32 s%d, 512" % sT5, "s_cmp_ge_u32 s%d, 9" % sLINE,
      "s_cselect_b32 s%d, %d, s%d" % (sT4, 4 * 9216, sT4), "s_cselect_b32 s%d, 9216, s%d" % (sT5, sT5),
      "s_cselect_b32 s%d, 9, 12" % sT1, "s_cselect_b32 s%d, %d, 0" % (sT3, 2 * SEC - 18 * 1024),
      "s_mul_i32 s%d, s%d, s%d" % (sT0, sT0, sT4), "s_lshl_b32 s%d, s%d, s%d" % (sT2, sT2, sT1),
      "s_add_u32 s%d, s%d, s%d" % (sST, sST, sT3), "s_add_u32 s%d, s%d, s%d" % (sST, sST, sT2), "s_add_u32 s%d, s%d, s%d" % (sST, sST, sT0),
      "v_mad_u32_u24 v%d, v%d, s%d, v%d" % (vSTA, t1, sT5, t0))
    a(";STAMP 18")
    for kind, s in pre[cfg["npre"]:]:
        for f in issue(kind, s): f()
    hooks["setup2"]()


def p1_body(a, isv, cfg, hooks):
    issue = lambda kind, s: p1_issue(a, kind, s)
    plan = cfg["plan"]

    def reads(s):
        r = []
        for m in range(2):
            for t in range(2):
                r.append("ds_read_b128 %s, v%d offset:%d" % (vr(vXF[s % 2] + 8 * m + 4 * t, 4), vXR + m, xslot(s) - XBASE + 2048 * t))
                if s < 9:
                    for h in range(2):
                        r.append("ds_read_b64_tr_b16 %s, v%d offset:%d" % (vr(vWF + 16 * s + 8 * m + 4 * t + 2 * h, 2), vWR + t + 2 * (wslot(s) >> 16),
                                                                           (wslot(s) & 0xffff) + (32 * m + 4 * h) * 256))
        return [(lambda x=x: a.lds(x)) for x in r]

    def mfmas(s):
        r = []
        for m in range(2):
            for ft in range(2):
                for tt in range(2):
                    acc = vr(vACC[s // 9] + 8 * ft + 4 * tt, 4)
                    w = vr(vWF + 16 * (s % 9) + 8 * m + 4 * ft, 4); x = vr(vXF[s % 2] + 8 * m + 4 * tt, 4)
                    c = "0" if (s % 9 == 0 and m == 0) else acc
                    r.append("v_mfma_f32_16x16x32_bf16 %s, %s, %s, %s" % ((acc, x, w, c) if isv else (acc, w, x, c)))
        return r

    def store(r, n):
        a.vmem("buffer_store_dwordx4 %s, v%d, %s, s%d offen offset:%d sc1" % (vr(vACC[r] + 8 * n, 4), vSTA, srd(sWS), sST, (256 if isv else 2048) * n), ("st", r))

    def epilogue(r):
        acc = vACC[r]
        mid = hooks.get("mid_epi1") if r else None
        for n in range(2):
            if not isv:
                for i in range(8 * n, 8 * n + 8, 2): a("v_pk_mul_f32 %s, %s, %s op_sel_hi:[1,0]" % (vr(acc + i, 2), vr(acc + i, 2), sr(sSCALE, 2)))
            for i in range(4): a("v_cvt_pk_bf16_f32 v%d, v%d, v%d" % (acc + 8 * n + i, acc + 8 * n + 2 * i, acc + 8 * n + 2 * i + 1))
            if not mid: store(r, n)
        if mid: mid(lambda: (store(r, 0), store(r, 1)))
        if r == 0: a("s_add_u32 s%d, s%d, %d" % (sST, sST, 16 * PITCH))

    for s in range(18):
        extra = hooks.get(("waitfor", s), [])
        a.wait(vm=[("d", s)] + [("w", s)] + extra, lg="all")
        a("s_barrier")
        a(";STAMP %d" % (20 + s))
        hooks.get(("bar", s), lambda: None)()
        side = reads(s)
        xp = cfg.get("x_p1", "")
        if "noread" in xp: side = []
        if "nowread" in xp: side = side[0::3] if s < 9 else side
        for b, kind, s2 in plan:
            if b == s and "nodma" not in xp: side += issue(kind, s2)
        mm = mfmas(s - 1) if s > 0 else []
        if cfg["early0"] and s == 9: mm = []
        if "nomfma" in xp: mm = []
        side = hooks.get(("side0", s), []) + side + hooks.get(("side", s), [])
        per = max(cfg["per1"], -(-len(side) // 8))
        for x in mm:
            a(x)
            for f in side[:per]: f()
            side = side[per:]
        for f in side: f()
        if cfg["early0"] and s == 8:
            a.wait(lg="all"); a(mfmas(8))
        if s == (8 if cfg["early0"] else 9):
            a("s_nop 5")
            epilogue(0)
            a(";STAMP 39")
        hooks.get(("step", s), lambda: None)()
    a.wait(lg="all")
    a(mfmas(17))
    hooks.get("pre_epi1", lambda: None)()
    a("s_nop 5")
    epilogue(1)
    a(";STAMP 38")
    hooks.get("post_epi1", lambda: None)()


def wo_role(a, skip):
    L = vLANE
    t0, t1, t2, t3 = 42, 43, 44, 45
    a("s_sub_u32 s%d, s2, 224" % sLINE, "s_cmp_ge_u32 s%d, 18" % sLINE, "s_cbranch_scc1 %s" % skip)
    a("s_lshl_b32 s%d, s%d, 3" % (sT0, sWAVE), "v_lshrrev_b32 v%d, 3, v%d" % (t0, L), "v_add_u32 v%d, s%d, v%d" % (t0, sT0, t0),
      "v_mul_u32_u24 v%d, 1152, v%d" % (t0, t0), "v_and_b32 v%d, 7, v%d" % (t1, L), "v_lshl_add_u32 v%d, v%d, 4, v%d" % (t0, t1, t0),
      "s_lshr_b32 s%d, s%d, 1" % (sT4, sLINE), "s_lshl_b32 s%d, s%d, 7" % (sT1, sT4), "s_and_b32 s%d, s%d, 1" % (sT5, sLINE),
      "s_mul_i32 s%d, s%d, %d" % (sT2, sT5, 288 * 1152), "s_add_u32 s%d, s%d, s%d" % (sT1, sT1, sT2),
      "s_lshl_b32 s%d, s%d, 10" % (sT2, sWAVE))
    for k in range(5):
        a("s_add_u32 m0, s%d, %d" % (sT2, 8192 * k))
        if k == 4: a("s_cmp_ge_u32 s%d, 4" % sWAVE, "s_cselect_b32 s%d, 0x40000000, s%d" % (sT1, sT1))
        else: a("s_nop 0")
        a.vmem("buffer_load_dwordx4 v%d, %s, s%d offen lds" % (t0, srd(sW), sT1), "wo")
        if k < 4: a("s_add_u32 s%d, s%d, %d" % (sT1, sT1, 64 * 1152))
    a("s_and_b32 s%d, s%d, 3" % (sT0, sWAVE), "s_lshr_b32 s%d, s%d, 2" % (sT1, sWAVE),
      "s_mul_i32 s%d, s%d, 144" % (sT3, sT1), "s_lshl_b32 s%d, s%d, 5" % (sT2, sT0),
      "v_lshrrev_b32 v%d, 5, v%d" % (t0, L), "v_mul_u32_u24 v%d, 18, v%d" % (t0, t0),
      "v_bfe_u32 v%d, v%d, 2, 3" % (t1, L),
      "v_add3_u32 v%d, v%d, v%d, s%d" % (t0, t0, t1, sT3),
      "v_and_b32 v%d, 3, v%d" % (t2, L), "v_lshl_add_u32 v%d, v%d, 3, s%d" % (t2, t2, sT2),
      "v_lshl_add_u32 v%d, v%d, 7, v%d" % (t0, t0, t2),
      "v_lshrrev_b32 v%d, 3, v%d" % (t1, L), "v_mul_u32_u24 v%d, 18, v%d" % (t1, t1),
      "v_bfe_u32 v%d, v%d, 2, 1" % (t3, L), "s_add_u32 s%d, s%d, 16" % (sT3, sT3),
      "v_add3_u32 v%d, v%d, v%d, s%d" % (t1, t1, t3, sT3),
      "v_lshl_add_u32 v%d, v%d, 7, v%d" % (t1, t1, t2))
    a("s_lshl2_add_u32 s%d, s%d, s%d" % (sT2, sT4, sT0), "s_lshl1_add_u32 s%d, s%d, s%d" % (sT2, sT2, sT5), "s_lshl1_add_u32 s%d, s%d, s%d" % (sT2, sT2, sT1),
      "s_mul_i32 s%d, s%d, 4608" % (sT2, sT2), "s_add_u32 s%d, s%d, %d" % (sT2, sT2, WOBASE), "s_add_u32 s%d, s%d, 4096" % (sT4, sT2),
      "v_lshlrev_b32 v%d, 4, v%d" % (t2, L), "v_lshlrev_b32 v%d, 3, v%d" % (t3, L))
    a.wait(vm="all"); a("s_barrier")
    for m in range(4):
        for h in range(2):
            a.lds("ds_read_b64_tr_b16 %s, v%d offset:%d" % (vr(48 + 4 * m + 2 * h, 2), t0, (36 * m + 8 * h) * 128))
    a.lds("ds_read_b64_tr_b16 v[64:65], v%d" % t1)
    a.wait(lg="all")
    for m in range(4):
        a.vmem("buffer_store_dwordx4 %s, v%d, %s, s%d offen offset:%d sc1" % (vr(48 + 4 * m, 4), t2, srd(sWS), sT2, 1024 * m), "st")
    a.vmem("buffer_store_dwordx2 v[64:65], v%d, %s, s%d offen sc1" % (t3, srd(sWS), sT4), "st")


def p2_setup(a):
    L = vLANE
    t0, t1, t2, t3 = 38, 39, 40, 41
    a("s_lshl_b32 s%d, s%d, 2" % (sHEAD, sXCD), "s_lshr_b32 s%d, s%d, 3" % (sT0, sJ), "s_add_u32 s%d, s%d, s%d" % (sHEAD, sHEAD, sT0),
      "s_and_b32 s%d, s%d, 7" % (sQI, sJ), "s_and_b32 s%d, s%d, 3" % (sP, sWAVE), "s_lshr_b32 s%d, s%d, 2" % (sKH, sWAVE),
      "s_mov_b32 s%d, 0x3ffff" % sVMASK, "s_mov_b32 s%d, 0x3ffff" % (sVMASK + 1),
      "s_mov_b32 s%d, -1" % sDMASK, "s_mov_b32 s%d, 0xffff" % (sDMASK + 1),
      "s_and_b32 s%d, s%d, 1" % (sT0, sHEAD),
      "s_lshr_b32 s%d, s%d, 1" % (sT1, sHEAD), "s_mul_i32 s%d, s%d, %d" % (sT1, sT1, 9 * 512))
    a("v_and_b32 v%d, 31, v%d" % (t0, L), "v_lshrrev_b32 v%d, 5, v%d" % (t1, L))
    a("s_lshl_b32 s%d, s%d, 11" % (sT2, sT0), "s_add_u32 s%d, s%d, s%d" % (sT2, sT2, sT1), "s_add_u32 s%d, s%d, %d" % (sT2, sT2, SEC),
      "v_lshl_add_u32 v%d, v%d, 4, s%d" % (vDMA, L, sT2),
      "s_mul_i32 s%d, s%d, 288" % (sT3, sHEAD))
    for k in (2, 3, 4):
        imm = 1024 * k if k < 4 else 0
        d = vDMA + k - 1
        a("v_add_u32 v%d, %d, v%d" % (t2, (64 * k - 160) & 0xffffffff, L))
        if k == 2: a("v_max_i32 v%d, 0, v%d" % (t2, t2))
        a("v_mul_u32_u24 v%d, 3641, v%d" % (t3, t2), "v_lshrrev_b32 v%d, 16, v%d" % (t3, t3),
          "v_mul_u32_u24 v%d, %d, v%d" % (t3, 9216 - 288, t3),
          "v_lshl_add_u32 v%d, v%d, 4, v%d" % (t3, t2, t3),
          "s_add_u32 s%d, s%d, %d" % (sT4, sT3, 2 * SEC - imm),
          "v_add_u32 v%d, s%d, v%d" % (d, sT4, t3))
        if k == 2:
            a("v_cmp_gt_u32 vcc, 32, v%d" % L, "s_nop 1", "v_cndmask_b32 v%d, v%d, v%d, vcc" % (d, d, vDMA))
    a("s_mul_i32 s%d, s%d, %d" % (sT2, sKH, CHUNK),
      "s_lshl_b32 s%d, s%d, 9" % (sT3, sT0), "s_add_u32 s%d, s%d, s%d" % (sT3, sT3, sT2),
      "v_lshlrev_b32 v%d, 10, v%d" % (t2, t1), "v_lshl_add_u32 v%d, v%d, 3, v%d" % (t2, t0, t2),
      "v_add_u32 v%d, s%d, v%d" % (vAK, sT3, t2),
      "s_mul_i32 s%d, s%d, %d" % (sT3, sT0, (4 - 2048) & 0xffffffff), "s_add_u32 s%d, s%d, 2048" % (sT3, sT3),
      "s_add_u32 s%d, s%d, s%d" % (sT3, sT3, sT2),
      "v_lshl_add_u32 v%d, v%d, 3, s%d" % (vAR, L, sT3),
      "s_add_u32 s%d, s%d, 2560" % (sT3, sT2),
      "v_mul_u32_u24 v%d, 288, v%d" % (t3, t1), "v_lshl_add_u32 v%d, v%d, 4, v%d" % (t3, t0, t3),
      "v_add_u32 v%d, s%d, v%d" % (vAV, sT3, t3))
    a("s_mul_i32 s%d, s%d, %d" % (sT3, sT0, 5 * 512), "s_add_u32 s%d, s%d, s%d" % (sT3, sT3, sT1),
      "v_add_u32 v%d, s%d, v%d" % (vQA, sT3, t2),
      "s_lshl_b32 s%d, s%d, 2" % (sT3, sT0), "s_add_u32 s%d, s%d, s%d" % (sT3, sT3, sT1), "s_add_u32 s%d, s%d, 2048" % (sT3, sT3),
      "v_lshl_add_u32 v%d, v%d, 3, s%d" % (vQR, t0, sT3),
      "s_lshl_b32 s%d, s%d, 1" % (sT3, sQI), "s_lshr_b32 s%d, s%d, 1" % (sT4, sP), "s_add_u32 s%d, s%d, s%d" % (sT3, sT3, sT4),
      "s_mul_i32 s%d, s%d, %d" % (sQOFF, sT3, PITCH), "s_and_b32 s%d, s%d, 1" % (sT4, sP), "s_lshl_b32 s%d, s%d, 8" % (sT4, sT4),
      "s_add_u32 s%d, s%d, s%d" % (sQOFF, sQOFF, sT4),
      "s_lshl1_add_u32 s%d, s%d, s%d" % (sT0, sP, sKH), "s_mul_i32 s%d, s%d, %d" % (sCM, sT0, CHUNK), "s_mul_i32 s%d, s%d, %d" % (sCH, sT0, PITCH),
      "v_mov_b32 v%d, 0xdddddddd" % vIDX, "v_mov_b32 v%d, 0" % (vQ[0] + 5), "v_mov_b32 v%d, 0" % (vQ[1] + 5))


def q_load(a, part):
    so = sQOFF
    if part:
        a("s_add_u32 s%d, s%d, %d" % (sT0, sQOFF, 16 * PITCH)); so = sT0
    q = vQ[part]
    a.vmem("buffer_load_dwordx2 %s, v%d, %s, s%d offen sc1" % (vr(q, 2), vQA, srd(sWS), so), ("q", part))
    a.vmem("buffer_load_dwordx2 %s, v%d, %s, s%d offen offset:512 sc1" % (vr(q + 2, 2), vQA, srd(sWS), so), ("q", part))
    a.vmem("buffer_load_dword v%d, v%d, %s, s%d offen sc1" % (q + 4, vQR, srd(sWS), so), ("q", part))


def kv_dma(a, st, part="kv"):
    if "k" in part:
        a("s_add_u32 m0, s%d, %d" % (sCM, 8 * st * CHUNK), "s_add_u32 s%d, s%d, %d" % (sCH, sCH, 8 * PITCH) if st else "s_nop 0")
        for k in range(3):
            a.vmem("buffer_load_dwordx4 v%d, %s, s%d offen offset:%d sc1 lds" % (vDMA + max(0, k - 1), srd(sWS), sCH, 1024 * k), ("k", st))
    if "v" in part:
        a.vmem("buffer_load_dwordx4 v%d, %s, s%d offen offset:3072 sc1 lds" % (vDMA + 2, srd(sWS), sCH), ("kv", st))
        a("s_add_u32 m0, m0, 4096", "s_mov_b64 exec, %s" % sr(sDMASK, 2))
        a.vmem("buffer_load_dwordx4 v%d, %s, s%d offen sc1 lds" % (vDMA + 3, srd(sWS), sCH), ("kv", st))
        a("s_mov_b64 exec, -1")


def v_consts(a, base, t):
    a("s_mov_b32 s%d, 0x440000" % sSAVE, "s_mov_b32 s%d, 0x440000" % (sSAVE + 1), "v_mov_b32 v%d, 0x3f803f80" % t,
      "v_cndmask_b32 v%d, 0, v%d, %s" % (base, t, sr(sSAVE, 2)))
    a("v_mov_b32 v%d, v%d" % (base + 1, base))
    for i in range(1, 8): a("v_mov_b64 %s, %s" % (vr(base + 2 * i, 2), vr(base, 2)))


def p2_init(a):
    word_setup(a)
    v_consts(a, vV, vV + 2)
    a("v_mov_b32 v%d, 0" % (vKR + 1))
    for i in range(16): a("v_mov_b64 %s, 0" % vr(vO[0] + 2 * i, 2))


def p2_main(a, cfg, ev):
    ns = cfg["nsolo"]
    U = [(i, 0) for i in range(ns)] + [(i, q) for i in range(ns, 16) for q in range(2)] + [(i, 1) for i in range(ns)]
    if cfg["uswap"]: U[6:10] = [(6, 0), (7, 0), (7, 1), (6, 1)]
    N = len(U)
    base = {"k": 0, "r": 0, "v": 0}
    reg = {"k": vAK, "r": vAR, "v": vAV}
    seen = set()

    def off(kind, i):
        if i not in seen:
            seen.add(i)
            if ("pre", i) in ev: ev[("pre", i)]()
        want = (i // 6) * 6
        if base[kind] != want:
            a("v_add_u32 v%d, 0x%x, v%d" % (reg[kind], ((want - base[kind]) * 2 * CHUNK) & 0xffffffff, reg[kind]))
            base[kind] = want
        return (i - want) * 2 * CHUNK

    def rR(i):
        o = off("r", i); a.lds("ds_read_b32 v%d, v%d offset:%d" % (vKR, vAR, o), "R")
    def rK(i, t):
        o = off("k", i)
        for h in range(2): a.lds("ds_read_b64 %s, v%d offset:%d" % (vr(vK + 4 * t + 2 * h, 2), vAK, o + 256 * t + 512 * h), ("K", t))
    def rV(i, fs):
        o = off("v", i)
        if not cfg.get("x_nomask"): a("s_mov_b64 exec, %s" % sr(sVMASK, 2))
        for f in fs: a.lds("ds_read_b128 %s, v%d offset:%d" % (vr(vV + 4 * f, 4), vAV, o + 576 * f), ("V", f // 2))
        if not cfg.get("x_nomask"): a("s_mov_b64 exec, -1")
    def R(u):
        a.wait(lg="R")
        if U[u][1] == 1 and "ql" in ev: ev.pop("ql")()
        a("v_mfma_f32_32x32x4_2b_bf16 %s, %s, %s, 0" % (vr(vS[u % 2], 32), vr(vKR, 2), vr(vQ[U[u][1]] + 4, 2)))
    def M(u, t):
        a.wait(lg=("K", t))
        s = vr(vS[u % 2] + 16 * t, 16)
        a("v_mfma_f32_32x32x16_bf16 %s, %s, %s, %s" % (s, vr(vK + 4 * t, 4), vr(vQ[U[u][1]], 4), s))
    def P(u, f):
        a.wait(lg=("V", f // 2))
        a("v_smfmac_f32_32x32x32_bf16 %s, %s, %s, v%d" % (vr(vO[U[u][1]], 16), vr(vV + 4 * f, 4), vr(vS[u % 2] + 8 * f, 8), vIDX))
    ch = lambda u: U[u][0]
    newk = lambda u: u < N and ch(u) != ch(u - 1)

    rR(ch(0)); rK(ch(0), 0); rK(ch(0), 1)
    rV(ch(0), (0, 1, 2, 3))
    R(0)
    if newk(1): rR(ch(1))
    if "fill" in ev: ev["fill"]()
    a("s_nop 15" if "fill" not in ev else "s_nop 13", "s_nop 1")
    M(0, 0)
    if newk(1): rK(ch(1), 0)
    M(0, 1)
    if newk(1): rK(ch(1), 1)
    a("s_nop 7")
    pos = cfg["pos"]
    for u in range(N):
        def op(j):
            if j == 0:
                if u > 0:
                    P(u - 1, 3)
                    if newk(u): rV(ch(u), (2, 3))
            elif j == 1:
                if u + 1 < N:
                    R(u + 1)
            elif j == 2: P(u, 0)
            elif j == 3:
                P(u, 1)
                if newk(u + 1): rV(ch(u + 1), (0, 1))
            elif j == 4 or j == 6:
                if u + 1 < N:
                    M(u + 1, (j - 4) // 2)
                    if newk(u + 2):
                        if j == 4: rR(ch(u + 2))
                        rK(ch(u + 2), (j - 4) // 2)
            elif j == 5: P(u, 2)
            if (u, j) in cfg.get("prio", {}): a("s_setprio %d" % cfg["prio"][(u, j)])
            if (u, j) in cfg.get("priox", {}):
                l = a.uid("px"); a("s_cmp_lg_u32 s%d, 0" % sKH, "s_cbranch_scc1 %s" % l, "s_setprio %d" % cfg["priox"][(u, j)], "%s:" % l)
            if (u, j) in ev: ev[(u, j)]()
        a(";STAMP %d" % (40 + u))
        for e in range(32):
            if e in pos: op(pos.index(e))
            a("v_exp_f32 v%d, v%d" % (vS[u % 2] + e, vS[u % 2] + e))
    a("s_nop 1")
    P(N - 1, 3)
    return U


SCR_RES, SCR_ROFF = 12 * CHUNK, (0, 2 * CHUNK)
SCR_MOFF = (0, 0)
P3_BASE, P3_OFF = 15 * CHUNK, (0, 39936)
sOA, sOR = 34, 3
sOL = 12
sPF = 15
vFD = [vWO + 72, vS[0] + 20]


def late_setup(a):
    L = vLANE
    a("s_lshl_b32 s%d, s%d, 11" % (sT0, sP), "s_add_u32 s%d, s%d, %d" % (sT0, sT0, LDS_SPARE), "v_add_u32 v%d, s%d, v%d" % (vSA, sT0, vL16),
      "s_lshl_b32 s%d, s%d, 10" % (sT0, sP), "s_add_u32 s%d, s%d, %d" % (sT0, sT0, SCR_RES), "v_add_u32 v%d, s%d, v%d" % (vSB, sT0, vL16),
      "s_lshl2_add_u32 s%d, s%d, s%d" % (sT0, sQI, sP), "s_mul_i32 s%d, s%d, %d" % (sT0, sT0, OTILE), "s_add_u32 s%d, s%d, %d" % (sT0, sT0, OBASE),
      "s_cmp_eq_u32 s%d, 0" % sKH, "s_cselect_b32 s%d, 0x40000000, s%d" % (sT0, sT0),
      "s_lshl_b32 s%d, s%d, 10" % (sT1, sHEAD), "s_add_u32 s%d, s%d, s%d" % (sOA, sT1, sT0),
      "s_lshl_b32 s%d, s%d, 7" % (sT1, sHEAD), "s_add_u32 s%d, s%d, s%d" % (sOR, sT1, sT0), "s_add_u32 s%d, s%d, 32768" % (sOR, sOR),
      "v_lshrrev_b32 v%d, 4, v%d" % (vOB, L), "v_and_b32 v%d, 15, v%d" % (vT, L),
      "v_lshlrev_b32 v%d, 9, v%d" % (vOA, vOB), "v_lshl_add_u32 v%d, v%d, 4, v%d" % (vOA, vT, vOA),
      "v_lshlrev_b32 v%d, 8, v%d" % (vOB, vOB), "v_lshl_add_u32 v%d, v%d, 2, v%d" % (vOB, vT, vOB),
      "s_lshl2_add_u32 s%d, s%d, s%d" % (sT0, sXCD, sRT), "s_mul_i32 s%d, s%d, %d" % (sT0, sT0, OTILE), "s_add_u32 s%d, s%d, %d" % (sT0, sT0, OBASE),
      "s_lshl_b32 s%d, s%d, 5" % (sT1, sKQ), "s_add_u32 s%d, s%d, s%d" % (sT1, sT1, sRH), "s_lshl_b32 s%d, s%d, 8" % (sT1, sT1),
      "s_add_u32 s%d, s%d, s%d" % (sOL, sT1, sT0), "s_add_u32 s%d, s%d, 4096" % (sOL + 1, sOL),
      "s_lshl4_add_u32 s%d, s%d, s%d" % (sT1, sKQ, sRH), "s_lshl_b32 s%d, s%d, 6" % (sT1, sT1),
      "s_add_u32 s%d, s%d, s%d" % (sOL + 2, sT1, sT0), "s_add_u32 s%d, s%d, 32768" % (sOL + 2, sOL + 2))


def o_store(a, d, t, part, em):
    sa, sb = sOA, sOR
    if part:
        a("s_add_u32 s%d, s%d, %d" % (sT1, sOA, 32 * OTILE), "s_add_u32 s%d, s%d, %d" % (sT2, sOR, 32 * OTILE)); sa, sb = sT1, sT2
    em("buffer_store_dwordx4 %s, v%d, %s, s%d offen sc1" % (vr(d, 4), vL16, srd(sWS), sa))
    a("s_mov_b32 exec_hi, 0")
    em("buffer_store_dword v%d, v%d, %s, s%d offen sc1" % (d + 4, t, srd(sWS), sb))
    a("s_mov_b64 exec, -1")


def poison(a):
    d = vFD[0]
    a("v_mov_b64 %s, -1" % vr(d, 2), "v_mov_b64 %s, -1" % vr(d + 2, 2), "v_mov_b32 v%d, -1" % (d + 4), "v_lshlrev_b32 v%d, 2, v%d" % (vT, vLANE))
    for part in range(2): o_store(a, d, vT, part, lambda x: a.vmem(x, "poison"))


def send_partial(a, part):
    o = vO[part]
    a("v_mov_b32 v%d, s%d" % (o + 11, sTAG),
      "ds_write_b128 v%d, %s offset:%d" % (vSA, vr(o, 4), SCR_MOFF[part]), "ds_write_b128 v%d, %s offset:%d" % (vSA, vr(o + 4, 4), SCR_MOFF[part] + 1024),
      "ds_write_b128 v%d, %s offset:%d" % (vSB, vr(o + 8, 4), SCR_ROFF[part]))


def fin_reads(part):
    d = vFD[part]
    return ["ds_read_b128 %s, v%d offset:%d" % (vr(d + 8, 4), vSB, SCR_ROFF[part]),
            "ds_read_b128 %s, v%d offset:%d" % (vr(d, 4), vSA, SCR_MOFF[part]), "ds_read_b128 %s, v%d offset:%d" % (vr(d + 4, 4), vSA, SCR_MOFF[part] + 1024)]


def finalize(a, part, slow, colds, prefetched=False):
    o = vO[part]
    t = vT
    d = vFD[part]
    if not prefetched: a(fin_reads(part))
    again = a.uid("meet")
    a("s_mov_b32 s%d, 0" % sT5, "s_mov_b32 s%d, 0x37800000" % sT4,
      "%s:" % again, "s_waitcnt lgkmcnt(0)", "v_cmp_ne_u32 vcc, s%d, v%d" % (sTAG, d + 11), "s_cbranch_vccnz %s_r" % again, "%s_k:" % again)
    def cold():
        a("%s_r:" % again); spin_guard(a, again + "_k"); a("s_sleep 1", fin_reads(part), "s_branch %s" % again)
    colds.append(cold)
    pk = lambda op, x, y, z, m="": "v_pk_%s_f32 %s, %s, %s%s" % (op, vr(x, 2), vr(y, 2), vr(z, 2), m)
    a("v_add_f32 v%d, v%d, v%d" % (o + 10, o + 10, d + 10), pk("add", o + 8, o + 8, d + 8))
    for i in (0, 2, 4, 6): a(pk("add", o + i, o + i, d + i))
    back = a.uid("norm")
    done = a.uid("normok")
    a("%s:" % back)
    a("v_rcp_f32 v%d, v%d" % (t, o + 10), "v_mov_b32 v%d, 0x71800000" % (d + 11))
    for i in range(0, 10, 2): a(pk("mul", d + i, o + i, t, " op_sel_hi:[1,0]"))
    a("v_med3_f32 v%d, v%d, s%d, v%d" % (d + 10, o + 10, sT4, d + 11), pk("add", t, d, d + 2))
    for i in (4, 6, 8): a(pk("add", t, t, d + i))
    a("v_add_f32 v%d, v%d, v%d" % (t, t, t + 1),
      "v_fma_f32 v%d, v%d, 0, v%d" % (t, t, o + 10),
      "v_cmp_neq_f32 vcc, v%d, v%d" % (d + 10, t))
    for i in range(5): a("v_cvt_pk_bf16_f32 v%d, v%d, v%d" % (d + i, d + 2 * i, d + 2 * i + 1))
    a("s_cbranch_vccz %s" % done)
    slow(part, back, done)
    a("%s:" % done, "v_lshlrev_b32 v%d, 2, v%d" % (t, vLANE))
    o_store(a, d, t, part, a)


def slow_path(a, part, label, back, done, after):
    S, K, KR, V, m, ar, av = 44, 76, 84, 88, 104, 105, 106
    q = vQ[part]; o = vO[part]
    a("%s:" % label, "s_cmp_eq_u32 s%d, 0" % sT5, "s_cbranch_scc1 %s_go" % label)
    for i in range(5): a("v_min_u32 v%d, -2, v%d" % (vFD[part] + i, vFD[part] + i))
    a("s_branch %s" % done, "%s_go:" % label, "s_mov_b32 s%d, 1" % sT5)
    a("s_waitcnt vmcnt(0) lgkmcnt(0)")
    v_consts(a, V, m)
    a("v_mov_b32 v%d, 0" % (KR + 1))
    for i in range(16): a("v_mov_b32 v%d, 0" % (o + i))
    a("v_lshrrev_b32 v%d, 5, v%d" % (m, vLANE), "v_lshl_add_u32 v%d, v%d, 8, v%d" % (ar, m, vQR),
      "v_mul_u32_u24 v%d, 9216, v%d" % (av, m), "v_and_b32 v%d, 31, v%d" % (m, vLANE), "v_lshl_add_u32 v%d, v%d, 4, v%d" % (av, m, av),
      "s_mul_i32 s%d, s%d, 288" % (sT3, sHEAD), "s_add_u32 s%d, s%d, %d" % (sT3, sT3, SEC), "v_add_u32 v%d, s%d, v%d" % (av, sT3, av))
    for f in range(1, 4): a("v_add_u32 v%d, 18432, v%d" % (av + f, av + f - 1))
    a("v_mov_b32 v%d, 0xff800000" % m)
    for ps in range(2):
        lp = a.uid("slow")
        a("s_mov_b32 s%d, %d" % (sLOOP, SEC), "%s:" % lp)
        for t in range(2):
            for h in range(2):
                a("buffer_load_dwordx2 %s, v%d, %s, s%d offen offset:%d sc1" % (vr(K + 4 * t + 2 * h, 2), vQA, srd(sWS), sLOOP, 256 * t + 512 * h))
        a("buffer_load_dword v%d, v%d, %s, s%d offen sc1" % (KR, ar, srd(sWS), sLOOP))
        if ps:
            a("s_mov_b64 exec, %s" % sr(sVMASK, 2))
            for f in range(4): a("buffer_load_dwordx4 %s, v%d, %s, s%d offen sc1" % (vr(V + 4 * f, 4), av + f, srd(sWS), sLOOP))
            a("s_mov_b64 exec, -1")
        a("s_waitcnt vmcnt(0)",
          "v_mfma_f32_32x32x4_2b_bf16 %s, %s, %s, 0" % (vr(S, 32), vr(KR, 2), vr(q + 4, 2)), "s_nop 15", "s_nop 1")
        for t in range(2):
            a("v_mfma_f32_32x32x16_bf16 %s, %s, %s, %s" % (vr(S + 16 * t, 16), vr(K + 4 * t, 4), vr(q, 4), vr(S + 16 * t, 16)))
        a("s_nop 11")
        if ps == 0:
            for i in range(16): a("v_max3_f32 v%d, v%d, v%d, v%d" % (m, m, S + 2 * i, S + 2 * i + 1))
        else:
            for i in range(32): a("v_sub_f32 v%d, v%d, v%d" % (S + i, S + i, m))
            for i in range(32): a("v_exp_f32 v%d, v%d" % (S + i, S + i))
            a("s_nop 1")
            for f in range(4): a("v_smfmac_f32_32x32x32_bf16 %s, %s, %s, v%d" % (vr(o, 16), vr(V + 4 * f, 4), vr(S + 8 * f, 8), vIDX))
        a("s_add_u32 s%d, s%d, %d" % (sLOOP, sLOOP, PITCH), "s_cmp_lt_u32 s%d, %d" % (sLOOP, 32 * PITCH), "s_cbranch_scc1 %s" % lp)
        if ps == 0:
            a("v_mov_b32 v%d, v%d" % (S, m), "s_nop 1", "v_permlane32_swap_b32 v%d, v%d" % (S, m), "s_nop 1", "v_max_f32 v%d, v%d, v%d" % (m, m, S))
    a("s_nop 15")
    after()
    a("s_branch %s" % back)


def p3_setup(a):
    a("s_and_b32 s%d, s%d, 3" % (sRT, sJ), "s_lshr_b32 s%d, s%d, 2" % (sCB, sJ),
      "s_lshr_b32 s%d, s%d, 2" % (sRH, sWAVE), "s_lshl1_add_u32 s%d, s%d, s%d" % (sKQ, sRH, sWAVE), "s_and_b32 s%d, s%d, 3" % (sKQ, sKQ),
      "s_and_b32 s%d, s%d, 1" % (sT0, sCB), "s_cmp_eq_u32 s%d, s%d" % (sT0, sRH), "s_cselect_b32 s%d, 1, 0" % sFIVE,
      "s_lshr_b32 s%d, s%d, 1" % (sT1, sCB), "s_mul_i32 s%d, s%d, 9" % (sT1, sT1),
      "s_mul_i32 s%d, s%d, 5" % (sT0, sT0), "s_add_u32 s%d, s%d, s%d" % (sT0, sT0, sT1),
      "s_add_u32 s%d, s%d, 4" % (sT1, sT1),
      "s_mul_i32 s%d, s%d, 4608" % (sT2, sKQ), "s_add_u32 s%d, s%d, %d" % (sT2, sT2, WOBASE),
      "s_mul_i32 s%d, s%d, %d" % (sT3, sT0, 4 * 4608), "s_add_u32 s%d, s%d, s%d" % (sWOF, sT3, sT2))
    for t in range(1, 4): a("s_add_u32 s%d, s%d, %d" % (sWOF + t, sWOF, 4 * 4608 * t))
    a("s_mul_i32 s%d, s%d, %d" % (sT3, sT1, 4 * 4608), "s_add_u32 s%d, s%d, s%d" % (sWOF + 4, sT3, sT2),
      "s_lshl2_add_u32 s%d, s%d, s%d" % (sT2, sXCD, sRT), "s_lshl1_add_u32 s%d, s%d, s%d" % (sT2, sT2, sRH),
      "s_mul_i32 s%d, s%d, %d" % (sT3, sT2, 16 * 1152), "s_lshl_b32 s%d, s%d, 5" % (sT1, sT1), "s_add_u32 s%d, s%d, s%d" % (sOCOL + 1, sT1, sT3),
      "s_lshl2_add_u32 s%d, s%d, s%d" % (sT2, sT2, sKQ), "s_mul_i32 s%d, s%d, %d" % (sT3, sT2, 4 * 1152),
      "s_lshl_b32 s%d, s%d, 5" % (sT0, sT0), "s_add_u32 s%d, s%d, s%d" % (sOCOL, sT0, sT3),
      "s_add_u32 s%d, s%d, %d" % (sOCOL + 2, sOCOL, 1024 * 1152), "s_add_u32 s%d, s%d, %d" % (sOCOL + 3, sOCOL + 1, 1024 * 1152),
      "s_cmp_eq_u32 s%d, 0" % sKQ, "s_cselect_b32 s%d, s%d, 0" % (sSHF, sFIVE),
      "s_movk_i32 s%d, 272" % sC272, "s_movk_i32 s%d, 80" % sC80)


def wo_load(a, tiles, t16, t8, track=True, only=None):
    em = a.vmem if track else (lambda s, tag: a(s))
    for t in tiles:
        for m in range(4):
            if only in (None, m): em("buffer_load_dwordx4 %s, v%d, %s, s%d offen offset:%d sc1" % (vr(vWO + 18 * t + 4 * m, 4), t16, srd(sWS), sWOF + t, 1024 * m), "wo")
        if only in (None, 4): em("buffer_load_dwordx2 %s, v%d, %s, s%d offen sc1" % (vr(vWO + 18 * t + 16, 2), t8, srd(sWS), sWOF + t), "wo")


def o_instr(of, g):
    main, res = of
    if g < 4: return ["buffer_load_dwordx4 %s, v%d, %s, s%d offen offset:%d sc1" % (vr(main + 4 * g, 4), vOA, srd(sWS), sOL + g // 2, 2048 * (g % 2))]
    return ["buffer_load_dword v%d, v%d, %s, s%d offen offset:%d sc1" % (res + e, vOB, srd(sWS), sOL + 2, 128 * e) for e in range(2)]


def o_load(a, of, tag):
    for g in range(5):
        for x in o_instr(of, g): a.vmem(x, tag)


def p3_mfma(a, of, acc, t, first_wait):
    main, res = of
    top = a.uid("opass"); out = a.uid("odone")
    a("s_mov_b32 s%d, 31" % sPEND)
    first_wait()
    a("%s:" % top)
    redo = []
    for g in range(5):
        skip = a.uid("oskip"); rd = a.uid("oredo")
        a("s_bitcmp0_b32 s%d, %d" % (sPEND, g), "s_cbranch_scc1 %s" % skip)
        if g < 4: a("v_max3_u32 v%d, v%d, v%d, v%d" % (t, main + 4 * g, main + 4 * g + 1, main + 4 * g + 2), "v_max_u32 v%d, v%d, v%d" % (t, t, main + 4 * g + 3))
        else: a("v_max_u32 v%d, v%d, v%d" % (t, res, res + 1))
        a("v_cmp_eq_u32 vcc, -1, v%d" % t, "s_cbranch_vccnz %s" % rd, "s_bitset0_b32 s%d, %d" % (sPEND, g))
        for k in range(5):
            c = vr(acc + 4 * k, 4)
            if g < 4: a("v_mfma_f32_16x16x32_bf16 %s, %s, %s, %s" % (c, vr(vWO + 18 * k + 4 * g, 4), vr(main + 4 * g, 4), c))
            else: a("v_mfma_f32_16x16x16_bf16 %s, %s, %s, %s" % (c, vr(vWO + 18 * k + 16, 2), vr(res, 2), c))
        a("%s:" % skip)
        redo.append((rd, skip, g))
    a("s_cmp_lg_u32 s%d, 0" % sPEND, "s_cbranch_scc1 %s_again" % top, "%s:" % out)
    def cold():
        for rd, skip, g in redo: a("%s:" % rd, o_instr(of, g), "s_branch %s" % skip)
        a("%s_again:" % top)
        spin_guard(a, out)
        a("s_waitcnt vmcnt(0)", "s_branch %s" % top)
    return cold


def p3_mfma_all(a, of, acc, t, colds, part, ta):
    main, res = of
    top = a.uid("eall")
    a("%s:" % top, "v_max_u32 v%d, v%d, v%d" % (t, res, res + 1))
    for i in range(8): a("v_max3_u32 v%d, v%d, v%d, v%d" % (t, t, main + 2 * i, main + 2 * i + 1))
    a("v_cmp_eq_u32 vcc, -1, v%d" % t, "s_cbranch_vccnz %s_r" % top, "%s_k:" % top)
    def cold():
        a("%s_r:" % top); spin_guard(a, top + "_k"); a("s_sleep 2")
        for g in range(5): a(o_instr(of, g))
        a("s_waitcnt vmcnt(0)", "s_branch %s" % top)
    colds.append(cold)
    def mm(k, g):
        c = vr(acc + 4 * k, 4)
        if g < 4: a("v_mfma_f32_16x16x32_bf16 %s, %s, %s, %s" % (c, vr(vWO + 18 * k + 4 * g, 4), vr(main + 4 * g, 4), c))
        else: a("v_mfma_f32_16x16x16_bf16 %s, %s, %s, 0" % (c, vr(vWO + 18 * k + 16, 2), vr(res, 2)))
    scr = P3_OFF[part]
    wr = lambda k: a("ds_write_b128 v%d, %s offset:%d" % (ta + (k // 4), vr(acc + 4 * k, 4), scr + (64 * k if k < 4 else 0)))
    for k in (4, 0, 1, 2, 3): mm(k, 4)
    a("s_cmp_eq_u32 s%d, 0" % sFIVE, "s_nop 0", "s_cbranch_scc1 %s_5" % top)
    for g in range(4): mm(4, g)
    a("%s_5:" % top)
    for k in (0, 1):
        for g in range(4): mm(k, g)
    a("s_cbranch_scc1 %s_6" % top); wr(4); a("%s_6:" % top)
    for g in range(4): mm(2, g)
    wr(0)
    for g in range(3): mm(3, g)
    wr(1)
    mm(3, 3)
    a("s_nop 1"); wr(2); a("s_nop 4"); wr(3)


P3_ROW, P3_PART = 272, 16 * 272
P3_SH = 8 * P3_PART


def p3_addr(a, t):
    L = vLANE
    a("v_and_b32 v24, 15, v%d" % L, "v_lshrrev_b32 v%d, 4, v%d" % (t + 5, L),
      "s_lshl2_add_u32 s%d, s%d, s%d" % (sT0, sRH, sKQ), "s_mul_i32 s%d, s%d, %d" % (sT0, sT0, P3_PART), "s_add_u32 s%d, s%d, %d" % (sT0, sT0, P3_BASE),
      "v_lshl_add_u32 v%d, v%d, 4, s%d" % (t, t + 5, sT0), "v_mad_u32_u24 v%d, v24, s%d, v%d" % (t, sC272, t),
      "s_mul_i32 s%d, s%d, 1280" % (sT0, sKQ), "s_add_u32 s%d, s%d, %d" % (sT0, sT0, P3_BASE + P3_SH),
      "v_lshl_add_u32 v%d, v%d, 4, s%d" % (t + 1, t + 5, sT0), "v_mad_u32_u24 v%d, v24, s%d, v%d" % (t + 1, sC80, t + 1),
      "s_lshl4_add_u32 s%d, s%d, s%d" % (sT0, sRH, sKQ), "s_mul_i32 s%d, s%d, %d" % (sT0, sT0, 4 * P3_ROW), "s_add_u32 s%d, s%d, %d" % (sT0, sT0, P3_BASE),
      "v_lshl_add_u32 v%d, v24, 4, s%d" % (t + 2, sT0), "v_mad_u32_u24 v%d, v%d, s%d, v%d" % (t + 2, t + 5, sC272, t + 2),
      "v_mul_u32_u24 v%d, 1152, v%d" % (t + 4, t + 5), "v_lshl_add_u32 v%d, v24, 3, v%d" % (t + 4, t + 4),
      "v_lshrrev_b32 v24, 2, v%d" % L, "v_and_b32 v%d, 3, v%d" % (t + 5, L),
      "v_mul_u32_u24 v%d, 80, v24" % (t + 3), "v_lshl_add_u32 v%d, v%d, 4, v%d" % (t + 3, t + 5, t + 3), "v_add_u32 v%d, %d, v%d" % (t + 3, P3_BASE + P3_SH, t + 3),
      "v_mul_u32_u24 v24, 1152, v24", "v_lshl_add_u32 v%d, v%d, 3, v24" % (t + 5, t + 5))


def p3_finish(a, parts, t, d, mod):
    def fin(src, step, va, so):
        for p_ in parts:
            for k in range(4): a("ds_read_b128 %s, v%d offset:%d" % (vr(d[p_] + 4 * k, 4), src, P3_OFF[p_] + step * k))
        n = 4 * len(parts)
        for p_ in parts:
            x = d[p_]
            for k in range(1, 4):
                a("s_waitcnt lgkmcnt(%d)" % (n - k - 1))
                for i in (0, 2): a("v_pk_add_f32 %s, %s, %s" % (vr(x + i, 2), vr(x + i, 2), vr(x + 4 * k + i, 2)))
            n -= 4
            a("v_cvt_pk_bf16_f32 v%d, v%d, v%d" % (x, x, x + 1), "v_cvt_pk_bf16_f32 v%d, v%d, v%d" % (x + 1, x + 2, x + 3),
              "buffer_store_dwordx2 %s, v%d, %s, s%d offen%s" % (vr(x, 2), va, srd(sOUT), so + 2 * p_, mod))
    fin(t + 2, P3_PART, t + 4, sOCOL)
    skip = a.uid("no5r")
    a("s_cmp_eq_u32 s%d, 0" % sSHF, "s_cbranch_scc1 %s" % skip)
    d = [x + 16 * len(parts) for x in d]
    fin(t + 3, 1280, t + 5, sOCOL + 1)
    a("%s:" % skip)


def kd(name, lds=False):
    return """.amdhsa_kernel %s
  .amdhsa_next_free_vgpr 256
  .amdhsa_next_free_sgpr 96
  .amdhsa_accum_offset 256
  .amdhsa_group_segment_fixed_size 0
  .amdhsa_kernarg_size 48
  .amdhsa_user_sgpr_count 2
  .amdhsa_user_sgpr_kernarg_segment_ptr 1
  .amdhsa_system_sgpr_workgroup_id_x 1
  .amdhsa_float_denorm_mode_32 3
.end_amdhsa_kernel""" % name


def head(a, name):
    a(".globl %s" % name, ".p2align 12", ".p2align 8", ".type %s,@function" % name, "%s:" % name)


def plan2(wb, xb, pre="w0 x0 x1 x2 w1"):
    p = [(-1, t[0], int(t[1:])) for t in pre.split()]
    for b in range(18):
        p += [(b, "w", s) for s in range(2, 9) if wb[s - 2] == b]
        p += [(b, "x", s) for s in range(3, 18) if xb[s - 3] == b]
    return p


DEF = dict(plan=plan2([0, 0, 1, 2, 3, 4, 5], [0, 1, 2, 3, 4, 5, 6, 6, 7, 7, 8, 9, 9, 10, 10]), early0=1, npre=4, align=1, tag_step=4, flag_step=13, flag_pos='side0',
           poll_step=16, check_step=16, init_steps=(15, 3), e_sleep=0, pf_code=1, pf_x=1, idle_sleep=2, canary=1, per0=2, per1=1,
           nsolo=6, pos=[2, 6, 14, 18, 22, 26, 30],
           w0=[(0, 2), (0, 3)], kv1=['fill', (0, 1)], st1=(0, 3), w1=[(2, 0), (2, 3)], f1=[(2, 1), (2, 5), (2, 6)], pollL=[(5, 0), (6, 2)], kv2=[(6, 2), (6, 2)], w2=[(8, 2), (8, 3)], uswap=1,
           kv3=[(8, 5), (8, 6)], w3=[(13, 2), (16, 3)], wo=[(11, 2), (13, 3), 14, 26], poison=[(9, 2), (10, 2), (25, 5)],
           opoll=[(26, 2), [(30, 3), (30, 6)], [(27, 3), (29, 0)]], hint=(31, 3), h_sleep=0, e_pipe=0, i_pipe=0, h_pipe=0, warm=1, xlow=1, efin=1, outmod='',
           prio={(0, 4): 2, (2, 2): 1, (6, 3): 0, (7, 5): 3, (26, 0): 2, (30, 3): 1}, priox={(21, 0): 2})


sF0, sF1 = 57, 58
sIDLE = 83
OOB = 0x7ffff000
MASTER = 242


def spin_guard(a, out):
    a("s_add_u32 s%d, s%d, 1" % (sSPIN, sSPIN), "s_cmp_gt_u32 s%d, 0x80000" % sSPIN, "s_cbranch_scc1 %s" % out)


def tag_issue(a):
    a.vmem("buffer_load_dword v%d, off, %s, 0 sc1" % (vTAG, srd(sDBG)), "tag")


def tag_check(a, colds):
    lp = a.uid("tag")
    a.wait(vm="tag")
    a("%s:" % lp, "v_readfirstlane_b32 s%d, v%d" % (sTAG, vTAG), "s_cmp_eq_u32 s%d, 0" % sTAG, "s_cbranch_scc1 %s_r" % lp, "%s_k:" % lp)
    def cold():
        a("%s_r:" % lp); spin_guard(a, lp + "_k")
        a("s_sleep 4", "buffer_load_dword v%d, off, %s, 0 sc1" % (vTAG, srd(sDBG)), "s_waitcnt vmcnt(0)", "s_branch %s" % lp)
    colds.append(cold)


def flag_store(a, soff, level, track=True, z=None):
    if level == 0:
        a("s_mov_b64 exec, 0xff")
        x = "buffer_store_dwordx4 %s, v%d, %s, s%d offen sc1" % (vr(z, 4), vL16, srd(sWS), soff)
    else:
        a("s_mov_b64 exec, 1")
        x = "buffer_store_dword v%d, off, %s, s%d offset:%d sc1" % (vTAG, srd(sWS), soff, 16 * (level - 1))
    if track: a.vmem(x, "flag")
    else: a(x)
    a("s_mov_b64 exec, -1")


def poll(a, va, colds, sleep=2, off=0):
    x = "buffer_load_dword v%d, v%d, %s, 0 offen offset:%d sc1" % (vPD, va, srd(sWS), off)
    def issue(): a.vmem(x, "poll")
    def check():
        lp = a.uid("poll")
        a.wait(vm="poll")
        a("%s:" % lp, "v_cmp_ne_u32 vcc, s%d, v%d" % (sTAG, vPD), "s_cbranch_vccnz %s_r" % lp, "%s_k:" % lp)
        def cold():
            a("%s_r:" % lp); spin_guard(a, lp + "_k")
            if sleep: a("s_sleep %d" % sleep)
            a(x, "s_waitcnt vmcnt(0)", "s_branch %s" % lp)
        colds.append(cold)
    return issue, check


def fused_setup(a):
    L = vLANE
    a("s_lshr_b32 s%d, s%d, 1" % (sT0, sHEAD), "s_mul_i32 s%d, s%d, 36" % (sT0, sT0), "s_and_b32 s%d, s%d, 1" % (sT1, sHEAD),
      "s_lshl_b32 s%d, s%d, 4" % (sT1, sT1), "s_add_u32 s%d, s%d, s%d" % (sT0, sT0, sT1),
      "v_min_u32 v%d, 11, v%d" % (vL16, L),
      "v_and_b32 v%d, 1, v%d" % (vPA, vL16), "v_mul_u32_u24 v%d, 19, v%d" % (vPA, vPA), "v_add_u32 v%d, s%d, v%d" % (vPA, sT0, vPA),
      "v_lshrrev_b32 v%d, 2, v%d" % (vL8, vL16), "v_sub_u32 v%d, 2, v%d" % (vL8, vL8), "v_mul_u32_u24 v%d, 576, v%d" % (vL8, vL8),
      "v_add_u32 v%d, v%d, v%d" % (vPA, vPA, vL8), "v_lshrrev_b32 v%d, 7, v%d" % (vPA, vPA),
      "s_lshl1_add_u32 s%d, s%d, s%d" % (sT0, sP, sKH), "s_lshr_b32 s%d, s%d, 1" % (sT1, sP), "s_lshl1_add_u32 s%d, s%d, s%d" % (sT1, sQI, sT1),
      "v_and_b32 v%d, 2, v%d" % (vL16, vL16), "v_lshl_add_u32 v%d, v%d, 2, s%d" % (vL16, vL16, sT0), "v_mov_b32 v%d, s%d" % (vL8, sT1),
      "v_cmp_le_u32 vcc, 8, v%d" % L, "v_lshlrev_b32 v%d, 11, v%d" % (vPA, vPA), "v_add_u32 v%d, %d, v%d" % (vPA, F01, vPA),
      "v_cndmask_b32 v%d, v%d, v%d, vcc" % (vL16, vL16, vL8),
      "v_lshl_add_u32 v%d, v%d, 7, v%d" % (vPA, vL16, vPA),
      "v_lshlrev_b32 v%d, 4, v%d" % (vL16, L), "v_lshlrev_b32 v%d, 3, v%d" % (vL8, L), "v_add_u32 v%d, 4096, v%d" % (vL8, vL8),
      "s_cmp_eq_u32 s%d, 0" % sFIVE, "s_cselect_b32 s%d, 0x%x, s%d" % (sWOF + 4, OOB - 8192, sWOF + 4))
    late_setup(a); p3_addr(a, vP3)
    a("v_min_u32 v%d, 17, v%d" % (vPW, L), "v_lshlrev_b32 v%d, 2, v%d" % (vPW, vPW), "v_add_u32 v%d, %d, v%d" % (vPW, FW, vPW),
      "s_lshl2_add_u32 s%d, s%d, s%d" % (sT0, sXCD, sRT), "s_lshl2_add_u32 s%d, s%d, s%d" % (sT0, sT0, sKQ),
      "s_lshl_b32 s%d, s%d, 10" % (sT0, sT0), "s_add_u32 s%d, s%d, %d" % (sT0, sT0, FO),
      "v_min_u32 v%d, 7, v%d" % (vPO, L), "v_lshl_add_u32 v%d, v%d, 7, s%d" % (vPO, vPO, sT0),
      "s_lshl2_add_u32 s%d, s%d, s%d" % (sT0, sQI, sP), "s_lshl_b32 s%d, s%d, 5" % (sT0, sT0),
      "s_add_u32 s%d, s%d, s%d" % (sT0, sT0, sHEAD), "s_lshl_b32 s%d, s%d, 7" % (sT0, sT0),
      "s_add_u32 s%d, s%d, %d" % (sT0, sT0, FO), "s_cmp_eq_u32 s%d, 0" % sKH, "s_cselect_b32 s%d, 0x40000000, s%d" % (sPF, sT0))


def tlb_touch(a, cfg):
    l = a.uid("tlb")
    a("s_cmp_lg_u32 s%d, 7" % sWAVE, "s_cbranch_scc1 %s" % l,
      "v_and_b32 v2, 7, v%d" % vLANE, "v_mul_u32_u24 v2, %d, v2" % (4 * PITCH), "v_add_u32 v2, %d, v2" % (PITCH - 128),
      "v_and_b32 v3, 3, v%d" % vLANE, "v_mul_u32_u24 v3, %d, v3" % (16 * OTILE), "v_add_u32 v3, %d, v3" % (OBASE + OTILE - 128),
      "v_cmp_gt_u32 vcc, 8, v%d" % vLANE, "v_mov_b32 v4, %d" % (FW + 1024), "v_cmp_gt_u32 s[%d:%d], 12, v%d" % (sSAVE, sSAVE + 1, vLANE),
      "v_cndmask_b32 v2, v3, v2, vcc", "s_nop 0", "v_cndmask_b32 v2, v4, v2, s[%d:%d]" % (sSAVE, sSAVE + 1),
      "buffer_load_dword v44, v2, %s, 0 offen" % srd(sWS),
      "v_and_b32 v2, 3, v%d" % vLANE, "v_mul_u32_u24 v2, %d, v2" % (786432 - 128),
      "buffer_load_dword v45, v2, %s, 0 offen" % srd(sOUT), "%s:" % l)


vWW, vWC = 158, 159


def word_setup(a):
    a("s_and_b32 s%d, s%d, 1" % (sT0, sHEAD), "s_mul_i32 s%d, s%d, %d" % (sT0, sT0, (-2052) & 0xffffffff), "s_add_u32 s%d, s%d, 2052" % (sT0, sT0),
      "s_lshl3_add_u32 s%d, s%d, s%d" % (sT1, sWAVE, sT0), "v_mov_b32 v%d, s%d" % (vWW, sT1),
      "s_lshl_b32 s%d, s%d, 5" % (sT1, sKH), "s_add_u32 s%d, s%d, s%d" % (sT1, sT1, sT0),
      "v_and_b32 v%d, 3, v%d" % (vWC, vLANE), "v_lshl_add_u32 v%d, v%d, 3, s%d" % (vWC, vWC, sT1))


def word_set(a, stage, track=True, twice=False):
    a("s_mov_b64 exec, 1")
    x = "ds_write_b32 v%d, v0 offset:%d" % (vWW, 64 * stage)
    if twice: x = "ds_write2_b32 v%d, v0, v0 offset0:%d offset1:%d" % (vWW, 16 * stage, 16 * stage + 16)
    if track: a.lds(x)
    else: a(x)
    a("s_mov_b64 exec, -1")


def word_check(a, offs, colds, t=vT):
    xs = ["ds_read_b32 v%d, v%d offset:%d" % (t + k, vWC, o) for k, o in enumerate(offs)]
    def issue():
        for x in xs: a.lds(x, "word")
    def check(track=True):
        l = a.uid("word")
        if track: a.wait(lg="word")
        a("%s:" % l)
        for k in range(len(offs)): a("v_cmp_ne_u32 vcc, s%d, v%d" % (sTAG, t + k), "s_cbranch_vccnz %s_r" % l)
        a("%s_k:" % l)
        def cold():
            a("%s_r:" % l); spin_guard(a, l + "_k"); a("s_sleep 1", xs, "s_waitcnt lgkmcnt(0)", "s_branch %s" % l)
        colds.append(cold)
    return issue, check, xs


def gen_fused(cfg):
    a = Asm()
    name = NAME + "_kernel"
    head(a, name)
    prologue(a, "L_exit"); a(";STAMP 0")
    a("s_mov_b32 s%d, 0" % sSPIN, "s_mov_b32 s%d, 0x%x" % (sF1, OOB))
    a("s_mov_b32 s%d, 0" % sIDLE, "s_mov_b32 s%d, 0x%x" % (sF0, OOB))
    p1_roles(a, "L_idle")
    def setup():
        a("L_setup:")
        p2_setup(a); p3_setup(a); fused_setup(a)
        a("s_cmp_lg_u32 s%d, 0" % sIDLE, "s_cbranch_scc1 L_idle2")
        a("s_lshl_b32 s%d, s%d, 11" % (sT0, sLINE), "s_lshl_b32 s%d, s%d, 7" % (sT1, sG), "s_add_u32 s%d, s%d, s%d" % (sT0, sT0, sT1),
          "s_add_u32 s%d, s%d, %d" % (sT0, sT0, F01),
          "s_cmp_eq_u32 s%d, 0" % sWAVE, "s_cselect_b32 s%d, s%d, s%d" % (sF1, sT0, sF1), "v_mov_b32 v%d, 0" % vT)
    p1_head(a, cfg, {"setup": setup, "setup2": lambda: flag_store(a, sF1, 0, z=vT)})
    a("s_cmp_ge_u32 s%d, 9" % sLINE, "s_cbranch_scc1 L_p1v", "s_branch L_p1q")
    vm_head = list(a.vm)
    a("L_idle:"); a.vm = []; a.lg = []
    a("s_waitcnt lgkmcnt(0)")
    a("s_cmp_lg_u32 s2, %d" % MASTER, "s_cbranch_scc1 L_nomaster", "s_cmp_lg_u32 s%d, 0" % sWAVE, "s_cbranch_scc1 L_nomaster",
      "s_mov_b32 s%d, %d" % (sT0, FEPOCH), "buffer_load_dword v2, off, %s, s%d sc1" % (srd(sWS), sT0), "s_waitcnt vmcnt(0)",
      "v_readfirstlane_b32 s%d, v2" % sT1, "s_mul_i32 s%d, s%d, 0x41c64e6d" % (sT1, sT1), "s_add_u32 s%d, s%d, 12345" % (sT1, sT1),
      "s_cmp_eq_u32 s%d, 0" % sT1, "s_cselect_b32 s%d, 12345, s%d" % (sT1, sT1), "v_mov_b32 v2, s%d" % sT1, "s_mov_b64 exec, 1",
      "buffer_store_dword v2, off, %s, 0 sc1" % srd(sDBG), "buffer_store_dword v2, off, %s, s%d sc1" % (srd(sWS), sT0), "s_mov_b64 exec, -1",
      "L_nomaster:")
    if cfg["pf_code"]:
        a("s_getpc_b64 s[%d:%d]" % (sRET, sRET + 1), "L_pc:", "s_sub_u32 s%d, s%d, L_pc-%s" % (sRET, sRET, name), "s_subb_u32 s%d, s%d, 0" % (sRET + 1, sRET + 1),
          "s_cmp_lg_u32 s%d, 7" % sWAVE, "s_cbranch_scc1 L_nopf",
          "s_and_b32 s%d, s%d, 3" % (sT0, sJ), "v_lshl_add_u32 v2, v%d, 2, s%d" % (vLANE, sT0),
          "v_lshlrev_b32 v2, 7, v2", "v_min_u32 v2, L_codeend-%s-4, v2" % name, "global_load_dword v47, v2, s[%d:%d]" % (sRET, sRET + 1), "L_nopf:")
    if cfg["pf_x"]:
        l = a.uid("pf")
        a("s_and_b32 s%d, s%d, 3" % (sT0, sJ), "s_cmp_ge_u32 s%d, 4" % sWAVE, "s_cbranch_scc1 %s" % l,
          "s_lshr_b32 s%d, s%d, 1" % (sT1, sWAVE), "s_lshl1_add_u32 s%d, s%d, s%d" % (sT1, sT0, sT1),
          "s_lshr_b32 s%d, s%d, 2" % (sT2, sXCD), "s_mul_i32 s%d, s%d, 7" % (sT2, sT2), "s_and_b32 s%d, s%d, 2" % (sT3, sXCD),
          "s_lshl1_add_u32 s%d, s%d, s%d" % (sT3, sT3, sT1),
          "s_sub_u32 s%d, s%d, 5" % (sT4, sT3), "s_add_u32 s%d, s%d, 4" % (sT3, sT3), "s_cmp_lt_u32 s%d, 5" % sT1,
          "s_cselect_b32 s%d, 3, s%d" % (sT4, sT4), "s_cselect_b32 s%d, s%d, 8" % (sT3, sT3), "s_add_u32 s%d, s%d, s%d" % (sT2, sT2, sT4),
          "s_mul_i32 s%d, s%d, 3" % (sT4, sT2), "s_add_u32 s%d, s%d, s%d" % (sT3, sT3, sT4))
        mod9(a, sT3, sT4)
        a("s_mul_i32 s%d, s%d, %d" % (sT3, sT3, 64 * 3456), "s_and_b32 s%d, s%d, 1" % (sT4, sWAVE), "s_lshl1_add_u32 s%d, s%d, s%d" % (sT2, sT2, sT4),
          "s_lshl_b32 s%d, s%d, 7" % (sT2, sT2), "s_add_u32 s%d, s%d, s%d" % (sT3, sT3, sT2),
          "v_mul_u32_u24 v2, 3456, v%d" % vLANE, "buffer_load_dword v47, v2, %s, s%d offen" % (srd(sW), sT3), "%s:" % l)
        a("s_barrier",
          "s_and_b32 s%d, s%d, 6" % (sT1, sXCD), "s_lshl1_add_u32 s%d, s%d, s%d" % (sT0, sT1, sT0), "s_and_b32 s%d, s%d, 1" % (sT1, sXCD),
          "s_lshl4_add_u32 s%d, s%d, s%d" % (sT0, sT1, sT0), "s_add_u32 s%d, s%d, 32" % (sT0, sT0), "s_mul_i32 s%d, s%d, %d" % (sT0, sT0, 32 * 1152),
          "s_cmp_ge_u32 s%d, 5" % sWAVE, "s_cselect_b32 s%d, 0x40000000, s%d" % (sT0, sT0),
          "v_min_u32 v2, 287, v0", "v_lshlrev_b32 v2, 7, v2", "buffer_load_dword v47, v2, %s, s%d offen" % (srd(sX), sT0))
    a("s_mov_b64 %s, %s" % (sr(sW, 2), sr(sWO, 2)), "s_mov_b32 s%d, 663552" % (sW + 2))
    a("s_mov_b32 s%d, 1" % sIDLE, "s_branch L_setup")
    def idle2():
      tag_issue(a); p2_init(a)
      wo_role(a, "L_nowo")
      a("s_lshl_b32 s%d, s%d, 2" % (sT0, sLINE), "s_add_u32 s%d, s%d, %d" % (sT0, sT0, FW), "s_cmp_eq_u32 s%d, 0" % sWAVE, "s_cselect_b32 s%d, s%d, s%d" % (sF0, sT0, sF0))
      a("L_nowo:"); a.vm = ["tag"]; a.lg = []
    sF, sPo = cfg["flag_step"], cfg["poll_step"]
    colds = []
    def first_loads(n):
        l = a.uid("fl")
        keep = list(a.vm)
        if n == 0: q_load(a, 0)
        a("s_cmp_%s_u32 s%d, 2" % (("ge", "lt")[n], sP), "s_cbranch_scc1 %s" % l)
        kv_dma(a, 0)
        a.vm = keep
        a("%s:" % l)
    for isv in (False, True):
        if cfg["align"]: a(".p2align 12")
        a("L_p1v:" if isv else "L_p1q:")
        a.vm = list(vm_head); a.lg = []
        hooks = {}
        hooks[("side", cfg["tag_step"])] = [lambda: tag_issue(a)]
        hooks[("step", 9)] = lambda: tag_check(a, colds)
        hooks[("waitfor", sF)] = [("st", 0)]
        hooks[(cfg["flag_pos"], sF)] = [lambda: flag_store(a, sF1, 1)]
        pi, pc = poll(a, vPA, colds, sleep=cfg["e_sleep"])
        tmp = Asm(); p2_init(tmp)
        ini = [x.strip() for x in tmp.l]
        st0, nst = cfg["init_steps"]
        n = -(-len(ini) // nst)
        for k in range(nst): hooks.setdefault(("side", st0 + k), []).extend((lambda x=x: a(x)) for x in ini[k * n:(k + 1) * n])
        if sPo < 18: hooks.setdefault(("side", sPo), []).insert(0, pi)
        else: hooks["pre_epi1"] = pi
        cs = cfg["check_step"]
        hooks[("step", cs)] = lambda: (pc(), a(";STAMP 8"))
        hooks[("bar", cs + 1)] = lambda: first_loads(0)
        hooks["mid_epi1"] = lambda stores: (a("s_add_u32 s%d, s%d, %d" % (sST2, sST, 256 if isv else 2048)), first_loads(1))
        p1_body(a, isv, cfg, hooks)
        a("s_branch L_attn")
    a("L_idle2:"); a.vm = []; a.lg = []
    idle2()
    pi, pc = poll(a, vPA, colds, sleep=cfg["idle_sleep"])
    tag_check(a, colds); a(";STAMP 16")
    if cfg["canary"]:
        a("s_mov_b64 exec, 0x100"); pi(); pc(); a("s_mov_b64 exec, -1")
        pi, pc = poll(a, vPA, colds, sleep=cfg["e_sleep"])
    pi(); pc(); a(";STAMP 8", "s_barrier"); first_loads(0); a("s_barrier"); first_loads(1)
    a("s_mov_b32 s%d, 0x40000000" % sST, "s_mov_b32 s%d, 0x40000000" % sST2, "v_mov_b32 v%d, 0" % vSTA)
    a("L_attn:"); a.vm = [("kv", 0)]; a.lg = []
    slows = []
    def slow(part, back, done):
        lab = a.uid("slowp"); slows.append((part, lab, back, done)); a("s_branch %s" % lab)
    ev = {}
    skip = cfg.get("skip", "")
    def at(k, f, name=None):
        if name and name in skip.split(): return
        g = ev.get(k)
        ev[k] = f if g is None else (lambda: (g(), f()))
    def role(kh, f):
        def g():
            l = a.uid("role")
            a("s_cmp_lg_u32 s%d, %d" % (sKH, kh), "s_cbranch_scc1 %s" % l)
            keep = list(a.vm); f(); a.vm = keep
            a("%s:" % l)
        return g
    st1 = ["buffer_store_dwordx4 %s, v%d, %s, s%d offen sc1" % (vr(vACC[1] + 8 * n, 4), vSTA, srd(sWS), (sST, sST2)[n]) for n in range(2)]
    at(cfg["st1"], lambda: [a.vmem(x, "st1") for x in st1])
    def b0():
        l = a.uid("b0")
        a("s_setprio 3", "s_waitcnt vmcnt(5)", "s_cmp_ge_u32 s%d, 2" % sP, "s_cbranch_scc1 %s" % l, "s_waitcnt vmcnt(0)", "%s:" % l, "s_barrier", ";STAMP 6")
    at(("pre", 0), b0)
    def stage(st, pos_set, pos_rd, pos_chk, offs=None, after=None):
        wi, wc, xs = word_check(a, offs or [64 * st], colds)
        at(pos_set, lambda: a.wait(vm=("kv", st)), "kv")
        at(pos_set, lambda: word_set(a, st), "word")
        at(pos_rd, wi, "word")
        at(pos_chk, wc, "word")
        if after: at(pos_chk, after)
    def spread(pos, fs):
        for p_, f in zip(pos, fs): at(p_, f, "kv")
    spread(cfg["kv1"], [lambda: kv_dma(a, 1, "k"), lambda: kv_dma(a, 1, "v")])
    stage(0, cfg["w0"][0], cfg["w0"][1], ("pre", 2))
    stage(1, cfg["w1"][0], cfg["w1"][1], ("pre", 4))
    wi, wc, xs = word_check(a, [CHUNK, CHUNK + 32], colds)
    at(cfg["f1"][0], lambda: (a.wait(vm="st1"), word_set(a, CHUNK // 64)))
    at(cfg["f1"][1], wi); at(cfg["f1"][2], role(0, lambda wc=wc: (a("s_waitcnt lgkmcnt(0)"), wc(track=False), flag_store(a, sF1, 2), flag_store(a, sF0, 1))))
    pi, pc = poll(a, vPA, colds, off=16)
    at(cfg["pollL"][0], pi, "pollL")
    at(cfg["pollL"][1], pc, "pollL")
    at(cfg["pollL"][1], lambda: (a(";STAMP 9"), q_load(a, 1)))
    spread(cfg["kv2"], [lambda: kv_dma(a, 2, "k"), lambda: kv_dma(a, 2, "v")])
    ev["ql"] = lambda: a.wait(vm=("q", 1))
    stage(2, cfg["w2"][0], cfg["w2"][1], ("pre", 8))
    spread(cfg["kv3"], [lambda: kv_dma(a, 3, "k"), lambda: kv_dma(a, 3, "v")])
    assert cfg["w3"][0] >= (13, 0)
    stage(3, cfg["w3"][0], cfg["w3"][1], ("pre", 12))
    pi2, pc2 = poll(a, vPW, colds)
    at(cfg["wo"][0], pi2, "wo")
    at(cfg["wo"][1], pc2, "wo")
    u0 = cfg["wo"][2]
    k = 0
    for t in range(5):
        for m in range(5):
            if t == 4 and m == 0: u0, k = cfg["wo"][3], 0
            at((u0 + k // 3, (2, 3, 5)[k % 3]), lambda t=t, m=m: wo_load(a, [t], vL16, vL8, only=m), "wo")
            k += 1
    ns = cfg["nsolo"]
    assert ns == 6
    ue = 32 - ns - 1
    def send_e():
        l = a.uid("se")
        a("s_cmp_lg_u32 s%d, 0" % sKH, "s_cbranch_scc1 %s" % l); send_partial(a, 0); a("s_branch %s_e" % l, "%s:" % l)
        finalize(a, 0, slow, colds); a("%s_e:" % l)
        a("v_subrev_u32 v%d, %d, v%d" % (vSA, LDS_SPARE - 12 * CHUNK, vSA))
        word_set(a, 4, twice=True)
    at((ue, 3), send_e, "fin")
    at(cfg["poison"][1], lambda: poison(a), "fin")
    at(cfg["poison"][1], lambda: (a("v_mov_b32 v%d, 0" % vT), flag_store(a, sPF, 0, z=vT)))
    at(cfg["poison"][2], lambda: (a.wait(vm="poison"), flag_store(a, sPF, 1)))
    ofs = [(vO[0], vQ[0]), (vS[1], vS[1] + 16)]
    pi3, pc3 = poll(a, vPO, colds)
    for kh in range(2):
        at(cfg["opoll"][1 + kh][0], role(kh, pi3))
        at(cfg["opoll"][1 + kh][1], role(kh, lambda: (a("s_waitcnt vmcnt(0)"), pc3(), o_load(a, ofs[0], "oe"))))
    assert cfg["hint"] > cfg["opoll"][2][1]
    acc = [vV, vS[0]]
    ta = vP3
    at(cfg["hint"], lambda: flag_store(a, sPF, 2))
    wi, wc, xs = word_check(a, [256, 288], colds, t=vQ[0] + 2)
    at((31, 3), wi)
    at((31, 5), lambda: [a.lds(x) for x in fin_reads(1)])
    p2_main(a, cfg, ev)
    a(";STAMP 7")
    if cfg["hint"] == (32, 0): flag_store(a, sPF, 2)
    wc()
    pi4, pc4 = poll(a, vPO, colds, sleep=cfg["h_sleep"], off=16)
    a("s_cmp_lg_u32 s%d, 0" % sKH, "s_cbranch_scc1 L_fl", "s_nop 5")
    send_partial(a, 1)
    if cfg["xlow"]: a("s_setprio 0")
    a("s_waitcnt vmcnt(0)", "s_branch L_tail", "L_fl:")
    finalize(a, 1, slow, colds, prefetched=True)
    if cfg["hint"] == (33, 0): flag_store(a, sPF, 2)
    a("s_waitcnt vmcnt(3)")
    a("L_tail:", ";STAMP 10")
    p3_mfma_all(a, ofs[0], acc[0], vT, colds, 0, ta)
    for i in range(3): a("s_add_u32 s%d, s%d, %d" % (sOL + i, sOL + i, 32 * OTILE))
    if cfg["efin"]: word_set(a, 6)
    a(";STAMP 11")
    a.vm = []; a.lg = []
    a("s_cmp_lg_u32 s%d, 0" % sKH, "s_cbranch_scc1 L_hy", "s_setprio 0")
    pi4(); pc4(); word_set(a, 7)
    a("s_branch L_hx", "L_hy:", "v_xor_b32 v%d, 48, v%d" % (vT + 1, vWW), "L_hy2:", "ds_read_b32 v%d, v%d offset:448" % (vT, vT + 1), "s_waitcnt lgkmcnt(0)",
      "v_cmp_ne_u32 vcc, s%d, v%d" % (sTAG, vT), "s_cbranch_vccnz L_hy3", "L_hx:")
    colds.append(lambda: (a("L_hy3:"), spin_guard(a, "L_hx"), a("s_sleep 1", "s_branch L_hy2")))
    a(";STAMP 13")
    a.vm = []; a.lg = []
    dd = [vO[0], vO[0] + 16]
    if cfg["efin"]:
        wi, wc, xs = word_check(a, [384], colds)
        wi()
        o_load(a, ofs[1], "ol")
        wc()
        p3_finish(a, [0], ta, dd, cfg["outmod"])
        a("s_waitcnt vmcnt(1)")
    else:
        o_load(a, ofs[1], "ol")
        a("s_waitcnt vmcnt(0)")
    a(";STAMP 12")
    p3_mfma_all(a, ofs[1], acc[1], vT, colds, 1, ta)
    a(";STAMP 14")
    a("s_waitcnt lgkmcnt(0)", "s_barrier")
    p3_finish(a, [1] if cfg["efin"] else [1, 0], ta, [vWO + 2, vWO + 18], cfg["outmod"])
    a(";STAMP 15", ";STAMPWAIT", ";STAMP 5", ";STAMPEND", "L_exit:", "s_endpgm")
    k = 0
    while k < len(colds):
        colds[k](); k += 1
    def reload():
        wo_load(a, range(5), vL16, vL8, track=False); a("s_waitcnt vmcnt(0)")
    for part, lab, back, done in slows: slow_path(a, part, lab, back, done, reload)
    a("L_codeend:")
    hdr = ["; @launch grid=(256,1,1) block=(512,1,1) lds=%d" % LDS_TOTAL]
    return finish(a, hdr, [name])


def finish(a, hdr, names):
    errs = lint(a.l)
    for e in errs: print("HAZARD", e, file=sys.stderr)
    out = hdr + ['.amdgcn_target "amdgcn-amd-amdhsa--gfx950"', ".text"] + a.l + ['.section .rodata,"a"']
    for n in names: out += [".p2align 6", kd(n)]
    return "\n".join(out) + "\n"


if __name__ == "__main__":
    mode = sys.argv[1] if len(sys.argv) > 1 else "split"
    out = sys.argv[2] if len(sys.argv) > 2 else "cdna_kernels/%s.s" % NAME
    cfg = dict(DEF)
    for kv in sys.argv[3:]:
        k, v = kv.split("=", 1); cfg[k] = eval(v)
    txt = {"fused": gen_fused}[mode](cfg)
    open(out, "w").write(txt)
    print("wrote", out, len(txt.split("\n")), "lines")
```

```python
import sys, struct, math
from hazard import lint

NAME = "standalone__mha_block__prompt"

PITCH = 221184 + 128
SEC = 73728
OBASE = 32 * PITCH
OTILE = 36864 + 128
WOBASE = OBASE + 64 * OTILE
FBASE = WOBASE + 36 * 4 * 4608
F01 = FBASE
FRND = 27 * 8 * 128
FW = FBASE + 57344
FEPOCH = FW + 512
FO = FBASE + 65536
WS_SIZE = FO + 131072
CHUNK = 4864
LDS_SPARE = 32 * CHUNK
LDS_TOTAL = 163840
SCALE = struct.unpack("<I", struct.pack("<f", math.log2(math.e) / math.sqrt(18.0)))[0]

sX, sW, sWO, sOUT, sWS, sDBG = 4, 8, 12, 16, 20, 24
sWAVE, sXCD, sJ = 28, 29, 30
sTAG = 31
sLINE, sG, sSEC = 32, 33, 34
sXOFF, sWOFF, sM0X, sSCALE, sM0W, sST = 35, 36, 37, 38, 39, 40
sHEAD, sQI, sKH, sP = 41, 42, 43, 44
sVMASK = 46
sDMASK = 48
sCH, sQOFF = 50, 51
sCM = 45
sST2 = 39
sRT, sCB, sKQ, sRH = 52, 53, 54, 55
sFIVE = 56
sT0, sT1, sT2, sT3, sT4, sT5 = 60, 61, 62, 63, 64, 65
sRET = 66
sSPIN = 68
sWOF = 70
sOCOL = 75
sLOOP = 79
sSHF, sC272, sC80 = 69, 82, 59
sSAVE = 80

def srd(s): return "s[%d:%d]" % (s, s + 3)
def vr(a, n=1): return "v%d" % a if n == 1 else "v[%d:%d]" % (a, a + n - 1)
def sr(a, n=1): return "s%d" % a if n == 1 else "s[%d:%d]" % (a, a + n - 1)

vLANE = 1
vQ = [2, 8]
vIDX = 14
vAK, vAR, vAV = 15, 16, 17
vDMA = 18
vQA, vQR = 22, 23
vT = 24
vSA, vSB, vOA, vOB = 26, 27, 28, 29
vP3 = 30
vPW, vPO = 36, 37
vPA, vPD, vL16, vL8 = 38, 39, 40, 41
vTAG = 0
vAK1 = 47
vXS = 8
vWS = 9
vXR = 11
vWR = 42
vSTA = 46
vACC = [48, 64]
vXF = [80, 96]
vWF = 112
vWO = 42
vV = 132
vK = 148
vKR = 156
vO = [160, 176]
vS = [192, 224]


class Asm:
    def __init__(self):
        self.l = []
        self.vm = []
        self.lg = []
        self.n = 0
        self.clock = 0
        self.lgt = []
        self.age = None

    def __call__(self, *lines):
        for s in lines:
            if isinstance(s, (list, tuple)):
                self(*s)
            elif s.endswith(":") or s.startswith((".", ";")):
                self.l.append(s)
            else:
                self.l.append("    " + s)

    def uid(self, p):
        self.n += 1
        return "L_%s_%d" % (p, self.n)

    def vmem(self, s, tag):
        self(s); self.vm.append(tag)
        assert len(self.vm) <= 63

    def lds(self, s, tag=None):
        self(s); self.lg.append(tag); self.lgt.append(self.clock)

    def _cnt(self, q, tags):
        if not isinstance(tags, (list, set)): tags = [tags]
        last = max([k for k, t in enumerate(q) if t in tags], default=-1)
        return None if last < 0 else len(q) - 1 - last

    def wait(self, vm=None, lg=None):
        parts = []
        if vm is not None:
            n = 0 if vm == "all" else self._cnt(self.vm, vm)
            if n is not None:
                parts.append("vmcnt(%d)" % n); self.vm = self.vm[len(self.vm) - n:]
        if lg is not None:
            n = 0 if lg == "all" else self._cnt(self.lg, lg)
            if n is not None:
                if self.age is not None:
                    while n > 0 and self.clock - self.lgt[len(self.lgt) - n] >= self.age: n -= 1
                n = min(n, 15)
                parts.append("lgkmcnt(%d)" % n); self.lg = self.lg[len(self.lg) - n:]
        if parts: self("s_waitcnt " + " ".join(parts))


def prologue(a, endlabel):
    a(";STAMPINIT", ";STAMP 3", "s_cmp_ge_u32 s2, 256", "s_cbranch_scc1 %s" % endlabel)
    for k, s in enumerate((sX, sW, sWO, sOUT, sDBG, sWS)):
        a("s_load_dwordx2 %s, s[0:1], %d" % (sr(s, 2), 8 * k))
    for s, n in ((sX, 2359296), (sW, 1990656), (sWO, 663552), (sOUT, 2359296), (sDBG, 256), (sWS, WS_SIZE)):
        a("s_mov_b32 s%d, %d" % (s + 2, n), "s_mov_b32 s%d, 0x00020000" % (s + 3))
    a("v_lshrrev_b32 v2, 6, v0", "v_and_b32 v%d, 63, v0" % vLANE, "v_readfirstlane_b32 s%d, v2" % sWAVE,
      "s_and_b32 s%d, s2, 7" % sXCD, "s_lshr_b32 s%d, s2, 3" % sJ)


def p1_roles(a, idle):
    a("s_cmp_ge_u32 s%d, 28" % sJ, "s_cbranch_scc1 %s" % idle,
      "s_lshr_b32 s%d, s%d, 1" % (sT1, sXCD), "s_mul_i32 s%d, s%d, 28" % (sT1, sT1), "s_add_u32 s%d, s%d, s%d" % (sT1, sT1, sJ),
      "s_lshr_b32 s%d, s%d, 3" % (sLINE, sT1), "s_and_b32 s%d, s%d, 7" % (sT5, sT1),
      "s_and_b32 s%d, s%d, 1" % (sG, sXCD), "s_lshl3_add_u32 s%d, s%d, s%d" % (sG, sG, sT5))


XBASE = 98304
def xslot(s): return XBASE + 8192 * (s % 8)
def wslot(s): return 16384 * (s % 6)


def mod9(a, d, t):
    a("s_mul_i32 s%d, s%d, 57" % (t, d), "s_lshr_b32 s%d, s%d, 9" % (t, t), "s_mul_i32 s%d, s%d, 9" % (t, t), "s_sub_u32 s%d, s%d, s%d" % (d, d, t))


def p1_issue(a, kind, s):
    if kind == "w":
        def f0():
            a("s_add_u32 m0, s%d, %d" % (sM0W, wslot(s)))
            if s: a("s_add_u32 s%d, s%d, %d" % (sWOFF, sWOFF, 64 * 3456), "s_cmp_eq_u32 s%d, %d" % (sWOFF, 576 * 3456), "s_cselect_b32 s%d, 0, s%d" % (sWOFF, sWOFF))
            else: a("s_nop 0")
            a.vmem("buffer_load_dwordx4 v%d, %s, s%d offen lds" % (vWS, srd(sW), sWOFF), ("w", s))
        def f1():
            a.vmem("buffer_load_dwordx4 v%d, %s, s%d offen offset:1024 lds" % (vWS + 1, srd(sW), sWOFF), ("w", s))
        return [f0, f1]
    def fx():
        a("s_add_u32 m0, s%d, %d" % (sM0X, xslot(s)))
        if s: a("s_add_u32 s%d, s%d, 128" % (sXOFF, sXOFF), "s_cmpk_eq_u32 s%d, 1152" % sXOFF, "s_cselect_b32 s%d, 0, s%d" % (sXOFF, sXOFF))
        else: a("s_nop 0")
        if s == 9: a("v_add_u32 v%d, %d, v%d" % (vXS, 1024 * 1152, vXS))
        a.vmem("buffer_load_dwordx4 v%d, %s, s%d offen lds" % (vXS, srd(sX), sXOFF), ("d", s))
    return [fx]


def p1_head(a, cfg, hooks):
    L = vLANE
    t0, t1, t2, t3 = 38, 39, 40, 41
    a("s_and_b32 s%d, s%d, 1" % (sT0, sWAVE), "s_lshl_b32 s%d, s%d, 2" % (sT1, sT0),
      "v_lshrrev_b32 v%d, 4, v%d" % (t0, L), "v_add_u32 v%d, s%d, v%d" % (t1, sT1, t0),
      "v_and_b32 v%d, 15, v%d" % (t2, L), "v_lshlrev_b32 v%d, 1, v%d" % (t3, t1), "v_xor_b32 v%d, v%d, v%d" % (t2, t2, t3),
      "s_mul_i32 s%d, s%d, %d" % (sT2, sWAVE, 8 * 3456), "s_lshl_b32 s%d, s%d, 8" % (sT3, sLINE), "s_add_u32 s%d, s%d, s%d" % (sT2, sT2, sT3),
      "v_mul_u32_u24 v%d, 3456, v%d" % (t0, t0), "v_lshl_add_u32 v%d, v%d, 4, s%d" % (vWS, t2, sT2),
      "s_cmp_eq_u32 s%d, 13" % sLINE, "s_cselect_b32 s%d, 8, 0" % sT3, "v_and_b32 v%d, s%d, v%d" % (t2, sT3, t2),
      "v_lshl_add_u32 v%d, v%d, 26, v%d" % (t0, t2, t0), "v_add_u32 v%d, v%d, v%d" % (vWS, vWS, t0),
      "v_add_u32 v%d, %d, v%d" % (vWS + 1, 4 * 3456 - 1024, vWS))
    a("s_mul_i32 s%d, s%d, 3" % (sT2, sLINE), "s_add_u32 s%d, s%d, s%d" % (sT2, sT2, sT5))
    mod9(a, sT2, sT3)
    a("s_lshl_b32 s%d, s%d, 7" % (sXOFF, sT2), "s_mul_i32 s%d, s%d, %d" % (sWOFF, sT2, 64 * 3456),
      "s_lshl_b32 s%d, s%d, 10" % (sM0X, sWAVE), "s_lshl_b32 s%d, s%d, 11" % (sM0W, sWAVE))
    a("v_lshrrev_b32 v%d, 3, v%d" % (t0, L), "v_and_b32 v%d, 7, v%d" % (t2, L), "v_xor_b32 v%d, v%d, v%d" % (t2, t2, t1),
      "s_cmp_ge_u32 s%d, 9" % sLINE, "s_cselect_b32 s%d, 2, 0" % sT3, "s_cselect_b32 s%d, 4, 7" % sT4,
      "s_bfe_u32 s%d, s%d, 0x10001" % (sT1, sWAVE), "s_lshl_b32 s%d, s%d, s%d" % (sT1, sT1, sT3),
      "s_lshl4_add_u32 s%d, s%d, s%d" % (sT1, sT0, sT1), "s_and_b32 s%d, s%d, 4" % (sT2, sWAVE), "s_lshl3_add_u32 s%d, s%d, s%d" % (sT1, sT2, sT1),
      "s_lshl_b32 s%d, s%d, 6" % (sT2, sG), "s_add_u32 s%d, s%d, s%d" % (sT1, sT1, sT2),
      "v_and_b32 v%d, s%d, v%d" % (t3, sT4, t0), "v_add3_u32 v%d, v%d, v%d, s%d" % (t3, t3, t0, sT1),
      "v_mul_u32_u24 v%d, 1152, v%d" % (t3, t3), "v_lshl_add_u32 v%d, v%d, 4, v%d" % (vXS, t2, t3))
    a("s_waitcnt lgkmcnt(0)", ";STAMP 17")

    issue = lambda kind, s: p1_issue(a, kind, s)
    plan = cfg["plan"]
    assert sorted((k, s) for _, k, s in plan) == sorted([("w", s) for s in range(9)] + [("x", s) for s in range(18)])
    for b, kind, s in plan:
        assert b < s and (kind == "w" and (s < 6 or b >= s - 5) or kind == "x" and (s < 8 or b >= s - 7))
    pre = [(kind, s) for b, kind, s in plan if b < 0]
    for kind, s in pre[:cfg["npre"]]:
        for f in issue(kind, s): f()
    t0, t1, t2, t3 = 48, 49, 50, 51
    hooks["setup"]()

    a("s_lshr_b32 s%d, s%d, 2" % (sT0, sWAVE), "s_and_b32 s%d, s%d, 3" % (sT1, sWAVE),
      "s_lshl_b32 s%d, s%d, 12" % (sT2, sT0), "s_add_u32 s%d, s%d, %d" % (sT2, sT2, XBASE),
      "v_and_b32 v%d, 15, v%d" % (t0, L), "v_lshrrev_b32 v%d, 4, v%d" % (t1, L),
      "v_bfe_u32 v%d, v%d, 1, 3" % (t2, L), "v_xor_b32 v%d, v%d, v%d" % (t2, t2, t1),
      "v_lshlrev_b32 v%d, 4, v%d" % (t2, t2),
      "v_lshl_add_u32 v%d, v%d, 7, s%d" % (t3, t0, sT2),
      "v_add_u32 v%d, v%d, v%d" % (vXR, t2, t3), "v_xor_b32 v%d, 64, v%d" % (vXR + 1, vXR))
    a("v_bfe_u32 v%d, v%d, 2, 2" % (t2, L), "v_lshl_add_u32 v%d, v%d, 3, v%d" % (t2, t1, t2),
      "v_lshlrev_b32 v%d, 8, v%d" % (vWR, t2),
      "v_and_b32 v%d, 3, v%d" % (t2, L), "v_lshl_add_u32 v%d, v%d, 3, v%d" % (vWR, t2, vWR),
      "s_lshl_b32 s%d, s%d, 1" % (sT2, sT1),
      "v_bfe_u32 v%d, v%d, 2, 3" % (t2, L), "v_xor_b32 v%d, s%d, v%d" % (t2, sT2, t2),
      "v_lshl_add_u32 v%d, v%d, 5, v%d" % (vWR, t2, vWR),
      "v_xor_b32 v%d, 32, v%d" % (vWR + 1, vWR),
      "v_add_u32 v%d, 0x10000, v%d" % (vWR + 2, vWR), "v_add_u32 v%d, 0x10000, v%d" % (vWR + 3, vWR + 1))
    a("s_mul_i32 s%d, s%d, %d" % (sST, sG, PITCH), "v_lshlrev_b32 v%d, 4, v%d" % (t0, t0),
      "s_lshl2_add_u32 s%d, s%d, s%d" % (sT2, sLINE, sT1),
      "s_cmp_ge_u32 s%d, 54" % sT2, "s_cselect_b32 s%d, 0x40000000, s%d" % (sST, sST),
      "s_mov_b32 s%d, 0x%08x" % (sT4, SCALE), "s_cmp_lt_u32 s%d, 18" % sT2, "s_cselect_b32 s%d, s%d, 1.0" % (sSCALE, sT4),
      "s_movk_i32 s%d, 256" % sT4, "s_movk_i32 s%d, 512" % sT5, "s_cmp_ge_u32 s%d, 9" % sLINE,
      "s_cselect_b32 s%d, %d, s%d" % (sT4, 4 * 9216, sT4), "s_cselect_b32 s%d, 9216, s%d" % (sT5, sT5),
      "s_cselect_b32 s%d, 9, 12" % sT1, "s_cselect_b32 s%d, %d, 0" % (sT3, 2 * SEC - 18 * 1024),
      "s_mul_i32 s%d, s%d, s%d" % (sT0, sT0, sT4), "s_lshl_b32 s%d, s%d, s%d" % (sT2, sT2, sT1),
      "s_add_u32 s%d, s%d, s%d" % (sST, sST, sT3), "s_add_u32 s%d, s%d, s%d" % (sST, sST, sT2), "s_add_u32 s%d, s%d, s%d" % (sST, sST, sT0),
      "v_mad_u32_u24 v%d, v%d, s%d, v%d" % (vSTA, t1, sT5, t0))
    a(";STAMP 18")
    for kind, s in pre[cfg["npre"]:]:
        for f in issue(kind, s): f()
    hooks["setup2"]()


def p1_body(a, isv, cfg, hooks):
    issue = lambda kind, s: p1_issue(a, kind, s)
    plan = cfg["plan"]

    def reads(s):
        r = []
        for m in range(2):
            for t in range(2):
                r.append("ds_read_b128 %s, v%d offset:%d" % (vr(vXF[s % 2] + 8 * m + 4 * t, 4), vXR + m, xslot(s) - XBASE + 2048 * t))
                if s < 9:
                    for h in range(2):
                        r.append("ds_read_b64_tr_b16 %s, v%d offset:%d" % (vr(vWF + 16 * s + 8 * m + 4 * t + 2 * h, 2), vWR + t + 2 * (wslot(s) >> 16),
                                                                           (wslot(s) & 0xffff) + (32 * m + 4 * h) * 256))
        return [(lambda x=x: a.lds(x)) for x in r]

    def mfmas(s):
        r = []
        for m in range(2):
            for ft in range(2):
                for tt in range(2):
                    acc = vr(vACC[s // 9] + 8 * ft + 4 * tt, 4)
                    w = vr(vWF + 16 * (s % 9) + 8 * m + 4 * ft, 4); x = vr(vXF[s % 2] + 8 * m + 4 * tt, 4)
                    c = "0" if (s % 9 == 0 and m == 0) else acc
                    r.append("v_mfma_f32_16x16x32_bf16 %s, %s, %s, %s" % ((acc, x, w, c) if isv else (acc, w, x, c)))
        return r

    def store(r, n):
        a.vmem("buffer_store_dwordx4 %s, v%d, %s, s%d offen offset:%d sc1" % (vr(vACC[r] + 8 * n, 4), vSTA, srd(sWS), sST, (256 if isv else 2048) * n), ("st", r))

    def epilogue(r):
        acc = vACC[r]
        mid = hooks.get("mid_epi1") if r else None
        for n in range(2):
            if not isv:
                for i in range(8 * n, 8 * n + 8, 2): a("v_pk_mul_f32 %s, %s, %s op_sel_hi:[1,0]" % (vr(acc + i, 2), vr(acc + i, 2), sr(sSCALE, 2)))
            for i in range(4): a("v_cvt_pk_bf16_f32 v%d, v%d, v%d" % (acc + 8 * n + i, acc + 8 * n + 2 * i, acc + 8 * n + 2 * i + 1))
            if not mid: store(r, n)
        if mid: mid(lambda: (store(r, 0), store(r, 1)))
        if r == 0: a("s_add_u32 s%d, s%d, %d" % (sST, sST, 16 * PITCH))

    for s in range(18):
        extra = hooks.get(("waitfor", s), [])
        a.wait(vm=[("d", s)] + [("w", s)] + extra, lg="all")
        a("s_barrier")
        a(";STAMP %d" % (20 + s))
        hooks.get(("bar", s), lambda: None)()
        side = reads(s)
        xp = cfg.get("x_p1", "")
        if "noread" in xp: side = []
        if "nowread" in xp: side = side[0::3] if s < 9 else side
        dm = []
        for b, kind, s2 in plan:
            if b == s and "nodma" not in xp: dm += issue(kind, s2)
        if cfg["dmapos"] == 0 or s >= 9: side += dm
        elif cfg["dmapos"] == 1: side = dm + side
        else:
            k = max(1, len(side) // max(1, len(dm))); mix = []
            while side or dm:
                mix += side[:k] + dm[:1]; side = side[k:]; dm = dm[1:]
            side = mix
        mm = mfmas(s - 1) if s > 0 else []
        if cfg["early0"] and s == 9: mm = []
        if "nomfma" in xp: mm = []
        side = hooks.get(("side0", s), []) + side + hooks.get(("side", s), [])
        per = max(cfg["per1"], -(-len(side) // 8))
        for x in mm:
            a(x)
            for f in side[:per]: f()
            side = side[per:]
        for f in side: f()
        if cfg["early0"] and s == 8:
            a.wait(lg="all"); a(mfmas(8))
        if s == (8 if cfg["early0"] else 9):
            a("s_nop 5")
            epilogue(0)
            a(";STAMP 39")
        hooks.get(("step", s), lambda: None)()
    a.wait(lg="all")
    a(mfmas(17))
    hooks.get("pre_epi1", lambda: None)()
    a("s_nop 5")
    epilogue(1)
    a(";STAMP 38")
    hooks.get("post_epi1", lambda: None)()


def wo_role(a, skip):
    L = vLANE
    t0, t1, t2, t3 = 42, 43, 44, 45
    a("s_sub_u32 s%d, s2, 224" % sLINE, "s_cmp_ge_u32 s%d, 18" % sLINE, "s_cbranch_scc1 %s" % skip)
    a("s_lshl_b32 s%d, s%d, 3" % (sT0, sWAVE), "v_lshrrev_b32 v%d, 3, v%d" % (t0, L), "v_add_u32 v%d, s%d, v%d" % (t0, sT0, t0),
      "v_mul_u32_u24 v%d, 1152, v%d" % (t0, t0), "v_and_b32 v%d, 7, v%d" % (t1, L), "v_lshl_add_u32 v%d, v%d, 4, v%d" % (t0, t1, t0),
      "s_lshr_b32 s%d, s%d, 1" % (sT4, sLINE), "s_lshl_b32 s%d, s%d, 7" % (sT1, sT4), "s_and_b32 s%d, s%d, 1" % (sT5, sLINE),
      "s_mul_i32 s%d, s%d, %d" % (sT2, sT5, 288 * 1152), "s_add_u32 s%d, s%d, s%d" % (sT1, sT1, sT2),
      "s_lshl_b32 s%d, s%d, 10" % (sT2, sWAVE))
    for k in range(5):
        a("s_add_u32 m0, s%d, %d" % (sT2, 8192 * k))
        if k == 4: a("s_cmp_ge_u32 s%d, 4" % sWAVE, "s_cselect_b32 s%d, 0x40000000, s%d" % (sT1, sT1))
        else: a("s_nop 0")
        a.vmem("buffer_load_dwordx4 v%d, %s, s%d offen lds" % (t0, srd(sW), sT1), "wo")
        if k < 4: a("s_add_u32 s%d, s%d, %d" % (sT1, sT1, 64 * 1152))
    a("s_and_b32 s%d, s%d, 3" % (sT0, sWAVE), "s_lshr_b32 s%d, s%d, 2" % (sT1, sWAVE),
      "s_mul_i32 s%d, s%d, 144" % (sT3, sT1), "s_lshl_b32 s%d, s%d, 5" % (sT2, sT0),
      "v_lshrrev_b32 v%d, 5, v%d" % (t0, L), "v_mul_u32_u24 v%d, 18, v%d" % (t0, t0),
      "v_bfe_u32 v%d, v%d, 2, 3" % (t1, L),
      "v_add3_u32 v%d, v%d, v%d, s%d" % (t0, t0, t1, sT3),
      "v_and_b32 v%d, 3, v%d" % (t2, L), "v_lshl_add_u32 v%d, v%d, 3, s%d" % (t2, t2, sT2),
      "v_lshl_add_u32 v%d, v%d, 7, v%d" % (t0, t0, t2),
      "v_lshrrev_b32 v%d, 3, v%d" % (t1, L), "v_mul_u32_u24 v%d, 18, v%d" % (t1, t1),
      "v_bfe_u32 v%d, v%d, 2, 1" % (t3, L), "s_add_u32 s%d, s%d, 16" % (sT3, sT3),
      "v_add3_u32 v%d, v%d, v%d, s%d" % (t1, t1, t3, sT3),
      "v_lshl_add_u32 v%d, v%d, 7, v%d" % (t1, t1, t2))
    a("s_lshl2_add_u32 s%d, s%d, s%d" % (sT2, sT4, sT0), "s_lshl1_add_u32 s%d, s%d, s%d" % (sT2, sT2, sT5), "s_lshl1_add_u32 s%d, s%d, s%d" % (sT2, sT2, sT1),
      "s_mul_i32 s%d, s%d, 4608" % (sT2, sT2), "s_add_u32 s%d, s%d, %d" % (sT2, sT2, WOBASE), "s_add_u32 s%d, s%d, 4096" % (sT4, sT2),
      "v_lshlrev_b32 v%d, 4, v%d" % (t2, L), "v_lshlrev_b32 v%d, 3, v%d" % (t3, L))
    a.wait(vm="all"); a("s_barrier")
    for m in range(4):
        for h in range(2):
            a.lds("ds_read_b64_tr_b16 %s, v%d offset:%d" % (vr(48 + 4 * m + 2 * h, 2), t0, (36 * m + 8 * h) * 128))
    a.lds("ds_read_b64_tr_b16 v[64:65], v%d" % t1)
    a.wait(lg="all")
    for m in range(4):
        a.vmem("buffer_store_dwordx4 %s, v%d, %s, s%d offen offset:%d sc1" % (vr(48 + 4 * m, 4), t2, srd(sWS), sT2, 1024 * m), "st")
    a.vmem("buffer_store_dwordx2 v[64:65], v%d, %s, s%d offen sc1" % (t3, srd(sWS), sT4), "st")


def p2_setup(a):
    L = vLANE
    t0, t1, t2, t3 = 38, 39, 40, 41
    a("s_lshl_b32 s%d, s%d, 2" % (sHEAD, sXCD), "s_lshr_b32 s%d, s%d, 3" % (sT0, sJ), "s_add_u32 s%d, s%d, s%d" % (sHEAD, sHEAD, sT0),
      "s_and_b32 s%d, s%d, 7" % (sQI, sJ), "s_and_b32 s%d, s%d, 3" % (sP, sWAVE), "s_lshr_b32 s%d, s%d, 2" % (sKH, sWAVE),
      "s_mov_b32 s%d, 0x3ffff" % sVMASK, "s_mov_b32 s%d, 0x3ffff" % (sVMASK + 1),
      "s_mov_b32 s%d, -1" % sDMASK, "s_mov_b32 s%d, 0xffff" % (sDMASK + 1),
      "s_and_b32 s%d, s%d, 1" % (sT0, sHEAD),
      "s_lshr_b32 s%d, s%d, 1" % (sT1, sHEAD), "s_mul_i32 s%d, s%d, %d" % (sT1, sT1, 9 * 512))
    a("v_and_b32 v%d, 31, v%d" % (t0, L), "v_lshrrev_b32 v%d, 5, v%d" % (t1, L))
    a("s_lshl_b32 s%d, s%d, 11" % (sT2, sT0), "s_add_u32 s%d, s%d, s%d" % (sT2, sT2, sT1), "s_add_u32 s%d, s%d, %d" % (sT2, sT2, SEC),
      "v_lshl_add_u32 v%d, v%d, 4, s%d" % (vDMA, L, sT2),
      "s_mul_i32 s%d, s%d, 288" % (sT3, sHEAD))
    for k in (2, 3, 4):
        imm = 1024 * k if k < 4 else 0
        d = vDMA + k - 1
        a("v_add_u32 v%d, %d, v%d" % (t2, (64 * k - 160) & 0xffffffff, L))
        if k == 2: a("v_max_i32 v%d, 0, v%d" % (t2, t2))
        a("v_mul_u32_u24 v%d, 3641, v%d" % (t3, t2), "v_lshrrev_b32 v%d, 16, v%d" % (t3, t3),
          "v_mul_u32_u24 v%d, %d, v%d" % (t3, 9216 - 288, t3),
          "v_lshl_add_u32 v%d, v%d, 4, v%d" % (t3, t2, t3),
          "s_add_u32 s%d, s%d, %d" % (sT4, sT3, 2 * SEC - imm),
          "v_add_u32 v%d, s%d, v%d" % (d, sT4, t3))
        if k == 2:
            a("v_cmp_gt_u32 vcc, 32, v%d" % L, "s_nop 1", "v_cndmask_b32 v%d, v%d, v%d, vcc" % (d, d, vDMA))
    a("s_mul_i32 s%d, s%d, %d" % (sT2, sKH, CHUNK),
      "s_lshl_b32 s%d, s%d, 9" % (sT3, sT0), "s_add_u32 s%d, s%d, s%d" % (sT3, sT3, sT2),
      "v_lshlrev_b32 v%d, 10, v%d" % (t2, t1), "v_lshl_add_u32 v%d, v%d, 3, v%d" % (t2, t0, t2),
      "v_add_u32 v%d, s%d, v%d" % (vAK, sT3, t2),
      "s_mul_i32 s%d, s%d, %d" % (sT3, sT0, (4 - 2048) & 0xffffffff), "s_add_u32 s%d, s%d, 2048" % (sT3, sT3),
      "s_add_u32 s%d, s%d, s%d" % (sT3, sT3, sT2),
      "v_lshl_add_u32 v%d, v%d, 3, s%d" % (vAR, L, sT3),
      "s_add_u32 s%d, s%d, 2560" % (sT3, sT2),
      "v_mul_u32_u24 v%d, 288, v%d" % (t3, t1), "v_lshl_add_u32 v%d, v%d, 4, v%d" % (t3, t0, t3),
      "v_add_u32 v%d, s%d, v%d" % (vAV, sT3, t3))
    a("s_mul_i32 s%d, s%d, %d" % (sT3, sT0, 5 * 512), "s_add_u32 s%d, s%d, s%d" % (sT3, sT3, sT1),
      "v_add_u32 v%d, s%d, v%d" % (vQA, sT3, t2),
      "s_lshl_b32 s%d, s%d, 2" % (sT3, sT0), "s_add_u32 s%d, s%d, s%d" % (sT3, sT3, sT1), "s_add_u32 s%d, s%d, 2048" % (sT3, sT3),
      "v_lshl_add_u32 v%d, v%d, 3, s%d" % (vQR, t0, sT3),
      "s_lshl_b32 s%d, s%d, 1" % (sT3, sQI), "s_lshr_b32 s%d, s%d, 1" % (sT4, sP), "s_add_u32 s%d, s%d, s%d" % (sT3, sT3, sT4),
      "s_mul_i32 s%d, s%d, %d" % (sQOFF, sT3, PITCH), "s_and_b32 s%d, s%d, 1" % (sT4, sP), "s_lshl_b32 s%d, s%d, 8" % (sT4, sT4),
      "s_add_u32 s%d, s%d, s%d" % (sQOFF, sQOFF, sT4),
      "s_lshl1_add_u32 s%d, s%d, s%d" % (sT0, sP, sKH), "s_mul_i32 s%d, s%d, %d" % (sCM, sT0, CHUNK), "s_mul_i32 s%d, s%d, %d" % (sCH, sT0, PITCH),
      "v_mov_b32 v%d, 0xdddddddd" % vIDX, "v_mov_b32 v%d, 0" % (vQ[0] + 5), "v_mov_b32 v%d, 0" % (vQ[1] + 5))


def q_load(a, part):
    so = sQOFF
    if part:
        a("s_add_u32 s%d, s%d, %d" % (sT0, sQOFF, 16 * PITCH)); so = sT0
    q = vQ[part]
    a.vmem("buffer_load_dwordx2 %s, v%d, %s, s%d offen sc1" % (vr(q, 2), vQA, srd(sWS), so), ("q", part))
    a.vmem("buffer_load_dwordx2 %s, v%d, %s, s%d offen offset:512 sc1" % (vr(q + 2, 2), vQA, srd(sWS), so), ("q", part))
    a.vmem("buffer_load_dword v%d, v%d, %s, s%d offen sc1" % (q + 4, vQR, srd(sWS), so), ("q", part))


def kv_piece(a, st, k):
    if k == 0: a("s_add_u32 m0, s%d, %d" % (sCM, 8 * st * CHUNK), "s_add_u32 s%d, s%d, %d" % (sCH, sCH, 8 * PITCH) if st else "s_nop 0")
    if k < 4:
        a.vmem("buffer_load_dwordx4 v%d, %s, s%d offen offset:%d sc1 lds" % (vDMA + max(0, k - 1), srd(sWS), sCH, 1024 * k), ("kv", st))
    else:
        a("s_add_u32 m0, m0, 4096", "s_mov_b64 exec, %s" % sr(sDMASK, 2))
        a.vmem("buffer_load_dwordx4 v%d, %s, s%d offen sc1 lds" % (vDMA + 3, srd(sWS), sCH), ("kv", st))
        a("s_mov_b64 exec, -1")


def kv_dma(a, st):
    for k in range(5): kv_piece(a, st, k)


def q_dma(a):
    a("s_lshl1_add_u32 s%d, s%d, s%d" % (sT1, sQI, sKH), "s_mul_i32 s%d, s%d, %d" % (sT1, sT1, PITCH),
      "s_mul_i32 s%d, s%d, 2560" % (sT0, sKH), "s_add_u32 m0, s%d, %d" % (sT0, LDS_SPARE),
      "v_subrev_u32 v%d, %d, v%d" % (vT, SEC, vDMA))
    for k in range(3):
        if k == 2: a("s_mov_b32 exec_hi, 0")
        a("buffer_load_dwordx4 v%d, %s, s%d offen offset:%d sc1 lds" % (vT, srd(sWS), sT1, 1024 * k))
    a("s_mov_b64 exec, -1")


def q_addr(a):
    a("s_lshr_b32 s%d, s%d, 1" % (sT0, sP), "s_mul_i32 s%d, s%d, 2560" % (sT0, sT0), "s_and_b32 s%d, s%d, 1" % (sT1, sP), "s_lshl_b32 s%d, s%d, 8" % (sT1, sT1),
      "s_add_u32 s%d, s%d, s%d" % (sT0, sT0, sT1), "s_mul_i32 s%d, s%d, %d" % (sT1, sKH, CHUNK), "s_sub_u32 s%d, s%d, s%d" % (sT0, sT0, sT1),
      "s_add_u32 s%d, s%d, %d" % (sT0, sT0, LDS_SPARE),
      "v_add_u32 v%d, s%d, v%d" % (vT, sT0, vAK), "v_and_b32 v%d, 32, v%d" % (vT + 1, vLANE), "v_lshlrev_b32 v%d, 3, v%d" % (vT + 1, vT + 1),
      "v_sub_u32 v%d, v%d, v%d" % (vT + 1, vAR, vT + 1), "v_add_u32 v%d, s%d, v%d" % (vT + 1, sT0, vT + 1))


def q_read(a):
    q = vQ[0]
    a.lds("ds_read_b32 v%d, v%d" % (q + 4, vT + 1), "R")
    for h in range(2): a.lds("ds_read_b64 %s, v%d offset:%d" % (vr(q + 2 * h, 2), vT, 512 * h), ("K", 0))


def v_consts(a, base, t):
    a("s_mov_b32 s%d, 0x440000" % sSAVE, "s_mov_b32 s%d, 0x440000" % (sSAVE + 1), "v_mov_b32 v%d, 0x3f803f80" % t,
      "v_cndmask_b32 v%d, 0, v%d, %s" % (base, t, sr(sSAVE, 2)))
    a("v_mov_b32 v%d, v%d" % (base + 1, base))
    for i in range(1, 8): a("v_mov_b64 %s, %s" % (vr(base + 2 * i, 2), vr(base, 2)))


def p2_init(a):
    word_setup(a)
    v_consts(a, vV, vV + 2)
    a("v_mov_b32 v%d, 0" % (vKR + 1))
    for i in range(16): a("v_mov_b64 %s, 0" % vr(vO[0] + 2 * i, 2))


def p2_main(a, cfg, ev):
    ns = cfg["nsolo"]
    U = [(i, 0) for i in range(ns)] + [(i, q) for i in range(ns, 16) for q in range(2)] + [(i, 1) for i in range(ns)]
    if cfg["uswap"]: U[6:10] = [(6, 0), (7, 0), (7, 1), (6, 1)]
    N = len(U)
    base = {"k": 0, "r": 0, "v": 0, "k0": 0, "k1": 0}
    reg = {"k": vAK, "r": vAR, "v": vAV, "k0": vAK, "k1": vAK1}
    seen = set()

    def off(kind, i):
        if i not in seen:
            seen.add(i)
            if ("pre", i) in ev: ev[("pre", i)]()
        want = (i // 6) * 6
        if base[kind] != want:
            a("v_add_u32 v%d, 0x%x, v%d" % (reg[kind], ((want - base[kind]) * 2 * CHUNK) & 0xffffffff, reg[kind]))
            base[kind] = want
        return (i - want) * 2 * CHUNK

    def rR(i):
        o = off("r", i); a.lds("ds_read_b32 v%d, v%d offset:%d" % (vKR, vAR, o), "R")
    def rK(i, t):
        if cfg["k2"]:
            kind = "k%d" % t
            want = 0 if i < 13 else 13
            if base[kind] != want:
                a("v_add_u32 v%d, 0x%x, v%d" % (reg[kind], ((want - base[kind]) * 2 * CHUNK) & 0xffffffff, reg[kind])); base[kind] = want
            o = (i - want) * 19
            a.lds("ds_read2st64_b64 %s, v%d offset0:%d offset1:%d" % (vr(vK + 4 * t, 4), reg[kind], o, o + 1), ("K", t))
            return
        o = off("k", i)
        for h in range(2): a.lds("ds_read_b64 %s, v%d offset:%d" % (vr(vK + 4 * t + 2 * h, 2), vAK, o + 256 * t + 512 * h), ("K", t))
    def rV(i, fs):
        if ("prev", i) in ev: ev.pop(("prev", i))()
        o = off("v", i)
        if not cfg.get("x_nomask"): a("s_mov_b64 exec, %s" % sr(sVMASK, 2))
        for f in fs: a.lds("ds_read_b128 %s, v%d offset:%d" % (vr(vV + 4 * f, 4), vAV, o + 576 * f), ("V", f // 2))
        if not cfg.get("x_nomask"): a("s_mov_b64 exec, -1")
    def R(u):
        a.wait(lg="R")
        if U[u][1] == 1 and "ql" in ev: ev.pop("ql")()
        a("v_mfma_f32_32x32x4_2b_bf16 %s, %s, %s, 0" % (vr(vS[u % 2], 32), vr(vKR, 2), vr(vQ[U[u][1]] + 4, 2)))
    def M(u, t):
        a.wait(lg=("K", t))
        s = vr(vS[u % 2] + 16 * t, 16)
        a("v_mfma_f32_32x32x16_bf16 %s, %s, %s, %s" % (s, vr(vK + 4 * t, 4), vr(vQ[U[u][1]], 4), s))
    def P(u, f):
        a.wait(lg=("V", f // 2))
        a("v_smfmac_f32_32x32x32_bf16 %s, %s, %s, v%d" % (vr(vO[U[u][1]], 16), vr(vV + 4 * f, 4), vr(vS[u % 2] + 8 * f, 8), vIDX))
    ch = lambda u: U[u][0]
    newk = lambda u: u < N and ch(u) != ch(u - 1)

    rR(ch(0)); rK(ch(0), 0); rK(ch(0), 1)
    rV(ch(0), (0, 1, 2, 3))
    R(0)
    if newk(1): rR(ch(1))
    if "fill" in ev: ev["fill"]()
    a("s_nop 15" if "fill" not in ev else "s_nop 13", "s_nop 1")
    M(0, 0)
    if newk(1): rK(ch(1), 0)
    M(0, 1)
    if newk(1): rK(ch(1), 1)
    a("s_nop 7")
    pos = cfg["pos"]
    a.age = cfg["age"]
    for u in range(N):
        def op(j):
            if j == 0:
                if u > 0:
                    P(u - 1, 3)
                    if newk(u): rV(ch(u), (2, 3))
            elif j == 1:
                if u + 1 < N:
                    R(u + 1)
            elif j == 2: P(u, 0)
            elif j == 3:
                P(u, 1)
                if newk(u + 1): rV(ch(u + 1), (0, 1))
            elif j == 4 or j == 6:
                if u + 1 < N:
                    M(u + 1, (j - 4) // 2)
                    if newk(u + 2):
                        if j == 4: rR(ch(u + 2))
                        rK(ch(u + 2), (j - 4) // 2)
            elif j == 5: P(u, 2)
            if (u, j) in cfg.get("prio", {}): a("s_setprio %d" % cfg["prio"][(u, j)])
            if (u, j) in cfg.get("priox", {}):
                l = a.uid("px"); a("s_cmp_lg_u32 s%d, 0" % sKH, "s_cbranch_scc1 %s" % l, "s_setprio %d" % cfg["priox"][(u, j)], "%s:" % l)
            if (u, j) in ev: ev[(u, j)]()
        a(";STAMP %d" % (40 + u))
        for e in range(32):
            if e in pos: op(pos.index(e))
            a("v_exp_f32 v%d, v%d" % (vS[u % 2] + e, vS[u % 2] + e)); a.clock += 1
    a.age = None
    a("s_nop 1")
    P(N - 1, 3)
    return U


SCR_RES, SCR_ROFF = 12 * CHUNK, (0, 2 * CHUNK)
SCR_MOFF = (0, 0)
P3_BASE, P3_OFF = 15 * CHUNK, (0, 39936)
sOA, sOR = 34, 3
sOL = 12
sPF = 15
vFD = [vWO + 72, vS[0] + 20]


def late_setup(a):
    L = vLANE
    a("s_lshl_b32 s%d, s%d, 11" % (sT0, sP), "s_add_u32 s%d, s%d, %d" % (sT0, sT0, LDS_SPARE), "v_add_u32 v%d, s%d, v%d" % (vSA, sT0, vL16),
      "s_lshl_b32 s%d, s%d, 10" % (sT0, sP), "s_add_u32 s%d, s%d, %d" % (sT0, sT0, SCR_RES), "v_add_u32 v%d, s%d, v%d" % (vSB, sT0, vL16),
      "s_lshl2_add_u32 s%d, s%d, s%d" % (sT0, sQI, sP), "s_mul_i32 s%d, s%d, %d" % (sT0, sT0, OTILE), "s_add_u32 s%d, s%d, %d" % (sT0, sT0, OBASE),
      "s_cmp_eq_u32 s%d, 0" % sKH, "s_cselect_b32 s%d, 0x40000000, s%d" % (sT0, sT0),
      "s_lshl_b32 s%d, s%d, 10" % (sT1, sHEAD), "s_add_u32 s%d, s%d, s%d" % (sOA, sT1, sT0),
      "s_lshl_b32 s%d, s%d, 7" % (sT1, sHEAD), "s_add_u32 s%d, s%d, s%d" % (sOR, sT1, sT0), "s_add_u32 s%d, s%d, 32768" % (sOR, sOR),
      "v_lshrrev_b32 v%d, 4, v%d" % (vOB, L), "v_and_b32 v%d, 15, v%d" % (vT, L),
      "v_lshlrev_b32 v%d, 9, v%d" % (vOA, vOB), "v_lshl_add_u32 v%d, v%d, 4, v%d" % (vOA, vT, vOA),
      "v_lshlrev_b32 v%d, 8, v%d" % (vOB, vOB),
      ["v_and_b32 v%d, 7, v%d" % (vT + 1, vT), "v_lshl_add_u32 v%d, v%d, 4, v%d" % (vOB, vT + 1, vOB), "v_lshrrev_b32 v%d, 3, v%d" % (vT, vT)] if RES4[0] else [],
      "v_lshl_add_u32 v%d, v%d, 2, v%d" % (vOB, vT, vOB),
      "s_lshl2_add_u32 s%d, s%d, s%d" % (sT0, sXCD, sRT), "s_mul_i32 s%d, s%d, %d" % (sT0, sT0, OTILE), "s_add_u32 s%d, s%d, %d" % (sT0, sT0, OBASE),
      "s_lshl_b32 s%d, s%d, 5" % (sT1, sKQ), "s_add_u32 s%d, s%d, s%d" % (sT1, sT1, sRH), "s_lshl_b32 s%d, s%d, 8" % (sT1, sT1),
      "s_add_u32 s%d, s%d, s%d" % (sOL, sT1, sT0), "s_add_u32 s%d, s%d, 4096" % (sOL + 1, sOL),
      "s_lshl_b32 s%d, s%d, 10" % (sT1, sKQ), "s_lshl_b32 s%d, s%d, %d" % (sT2, sRH, 3 if RES4[0] else 6), "s_add_u32 s%d, s%d, s%d" % (sT1, sT1, sT2),
      "s_add_u32 s%d, s%d, s%d" % (sOL + 2, sT1, sT0), "s_add_u32 s%d, s%d, 32768" % (sOL + 2, sOL + 2))


RES4 = [0]


def o_store(a, d, t, part, em):
    sa, sb = sOA, sOR
    if part:
        a("s_add_u32 s%d, s%d, %d" % (sT1, sOA, 32 * OTILE), "s_add_u32 s%d, s%d, %d" % (sT2, sOR, 32 * OTILE)); sa, sb = sT1, sT2
    em("buffer_store_dwordx4 %s, v%d, %s, s%d offen sc1" % (vr(d, 4), vL16, srd(sWS), sa))
    if RES4[0]:
        a("s_mov_b64 exec, 0xff")
        em("buffer_store_dwordx4 %s, v%d, %s, s%d offen sc1" % (vr(t, 4), vL16, srd(sWS), sb))
        a("s_mov_b64 exec, -1")
        return
    a("s_mov_b32 exec_hi, 0")
    em("buffer_store_dword v%d, v%d, %s, s%d offen sc1" % (d + 4, t, srd(sWS), sb))
    a("s_mov_b64 exec, -1")


def poison(a):
    d = vFD[0]
    a("v_mov_b64 %s, -1" % vr(d, 2), "v_mov_b64 %s, -1" % vr(d + 2, 2))
    if not RES4[0]: a("v_mov_b32 v%d, -1" % (d + 4), "v_lshlrev_b32 v%d, 2, v%d" % (vT, vLANE))
    for part in range(2): o_store(a, d, d if RES4[0] else vT, part, lambda x: a.vmem(x, "poison"))


def send_partial(a, part):
    o = vO[part]
    a("v_mov_b32 v%d, s%d" % (o + 11, sTAG),
      "ds_write_b128 v%d, %s offset:%d" % (vSA, vr(o, 4), SCR_MOFF[part]), "ds_write_b128 v%d, %s offset:%d" % (vSA, vr(o + 4, 4), SCR_MOFF[part] + 1024),
      "ds_write_b128 v%d, %s offset:%d" % (vSB, vr(o + 8, 4), SCR_ROFF[part]))


def fin_reads(part):
    d = vFD[part]
    return ["ds_read_b128 %s, v%d offset:%d" % (vr(d + 8, 4), vSB, SCR_ROFF[part]),
            "ds_read_b128 %s, v%d offset:%d" % (vr(d, 4), vSA, SCR_MOFF[part]), "ds_read_b128 %s, v%d offset:%d" % (vr(d + 4, 4), vSA, SCR_MOFF[part] + 1024)]


NOPK = [0, 0]


def finalize(a, part, slow, colds, prefetched=False):
    o = vO[part]
    t = vT
    d = vFD[part]
    if not prefetched: a(fin_reads(part))
    again = a.uid("meet")
    a("s_mov_b32 s%d, 0" % sT5, "s_mov_b32 s%d, 0x37800000" % sT4,
      "%s:" % again, "s_waitcnt lgkmcnt(0)", "v_cmp_ne_u32 vcc, s%d, v%d" % (sTAG, d + 11), "s_cbranch_vccnz %s_r" % again, "%s_k:" % again)
    def cold():
        a("%s_r:" % again); spin_guard(a, again + "_k"); a("s_sleep 1", fin_reads(part), "s_branch %s" % again)
    colds.append(cold)
    pk = lambda op, x, y, z, m="": "v_pk_%s_f32 %s, %s, %s%s" % (op, vr(x, 2), vr(y, 2), vr(z, 2), m)
    if NOPK[part]: pk = lambda op, x, y, z, m="": ["v_%s_f32 v%d, v%d, v%d" % (op, x + i, y + i, z + (0 if m else i)) for i in range(2)]
    a("v_add_f32 v%d, v%d, v%d" % (o + 10, o + 10, d + 10), pk("add", o + 8, o + 8, d + 8))
    for i in (0, 2, 4, 6): a(pk("add", o + i, o + i, d + i))
    back = a.uid("norm")
    done = a.uid("normok")
    a("%s:" % back)
    a("v_rcp_f32 v%d, v%d" % (t, o + 10), "v_mov_b32 v%d, 0x71800000" % (d + 11))
    for i in range(0, 10, 2): a(pk("mul", d + i, o + i, t, " op_sel_hi:[1,0]"))
    a("v_med3_f32 v%d, v%d, s%d, v%d" % (d + 10, o + 10, sT4, d + 11), pk("add", t, d, d + 2))
    for i in (4, 6, 8): a(pk("add", t, t, d + i))
    a("v_add_f32 v%d, v%d, v%d" % (t, t, t + 1),
      "v_fma_f32 v%d, v%d, 0, v%d" % (t, t, o + 10),
      "v_cmp_neq_f32 vcc, v%d, v%d" % (d + 10, t))
    cv = lambda i, x: "v_cvt_pk_bf16_f32 v%d, v%d, v%d" % (x, d + 2 * i, d + 2 * i + 1)
    if RES4[0]:
        a(cv(4, d + 8), cv(0, d), cv(1, d + 1), "v_mov_b32_dpp v%d, v%d row_ror:8 row_mask:0xf bank_mask:0xf" % (d + 9, d + 8), cv(2, d + 2),
          "v_permlane16_swap_b32 v%d, v%d" % (d + 8, d + 10), cv(3, d + 3), "v_permlane16_swap_b32 v%d, v%d" % (d + 9, d + 11))
        slow(part, back, done)
        a("%s:" % done)
        o_store(a, d, d + 8, part, a)
        return
    for i in range(5): a(cv(i, d + i))
    slow(part, back, done)
    a("%s:" % done, "v_lshlrev_b32 v%d, 2, v%d" % (t, vLANE))
    o_store(a, d, t, part, a)


def slow_path(a, part, label, back, done, after):
    S, K, KR, V, m, ar, av = 44, 76, 84, 88, 104, 105, 106
    q = vQ[part]; o = vO[part]
    a("%s:" % label, "s_cmp_eq_u32 s%d, 0" % sT5, "s_cbranch_scc1 %s_go" % label)
    for i in range(12): a("v_min_u32 v%d, -2, v%d" % (vFD[part] + i, vFD[part] + i))
    a("s_branch %s" % done, "%s_go:" % label, "s_mov_b32 s%d, 1" % sT5)
    a("s_waitcnt vmcnt(0) lgkmcnt(0)")
    v_consts(a, V, m)
    a("v_mov_b32 v%d, 0" % (KR + 1))
    for i in range(16): a("v_mov_b32 v%d, 0" % (o + i))
    a("v_lshrrev_b32 v%d, 5, v%d" % (m, vLANE), "v_lshl_add_u32 v%d, v%d, 8, v%d" % (ar, m, vQR),
      "v_mul_u32_u24 v%d, 9216, v%d" % (av, m), "v_and_b32 v%d, 31, v%d" % (m, vLANE), "v_lshl_add_u32 v%d, v%d, 4, v%d" % (av, m, av),
      "s_mul_i32 s%d, s%d, 288" % (sT3, sHEAD), "s_add_u32 s%d, s%d, %d" % (sT3, sT3, SEC), "v_add_u32 v%d, s%d, v%d" % (av, sT3, av))
    for f in range(1, 4): a("v_add_u32 v%d, 18432, v%d" % (av + f, av + f - 1))
    a("v_mov_b32 v%d, 0xff800000" % m)
    for ps in range(2):
        lp = a.uid("slow")
        a("s_mov_b32 s%d, %d" % (sLOOP, SEC), "%s:" % lp)
        for t in range(2):
            for h in range(2):
                a("buffer_load_dwordx2 %s, v%d, %s, s%d offen offset:%d sc1" % (vr(K + 4 * t + 2 * h, 2), vQA, srd(sWS), sLOOP, 256 * t + 512 * h))
        a("buffer_load_dword v%d, v%d, %s, s%d offen sc1" % (KR, ar, srd(sWS), sLOOP))
        if ps:
            a("s_mov_b64 exec, %s" % sr(sVMASK, 2))
            for f in range(4): a("buffer_load_dwordx4 %s, v%d, %s, s%d offen sc1" % (vr(V + 4 * f, 4), av + f, srd(sWS), sLOOP))
            a("s_mov_b64 exec, -1")
        a("s_waitcnt vmcnt(0)",
          "v_mfma_f32_32x32x4_2b_bf16 %s, %s, %s, 0" % (vr(S, 32), vr(KR, 2), vr(q + 4, 2)), "s_nop 15", "s_nop 1")
        for t in range(2):
            a("v_mfma_f32_32x32x16_bf16 %s, %s, %s, %s" % (vr(S + 16 * t, 16), vr(K + 4 * t, 4), vr(q, 4), vr(S + 16 * t, 16)))
        a("s_nop 11")
        if ps == 0:
            for i in range(16): a("v_max3_f32 v%d, v%d, v%d, v%d" % (m, m, S + 2 * i, S + 2 * i + 1))
        else:
            for i in range(32): a("v_sub_f32 v%d, v%d, v%d" % (S + i, S + i, m))
            for i in range(32): a("v_exp_f32 v%d, v%d" % (S + i, S + i))
            a("s_nop 1")
            for f in range(4): a("v_smfmac_f32_32x32x32_bf16 %s, %s, %s, v%d" % (vr(o, 16), vr(V + 4 * f, 4), vr(S + 8 * f, 8), vIDX))
        a("s_add_u32 s%d, s%d, %d" % (sLOOP, sLOOP, PITCH), "s_cmp_lt_u32 s%d, %d" % (sLOOP, 32 * PITCH), "s_cbranch_scc1 %s" % lp)
        if ps == 0:
            a("v_mov_b32 v%d, v%d" % (S, m), "s_nop 1", "v_permlane32_swap_b32 v%d, v%d" % (S, m), "s_nop 1", "v_max_f32 v%d, v%d, v%d" % (m, m, S))
    a("s_nop 15")
    after()
    a("s_branch %s" % back)


def p3_setup(a):
    a("s_and_b32 s%d, s%d, 3" % (sRT, sJ), "s_lshr_b32 s%d, s%d, 2" % (sCB, sJ),
      "s_lshr_b32 s%d, s%d, 2" % (sRH, sWAVE), "s_lshl1_add_u32 s%d, s%d, s%d" % (sKQ, sRH, sWAVE), "s_and_b32 s%d, s%d, 3" % (sKQ, sKQ),
      "s_and_b32 s%d, s%d, 1" % (sT0, sCB), "s_cmp_eq_u32 s%d, s%d" % (sT0, sRH), "s_cselect_b32 s%d, 1, 0" % sFIVE,
      "s_lshr_b32 s%d, s%d, 1" % (sT1, sCB), "s_mul_i32 s%d, s%d, 9" % (sT1, sT1),
      "s_mul_i32 s%d, s%d, 5" % (sT0, sT0), "s_add_u32 s%d, s%d, s%d" % (sT0, sT0, sT1),
      "s_add_u32 s%d, s%d, 4" % (sT1, sT1),
      "s_mul_i32 s%d, s%d, 4608" % (sT2, sKQ), "s_add_u32 s%d, s%d, %d" % (sT2, sT2, WOBASE),
      "s_mul_i32 s%d, s%d, %d" % (sT3, sT0, 4 * 4608), "s_add_u32 s%d, s%d, s%d" % (sWOF, sT3, sT2))
    for t in range(1, 4): a("s_add_u32 s%d, s%d, %d" % (sWOF + t, sWOF, 4 * 4608 * t))
    a("s_mul_i32 s%d, s%d, %d" % (sT3, sT1, 4 * 4608), "s_add_u32 s%d, s%d, s%d" % (sWOF + 4, sT3, sT2),
      "s_lshl2_add_u32 s%d, s%d, s%d" % (sT2, sXCD, sRT), "s_lshl1_add_u32 s%d, s%d, s%d" % (sT2, sT2, sRH),
      "s_mul_i32 s%d, s%d, %d" % (sT3, sT2, 16 * 1152), "s_lshl_b32 s%d, s%d, 5" % (sT1, sT1), "s_add_u32 s%d, s%d, s%d" % (sOCOL + 1, sT1, sT3),
      "s_lshl2_add_u32 s%d, s%d, s%d" % (sT2, sT2, sKQ), "s_mul_i32 s%d, s%d, %d" % (sT3, sT2, 4 * 1152),
      "s_lshl_b32 s%d, s%d, 5" % (sT0, sT0), "s_add_u32 s%d, s%d, s%d" % (sOCOL, sT0, sT3),
      "s_add_u32 s%d, s%d, %d" % (sOCOL + 2, sOCOL, 1024 * 1152), "s_add_u32 s%d, s%d, %d" % (sOCOL + 3, sOCOL + 1, 1024 * 1152),
      "s_cmp_eq_u32 s%d, 0" % sKQ, "s_cselect_b32 s%d, s%d, 0" % (sSHF, sFIVE),
      "s_movk_i32 s%d, 272" % sC272, "s_movk_i32 s%d, 80" % sC80)


def wo_load(a, tiles, t16, t8, track=True, only=None):
    em = a.vmem if track else (lambda s, tag: a(s))
    for t in tiles:
        for m in range(4):
            if only in (None, m): em("buffer_load_dwordx4 %s, v%d, %s, s%d offen offset:%d sc1" % (vr(vWO + 18 * t + 4 * m, 4), t16, srd(sWS), sWOF + t, 1024 * m), "wo")
        if only in (None, 4): em("buffer_load_dwordx2 %s, v%d, %s, s%d offen sc1" % (vr(vWO + 18 * t + 16, 2), t8, srd(sWS), sWOF + t), "wo")


def o_instr(of, g, so):
    main, res = of
    if g < 4: return ["buffer_load_dwordx4 %s, v%d, %s, s%d offen offset:%d sc1" % (vr(main + 4 * g, 4), vOA, srd(sWS), so + g // 2, 2048 * (g % 2))]
    return ["buffer_load_dword v%d, v%d, %s, s%d offen offset:%d sc1" % (res + e, vOB, srd(sWS), so + 2, 128 * e) for e in range(2)]


def o_load(a, of, tag, so):
    for g in range(5):
        for x in o_instr(of, g, so): a.vmem(x, tag)


def p3_mfma_all(a, of, acc, t, colds, part, ta, so):
    main, res = of
    top = a.uid("eall")
    chk = ["v_max_u32 v%d, v%d, v%d" % (t, res, res + 1)] + ["v_max3_u32 v%d, v%d, v%d, v%d" % (t, t, main + 2 * i, main + 2 * i + 1) for i in range(8)]
    chk += ["v_cmp_eq_u32 vcc, -1, v%d" % t]
    def cold():
        a("%s_r:" % top); spin_guard(a, top + "_t"); a("s_sleep 2")
        for g in range(5): a(o_instr(of, g, so))
        a("s_waitcnt vmcnt(0)", "s_branch %s" % top, "%s_t:" % top, "s_cmp_eq_u32 s%d, 0" % sFIVE, "s_branch %s_k" % top)
    colds.append(cold)
    def mm(k, g):
        c = vr(acc + 4 * k, 4)
        if g < 4: a("v_mfma_f32_16x16x32_bf16 %s, %s, %s, %s" % (c, vr(vWO + 18 * k + 4 * g, 4), vr(main + 4 * g, 4), c))
        else: a("v_mfma_f32_16x16x16_bf16 %s, %s, %s, 0" % (c, vr(vWO + 18 * k + 16, 2), vr(res, 2)))
    scr = P3_OFF[part]
    wr = lambda k: a("ds_write_b128 v%d, %s offset:%d" % (ta + (k // 4), vr(acc + 4 * k, 4), scr + (64 * k if k < 4 else 0)))
    a("%s:" % top)
    for n, k in enumerate((4, 0, 1, 2, 3)):
        mm(k, 4); a(chk[2 * n: 2 * n + 2])
    a("s_cmp_eq_u32 s%d, 0" % sFIVE, "s_cbranch_vccnz %s_r" % top, "%s_k:" % top, "s_cbranch_scc1 %s_5" % top)
    for g in range(4): mm(4, g)
    a("%s_5:" % top)
    for k in (0, 1):
        for g in range(4): mm(k, g)
    a("s_cbranch_scc1 %s_6" % top); wr(4); a("%s_6:" % top)
    for g in range(4): mm(2, g)
    wr(0)
    for g in range(3): mm(3, g)
    wr(1)
    mm(3, 3)
    a("s_nop 1"); wr(2); a("s_nop 4"); wr(3)


P3_ROW, P3_PART = 272, 16 * 272
P3_SH = 8 * P3_PART


def p3_addr(a, t):
    L = vLANE
    a("v_and_b32 v24, 15, v%d" % L, "v_lshrrev_b32 v%d, 4, v%d" % (t + 5, L),
      "s_lshl2_add_u32 s%d, s%d, s%d" % (sT0, sRH, sKQ), "s_mul_i32 s%d, s%d, %d" % (sT0, sT0, P3_PART), "s_add_u32 s%d, s%d, %d" % (sT0, sT0, P3_BASE),
      "v_lshl_add_u32 v%d, v%d, 4, s%d" % (t, t + 5, sT0), "v_mad_u32_u24 v%d, v24, s%d, v%d" % (t, sC272, t),
      "s_mul_i32 s%d, s%d, 1280" % (sT0, sKQ), "s_add_u32 s%d, s%d, %d" % (sT0, sT0, P3_BASE + P3_SH),
      "v_lshl_add_u32 v%d, v%d, 4, s%d" % (t + 1, t + 5, sT0), "v_mad_u32_u24 v%d, v24, s%d, v%d" % (t + 1, sC80, t + 1),
      "s_lshl4_add_u32 s%d, s%d, s%d" % (sT0, sRH, sKQ), "s_mul_i32 s%d, s%d, %d" % (sT0, sT0, 4 * P3_ROW), "s_add_u32 s%d, s%d, %d" % (sT0, sT0, P3_BASE),
      "v_lshl_add_u32 v%d, v24, 4, s%d" % (t + 2, sT0), "v_mad_u32_u24 v%d, v%d, s%d, v%d" % (t + 2, t + 5, sC272, t + 2),
      "v_mul_u32_u24 v%d, 1152, v%d" % (t + 4, t + 5), "v_lshl_add_u32 v%d, v24, 3, v%d" % (t + 4, t + 4),
      "v_lshrrev_b32 v24, 2, v%d" % L, "v_and_b32 v%d, 3, v%d" % (t + 5, L),
      "v_mul_u32_u24 v%d, 80, v24" % (t + 3), "v_lshl_add_u32 v%d, v%d, 4, v%d" % (t + 3, t + 5, t + 3), "v_add_u32 v%d, %d, v%d" % (t + 3, P3_BASE + P3_SH, t + 3),
      "v_mul_u32_u24 v24, 1152, v24", "v_lshl_add_u32 v%d, v%d, 3, v24" % (t + 5, t + 5))


def p3_finish(a, part, t, d, mod, colds, pk):
    def rd(src, step, x):
        for k in range(4): a("ds_read_b128 %s, v%d offset:%d" % (vr(x + 4 * k, 4), src, P3_OFF[part] + step * k))
    def fin(x, va, so, wait):
        for k in range(1, 4):
            if wait: a("s_waitcnt lgkmcnt(%d)" % (3 - k))
            if pk: a(["v_pk_add_f32 %s, %s, %s" % (vr(x + i, 2), vr(x + i, 2), vr(x + 4 * k + i, 2)) for i in (0, 2)])
            else: a(["v_add_f32 v%d, v%d, v%d" % (x + i, x + i, x + 4 * k + i) for i in range(4)])
        a("v_cvt_pk_bf16_f32 v%d, v%d, v%d" % (x, x, x + 1), "v_cvt_pk_bf16_f32 v%d, v%d, v%d" % (x + 1, x + 2, x + 3),
          "buffer_store_dwordx2 %s, v%d, %s, s%d offen%s" % (vr(x, 2), va, srd(sOUT), so + 2 * part, mod))
    skip = a.uid("no5r")
    a("s_cbranch_scc1 %s" % skip); rd(t + 3, 1280, d + 16); a("%s:" % skip)
    rd(t + 2, P3_PART, d)
    fin(d, t + 4, sOCOL, True)
    if part == 0:
        a("s_cbranch_scc0 %s_c" % skip, "s_waitcnt vmcnt(1)", "%s_b:" % skip)
        colds.insert(0, lambda: (a("%s_c:" % skip), fin(d + 16, t + 5, sOCOL + 1, False), a("s_waitcnt vmcnt(2)", "s_branch %s_b" % skip)))
    else:
        a("s_cbranch_scc1 %s_b" % skip); fin(d + 16, t + 5, sOCOL + 1, False); a("%s_b:" % skip)


def kd(name, lds=False):
    return """.amdhsa_kernel %s
  .amdhsa_next_free_vgpr 256
  .amdhsa_next_free_sgpr 96
  .amdhsa_accum_offset 256
  .amdhsa_group_segment_fixed_size 0
  .amdhsa_kernarg_size 48
  .amdhsa_user_sgpr_count 2
  .amdhsa_user_sgpr_kernarg_segment_ptr 1
  .amdhsa_system_sgpr_workgroup_id_x 1
  .amdhsa_float_denorm_mode_32 3
.end_amdhsa_kernel""" % name


def head(a, name):
    a(".globl %s" % name, ".p2align 12", ".p2align 8", ".type %s,@function" % name, "%s:" % name)


def plan2(wb, xb, pre="w0 x0 x1 w1 x2", xfirst=False):
    p = [(-1, t[0], int(t[1:])) for t in pre.split()]
    w0, x0 = 9 - len(wb), 18 - len(xb)
    for b in range(18):
        w = [(b, "w", s) for s in range(w0, 9) if wb[s - w0] == b]
        x = [(b, "x", s) for s in range(x0, 18) if xb[s - x0] == b]
        p += x + w if xfirst else w + x
    return p


DEF = dict(plan=plan2([0, 0, 1, 2, 3, 4, 5], [0, 1, 2, 3, 4, 5, 6, 6, 7, 7, 8, 9, 9, 10, 10]), early0=1, npre=4, dmapos=0, align=1, tag_step=4, flag_step=13, flag_pos='side0',
           poll_step=16, check_step=16, init_steps=(15, 3), e_sleep=0, pf_code=1, pf_x=1, idle_sleep=2, canary=1, per0=2, per1=1,
           nsolo=6, pos=[2, 6, 14, 18, 22, 26, 30],
           w0=[(1, 0), (1, 2)], kv1=['fill', (0, 1)], st1=[(0, 3), (0, 3)], w1=[(1, 6), (2, 3)], f1=[(2, 1), (2, 5), (2, 6)], pollL=[(5, 0), (6, 2)], kv2=[(6, 2), (6, 2), (6, 3), (6, 3), (6, 3)], w2=[(8, 2), (8, 3)], uswap=1, age=None, qdma=1, tagc=9, k2=0,
           kv3=[(8, 5), (8, 6), (9, 0), (9, 1), (9, 2)], w3=[(13, 2), (16, 3)], wo=[(11, 2), (13, 3), 14, 26], poison=[(9, 2), (10, 2), (25, 5)],
           opoll=[(26, 2), [(30, 3), (30, 6)], [(27, 3), (29, 0)]], hint=(31, 3), h_sleep=0, e_pipe=0, i_pipe=0, h_pipe=0, warm=1, nopk=[0, 0], xw_sleep=0, try1=0, res4=0, yprio=0, fpk=[0, 1], full=0, xprio2=0, outmod='',
           prio={(0, 4): 2, (2, 2): 1, (6, 3): 0, (7, 5): 3, (26, 0): 2, (30, 3): 1, (31, 2): 0}, priox={(22, 0): 2})


sF0, sF1 = 57, 58
sIDLE = 83
OOB = 0x7ffff000
MASTER = 242


def spin_guard(a, out):
    a("s_add_u32 s%d, s%d, 1" % (sSPIN, sSPIN), "s_cmp_gt_u32 s%d, 0x80000" % sSPIN, "s_cbranch_scc1 %s" % out)


def tag_issue(a):
    a.vmem("buffer_load_dword v%d, off, %s, 0 sc1" % (vTAG, srd(sDBG)), "tag")


def tag_check(a, colds):
    lp = a.uid("tag")
    a.wait(vm="tag")
    a("%s:" % lp, "v_readfirstlane_b32 s%d, v%d" % (sTAG, vTAG), "s_cmp_eq_u32 s%d, 0" % sTAG, "s_cbranch_scc1 %s_r" % lp, "%s_k:" % lp)
    def cold():
        a("%s_r:" % lp); spin_guard(a, lp + "_k")
        a("s_sleep 4", "buffer_load_dword v%d, off, %s, 0 sc1" % (vTAG, srd(sDBG)), "s_waitcnt vmcnt(0)", "s_branch %s" % lp)
    colds.append(cold)


FULL = [1]


def flag_store(a, soff, level, track=True, word=False):
    if word or (level and not FULL[0]):
        a("s_mov_b64 exec, 1")
        x = "buffer_store_dword v%d, off, %s, s%d offset:%d sc1" % (vTAG, srd(sWS), soff, 4 * (level - 1))
    else:
        if level == 0: a("v_mov_b64 %s, 0" % vr(vT, 2))
        if level == 2: a("v_mov_b32 v%d, v%d" % (vT, vTAG), "v_mov_b32 v%d, v%d" % (vT + 1, vTAG))
        a("s_mov_b64 exec, 0xff")
        x = "buffer_store_dwordx4 %s, v%d, %s, s%d offen sc1" % (vr(vTAG if level == 1 else vT, 4), vL16, srd(sWS), soff)
    if track: a.vmem(x, "flag")
    else: a(x)
    a("s_mov_b64 exec, -1")


def poll(a, va, colds, sleep=2, off=0):
    x = "buffer_load_dword v%d, v%d, %s, 0 offen offset:%d sc1" % (vPD, va, srd(sWS), off)
    def issue(): a.vmem(x, "poll")
    def check(mask=None):
        lp = a.uid("poll")
        a.wait(vm="poll")
        a("%s:" % lp, "v_cmp_ne_u32 vcc, s%d, v%d" % (sTAG, vPD))
        if mask is None: a("s_cbranch_vccnz %s_r" % lp)
        else: a("s_and_b32 vcc_lo, vcc_lo, %s" % mask, "s_cbranch_scc1 %s_r" % lp)
        a("%s_k:" % lp)
        def cold():
            a("%s_r:" % lp); spin_guard(a, lp + "_k")
            if sleep: a("s_sleep %d" % sleep)
            a(x, "s_waitcnt vmcnt(0)", "s_branch %s" % lp)
        colds.append(cold)
    return issue, check


def fused_setup(a):
    L = vLANE
    a("s_lshr_b32 s%d, s%d, 1" % (sT0, sHEAD), "s_mul_i32 s%d, s%d, 36" % (sT0, sT0), "s_and_b32 s%d, s%d, 1" % (sT1, sHEAD),
      "s_lshl_b32 s%d, s%d, 4" % (sT1, sT1), "s_add_u32 s%d, s%d, s%d" % (sT0, sT0, sT1),
      "v_min_u32 v%d, 11, v%d" % (vL16, L),
      "v_and_b32 v%d, 1, v%d" % (vPA, vL16), "v_mul_u32_u24 v%d, 19, v%d" % (vPA, vPA), "v_add_u32 v%d, s%d, v%d" % (vPA, sT0, vPA),
      "v_lshrrev_b32 v%d, 2, v%d" % (vL8, vL16), "v_sub_u32 v%d, 2, v%d" % (vL8, vL8), "v_mul_u32_u24 v%d, 576, v%d" % (vL8, vL8),
      "v_add_u32 v%d, v%d, v%d" % (vPA, vPA, vL8), "v_lshrrev_b32 v%d, 7, v%d" % (vPA, vPA),
      "s_lshl1_add_u32 s%d, s%d, s%d" % (sT0, sP, sKH), "s_lshr_b32 s%d, s%d, 1" % (sT1, sP), "s_lshl1_add_u32 s%d, s%d, s%d" % (sT1, sQI, sT1),
      "v_and_b32 v%d, 2, v%d" % (vL16, vL16), "v_lshl_add_u32 v%d, v%d, 2, s%d" % (vL16, vL16, sT0), "v_mov_b32 v%d, s%d" % (vL8, sT1),
      "v_cmp_le_u32 vcc, 8, v%d" % L, "v_lshlrev_b32 v%d, 11, v%d" % (vPA, vPA), "v_add_u32 v%d, %d, v%d" % (vPA, F01, vPA),
      "v_cndmask_b32 v%d, v%d, v%d, vcc" % (vL16, vL16, vL8),
      "v_lshl_add_u32 v%d, v%d, 7, v%d" % (vPA, vL16, vPA),
      "v_lshlrev_b32 v%d, 4, v%d" % (vL16, L), "v_lshlrev_b32 v%d, 3, v%d" % (vL8, L), "v_add_u32 v%d, 4096, v%d" % (vL8, vL8),
      "s_cmp_eq_u32 s%d, 0" % sFIVE, "s_cselect_b32 s%d, 0x%x, s%d" % (sWOF + 4, OOB - 8192, sWOF + 4))
    late_setup(a); p3_addr(a, vP3)
    a("v_min_u32 v%d, 17, v%d" % (vPW, L), "v_lshlrev_b32 v%d, 2, v%d" % (vPW, vPW), "v_add_u32 v%d, %d, v%d" % (vPW, FW, vPW),
      "s_lshl2_add_u32 s%d, s%d, s%d" % (sT0, sXCD, sRT), "s_lshl2_add_u32 s%d, s%d, s%d" % (sT0, sT0, sKQ),
      "s_lshl_b32 s%d, s%d, 10" % (sT0, sT0), "s_add_u32 s%d, s%d, %d" % (sT0, sT0, FO),
      "v_min_u32 v%d, 7, v%d" % (vPO, L), "v_lshl_add_u32 v%d, v%d, 7, s%d" % (vPO, vPO, sT0),
      "s_lshl2_add_u32 s%d, s%d, s%d" % (sT0, sQI, sP), "s_lshl_b32 s%d, s%d, 5" % (sT0, sT0),
      "s_add_u32 s%d, s%d, s%d" % (sT0, sT0, sHEAD), "s_lshl_b32 s%d, s%d, 7" % (sT0, sT0),
      "s_add_u32 s%d, s%d, %d" % (sT0, sT0, FO), "s_cmp_eq_u32 s%d, 0" % sKH, "s_cselect_b32 s%d, 0x40000000, s%d" % (sPF, sT0))


def tlb_touch(a, cfg):
    l = a.uid("tlb")
    a("s_cmp_lg_u32 s%d, 7" % sWAVE, "s_cbranch_scc1 %s" % l,
      "v_and_b32 v2, 7, v%d" % vLANE, "v_mul_u32_u24 v2, %d, v2" % (4 * PITCH), "v_add_u32 v2, %d, v2" % (PITCH - 128),
      "v_and_b32 v3, 3, v%d" % vLANE, "v_mul_u32_u24 v3, %d, v3" % (16 * OTILE), "v_add_u32 v3, %d, v3" % (OBASE + OTILE - 128),
      "v_cmp_gt_u32 vcc, 8, v%d" % vLANE, "v_mov_b32 v4, %d" % (FW + 1024), "v_cmp_gt_u32 s[%d:%d], 12, v%d" % (sSAVE, sSAVE + 1, vLANE),
      "v_cndmask_b32 v2, v3, v2, vcc", "s_nop 0", "v_cndmask_b32 v2, v4, v2, s[%d:%d]" % (sSAVE, sSAVE + 1),
      "buffer_load_dword v44, v2, %s, 0 offen" % srd(sWS),
      "v_and_b32 v2, 3, v%d" % vLANE, "v_mul_u32_u24 v2, %d, v2" % (786432 - 128),
      "buffer_load_dword v45, v2, %s, 0 offen" % srd(sOUT), "%s:" % l)


vWW, vWC = 158, 159


def word_setup(a):
    a("s_and_b32 s%d, s%d, 1" % (sT0, sHEAD), "s_mul_i32 s%d, s%d, %d" % (sT0, sT0, (-2052) & 0xffffffff), "s_add_u32 s%d, s%d, 2052" % (sT0, sT0),
      "s_lshl3_add_u32 s%d, s%d, s%d" % (sT1, sWAVE, sT0), "v_mov_b32 v%d, s%d" % (vWW, sT1),
      "s_lshl_b32 s%d, s%d, 5" % (sT1, sKH), "s_add_u32 s%d, s%d, s%d" % (sT1, sT1, sT0),
      "v_and_b32 v%d, 3, v%d" % (vWC, vLANE), "v_lshl_add_u32 v%d, v%d, 3, s%d" % (vWC, vWC, sT1))


def word_set(a, stage, track=True, twice=False):
    a("s_mov_b64 exec, 1")
    x = "ds_write_b32 v%d, v0 offset:%d" % (vWW, 64 * stage)
    if twice: x = "ds_write2_b32 v%d, v0, v0 offset0:%d offset1:%d" % (vWW, 16 * stage, 16 * stage + 16)
    if track: a.lds(x)
    else: a(x)
    a("s_mov_b64 exec, -1")


def word_check(a, offs, colds, t=vT):
    xs = ["ds_read_b32 v%d, v%d offset:%d" % (t + k, vWC, o) for k, o in enumerate(offs)]
    def issue():
        for x in xs: a.lds(x, "word")
    def check(track=True):
        l = a.uid("word")
        if track: a.wait(lg="word")
        a("%s:" % l)
        for k in range(len(offs)): a("v_cmp_ne_u32 vcc, s%d, v%d" % (sTAG, t + k), "s_cbranch_vccnz %s_r" % l)
        a("%s_k:" % l)
        def cold():
            a("%s_r:" % l); spin_guard(a, l + "_k"); a("s_sleep 1", xs, "s_waitcnt lgkmcnt(0)", "s_branch %s" % l)
        colds.append(cold)
    return issue, check, xs


def gen_fused(cfg):
    NOPK[:] = cfg["nopk"]; FULL[0] = cfg["full"]; RES4[0] = cfg["res4"]
    a = Asm()
    name = NAME + "_kernel"
    head(a, name)
    prologue(a, "L_exit"); a(";STAMP 0")
    a("s_mov_b32 s%d, 0" % sSPIN, "s_mov_b32 s%d, 0x%x" % (sF1, OOB))
    a("s_mov_b32 s%d, 0" % sIDLE)
    p1_roles(a, "L_idle")
    def setup():
        a("L_setup:")
        p2_setup(a); p3_setup(a); fused_setup(a)
        a("s_cmp_lg_u32 s%d, 0" % sIDLE, "s_cbranch_scc1 L_idle2")
        a("s_lshl_b32 s%d, s%d, 11" % (sT0, sLINE), "s_lshl_b32 s%d, s%d, 7" % (sT1, sG), "s_add_u32 s%d, s%d, s%d" % (sT0, sT0, sT1),
          "s_add_u32 s%d, s%d, %d" % (sT0, sT0, F01),
          "s_cmp_eq_u32 s%d, 0" % sWAVE, "s_cselect_b32 s%d, s%d, s%d" % (sF1, sT0, sF1))
    p1_head(a, cfg, {"setup": setup, "setup2": lambda: flag_store(a, sF1, 0)})
    a("s_cmp_ge_u32 s%d, 9" % sLINE, "s_cbranch_scc1 L_p1v", "s_branch L_p1q")
    vm_head = list(a.vm)
    a("L_idle:"); a.vm = []; a.lg = []
    a("s_waitcnt lgkmcnt(0)")
    a("s_cmp_lg_u32 s2, %d" % MASTER, "s_cbranch_scc1 L_nomaster", "s_cmp_lg_u32 s%d, 0" % sWAVE, "s_cbranch_scc1 L_nomaster",
      "s_mov_b32 s%d, %d" % (sT0, FEPOCH), "buffer_load_dword v2, off, %s, s%d sc1" % (srd(sWS), sT0), "s_waitcnt vmcnt(0)",
      "v_readfirstlane_b32 s%d, v2" % sT1, "s_mul_i32 s%d, s%d, 0x41c64e6d" % (sT1, sT1), "s_add_u32 s%d, s%d, 12345" % (sT1, sT1),
      "s_cmp_eq_u32 s%d, 0" % sT1, "s_cselect_b32 s%d, 12345, s%d" % (sT1, sT1), "v_mov_b32 v2, s%d" % sT1, "s_mov_b64 exec, 1",
      "buffer_store_dword v2, off, %s, 0 sc1" % srd(sDBG), "buffer_store_dword v2, off, %s, s%d sc1" % (srd(sWS), sT0), "s_mov_b64 exec, -1",
      "L_nomaster:")
    if cfg["pf_code"]:
        a("s_getpc_b64 s[%d:%d]" % (sRET, sRET + 1), "L_pc:", "s_sub_u32 s%d, s%d, L_pc-%s" % (sRET, sRET, name), "s_subb_u32 s%d, s%d, 0" % (sRET + 1, sRET + 1),
          "s_cmp_lg_u32 s%d, 7" % sWAVE, "s_cbranch_scc1 L_nopf",
          "s_and_b32 s%d, s%d, 3" % (sT0, sJ), "v_lshl_add_u32 v2, v%d, 2, s%d" % (vLANE, sT0),
          "v_lshlrev_b32 v2, 7, v2", "v_min_u32 v2, L_codeend-%s-4, v2" % name, "global_load_dword v47, v2, s[%d:%d]" % (sRET, sRET + 1), "L_nopf:")
    if cfg["pf_x"]:
        l = a.uid("pf")
        a("s_and_b32 s%d, s%d, 3" % (sT0, sJ), "s_cmp_ge_u32 s%d, 4" % sWAVE, "s_cbranch_scc1 %s" % l,
          "s_lshr_b32 s%d, s%d, 1" % (sT1, sWAVE), "s_lshl1_add_u32 s%d, s%d, s%d" % (sT1, sT0, sT1),
          "s_lshr_b32 s%d, s%d, 2" % (sT2, sXCD), "s_mul_i32 s%d, s%d, 7" % (sT2, sT2), "s_and_b32 s%d, s%d, 2" % (sT3, sXCD),
          "s_lshl1_add_u32 s%d, s%d, s%d" % (sT3, sT3, sT1),
          "s_sub_u32 s%d, s%d, 5" % (sT4, sT3), "s_add_u32 s%d, s%d, 4" % (sT3, sT3), "s_cmp_lt_u32 s%d, 5" % sT1,
          "s_cselect_b32 s%d, 3, s%d" % (sT4, sT4), "s_cselect_b32 s%d, s%d, 8" % (sT3, sT3), "s_add_u32 s%d, s%d, s%d" % (sT2, sT2, sT4),
          "s_mul_i32 s%d, s%d, 3" % (sT4, sT2), "s_add_u32 s%d, s%d, s%d" % (sT3, sT3, sT4))
        mod9(a, sT3, sT4)
        a("s_mul_i32 s%d, s%d, %d" % (sT3, sT3, 64 * 3456), "s_and_b32 s%d, s%d, 1" % (sT4, sWAVE), "s_lshl1_add_u32 s%d, s%d, s%d" % (sT2, sT2, sT4),
          "s_lshl_b32 s%d, s%d, 7" % (sT2, sT2), "s_add_u32 s%d, s%d, s%d" % (sT3, sT3, sT2),
          "v_mul_u32_u24 v2, 3456, v%d" % vLANE, "buffer_load_dword v47, v2, %s, s%d offen" % (srd(sW), sT3), "%s:" % l)
        a("s_barrier",
          "s_and_b32 s%d, s%d, 6" % (sT1, sXCD), "s_lshl1_add_u32 s%d, s%d, s%d" % (sT0, sT1, sT0), "s_and_b32 s%d, s%d, 1" % (sT1, sXCD),
          "s_lshl4_add_u32 s%d, s%d, s%d" % (sT0, sT1, sT0), "s_add_u32 s%d, s%d, 32" % (sT0, sT0), "s_mul_i32 s%d, s%d, %d" % (sT0, sT0, 32 * 1152),
          "s_cmp_ge_u32 s%d, 5" % sWAVE, "s_cselect_b32 s%d, 0x40000000, s%d" % (sT0, sT0),
          "v_min_u32 v2, 287, v0", "v_lshlrev_b32 v2, 7, v2", "buffer_load_dword v47, v2, %s, s%d offen" % (srd(sX), sT0))
    a("s_mov_b64 %s, %s" % (sr(sW, 2), sr(sWO, 2)), "s_mov_b32 s%d, 663552" % (sW + 2))
    a("s_mov_b32 s%d, 1" % sIDLE, "s_branch L_setup")
    def idle2():
      tag_issue(a); p2_init(a)
      wo_role(a, "L_nowo")
      a("s_lshl_b32 s%d, s%d, 2" % (sT0, sLINE), "s_add_u32 s%d, s%d, %d" % (sT0, sT0, FW - 4), "s_cmp_eq_u32 s%d, 0" % sWAVE, "s_cselect_b32 s%d, s%d, s%d" % (sF1, sT0, sF1))
      a("L_nowo:"); a.vm = ["tag"]; a.lg = []
    sF, sPo = cfg["flag_step"], cfg["poll_step"]
    colds = []
    def first_loads(n):
        l = a.uid("fl")
        keep = list(a.vm)
        a("s_cmp_%s_u32 s%d, 3" % (("eq", "lg")[n], sP), "s_cbranch_scc1 %s" % l)
        for k in range(3): kv_piece(a, 0, k)
        if n: a("%s:" % l)
        a("s_cmp_%s_u32 s%d, 2" % (("ge", "lt")[n], sP), "s_cbranch_scc1 %s_e" % l)
        for k in range(3, 5): kv_piece(a, 0, k)
        if n == 0:
            a("s_branch %s_e" % l, "%s:" % l); q_dma(a)
        a("%s_e:" % l)
        a.vm = keep
    for isv in (False, True):
        if cfg["align"]: a(".p2align 12")
        a("L_p1v:" if isv else "L_p1q:")
        a.vm = list(vm_head); a.lg = []
        hooks = {}
        hooks[("side", cfg["tag_step"])] = [lambda: tag_issue(a)]
        hooks[("step", cfg["tagc"])] = lambda: tag_check(a, colds)
        hooks[("waitfor", sF)] = [("st", 0)]
        hooks[(cfg["flag_pos"], sF)] = [lambda: flag_store(a, sF1, 1)]
        pi, pc = poll(a, vPA, colds, sleep=cfg["e_sleep"])
        tmp = Asm(); p2_init(tmp)
        ini = [x.strip() for x in tmp.l]
        st0, nst = cfg["init_steps"]
        n = -(-len(ini) // nst)
        for k in range(nst): hooks.setdefault(("side", st0 + k), []).extend((lambda x=x: a(x)) for x in ini[k * n:(k + 1) * n])
        if sPo < 18: hooks.setdefault(("side", sPo), []).insert(0, pi)
        else: hooks["pre_epi1"] = pi
        cs = cfg["check_step"]
        hooks[("step", cs)] = lambda: (pc(), a(";STAMP 8"))
        hooks[("bar", cs + 1)] = lambda: (first_loads(0), a(";STAMP 1"))
        hooks["pre_epi1"] = lambda: a(";STAMP 2")
        hooks["mid_epi1"] = lambda stores: (a("s_add_u32 s%d, s%d, %d" % (sST2, sST, 256 if isv else 2048)), first_loads(1))
        p1_body(a, isv, cfg, hooks)
        a("s_branch L_attn")
    def idle_rest():
        a("L_idle2:"); a.vm = []; a.lg = []
        idle2()
        pi, pc = poll(a, vPA, colds, sleep=cfg["idle_sleep"])
        tag_check(a, colds); a(";STAMP 16")
        if cfg["canary"]:
            a("s_mov_b64 exec, 0x100"); pi(); pc(); a("s_mov_b64 exec, -1")
            pi, pc = poll(a, vPA, colds, sleep=cfg["e_sleep"])
        pi(); pc(); a(";STAMP 8", "s_barrier"); first_loads(0); a("s_barrier"); first_loads(1)
        a("s_mov_b32 s%d, 0x40000000" % sST, "s_mov_b32 s%d, 0x40000000" % sST2, "v_mov_b32 v%d, 0" % vSTA)
        a("s_branch L_attn")
    if cfg["align"]: a(".p2align 12")
    a("L_attn:", ";STAMP 19"); a.vm = [("kv", 0)]; a.lg = []
    slows = []
    def slow(part, back, done):
        lab = a.uid("slowp"); slows.append((part, lab, back, done)); a("s_cbranch_vccnz %s" % lab)
    ev = {}
    skip = cfg.get("skip", "")
    def at(k, f, name=None):
        if name and name in skip.split(): return
        g = ev.get(k)
        ev[k] = f if g is None else (lambda: (g(), f()))
    def role(kh, f):
        def g():
            l = a.uid("role")
            a("s_cmp_lg_u32 s%d, %d" % (sKH, kh), "s_cbranch_scc1 %s" % l)
            keep = list(a.vm); f(); a.vm = keep
            a("%s:" % l)
        return g
    st1 = ["buffer_store_dwordx4 %s, v%d, %s, s%d offen sc1" % (vr(vACC[1] + 8 * n, 4), vSTA, srd(sWS), (sST, sST2)[n]) for n in range(2)]
    for k in range(2): at(cfg["st1"][k], lambda k=k: a.vmem(st1[k], "st1"))
    def b0():
        l = a.uid("b0")
        if "b0" in ev: ev["b0"]()
        n = len(a.vm) - 1
        if cfg["qdma"]: q_addr(a)
        a("s_setprio 3", "s_waitcnt vmcnt(%d)" % (5 + n), "s_cmp_eq_u32 s%d, 3" % sP, "s_cbranch_scc1 %s" % l, "s_waitcnt vmcnt(%d)" % (2 + n),
          "s_cmp_eq_u32 s%d, 2" % sP, "s_cbranch_scc1 %s" % l, "s_waitcnt vmcnt(%d)" % n, "%s:" % l, ";STAMP 4", "s_barrier", ";STAMP 6")
        if cfg["qdma"]: q_read(a)
    at(("pre", 0), b0)
    def stage(st, pos_set, pos_rd, pos_chk, offs=None, after=None):
        wi, wc, xs = word_check(a, offs or [64 * st], colds)
        at(pos_set, lambda: a.wait(vm=("kv", st)), "kv")
        at(pos_set, lambda: word_set(a, st), "word")
        at(pos_rd, wi, "word")
        at(pos_chk, wc, "word")
        if after: at(pos_chk, after)
    def spread(pos, st):
        if len(pos) == 2: pos = [pos[0]] * 3 + [pos[1]] * 2
        for k, p_ in enumerate(pos): at(p_, lambda k=k: kv_piece(a, st, k), "kv")
    spread(cfg["kv1"], 1)
    stage(0, cfg["w0"][0], cfg["w0"][1], ("prev", 2))
    stage(1, cfg["w1"][0], cfg["w1"][1], ("pre", 4))
    wi, wc, xs = word_check(a, [CHUNK, CHUNK + 32], colds)
    at(cfg["f1"][0], lambda: (a.wait(vm="st1"), word_set(a, CHUNK // 64)))
    at(cfg["f1"][1], wi); at(cfg["f1"][2], role(0, lambda wc=wc: (a("s_waitcnt lgkmcnt(0)"), wc(track=False))))
    at(cfg["f1"][2], lambda: flag_store(a, sF1, 2, word=True))
    pi, pc = poll(a, vPA, colds, off=4)
    at(cfg["pollL"][0], pi, "pollL")
    at(cfg["pollL"][1], pc, "pollL")
    at(cfg["pollL"][1], lambda: (a(";STAMP 9"), q_load(a, 1)))
    spread(cfg["kv2"], 2)
    ev["ql"] = lambda: a.wait(vm=("q", 1))
    stage(2, cfg["w2"][0], cfg["w2"][1], ("pre", 8))
    spread(cfg["kv3"], 3)
    assert cfg["w3"][0] >= (13, 0)
    stage(3, cfg["w3"][0], cfg["w3"][1], ("pre", 12))
    pi2, pc2 = poll(a, vPW, colds)
    at(cfg["wo"][0], pi2, "wo")
    at(cfg["wo"][1], pc2, "wo")
    u0 = cfg["wo"][2]
    k = 0
    for t in range(5):
        for m in range(5):
            if t == 4 and m == 0: u0, k = cfg["wo"][3], 0
            at((u0 + k // 3, (2, 3, 5)[k % 3]), lambda t=t, m=m: wo_load(a, [t], vL16, vL8, only=m), "wo")
            k += 1
    ns = cfg["nsolo"]
    assert ns == 6
    ue = 32 - ns - 1
    def send_e():
        l = a.uid("se")
        a("s_cmp_lg_u32 s%d, 0" % sKH, "s_cbranch_scc1 %s" % l); send_partial(a, 0); a("s_branch %s_e" % l, "%s:" % l)
        finalize(a, 0, slow, colds); a("%s_e:" % l)
        a("v_subrev_u32 v%d, %d, v%d" % (vSA, LDS_SPARE - 12 * CHUNK, vSA))
        word_set(a, 4, twice=True)
    at((ue, 3), send_e, "fin")
    at(cfg["poison"][1], lambda: poison(a), "fin")
    at(cfg["poison"][1], lambda: flag_store(a, sPF, 0))
    at(cfg["poison"][2], lambda: (a.wait(vm="poison"), flag_store(a, sPF, 1)))
    ofs = [(vO[0], vQ[0]), (vS[1], vS[1] + 16)]
    pi3, pc3 = poll(a, vPO, colds)
    for kh in range(2):
        at(cfg["opoll"][1 + kh][0], role(kh, pi3))
        at(cfg["opoll"][1 + kh][1], role(kh, lambda: (a("s_waitcnt vmcnt(0)"), pc3(), o_load(a, ofs[0], "oe", sOL))))
    assert cfg["hint"] > cfg["opoll"][2][1]
    acc = [vV, vS[0]]
    ta = vP3
    at(cfg["hint"], lambda: flag_store(a, sPF, 2))
    wi, wc, xs = word_check(a, [256, 288], colds, t=vQ[0] + 2)
    at((31, 3), wi)
    at((31, 5), lambda: [a.lds(x) for x in fin_reads(1)])
    p2_main(a, cfg, ev)
    a(";STAMP 7")
    if cfg["hint"] == (32, 0): flag_store(a, sPF, 2)
    wc()
    pi4, pc4 = poll(a, vPO, colds, sleep=cfg["h_sleep"], off=4)
    sOM = 35
    for i in range(3): a("s_add_u32 s%d, s%d, %d" % (sOM + i, sOL + i, 32 * OTILE))
    late = lambda: (a(";STAMP 13"), o_load(a, ofs[1], "ol", sOM))
    sGOT = 38
    a("s_mov_b32 s%d, 0" % sGOT, "s_cmp_eq_u32 s%d, 0" % sKH, "s_cbranch_scc1 L_xs")
    if cfg["try1"] == 2: word_set(a, 7)
    def xsend():
        a("L_xs:", "s_nop 2")
        send_partial(a, 1)
        a("s_waitcnt vmcnt(0)", "L_xw:", "ds_read_b32 v%d, v%d offset:480" % (vT, vWW), "s_waitcnt lgkmcnt(0)",
          "v_cmp_ne_u32 vcc, s%d, v%d" % (sTAG, vT), "s_cbranch_vccz L_xw3")
        spin_guard(a, "L_xw3"); a("s_sleep %d" % cfg["xw_sleep"] if cfg["xw_sleep"] else "s_nop 0", "s_branch L_xw")
        a("L_xw3:", "s_setprio %d" % cfg["xprio2"]); pi4()
        if cfg["try1"]:
            a("s_waitcnt vmcnt(0)", "v_cmp_ne_u32 vcc, s%d, v%d" % (sTAG, vPD), "s_cbranch_vccnz L_xw4", "s_mov_b32 s%d, 1" % sGOT)
            word_set(a, 7); late(); a("s_branch L_tail", "L_xw4:"); pi4()
        a("s_branch L_tail")
    colds.insert(0, xsend)
    a("v_xor_b32 v%d, 48, v%d" % (vPA, vWW))
    finalize(a, 1, slow, colds, prefetched=True)
    rdh = "ds_read_b32 v%d, v%d offset:448" % (vT, vPA)
    if cfg["try1"] != 2: word_set(a, 7)
    if cfg["yprio"]: a("s_setprio %d" % cfg["yprio"])
    a("s_waitcnt vmcnt(3)")
    a("L_tail:", ";STAMP 10")
    p3_mfma_all(a, ofs[0], acc[0], vT, colds, 0, ta, sOL)
    word_set(a, 6)
    a(";STAMP 11")
    a("s_cmp_eq_u32 s%d, 0" % sKH, "s_cbranch_scc1 L_hx")
    a("L_hy2:", rdh, "s_waitcnt lgkmcnt(0)", "v_cmp_ne_u32 vcc, s%d, v%d" % (sTAG, vT), "s_cbranch_vccnz L_hy3", "L_hz:")
    def hint_wait():
        a("L_hy3:"); spin_guard(a, "L_hz"); a("s_sleep 1", "s_branch L_hy2")
        a("L_hx:", "s_cmp_lg_u32 s%d, 0" % sGOT, "s_cbranch_scc1 L_hdone"); a.vm = ["poll"]; pc4(); word_set(a, 7); a("s_branch L_hz")
    colds.insert(0, hint_wait)
    late()
    a("L_hdone:")
    a.vm = []; a.lg = []
    wi, wc, xs = word_check(a, [384], colds)
    wi(); wc()
    a("s_cmp_eq_u32 s%d, 0" % sSHF)
    p3_finish(a, 0, ta, vO[0], cfg["outmod"], colds, cfg["fpk"][0])
    a(";STAMP 12")
    p3_mfma_all(a, ofs[1], acc[1], vT, colds, 1, ta, sOM)
    a(";STAMP 14")
    a("s_cmp_eq_u32 s%d, 0" % sSHF, "s_waitcnt lgkmcnt(0)", "s_barrier")
    p3_finish(a, 1, ta, vWO + 2, cfg["outmod"], colds, cfg["fpk"][1])
    a(";STAMP 15", ";STAMPWAIT", ";STAMP 5", ";STAMPEND", "L_exit:", "s_endpgm")
    colds.append(idle_rest)
    k = 0
    while k < len(colds):
        colds[k](); k += 1
    def reload():
        wo_load(a, range(5), vL16, vL8, track=False); a("s_waitcnt vmcnt(0)")
    for part, lab, back, done in slows: slow_path(a, part, lab, back, done, reload)
    a("L_codeend:")
    hdr = ["; @launch grid=(256,1,1) block=(512,1,1) lds=%d" % LDS_TOTAL]
    return finish(a, hdr, [name])


def finish(a, hdr, names):
    errs = lint(a.l)
    for e in errs: print("HAZARD", e, file=sys.stderr)
    out = hdr + ['.amdgcn_target "amdgcn-amd-amdhsa--gfx950"', ".text"] + a.l + ['.section .rodata,"a"']
    for n in names: out += [".p2align 6", kd(n)]
    return "\n".join(out) + "\n"


if __name__ == "__main__":
    mode = sys.argv[1] if len(sys.argv) > 1 else "split"
    out = sys.argv[2] if len(sys.argv) > 2 else "cdna_kernels/%s.s" % NAME
    cfg = dict(DEF)
    for kv in sys.argv[3:]:
        k, v = kv.split("=", 1); cfg[k] = eval(v)
    txt = {"fused": gen_fused}[mode](cfg)
    open(out, "w").write(txt)
    print("wrote", out, len(txt.split("\n")), "lines")
```

```python
import sys, struct, math
from hazard import lint

NAME = "standalone__mha_block__prompt"

PITCH = 221184 + 128
SEC = 73728
OBASE = 32 * PITCH
OTILE = 36864 + 128
WOBASE = OBASE + 64 * OTILE
FBASE = WOBASE + 36 * 4 * 4608
F01 = FBASE
FRND = 27 * 8 * 128
FW = FBASE + 57344
FEPOCH = FW + 512
FO = FBASE + 65536
WS_SIZE = FO + 131072
CHUNK = 4864
LDS_SPARE = 32 * CHUNK
LDS_TOTAL = 163840
SCALE = struct.unpack("<I", struct.pack("<f", math.log2(math.e) / math.sqrt(18.0)))[0]

sX, sW, sWO, sOUT, sWS, sDBG = 4, 8, 12, 16, 20, 24
sWAVE, sXCD, sJ = 28, 29, 30
sTAG = 31
sLINE, sG, sSEC = 32, 33, 34
sXOFF, sWOFF, sM0X, sSCALE, sM0W, sST = 35, 36, 37, 38, 39, 40
sHEAD, sQI, sKH, sP = 41, 42, 43, 44
sVMASK = 46
sDMASK = 48
sCH, sQOFF = 50, 51
sCM = 45
sST2 = 39
sRT, sCB, sKQ, sRH = 52, 53, 54, 55
sFIVE = 56
sT0, sT1, sT2, sT3, sT4, sT5 = 60, 61, 62, 63, 64, 65
sRET = 66
sSPIN = 68
sWOF = 70
sOCOL = 75
sLOOP = 79
sSHF, sC272, sC80 = 69, 82, 59
sSAVE = 80

def srd(s): return "s[%d:%d]" % (s, s + 3)
def vr(a, n=1): return "v%d" % a if n == 1 else "v[%d:%d]" % (a, a + n - 1)
def sr(a, n=1): return "s%d" % a if n == 1 else "s[%d:%d]" % (a, a + n - 1)

vLANE = 1
vQ = [2, 8]
vIDX = 14
vAK, vAR, vAV = 15, 16, 17
vDMA = 18
vQA, vQR = 22, 23
vT = 24
vSA, vSB, vOA, vOB = 26, 27, 28, 29
vP3 = 30
vPW, vPO = 36, 37
vPA, vPD, vL16, vL8 = 38, 39, 40, 41
vTAG = 0
vAK1 = 47
vXS = 8
vWS = 9
vXR = 11
vWR = 42
vSTA = 46
vACC = [48, 64]
vXF = [80, 96]
vWF = 112
vWO = 42
vV = 132
vK = 148
vKR = 156
vO = [160, 176]
vS = [192, 224]


class Asm:
    def __init__(self):
        self.l = []
        self.vm = []
        self.lg = []
        self.n = 0
        self.clock = 0
        self.lgt = []
        self.age = None

    def __call__(self, *lines):
        for s in lines:
            if isinstance(s, (list, tuple)):
                self(*s)
            elif s.endswith(":") or s.startswith((".", ";")):
                self.l.append(s)
            else:
                self.l.append("    " + s)

    def uid(self, p):
        self.n += 1
        return "L_%s_%d" % (p, self.n)

    def vmem(self, s, tag):
        self(s); self.vm.append(tag)
        assert len(self.vm) <= 63

    def lds(self, s, tag=None):
        self(s); self.lg.append(tag); self.lgt.append(self.clock)

    def _cnt(self, q, tags):
        if not isinstance(tags, (list, set)): tags = [tags]
        last = max([k for k, t in enumerate(q) if t in tags], default=-1)
        return None if last < 0 else len(q) - 1 - last

    def wait(self, vm=None, lg=None):
        parts = []
        if vm is not None:
            n = 0 if vm == "all" else self._cnt(self.vm, vm)
            if n is not None:
                parts.append("vmcnt(%d)" % n); self.vm = self.vm[len(self.vm) - n:]
        if lg is not None:
            n = 0 if lg == "all" else self._cnt(self.lg, lg)
            if n is not None:
                if self.age is not None:
                    while n > 0 and self.clock - self.lgt[len(self.lgt) - n] >= self.age: n -= 1
                n = min(n, 15)
                parts.append("lgkmcnt(%d)" % n); self.lg = self.lg[len(self.lg) - n:]
        if parts: self("s_waitcnt " + " ".join(parts))


def prologue(a, endlabel):
    a(";STAMPINIT", ";STAMP 3", "s_cmp_ge_u32 s2, 256", "s_cbranch_scc1 %s" % endlabel)
    for k, s in enumerate((sX, sW, sWO, sOUT, sDBG, sWS)):
        a("s_load_dwordx2 %s, s[0:1], %d" % (sr(s, 2), 8 * k))
    for s, n in ((sX, 2359296), (sW, 1990656), (sWO, 663552), (sOUT, 2359296), (sDBG, 256), (sWS, WS_SIZE)):
        a("s_mov_b32 s%d, %d" % (s + 2, n), "s_mov_b32 s%d, 0x00020000" % (s + 3))
    a("v_lshrrev_b32 v2, 6, v0", "v_and_b32 v%d, 63, v0" % vLANE, "v_readfirstlane_b32 s%d, v2" % sWAVE,
      "s_and_b32 s%d, s2, 7" % sXCD, "s_lshr_b32 s%d, s2, 3" % sJ)


def p1_roles(a, idle):
    a("s_cmp_ge_u32 s%d, 28" % sJ, "s_cbranch_scc1 %s" % idle,
      "s_lshr_b32 s%d, s%d, 1" % (sT1, sXCD), "s_mul_i32 s%d, s%d, 28" % (sT1, sT1), "s_add_u32 s%d, s%d, s%d" % (sT1, sT1, sJ),
      "s_lshr_b32 s%d, s%d, 3" % (sLINE, sT1), "s_and_b32 s%d, s%d, 7" % (sT5, sT1),
      "s_and_b32 s%d, s%d, 1" % (sG, sXCD), "s_lshl3_add_u32 s%d, s%d, s%d" % (sG, sG, sT5))


XBASE = 98304
def xslot(s): return XBASE + 8192 * (s % 8)
def wslot(s): return 16384 * (s % 6)


def mod9(a, d, t):
    a("s_mul_i32 s%d, s%d, 57" % (t, d), "s_lshr_b32 s%d, s%d, 9" % (t, t), "s_mul_i32 s%d, s%d, 9" % (t, t), "s_sub_u32 s%d, s%d, s%d" % (d, d, t))


def rot_die(a, cfg, d, t):
    if cfg["rotx"] == 1: a("s_lshr_b32 s%d, s%d, 1" % (t, sXCD), "s_add_u32 s%d, s%d, s%d" % (d, d, t))
    if cfg["rotx"] == 2: a("s_add_u32 s%d, s%d, s%d" % (d, d, sXCD))
    if cfg["rotx"] == 3:
        a("s_lshr_b32 s%d, s%d, 1" % (t, sXCD), "s_add_u32 s%d, s%d, s%d" % (d, d, t), "s_and_b32 s%d, s%d, 1" % (t, sXCD), "s_lshl2_add_u32 s%d, s%d, s%d" % (d, t, d))


def p1_issue(a, kind, s):
    if kind == "w":
        def f0():
            a("s_add_u32 m0, s%d, %d" % (sM0W, wslot(s)))
            if s: a("s_add_u32 s%d, s%d, %d" % (sWOFF, sWOFF, 64 * 3456), "s_cmp_eq_u32 s%d, %d" % (sWOFF, 576 * 3456), "s_cselect_b32 s%d, 0, s%d" % (sWOFF, sWOFF))
            else: a("s_nop 0")
            a.vmem("buffer_load_dwordx4 v%d, %s, s%d offen lds" % (vWS, srd(sW), sWOFF), ("w", s))
        def f1():
            a.vmem("buffer_load_dwordx4 v%d, %s, s%d offen offset:1024 lds" % (vWS + 1, srd(sW), sWOFF), ("w", s))
        return [f0, f1]
    def fx():
        a("s_add_u32 m0, s%d, %d" % (sM0X, xslot(s)))
        if s: a("s_add_u32 s%d, s%d, 128" % (sXOFF, sXOFF), "s_cmpk_eq_u32 s%d, 1152" % sXOFF, "s_cselect_b32 s%d, 0, s%d" % (sXOFF, sXOFF))
        else: a("s_nop 0")
        if s == 9: a("v_add_u32 v%d, %d, v%d" % (vXS, 1024 * 1152, vXS))
        a.vmem("buffer_load_dwordx4 v%d, %s, s%d offen lds" % (vXS, srd(sX), sXOFF), ("d", s))
    return [fx]


def p1_head(a, cfg, hooks):
    L = vLANE
    t0, t1, t2, t3 = 38, 39, 40, 41
    a("s_and_b32 s%d, s%d, 1" % (sT0, sWAVE), "s_lshl_b32 s%d, s%d, 2" % (sT1, sT0),
      "v_lshrrev_b32 v%d, 4, v%d" % (t0, L), "v_add_u32 v%d, s%d, v%d" % (t1, sT1, t0),
      "v_and_b32 v%d, 15, v%d" % (t2, L), "v_lshlrev_b32 v%d, 1, v%d" % (t3, t1), "v_xor_b32 v%d, v%d, v%d" % (t2, t2, t3),
      "s_mul_i32 s%d, s%d, %d" % (sT2, sWAVE, 8 * 3456), "s_lshl_b32 s%d, s%d, 8" % (sT3, sLINE), "s_add_u32 s%d, s%d, s%d" % (sT2, sT2, sT3),
      "v_mul_u32_u24 v%d, 3456, v%d" % (t0, t0), "v_lshl_add_u32 v%d, v%d, 4, s%d" % (vWS, t2, sT2),
      "s_cmp_eq_u32 s%d, 13" % sLINE, "s_cselect_b32 s%d, 8, 0" % sT3, "v_and_b32 v%d, s%d, v%d" % (t2, sT3, t2),
      "v_lshl_add_u32 v%d, v%d, 26, v%d" % (t0, t2, t0), "v_add_u32 v%d, v%d, v%d" % (vWS, vWS, t0),
      "v_add_u32 v%d, %d, v%d" % (vWS + 1, 4 * 3456 - 1024, vWS))
    a("s_mul_i32 s%d, s%d, 3" % (sT2, sLINE), "s_add_u32 s%d, s%d, s%d" % (sT2, sT2, sT5))
    rot_die(a, cfg, sT2, sT3)
    mod9(a, sT2, sT3)
    a("s_lshl_b32 s%d, s%d, 7" % (sXOFF, sT2), "s_mul_i32 s%d, s%d, %d" % (sWOFF, sT2, 64 * 3456),
      "s_lshl_b32 s%d, s%d, 10" % (sM0X, sWAVE), "s_lshl_b32 s%d, s%d, 11" % (sM0W, sWAVE))
    a("v_lshrrev_b32 v%d, 3, v%d" % (t0, L), "v_and_b32 v%d, 7, v%d" % (t2, L), "v_xor_b32 v%d, v%d, v%d" % (t2, t2, t1),
      "s_cmp_ge_u32 s%d, 9" % sLINE, "s_cselect_b32 s%d, 2, 0" % sT3, "s_cselect_b32 s%d, 4, 7" % sT4,
      "s_bfe_u32 s%d, s%d, 0x10001" % (sT1, sWAVE), "s_lshl_b32 s%d, s%d, s%d" % (sT1, sT1, sT3),
      "s_lshl4_add_u32 s%d, s%d, s%d" % (sT1, sT0, sT1), "s_and_b32 s%d, s%d, 4" % (sT2, sWAVE), "s_lshl3_add_u32 s%d, s%d, s%d" % (sT1, sT2, sT1),
      "s_lshl_b32 s%d, s%d, 6" % (sT2, sG), "s_add_u32 s%d, s%d, s%d" % (sT1, sT1, sT2),
      "v_and_b32 v%d, s%d, v%d" % (t3, sT4, t0), "v_add3_u32 v%d, v%d, v%d, s%d" % (t3, t3, t0, sT1),
      "v_mul_u32_u24 v%d, 1152, v%d" % (t3, t3), "v_lshl_add_u32 v%d, v%d, 4, v%d" % (vXS, t2, t3))
    a("s_waitcnt lgkmcnt(0)", ";STAMP 17")

    issue = lambda kind, s: p1_issue(a, kind, s)
    plan = cfg["plan"]
    assert sorted((k, s) for _, k, s in plan) == sorted([("w", s) for s in range(9)] + [("x", s) for s in range(18)])
    for b, kind, s in plan:
        assert b < s and (kind == "w" and (s < 6 or b >= s - 5) or kind == "x" and (s < 8 or b >= s - 7))
    pre = [(kind, s) for b, kind, s in plan if b < 0]
    for kind, s in pre[:cfg["npre"]]:
        for f in issue(kind, s): f()
    t0, t1, t2, t3 = 48, 49, 50, 51
    hooks["setup"]()

    a("s_lshr_b32 s%d, s%d, 2" % (sT0, sWAVE), "s_and_b32 s%d, s%d, 3" % (sT1, sWAVE),
      "s_lshl_b32 s%d, s%d, 12" % (sT2, sT0), "s_add_u32 s%d, s%d, %d" % (sT2, sT2, XBASE),
      "v_and_b32 v%d, 15, v%d" % (t0, L), "v_lshrrev_b32 v%d, 4, v%d" % (t1, L),
      "v_bfe_u32 v%d, v%d, 1, 3" % (t2, L), "v_xor_b32 v%d, v%d, v%d" % (t2, t2, t1),
      "v_lshlrev_b32 v%d, 4, v%d" % (t2, t2),
      "v_lshl_add_u32 v%d, v%d, 7, s%d" % (t3, t0, sT2),
      "v_add_u32 v%d, v%d, v%d" % (vXR, t2, t3), "v_xor_b32 v%d, 64, v%d" % (vXR + 1, vXR))
    a("v_bfe_u32 v%d, v%d, 2, 2" % (t2, L), "v_lshl_add_u32 v%d, v%d, 3, v%d" % (t2, t1, t2),
      "v_lshlrev_b32 v%d, 8, v%d" % (vWR, t2),
      "v_and_b32 v%d, 3, v%d" % (t2, L), "v_lshl_add_u32 v%d, v%d, 3, v%d" % (vWR, t2, vWR),
      "s_lshl_b32 s%d, s%d, 1" % (sT2, sT1),
      "v_bfe_u32 v%d, v%d, 2, 3" % (t2, L), "v_xor_b32 v%d, s%d, v%d" % (t2, sT2, t2),
      "v_lshl_add_u32 v%d, v%d, 5, v%d" % (vWR, t2, vWR),
      "v_xor_b32 v%d, 32, v%d" % (vWR + 1, vWR),
      "v_add_u32 v%d, 0x10000, v%d" % (vWR + 2, vWR), "v_add_u32 v%d, 0x10000, v%d" % (vWR + 3, vWR + 1))
    a("s_mul_i32 s%d, s%d, %d" % (sST, sG, PITCH), "v_lshlrev_b32 v%d, 4, v%d" % (t0, t0),
      "s_lshl2_add_u32 s%d, s%d, s%d" % (sT2, sLINE, sT1),
      "s_cmp_ge_u32 s%d, 54" % sT2, "s_cselect_b32 s%d, 0x40000000, s%d" % (sST, sST),
      "s_mov_b32 s%d, 0x%08x" % (sT4, SCALE), "s_cmp_lt_u32 s%d, 18" % sT2, "s_cselect_b32 s%d, s%d, 1.0" % (sSCALE, sT4),
      "s_movk_i32 s%d, 256" % sT4, "s_movk_i32 s%d, 512" % sT5, "s_cmp_ge_u32 s%d, 9" % sLINE,
      "s_cselect_b32 s%d, %d, s%d" % (sT4, 4 * 9216, sT4), "s_cselect_b32 s%d, 9216, s%d" % (sT5, sT5),
      "s_cselect_b32 s%d, 9, 12" % sT1, "s_cselect_b32 s%d, %d, 0" % (sT3, 2 * SEC - 18 * 1024),
      "s_mul_i32 s%d, s%d, s%d" % (sT0, sT0, sT4), "s_lshl_b32 s%d, s%d, s%d" % (sT2, sT2, sT1),
      "s_add_u32 s%d, s%d, s%d" % (sST, sST, sT3), "s_add_u32 s%d, s%d, s%d" % (sST, sST, sT2), "s_add_u32 s%d, s%d, s%d" % (sST, sST, sT0),
      "v_mad_u32_u24 v%d, v%d, s%d, v%d" % (vSTA, t1, sT5, t0))
    a(";STAMP 18")
    for kind, s in pre[cfg["npre"]:]:
        for f in issue(kind, s): f()
    hooks["setup2"]()


def p1_body(a, isv, cfg, hooks):
    issue = lambda kind, s: p1_issue(a, kind, s)
    plan = cfg["plan"]

    def reads(s):
        r = []
        for m in range(2):
            for t in range(2):
                r.append("ds_read_b128 %s, v%d offset:%d" % (vr(vXF[s % 2] + 8 * m + 4 * t, 4), vXR + m, xslot(s) - XBASE + 2048 * t))
                if s < 9:
                    for h in range(2):
                        r.append("ds_read_b64_tr_b16 %s, v%d offset:%d" % (vr(vWF + 16 * s + 8 * m + 4 * t + 2 * h, 2), vWR + t + 2 * (wslot(s) >> 16),
                                                                           (wslot(s) & 0xffff) + (32 * m + 4 * h) * 256))
        return [(lambda x=x: a.lds(x)) for x in r]

    def mfmas(s):
        r = []
        for m in range(2):
            for ft in range(2):
                for tt in range(2):
                    acc = vr(vACC[s // 9] + 8 * ft + 4 * tt, 4)
                    w = vr(vWF + 16 * (s % 9) + 8 * m + 4 * ft, 4); x = vr(vXF[s % 2] + 8 * m + 4 * tt, 4)
                    c = "0" if (s % 9 == 0 and m == 0) else acc
                    r.append("v_mfma_f32_16x16x32_bf16 %s, %s, %s, %s" % ((acc, x, w, c) if isv else (acc, w, x, c)))
        return r

    def store(r, n):
        a.vmem("buffer_store_dwordx4 %s, v%d, %s, s%d offen offset:%d sc1" % (vr(vACC[r] + 8 * n, 4), vSTA, srd(sWS), sST, (256 if isv else 2048) * n), ("st", r))

    def epilogue(r):
        acc = vACC[r]
        mid = hooks.get("mid_epi1") if r else None
        for n in range(2):
            if not isv:
                for i in range(8 * n, 8 * n + 8, 2): a("v_pk_mul_f32 %s, %s, %s op_sel_hi:[1,0]" % (vr(acc + i, 2), vr(acc + i, 2), sr(sSCALE, 2)))
            for i in range(4): a("v_cvt_pk_bf16_f32 v%d, v%d, v%d" % (acc + 8 * n + i, acc + 8 * n + 2 * i, acc + 8 * n + 2 * i + 1))
            if not mid: store(r, n)
        if mid: mid(lambda: (store(r, 0), store(r, 1)))
        if r == 0: a("s_add_u32 s%d, s%d, %d" % (sST, sST, 16 * PITCH))

    for s in range(18):
        extra = hooks.get(("waitfor", s), [])
        a.wait(vm=[("d", s)] + [("w", s)] + extra, lg="all")
        a("s_barrier")
        a(";STAMP %d" % (20 + s))
        hooks.get(("bar", s), lambda: None)()
        side = reads(s)
        xp = cfg.get("x_p1", "")
        if "noread" in xp: side = []
        if "nowread" in xp: side = side[0::3] if s < 9 else side
        dm = []
        for b, kind, s2 in plan:
            if b == s and "nodma" not in xp: dm += issue(kind, s2)
        if cfg["dmapos"] == 0 or s >= 9: side += dm
        elif cfg["dmapos"] == 1: side = dm + side
        else:
            k = max(1, len(side) // max(1, len(dm))); mix = []
            while side or dm:
                mix += side[:k] + dm[:1]; side = side[k:]; dm = dm[1:]
            side = mix
        mm = mfmas(s - 1) if s > 0 else []
        if cfg["early0"] and s == 9: mm = []
        if "nomfma" in xp: mm = []
        side = hooks.get(("side0", s), []) + side + hooks.get(("side", s), [])
        per = max(cfg["per1"], -(-len(side) // 8))
        for x in mm:
            a(x)
            for f in side[:per]: f()
            side = side[per:]
        for f in side: f()
        if cfg["early0"] and s == 8:
            a.wait(lg="all"); a(mfmas(8))
        if s == (8 if cfg["early0"] else 9):
            a("s_nop 5")
            epilogue(0)
            a(";STAMP 39")
        hooks.get(("step", s), lambda: None)()
    a.wait(lg="all")
    a(mfmas(17))
    hooks.get("pre_epi1", lambda: None)()
    a("s_nop 5")
    epilogue(1)
    a(";STAMP 38")
    hooks.get("post_epi1", lambda: None)()


def wo_role(a, skip):
    L = vLANE
    t0, t1, t2, t3 = 42, 43, 44, 45
    a("s_sub_u32 s%d, s2, 224" % sLINE, "s_cmp_ge_u32 s%d, 18" % sLINE, "s_cbranch_scc1 %s" % skip)
    a("s_lshl_b32 s%d, s%d, 3" % (sT0, sWAVE), "v_lshrrev_b32 v%d, 3, v%d" % (t0, L), "v_add_u32 v%d, s%d, v%d" % (t0, sT0, t0),
      "v_mul_u32_u24 v%d, 1152, v%d" % (t0, t0), "v_and_b32 v%d, 7, v%d" % (t1, L), "v_lshl_add_u32 v%d, v%d, 4, v%d" % (t0, t1, t0),
      "s_lshr_b32 s%d, s%d, 1" % (sT4, sLINE), "s_lshl_b32 s%d, s%d, 7" % (sT1, sT4), "s_and_b32 s%d, s%d, 1" % (sT5, sLINE),
      "s_mul_i32 s%d, s%d, %d" % (sT2, sT5, 288 * 1152), "s_add_u32 s%d, s%d, s%d" % (sT1, sT1, sT2),
      "s_lshl_b32 s%d, s%d, 10" % (sT2, sWAVE))
    for k in range(5):
        a("s_add_u32 m0, s%d, %d" % (sT2, 8192 * k))
        if k == 4: a("s_cmp_ge_u32 s%d, 4" % sWAVE, "s_cselect_b32 s%d, 0x40000000, s%d" % (sT1, sT1))
        else: a("s_nop 0")
        a.vmem("buffer_load_dwordx4 v%d, %s, s%d offen lds" % (t0, srd(sW), sT1), "wo")
        if k < 4: a("s_add_u32 s%d, s%d, %d" % (sT1, sT1, 64 * 1152))
    a("s_and_b32 s%d, s%d, 3" % (sT0, sWAVE), "s_lshr_b32 s%d, s%d, 2" % (sT1, sWAVE),
      "s_mul_i32 s%d, s%d, 144" % (sT3, sT1), "s_lshl_b32 s%d, s%d, 5" % (sT2, sT0),
      "v_lshrrev_b32 v%d, 5, v%d" % (t0, L), "v_mul_u32_u24 v%d, 18, v%d" % (t0, t0),
      "v_bfe_u32 v%d, v%d, 2, 3" % (t1, L),
      "v_add3_u32 v%d, v%d, v%d, s%d" % (t0, t0, t1, sT3),
      "v_and_b32 v%d, 3, v%d" % (t2, L), "v_lshl_add_u32 v%d, v%d, 3, s%d" % (t2, t2, sT2),
      "v_lshl_add_u32 v%d, v%d, 7, v%d" % (t0, t0, t2),
      "v_lshrrev_b32 v%d, 3, v%d" % (t1, L), "v_mul_u32_u24 v%d, 18, v%d" % (t1, t1),
      "v_bfe_u32 v%d, v%d, 2, 1" % (t3, L), "s_add_u32 s%d, s%d, 16" % (sT3, sT3),
      "v_add3_u32 v%d, v%d, v%d, s%d" % (t1, t1, t3, sT3),
      "v_lshl_add_u32 v%d, v%d, 7, v%d" % (t1, t1, t2))
    a("s_lshl2_add_u32 s%d, s%d, s%d" % (sT2, sT4, sT0), "s_lshl1_add_u32 s%d, s%d, s%d" % (sT2, sT2, sT5), "s_lshl1_add_u32 s%d, s%d, s%d" % (sT2, sT2, sT1),
      "s_mul_i32 s%d, s%d, 4608" % (sT2, sT2), "s_add_u32 s%d, s%d, %d" % (sT2, sT2, WOBASE), "s_add_u32 s%d, s%d, 4096" % (sT4, sT2),
      "v_lshlrev_b32 v%d, 4, v%d" % (t2, L), "v_lshlrev_b32 v%d, 3, v%d" % (t3, L))
    a.wait(vm="all"); a("s_barrier")
    for m in range(4):
        for h in range(2):
            a.lds("ds_read_b64_tr_b16 %s, v%d offset:%d" % (vr(48 + 4 * m + 2 * h, 2), t0, (36 * m + 8 * h) * 128))
    a.lds("ds_read_b64_tr_b16 v[64:65], v%d" % t1)
    a.wait(lg="all")
    for m in range(4):
        a.vmem("buffer_store_dwordx4 %s, v%d, %s, s%d offen offset:%d sc1" % (vr(48 + 4 * m, 4), t2, srd(sWS), sT2, 1024 * m), "st")
    a.vmem("buffer_store_dwordx2 v[64:65], v%d, %s, s%d offen sc1" % (t3, srd(sWS), sT4), "st")


def p2_setup(a):
    L = vLANE
    t0, t1, t2, t3 = 38, 39, 40, 41
    a("s_lshl_b32 s%d, s%d, 2" % (sHEAD, sXCD), "s_lshr_b32 s%d, s%d, 3" % (sT0, sJ), "s_add_u32 s%d, s%d, s%d" % (sHEAD, sHEAD, sT0),
      "s_and_b32 s%d, s%d, 7" % (sQI, sJ), "s_and_b32 s%d, s%d, 3" % (sP, sWAVE), "s_lshr_b32 s%d, s%d, 2" % (sKH, sWAVE),
      "s_mov_b32 s%d, 0x3ffff" % sVMASK, "s_mov_b32 s%d, 0x3ffff" % (sVMASK + 1),
      "s_mov_b32 s%d, -1" % sDMASK, "s_mov_b32 s%d, 0xffff" % (sDMASK + 1),
      "s_and_b32 s%d, s%d, 1" % (sT0, sHEAD),
      "s_lshr_b32 s%d, s%d, 1" % (sT1, sHEAD), "s_mul_i32 s%d, s%d, %d" % (sT1, sT1, 9 * 512))
    a("v_and_b32 v%d, 31, v%d" % (t0, L), "v_lshrrev_b32 v%d, 5, v%d" % (t1, L))
    a("s_lshl_b32 s%d, s%d, 11" % (sT2, sT0), "s_add_u32 s%d, s%d, s%d" % (sT2, sT2, sT1), "s_add_u32 s%d, s%d, %d" % (sT2, sT2, SEC),
      "v_lshl_add_u32 v%d, v%d, 4, s%d" % (vDMA, L, sT2),
      "s_mul_i32 s%d, s%d, 288" % (sT3, sHEAD))
    for k in (2, 3, 4):
        imm = 1024 * k if k < 4 else 0
        d = vDMA + k - 1
        a("v_add_u32 v%d, %d, v%d" % (t2, (64 * k - 160) & 0xffffffff, L))
        if k == 2: a("v_max_i32 v%d, 0, v%d" % (t2, t2))
        a("v_mul_u32_u24 v%d, 3641, v%d" % (t3, t2), "v_lshrrev_b32 v%d, 16, v%d" % (t3, t3),
          "v_mul_u32_u24 v%d, %d, v%d" % (t3, 9216 - 288, t3),
          "v_lshl_add_u32 v%d, v%d, 4, v%d" % (t3, t2, t3),
          "s_add_u32 s%d, s%d, %d" % (sT4, sT3, 2 * SEC - imm),
          "v_add_u32 v%d, s%d, v%d" % (d, sT4, t3))
        if k == 2:
            a("v_cmp_gt_u32 vcc, 32, v%d" % L, "s_nop 1", "v_cndmask_b32 v%d, v%d, v%d, vcc" % (d, d, vDMA))
    a("s_mul_i32 s%d, s%d, %d" % (sT2, sKH, CHUNK),
      "s_lshl_b32 s%d, s%d, 9" % (sT3, sT0), "s_add_u32 s%d, s%d, s%d" % (sT3, sT3, sT2),
      "v_lshlrev_b32 v%d, 10, v%d" % (t2, t1), "v_lshl_add_u32 v%d, v%d, 3, v%d" % (t2, t0, t2),
      "v_add_u32 v%d, s%d, v%d" % (vAK, sT3, t2),
      "s_mul_i32 s%d, s%d, %d" % (sT3, sT0, (4 - 2048) & 0xffffffff), "s_add_u32 s%d, s%d, 2048" % (sT3, sT3),
      "s_add_u32 s%d, s%d, s%d" % (sT3, sT3, sT2),
      "v_lshl_add_u32 v%d, v%d, 3, s%d" % (vAR, L, sT3),
      "s_add_u32 s%d, s%d, 2560" % (sT3, sT2),
      "v_mul_u32_u24 v%d, 288, v%d" % (t3, t1), "v_lshl_add_u32 v%d, v%d, 4, v%d" % (t3, t0, t3),
      "v_add_u32 v%d, s%d, v%d" % (vAV, sT3, t3))
    a("s_mul_i32 s%d, s%d, %d" % (sT3, sT0, 5 * 512), "s_add_u32 s%d, s%d, s%d" % (sT3, sT3, sT1),
      "v_add_u32 v%d, s%d, v%d" % (vQA, sT3, t2),
      "s_lshl_b32 s%d, s%d, 2" % (sT3, sT0), "s_add_u32 s%d, s%d, s%d" % (sT3, sT3, sT1), "s_add_u32 s%d, s%d, 2048" % (sT3, sT3),
      "v_lshl_add_u32 v%d, v%d, 3, s%d" % (vQR, t0, sT3),
      "s_lshl_b32 s%d, s%d, 1" % (sT3, sQI), "s_lshr_b32 s%d, s%d, 1" % (sT4, sP), "s_add_u32 s%d, s%d, s%d" % (sT3, sT3, sT4),
      "s_mul_i32 s%d, s%d, %d" % (sQOFF, sT3, PITCH), "s_and_b32 s%d, s%d, 1" % (sT4, sP), "s_lshl_b32 s%d, s%d, 8" % (sT4, sT4),
      "s_add_u32 s%d, s%d, s%d" % (sQOFF, sQOFF, sT4),
      "s_lshl1_add_u32 s%d, s%d, s%d" % (sT0, sP, sKH), "s_mul_i32 s%d, s%d, %d" % (sCM, sT0, CHUNK), "s_mul_i32 s%d, s%d, %d" % (sCH, sT0, PITCH),
      "v_mov_b32 v%d, 0xdddddddd" % vIDX, "v_mov_b32 v%d, 0" % (vQ[0] + 5), "v_mov_b32 v%d, 0" % (vQ[1] + 5))


def q_load(a, part):
    so = sQOFF
    if part:
        a("s_add_u32 s%d, s%d, %d" % (sT0, sQOFF, 16 * PITCH)); so = sT0
    q = vQ[part]
    a.vmem("buffer_load_dwordx2 %s, v%d, %s, s%d offen sc1" % (vr(q, 2), vQA, srd(sWS), so), ("q", part))
    a.vmem("buffer_load_dwordx2 %s, v%d, %s, s%d offen offset:512 sc1" % (vr(q + 2, 2), vQA, srd(sWS), so), ("q", part))
    a.vmem("buffer_load_dword v%d, v%d, %s, s%d offen sc1" % (q + 4, vQR, srd(sWS), so), ("q", part))


def kv_piece(a, st, k):
    if k == 0: a("s_add_u32 m0, s%d, %d" % (sCM, 8 * st * CHUNK), "s_add_u32 s%d, s%d, %d" % (sCH, sCH, 8 * PITCH) if st else "s_nop 0")
    if k < 4:
        a.vmem("buffer_load_dwordx4 v%d, %s, s%d offen offset:%d sc1 lds" % (vDMA + max(0, k - 1), srd(sWS), sCH, 1024 * k), ("kv", st))
    else:
        a("s_add_u32 m0, m0, 4096", "s_mov_b64 exec, %s" % sr(sDMASK, 2))
        a.vmem("buffer_load_dwordx4 v%d, %s, s%d offen sc1 lds" % (vDMA + 3, srd(sWS), sCH), ("kv", st))
        a("s_mov_b64 exec, -1")


def kv_dma(a, st):
    for k in range(5): kv_piece(a, st, k)


def q_dma(a):
    a("s_lshl1_add_u32 s%d, s%d, s%d" % (sT1, sQI, sKH), "s_mul_i32 s%d, s%d, %d" % (sT1, sT1, PITCH),
      "s_mul_i32 s%d, s%d, 2560" % (sT0, sKH), "s_add_u32 m0, s%d, %d" % (sT0, LDS_SPARE),
      "v_subrev_u32 v%d, %d, v%d" % (vT, SEC, vDMA))
    for k in range(3):
        if k == 2: a("s_mov_b32 exec_hi, 0")
        a("buffer_load_dwordx4 v%d, %s, s%d offen offset:%d sc1 lds" % (vT, srd(sWS), sT1, 1024 * k))
    a("s_mov_b64 exec, -1")


def q_addr(a):
    a("s_lshr_b32 s%d, s%d, 1" % (sT0, sP), "s_mul_i32 s%d, s%d, 2560" % (sT0, sT0), "s_and_b32 s%d, s%d, 1" % (sT1, sP), "s_lshl_b32 s%d, s%d, 8" % (sT1, sT1),
      "s_add_u32 s%d, s%d, s%d" % (sT0, sT0, sT1), "s_mul_i32 s%d, s%d, %d" % (sT1, sKH, CHUNK), "s_sub_u32 s%d, s%d, s%d" % (sT0, sT0, sT1),
      "s_add_u32 s%d, s%d, %d" % (sT0, sT0, LDS_SPARE),
      "v_add_u32 v%d, s%d, v%d" % (vT, sT0, vAK), "v_and_b32 v%d, 32, v%d" % (vT + 1, vLANE), "v_lshlrev_b32 v%d, 3, v%d" % (vT + 1, vT + 1),
      "v_sub_u32 v%d, v%d, v%d" % (vT + 1, vAR, vT + 1), "v_add_u32 v%d, s%d, v%d" % (vT + 1, sT0, vT + 1))


def q_read(a):
    q = vQ[0]
    a.lds("ds_read_b32 v%d, v%d" % (q + 4, vT + 1), "R")
    for h in range(2): a.lds("ds_read_b64 %s, v%d offset:%d" % (vr(q + 2 * h, 2), vT, 512 * h), ("K", 0))


def v_consts(a, base, t):
    a("s_mov_b32 s%d, 0x440000" % sSAVE, "s_mov_b32 s%d, 0x440000" % (sSAVE + 1), "v_mov_b32 v%d, 0x3f803f80" % t,
      "v_cndmask_b32 v%d, 0, v%d, %s" % (base, t, sr(sSAVE, 2)))
    a("v_mov_b32 v%d, v%d" % (base + 1, base))
    for i in range(1, 8): a("v_mov_b64 %s, %s" % (vr(base + 2 * i, 2), vr(base, 2)))


def p2_init(a):
    word_setup(a)
    v_consts(a, vV, vV + 2)
    a("v_mov_b32 v%d, 0" % (vKR + 1))
    for i in range(16): a("v_mov_b64 %s, 0" % vr(vO[0] + 2 * i, 2))


def p2_main(a, cfg, ev):
    ns = cfg["nsolo"]
    U = [(i, 0) for i in range(ns)] + [(i, q) for i in range(ns, 16) for q in range(2)] + [(i, 1) for i in range(ns)]
    if cfg["uswap"]: U[6:10] = [(6, 0), (7, 0), (7, 1), (6, 1)]
    N = len(U)
    base = {"k": 0, "r": 0, "v": 0, "k0": 0, "k1": 0}
    reg = {"k": vAK, "r": vAR, "v": vAV, "k0": vAK, "k1": vAK1}
    seen = set()

    def off(kind, i):
        if i not in seen:
            seen.add(i)
            if ("pre", i) in ev: ev[("pre", i)]()
        want = (i // 6) * 6
        if base[kind] != want:
            a("v_add_u32 v%d, 0x%x, v%d" % (reg[kind], ((want - base[kind]) * 2 * CHUNK) & 0xffffffff, reg[kind]))
            base[kind] = want
        return (i - want) * 2 * CHUNK

    def rR(i):
        o = off("r", i); a.lds("ds_read_b32 v%d, v%d offset:%d" % (vKR, vAR, o), "R")
    def rK(i, t):
        if cfg["k2"]:
            kind = "k%d" % t
            want = 0 if i < 13 else 13
            if base[kind] != want:
                a("v_add_u32 v%d, 0x%x, v%d" % (reg[kind], ((want - base[kind]) * 2 * CHUNK) & 0xffffffff, reg[kind])); base[kind] = want
            o = (i - want) * 19
            a.lds("ds_read2st64_b64 %s, v%d offset0:%d offset1:%d" % (vr(vK + 4 * t, 4), reg[kind], o, o + 1), ("K", t))
            return
        o = off("k", i)
        for h in range(2): a.lds("ds_read_b64 %s, v%d offset:%d" % (vr(vK + 4 * t + 2 * h, 2), vAK, o + 256 * t + 512 * h), ("K", t))
    def rV(i, fs):
        if ("prev", i) in ev: ev.pop(("prev", i))()
        o = off("v", i)
        if not cfg.get("x_nomask"): a("s_mov_b64 exec, %s" % sr(sVMASK, 2))
        for f in fs: a.lds("ds_read_b128 %s, v%d offset:%d" % (vr(vV + 4 * f, 4), vAV, o + 576 * f), ("V", f // 2))
        if not cfg.get("x_nomask"): a("s_mov_b64 exec, -1")
    def R(u):
        a.wait(lg="R")
        if U[u][1] == 1 and "ql" in ev: ev.pop("ql")()
        a("v_mfma_f32_32x32x4_2b_bf16 %s, %s, %s, 0" % (vr(vS[u % 2], 32), vr(vKR, 2), vr(vQ[U[u][1]] + 4, 2)))
    def M(u, t):
        a.wait(lg=("K", t))
        s = vr(vS[u % 2] + 16 * t, 16)
        a("v_mfma_f32_32x32x16_bf16 %s, %s, %s, %s" % (s, vr(vK + 4 * t, 4), vr(vQ[U[u][1]], 4), s))
    def P(u, f):
        a.wait(lg=("V", f // 2))
        a("v_smfmac_f32_32x32x32_bf16 %s, %s, %s, v%d" % (vr(vO[U[u][1]], 16), vr(vV + 4 * f, 4), vr(vS[u % 2] + 8 * f, 8), vIDX))
    ch = lambda u: U[u][0]
    newk = lambda u: u < N and ch(u) != ch(u - 1)

    rR(ch(0)); rK(ch(0), 0); rK(ch(0), 1)
    rV(ch(0), (0, 1, 2, 3))
    R(0)
    if newk(1): rR(ch(1))
    if "fill" in ev: ev["fill"]()
    a("s_nop 15" if "fill" not in ev else "s_nop 13", "s_nop 1")
    M(0, 0)
    if newk(1): rK(ch(1), 0)
    M(0, 1)
    if newk(1): rK(ch(1), 1)
    a("s_nop 7")
    pos = cfg["pos"]
    a.age = cfg["age"]
    for u in range(N):
        def op(j):
            if j == 0:
                if u > 0:
                    P(u - 1, 3)
                    if newk(u): rV(ch(u), (2, 3))
            elif j == 1:
                if u + 1 < N:
                    R(u + 1)
            elif j == 2: P(u, 0)
            elif j == 3:
                P(u, 1)
                if newk(u + 1): rV(ch(u + 1), (0, 1))
            elif j == 4 or j == 6:
                if u + 1 < N:
                    M(u + 1, (j - 4) // 2)
                    if newk(u + 2):
                        if j == 4: rR(ch(u + 2))
                        rK(ch(u + 2), (j - 4) // 2)
            elif j == 5: P(u, 2)
            if (u, j) in cfg.get("prio", {}): a("s_setprio %d" % cfg["prio"][(u, j)])
            if (u, j) in cfg.get("priox", {}):
                l = a.uid("px"); a("s_cmp_lg_u32 s%d, 0" % sKH, "s_cbranch_scc1 %s" % l, "s_setprio %d" % cfg["priox"][(u, j)], "%s:" % l)
            if (u, j) in ev: ev[(u, j)]()
        a(";STAMP %d" % (40 + u))
        for e in range(32):
            if e in pos: op(pos.index(e))
            a("v_exp_f32 v%d, v%d" % (vS[u % 2] + e, vS[u % 2] + e)); a.clock += 1
    a.age = None
    a("s_nop 1")
    P(N - 1, 3)
    return U


SCR_RES, SCR_ROFF = 12 * CHUNK, (0, 2 * CHUNK)
SCR_MOFF = (0, 0)
P3_BASE, P3_OFF = 15 * CHUNK, (0, 39936)
sOA, sOR = 34, 3
sOL = 12
sPF = 15
vFD = [vWO + 72, vS[0] + 20]


def late_setup(a):
    L = vLANE
    a("s_lshl_b32 s%d, s%d, 11" % (sT0, sP), "s_add_u32 s%d, s%d, %d" % (sT0, sT0, LDS_SPARE), "v_add_u32 v%d, s%d, v%d" % (vSA, sT0, vL16),
      "s_lshl_b32 s%d, s%d, 10" % (sT0, sP), "s_add_u32 s%d, s%d, %d" % (sT0, sT0, SCR_RES), "v_add_u32 v%d, s%d, v%d" % (vSB, sT0, vL16),
      "s_lshl2_add_u32 s%d, s%d, s%d" % (sT0, sQI, sP), "s_mul_i32 s%d, s%d, %d" % (sT0, sT0, OTILE), "s_add_u32 s%d, s%d, %d" % (sT0, sT0, OBASE),
      "s_cmp_eq_u32 s%d, 0" % sKH, "s_cselect_b32 s%d, 0x40000000, s%d" % (sT0, sT0),
      "s_lshl_b32 s%d, s%d, 10" % (sT1, sHEAD), "s_add_u32 s%d, s%d, s%d" % (sOA, sT1, sT0),
      "s_lshl_b32 s%d, s%d, 7" % (sT1, sHEAD), "s_add_u32 s%d, s%d, s%d" % (sOR, sT1, sT0), "s_add_u32 s%d, s%d, 32768" % (sOR, sOR),
      "v_lshrrev_b32 v%d, 4, v%d" % (vOB, L), "v_and_b32 v%d, 15, v%d" % (vT, L),
      "v_lshlrev_b32 v%d, 9, v%d" % (vOA, vOB), "v_lshl_add_u32 v%d, v%d, 4, v%d" % (vOA, vT, vOA),
      "v_lshlrev_b32 v%d, 8, v%d" % (vOB, vOB),
      ["v_and_b32 v%d, 7, v%d" % (vT + 1, vT), "v_lshl_add_u32 v%d, v%d, 4, v%d" % (vOB, vT + 1, vOB), "v_lshrrev_b32 v%d, 3, v%d" % (vT, vT)] if RES4[0] else [],
      "v_lshl_add_u32 v%d, v%d, 2, v%d" % (vOB, vT, vOB),
      "s_lshl2_add_u32 s%d, s%d, s%d" % (sT0, sXCD, sRT), "s_mul_i32 s%d, s%d, %d" % (sT0, sT0, OTILE), "s_add_u32 s%d, s%d, %d" % (sT0, sT0, OBASE),
      "s_lshl_b32 s%d, s%d, 5" % (sT1, sKQ), "s_add_u32 s%d, s%d, s%d" % (sT1, sT1, sRH), "s_lshl_b32 s%d, s%d, 8" % (sT1, sT1),
      "s_add_u32 s%d, s%d, s%d" % (sOL, sT1, sT0), "s_add_u32 s%d, s%d, 4096" % (sOL + 1, sOL),
      "s_lshl_b32 s%d, s%d, 10" % (sT1, sKQ), "s_lshl_b32 s%d, s%d, %d" % (sT2, sRH, 3 if RES4[0] else 6), "s_add_u32 s%d, s%d, s%d" % (sT1, sT1, sT2),
      "s_add_u32 s%d, s%d, s%d" % (sOL + 2, sT1, sT0), "s_add_u32 s%d, s%d, 32768" % (sOL + 2, sOL + 2))


RES4 = [0]


def o_store(a, d, t, part, em):
    sa, sb = sOA, sOR
    if part:
        a("s_add_u32 s%d, s%d, %d" % (sT1, sOA, 32 * OTILE), "s_add_u32 s%d, s%d, %d" % (sT2, sOR, 32 * OTILE)); sa, sb = sT1, sT2
    em("buffer_store_dwordx4 %s, v%d, %s, s%d offen sc1" % (vr(d, 4), vL16, srd(sWS), sa))
    if RES4[0]:
        a("s_mov_b64 exec, 0xff")
        em("buffer_store_dwordx4 %s, v%d, %s, s%d offen sc1" % (vr(t, 4), vL16, srd(sWS), sb))
        a("s_mov_b64 exec, -1")
        return
    a("s_mov_b32 exec_hi, 0")
    em("buffer_store_dword v%d, v%d, %s, s%d offen sc1" % (d + 4, t, srd(sWS), sb))
    a("s_mov_b64 exec, -1")


def poison(a):
    d = vFD[0]
    a("v_mov_b64 %s, -1" % vr(d, 2), "v_mov_b64 %s, -1" % vr(d + 2, 2))
    if not RES4[0]: a("v_mov_b32 v%d, -1" % (d + 4), "v_lshlrev_b32 v%d, 2, v%d" % (vT, vLANE))
    for part in range(2): o_store(a, d, d if RES4[0] else vT, part, lambda x: a.vmem(x, "poison"))


def send_partial(a, part):
    o = vO[part]
    a("v_mov_b32 v%d, s%d" % (o + 11, sTAG),
      "ds_write_b128 v%d, %s offset:%d" % (vSA, vr(o, 4), SCR_MOFF[part]), "ds_write_b128 v%d, %s offset:%d" % (vSA, vr(o + 4, 4), SCR_MOFF[part] + 1024),
      "ds_write_b128 v%d, %s offset:%d" % (vSB, vr(o + 8, 4), SCR_ROFF[part]))


def fin_reads(part):
    d = vFD[part]
    return ["ds_read_b128 %s, v%d offset:%d" % (vr(d + 8, 4), vSB, SCR_ROFF[part]),
            "ds_read_b128 %s, v%d offset:%d" % (vr(d, 4), vSA, SCR_MOFF[part]), "ds_read_b128 %s, v%d offset:%d" % (vr(d + 4, 4), vSA, SCR_MOFF[part] + 1024)]


NOPK = [0, 0]


def finalize(a, part, slow, colds, prefetched=False):
    o = vO[part]
    t = vT
    d = vFD[part]
    if not prefetched: a(fin_reads(part))
    again = a.uid("meet")
    a("s_mov_b32 s%d, 0" % sT5, "s_mov_b32 s%d, 0x37800000" % sT4,
      "%s:" % again, "s_waitcnt lgkmcnt(0)", "v_cmp_ne_u32 vcc, s%d, v%d" % (sTAG, d + 11), "s_cbranch_vccnz %s_r" % again, "%s_k:" % again)
    def cold():
        a("%s_r:" % again); spin_guard(a, again + "_k"); a("s_sleep 1", fin_reads(part), "s_branch %s" % again)
    colds.append(cold)
    pk = lambda op, x, y, z, m="": "v_pk_%s_f32 %s, %s, %s%s" % (op, vr(x, 2), vr(y, 2), vr(z, 2), m)
    if NOPK[part]: pk = lambda op, x, y, z, m="": ["v_%s_f32 v%d, v%d, v%d" % (op, x + i, y + i, z + (0 if m else i)) for i in range(2)]
    a("v_add_f32 v%d, v%d, v%d" % (o + 10, o + 10, d + 10), pk("add", o + 8, o + 8, d + 8))
    for i in (0, 2, 4, 6): a(pk("add", o + i, o + i, d + i))
    back = a.uid("norm")
    done = a.uid("normok")
    a("%s:" % back)
    a("v_rcp_f32 v%d, v%d" % (t, o + 10), "v_mov_b32 v%d, 0x71800000" % (d + 11))
    for i in range(0, 10, 2): a(pk("mul", d + i, o + i, t, " op_sel_hi:[1,0]"))
    a("v_med3_f32 v%d, v%d, s%d, v%d" % (d + 10, o + 10, sT4, d + 11), pk("add", t, d, d + 2))
    for i in (4, 6, 8): a(pk("add", t, t, d + i))
    a("v_add_f32 v%d, v%d, v%d" % (t, t, t + 1),
      "v_fma_f32 v%d, v%d, 0, v%d" % (t, t, o + 10),
      "v_cmp_neq_f32 vcc, v%d, v%d" % (d + 10, t))
    cv = lambda i, x: "v_cvt_pk_bf16_f32 v%d, v%d, v%d" % (x, d + 2 * i, d + 2 * i + 1)
    if RES4[0]:
        a(cv(4, d + 8), cv(0, d), cv(1, d + 1), "v_mov_b32_dpp v%d, v%d row_ror:8 row_mask:0xf bank_mask:0xf" % (d + 9, d + 8), cv(2, d + 2),
          "v_permlane16_swap_b32 v%d, v%d" % (d + 8, d + 10), cv(3, d + 3), "v_permlane16_swap_b32 v%d, v%d" % (d + 9, d + 11))
        slow(part, back, done)
        a("%s:" % done)
        o_store(a, d, d + 8, part, a)
        return
    for i in range(5): a(cv(i, d + i))
    slow(part, back, done)
    a("%s:" % done, "v_lshlrev_b32 v%d, 2, v%d" % (t, vLANE))
    o_store(a, d, t, part, a)


def slow_path(a, part, label, back, done, after):
    S, K, KR, V, m, ar, av = 44, 76, 84, 88, 104, 105, 106
    q = vQ[part]; o = vO[part]
    a("%s:" % label, "s_cmp_eq_u32 s%d, 0" % sT5, "s_cbranch_scc1 %s_go" % label)
    for i in range(12): a("v_min_u32 v%d, -2, v%d" % (vFD[part] + i, vFD[part] + i))
    a("s_branch %s" % done, "%s_go:" % label, "s_mov_b32 s%d, 1" % sT5)
    a("s_waitcnt vmcnt(0) lgkmcnt(0)")
    v_consts(a, V, m)
    a("v_mov_b32 v%d, 0" % (KR + 1))
    for i in range(16): a("v_mov_b32 v%d, 0" % (o + i))
    a("v_lshrrev_b32 v%d, 5, v%d" % (m, vLANE), "v_lshl_add_u32 v%d, v%d, 8, v%d" % (ar, m, vQR),
      "v_mul_u32_u24 v%d, 9216, v%d" % (av, m), "v_and_b32 v%d, 31, v%d" % (m, vLANE), "v_lshl_add_u32 v%d, v%d, 4, v%d" % (av, m, av),
      "s_mul_i32 s%d, s%d, 288" % (sT3, sHEAD), "s_add_u32 s%d, s%d, %d" % (sT3, sT3, SEC), "v_add_u32 v%d, s%d, v%d" % (av, sT3, av))
    for f in range(1, 4): a("v_add_u32 v%d, 18432, v%d" % (av + f, av + f - 1))
    a("v_mov_b32 v%d, 0xff800000" % m)
    for ps in range(2):
        lp = a.uid("slow")
        a("s_mov_b32 s%d, %d" % (sLOOP, SEC), "%s:" % lp)
        for t in range(2):
            for h in range(2):
                a("buffer_load_dwordx2 %s, v%d, %s, s%d offen offset:%d sc1" % (vr(K + 4 * t + 2 * h, 2), vQA, srd(sWS), sLOOP, 256 * t + 512 * h))
        a("buffer_load_dword v%d, v%d, %s, s%d offen sc1" % (KR, ar, srd(sWS), sLOOP))
        if ps:
            a("s_mov_b64 exec, %s" % sr(sVMASK, 2))
            for f in range(4): a("buffer_load_dwordx4 %s, v%d, %s, s%d offen sc1" % (vr(V + 4 * f, 4), av + f, srd(sWS), sLOOP))
            a("s_mov_b64 exec, -1")
        a("s_waitcnt vmcnt(0)",
          "v_mfma_f32_32x32x4_2b_bf16 %s, %s, %s, 0" % (vr(S, 32), vr(KR, 2), vr(q + 4, 2)), "s_nop 15", "s_nop 1")
        for t in range(2):
            a("v_mfma_f32_32x32x16_bf16 %s, %s, %s, %s" % (vr(S + 16 * t, 16), vr(K + 4 * t, 4), vr(q, 4), vr(S + 16 * t, 16)))
        a("s_nop 11")
        if ps == 0:
            for i in range(16): a("v_max3_f32 v%d, v%d, v%d, v%d" % (m, m, S + 2 * i, S + 2 * i + 1))
        else:
            for i in range(32): a("v_sub_f32 v%d, v%d, v%d" % (S + i, S + i, m))
            for i in range(32): a("v_exp_f32 v%d, v%d" % (S + i, S + i))
            a("s_nop 1")
            for f in range(4): a("v_smfmac_f32_32x32x32_bf16 %s, %s, %s, v%d" % (vr(o, 16), vr(V + 4 * f, 4), vr(S + 8 * f, 8), vIDX))
        a("s_add_u32 s%d, s%d, %d" % (sLOOP, sLOOP, PITCH), "s_cmp_lt_u32 s%d, %d" % (sLOOP, 32 * PITCH), "s_cbranch_scc1 %s" % lp)
        if ps == 0:
            a("v_mov_b32 v%d, v%d" % (S, m), "s_nop 1", "v_permlane32_swap_b32 v%d, v%d" % (S, m), "s_nop 1", "v_max_f32 v%d, v%d, v%d" % (m, m, S))
    a("s_nop 15")
    after()
    a("s_branch %s" % back)


def p3_setup(a):
    a("s_and_b32 s%d, s%d, 3" % (sRT, sJ), "s_lshr_b32 s%d, s%d, 2" % (sCB, sJ),
      "s_lshr_b32 s%d, s%d, 2" % (sRH, sWAVE), "s_lshl1_add_u32 s%d, s%d, s%d" % (sKQ, sRH, sWAVE), "s_and_b32 s%d, s%d, 3" % (sKQ, sKQ),
      "s_and_b32 s%d, s%d, 1" % (sT0, sCB), "s_cmp_eq_u32 s%d, s%d" % (sT0, sRH), "s_cselect_b32 s%d, 1, 0" % sFIVE,
      "s_lshr_b32 s%d, s%d, 1" % (sT1, sCB), "s_mul_i32 s%d, s%d, 9" % (sT1, sT1),
      "s_mul_i32 s%d, s%d, 5" % (sT0, sT0), "s_add_u32 s%d, s%d, s%d" % (sT0, sT0, sT1),
      "s_add_u32 s%d, s%d, 4" % (sT1, sT1),
      "s_mul_i32 s%d, s%d, 4608" % (sT2, sKQ), "s_add_u32 s%d, s%d, %d" % (sT2, sT2, WOBASE),
      "s_mul_i32 s%d, s%d, %d" % (sT3, sT0, 4 * 4608), "s_add_u32 s%d, s%d, s%d" % (sWOF, sT3, sT2))
    for t in range(1, 4): a("s_add_u32 s%d, s%d, %d" % (sWOF + t, sWOF, 4 * 4608 * t))
    a("s_mul_i32 s%d, s%d, %d" % (sT3, sT1, 4 * 4608), "s_add_u32 s%d, s%d, s%d" % (sWOF + 4, sT3, sT2),
      "s_lshl2_add_u32 s%d, s%d, s%d" % (sT2, sXCD, sRT), "s_lshl1_add_u32 s%d, s%d, s%d" % (sT2, sT2, sRH),
      "s_mul_i32 s%d, s%d, %d" % (sT3, sT2, 16 * 1152), "s_lshl_b32 s%d, s%d, 5" % (sT1, sT1), "s_add_u32 s%d, s%d, s%d" % (sOCOL + 1, sT1, sT3),
      "s_lshl2_add_u32 s%d, s%d, s%d" % (sT2, sT2, sKQ), "s_mul_i32 s%d, s%d, %d" % (sT3, sT2, 4 * 1152),
      "s_lshl_b32 s%d, s%d, 5" % (sT0, sT0), "s_add_u32 s%d, s%d, s%d" % (sOCOL, sT0, sT3),
      "s_add_u32 s%d, s%d, %d" % (sOCOL + 2, sOCOL, 1024 * 1152), "s_add_u32 s%d, s%d, %d" % (sOCOL + 3, sOCOL + 1, 1024 * 1152),
      "s_cmp_eq_u32 s%d, 0" % sKQ, "s_cselect_b32 s%d, s%d, 0" % (sSHF, sFIVE),
      "s_movk_i32 s%d, 272" % sC272, "s_movk_i32 s%d, 80" % sC80)


def wo_load(a, tiles, t16, t8, track=True, only=None):
    em = a.vmem if track else (lambda s, tag: a(s))
    for t in tiles:
        for m in range(4):
            if only in (None, m): em("buffer_load_dwordx4 %s, v%d, %s, s%d offen offset:%d sc1" % (vr(vWO + 18 * t + 4 * m, 4), t16, srd(sWS), sWOF + t, 1024 * m), "wo")
        if only in (None, 4): em("buffer_load_dwordx2 %s, v%d, %s, s%d offen sc1" % (vr(vWO + 18 * t + 16, 2), t8, srd(sWS), sWOF + t), "wo")


def o_instr(of, g, so):
    main, res = of
    if g < 4: return ["buffer_load_dwordx4 %s, v%d, %s, s%d offen offset:%d sc1" % (vr(main + 4 * g, 4), vOA, srd(sWS), so + g // 2, 2048 * (g % 2))]
    return ["buffer_load_dword v%d, v%d, %s, s%d offen offset:%d sc1" % (res + e, vOB, srd(sWS), so + 2, 128 * e) for e in range(2)]


def o_load(a, of, tag, so):
    for g in range(5):
        for x in o_instr(of, g, so): a.vmem(x, tag)


def p3_mfma_all(a, of, acc, t, colds, part, ta, so):
    main, res = of
    top = a.uid("eall")
    chk = ["v_max_u32 v%d, v%d, v%d" % (t, res, res + 1)] + ["v_max3_u32 v%d, v%d, v%d, v%d" % (t, t, main + 2 * i, main + 2 * i + 1) for i in range(8)]
    chk += ["v_cmp_eq_u32 vcc, -1, v%d" % t]
    def cold():
        a("%s_r:" % top); spin_guard(a, top + "_t"); a("s_sleep 2")
        for g in range(5): a(o_instr(of, g, so))
        a("s_waitcnt vmcnt(0)", "s_branch %s" % top, "%s_t:" % top, "s_cmp_eq_u32 s%d, 0" % sFIVE, "s_branch %s_k" % top)
    colds.append(cold)
    def mm(k, g):
        c = vr(acc + 4 * k, 4)
        if g < 4: a("v_mfma_f32_16x16x32_bf16 %s, %s, %s, %s" % (c, vr(vWO + 18 * k + 4 * g, 4), vr(main + 4 * g, 4), c))
        else: a("v_mfma_f32_16x16x16_bf16 %s, %s, %s, 0" % (c, vr(vWO + 18 * k + 16, 2), vr(res, 2)))
    scr = P3_OFF[part]
    wr = lambda k: a("ds_write_b128 v%d, %s offset:%d" % (ta + (k // 4), vr(acc + 4 * k, 4), scr + (64 * k if k < 4 else 0)))
    a("%s:" % top)
    for n, k in enumerate((4, 0, 1, 2, 3)):
        mm(k, 4); a(chk[2 * n: 2 * n + 2])
    a("s_cmp_eq_u32 s%d, 0" % sFIVE, "s_cbranch_vccnz %s_r" % top, "%s_k:" % top, "s_cbranch_scc1 %s_5" % top)
    for g in range(4): mm(4, g)
    a("%s_5:" % top)
    for k in (0, 1):
        for g in range(4): mm(k, g)
    a("s_cbranch_scc1 %s_6" % top); wr(4); a("%s_6:" % top)
    for g in range(4): mm(2, g)
    wr(0)
    for g in range(3): mm(3, g)
    wr(1)
    mm(3, 3)
    a("s_nop 1"); wr(2); a("s_nop 4"); wr(3)


P3_ROW, P3_PART = 272, 16 * 272
P3_SH = 8 * P3_PART


def p3_addr(a, t):
    L = vLANE
    a("v_and_b32 v24, 15, v%d" % L, "v_lshrrev_b32 v%d, 4, v%d" % (t + 5, L),
      "s_lshl2_add_u32 s%d, s%d, s%d" % (sT0, sRH, sKQ), "s_mul_i32 s%d, s%d, %d" % (sT0, sT0, P3_PART), "s_add_u32 s%d, s%d, %d" % (sT0, sT0, P3_BASE),
      "v_lshl_add_u32 v%d, v%d, 4, s%d" % (t, t + 5, sT0), "v_mad_u32_u24 v%d, v24, s%d, v%d" % (t, sC272, t),
      "s_mul_i32 s%d, s%d, 1280" % (sT0, sKQ), "s_add_u32 s%d, s%d, %d" % (sT0, sT0, P3_BASE + P3_SH),
      "v_lshl_add_u32 v%d, v%d, 4, s%d" % (t + 1, t + 5, sT0), "v_mad_u32_u24 v%d, v24, s%d, v%d" % (t + 1, sC80, t + 1),
      "s_lshl4_add_u32 s%d, s%d, s%d" % (sT0, sRH, sKQ), "s_mul_i32 s%d, s%d, %d" % (sT0, sT0, 4 * P3_ROW), "s_add_u32 s%d, s%d, %d" % (sT0, sT0, P3_BASE),
      "v_lshl_add_u32 v%d, v24, 4, s%d" % (t + 2, sT0), "v_mad_u32_u24 v%d, v%d, s%d, v%d" % (t + 2, t + 5, sC272, t + 2),
      "v_mul_u32_u24 v%d, 1152, v%d" % (t + 4, t + 5), "v_lshl_add_u32 v%d, v24, 3, v%d" % (t + 4, t + 4),
      "v_lshrrev_b32 v24, 2, v%d" % L, "v_and_b32 v%d, 3, v%d" % (t + 5, L),
      "v_mul_u32_u24 v%d, 80, v24" % (t + 3), "v_lshl_add_u32 v%d, v%d, 4, v%d" % (t + 3, t + 5, t + 3), "v_add_u32 v%d, %d, v%d" % (t + 3, P3_BASE + P3_SH, t + 3),
      "v_mul_u32_u24 v24, 1152, v24", "v_lshl_add_u32 v%d, v%d, 3, v24" % (t + 5, t + 5))


def p3_finish(a, part, t, d, mod, colds, pk):
    def rd(src, step, x):
        for k in range(4): a("ds_read_b128 %s, v%d offset:%d" % (vr(x + 4 * k, 4), src, P3_OFF[part] + step * k))
    def fin(x, va, so, wait):
        for k in range(1, 4):
            if wait: a("s_waitcnt lgkmcnt(%d)" % (3 - k))
            if pk: a(["v_pk_add_f32 %s, %s, %s" % (vr(x + i, 2), vr(x + i, 2), vr(x + 4 * k + i, 2)) for i in (0, 2)])
            else: a(["v_add_f32 v%d, v%d, v%d" % (x + i, x + i, x + 4 * k + i) for i in range(4)])
        a("v_cvt_pk_bf16_f32 v%d, v%d, v%d" % (x, x, x + 1), "v_cvt_pk_bf16_f32 v%d, v%d, v%d" % (x + 1, x + 2, x + 3),
          "buffer_store_dwordx2 %s, v%d, %s, s%d offen%s" % (vr(x, 2), va, srd(sOUT), so + 2 * part, mod))
    skip = a.uid("no5r")
    a("s_cbranch_scc1 %s" % skip); rd(t + 3, 1280, d + 16); a("%s:" % skip)
    rd(t + 2, P3_PART, d)
    fin(d, t + 4, sOCOL, True)
    if part == 0:
        a("s_cbranch_scc0 %s_c" % skip, "s_waitcnt vmcnt(1)", "%s_b:" % skip)
        colds.insert(0, lambda: (a("%s_c:" % skip), fin(d + 16, t + 5, sOCOL + 1, False), a("s_waitcnt vmcnt(2)", "s_branch %s_b" % skip)))
    else:
        a("s_cbranch_scc1 %s_b" % skip); fin(d + 16, t + 5, sOCOL + 1, False); a("%s_b:" % skip)


def kd(name, lds=False):
    return """.amdhsa_kernel %s
  .amdhsa_next_free_vgpr 256
  .amdhsa_next_free_sgpr 96
  .amdhsa_accum_offset 256
  .amdhsa_group_segment_fixed_size 0
  .amdhsa_kernarg_size 48
  .amdhsa_user_sgpr_count 2
  .amdhsa_user_sgpr_kernarg_segment_ptr 1
  .amdhsa_system_sgpr_workgroup_id_x 1
  .amdhsa_float_denorm_mode_32 3
.end_amdhsa_kernel""" % name


def head(a, name):
    a(".globl %s" % name, ".p2align 12", ".p2align 8", ".type %s,@function" % name, "%s:" % name)


def plan2(wb, xb, pre="w0 x0 x1 w1 x2", xfirst=False):
    p = [(-1, t[0], int(t[1:])) for t in pre.split()]
    w0, x0 = 9 - len(wb), 18 - len(xb)
    for b in range(18):
        w = [(b, "w", s) for s in range(w0, 9) if wb[s - w0] == b]
        x = [(b, "x", s) for s in range(x0, 18) if xb[s - x0] == b]
        p += x + w if xfirst else w + x
    return p


DEF = dict(plan=plan2([0, 0, 1, 2, 3, 4, 5], [0, 1, 2, 3, 4, 5, 6, 6, 7, 7, 8, 9, 9, 10, 10]), early0=1, npre=4, dmapos=0, rotx=0, align=1, tag_step=4, flag_step=13, flag_pos='side0',
           poll_step=16, check_step=16, init_steps=(15, 3), e_sleep=0, pf_code=1, pf_x=1, idle_sleep=2, canary=1, per0=2, per1=1,
           nsolo=6, pos=[2, 6, 14, 18, 22, 26, 30],
           w0=[(1, 0), (1, 2)], kv1=['fill', (0, 1)], st1=[(0, 3), (0, 3)], w1=[(1, 6), (2, 3)], f1=[(2, 1), (2, 5), (2, 6)], pollL=[(5, 0), (6, 2)], kv2=[(6, 2), (6, 2), (6, 3), (6, 3), (6, 3)], w2=[(8, 2), (8, 3)], uswap=1, age=None, qdma=1, tagc=9, k2=0,
           kv3=[(8, 5), (8, 6), (9, 0), (9, 1), (9, 2)], w3=[(13, 2), (16, 3)], wo=[(11, 2), (13, 3), 14, 26], poison=[(9, 2), (10, 2), (25, 5)],
           opoll=[(26, 2), [(30, 3), (30, 6)], [(27, 3), (29, 0)]], hint=(31, 3), h_sleep=0, e_pipe=0, i_pipe=0, h_pipe=0, warm=1, nopk=[0, 0], xw_sleep=0, try1=0, res4=0, yprio=0, fpk=[0, 1], full=0, xprio2=0, outmod='',
           prio={(0, 4): 2, (2, 2): 1, (6, 3): 0, (7, 5): 3, (26, 0): 2, (30, 3): 1, (31, 2): 0}, priox={(22, 0): 2})


sF0, sF1 = 57, 58
sIDLE = 83
OOB = 0x7ffff000
MASTER = 242


def spin_guard(a, out):
    a("s_add_u32 s%d, s%d, 1" % (sSPIN, sSPIN), "s_cmp_gt_u32 s%d, 0x80000" % sSPIN, "s_cbranch_scc1 %s" % out)


def tag_issue(a):
    a.vmem("buffer_load_dword v%d, off, %s, 0 sc1" % (vTAG, srd(sDBG)), "tag")


def tag_check(a, colds):
    lp = a.uid("tag")
    a.wait(vm="tag")
    a("%s:" % lp, "v_readfirstlane_b32 s%d, v%d" % (sTAG, vTAG), "s_cmp_eq_u32 s%d, 0" % sTAG, "s_cbranch_scc1 %s_r" % lp, "%s_k:" % lp)
    def cold():
        a("%s_r:" % lp); spin_guard(a, lp + "_k")
        a("s_sleep 4", "buffer_load_dword v%d, off, %s, 0 sc1" % (vTAG, srd(sDBG)), "s_waitcnt vmcnt(0)", "s_branch %s" % lp)
    colds.append(cold)


FULL = [1]


def flag_store(a, soff, level, track=True, word=False):
    if word or (level and not FULL[0]):
        a("s_mov_b64 exec, 1")
        x = "buffer_store_dword v%d, off, %s, s%d offset:%d sc1" % (vTAG, srd(sWS), soff, 4 * (level - 1))
    else:
        if level == 0: a("v_mov_b64 %s, 0" % vr(vT, 2))
        if level == 2: a("v_mov_b32 v%d, v%d" % (vT, vTAG), "v_mov_b32 v%d, v%d" % (vT + 1, vTAG))
        a("s_mov_b64 exec, 0xff")
        x = "buffer_store_dwordx4 %s, v%d, %s, s%d offen sc1" % (vr(vTAG if level == 1 else vT, 4), vL16, srd(sWS), soff)
    if track: a.vmem(x, "flag")
    else: a(x)
    a("s_mov_b64 exec, -1")


def poll(a, va, colds, sleep=2, off=0):
    x = "buffer_load_dword v%d, v%d, %s, 0 offen offset:%d sc1" % (vPD, va, srd(sWS), off)
    def issue(): a.vmem(x, "poll")
    def check(mask=None):
        lp = a.uid("poll")
        a.wait(vm="poll")
        a("%s:" % lp, "v_cmp_ne_u32 vcc, s%d, v%d" % (sTAG, vPD))
        if mask is None: a("s_cbranch_vccnz %s_r" % lp)
        else: a("s_and_b32 vcc_lo, vcc_lo, %s" % mask, "s_cbranch_scc1 %s_r" % lp)
        a("%s_k:" % lp)
        def cold():
            a("%s_r:" % lp); spin_guard(a, lp + "_k")
            if sleep: a("s_sleep %d" % sleep)
            a(x, "s_waitcnt vmcnt(0)", "s_branch %s" % lp)
        colds.append(cold)
    return issue, check


def fused_setup(a):
    L = vLANE
    a("s_lshr_b32 s%d, s%d, 1" % (sT0, sHEAD), "s_mul_i32 s%d, s%d, 36" % (sT0, sT0), "s_and_b32 s%d, s%d, 1" % (sT1, sHEAD),
      "s_lshl_b32 s%d, s%d, 4" % (sT1, sT1), "s_add_u32 s%d, s%d, s%d" % (sT0, sT0, sT1),
      "v_min_u32 v%d, 11, v%d" % (vL16, L),
      "v_and_b32 v%d, 1, v%d" % (vPA, vL16), "v_mul_u32_u24 v%d, 19, v%d" % (vPA, vPA), "v_add_u32 v%d, s%d, v%d" % (vPA, sT0, vPA),
      "v_lshrrev_b32 v%d, 2, v%d" % (vL8, vL16), "v_sub_u32 v%d, 2, v%d" % (vL8, vL8), "v_mul_u32_u24 v%d, 576, v%d" % (vL8, vL8),
      "v_add_u32 v%d, v%d, v%d" % (vPA, vPA, vL8), "v_lshrrev_b32 v%d, 7, v%d" % (vPA, vPA),
      "s_lshl1_add_u32 s%d, s%d, s%d" % (sT0, sP, sKH), "s_lshr_b32 s%d, s%d, 1" % (sT1, sP), "s_lshl1_add_u32 s%d, s%d, s%d" % (sT1, sQI, sT1),
      "v_and_b32 v%d, 2, v%d" % (vL16, vL16), "v_lshl_add_u32 v%d, v%d, 2, s%d" % (vL16, vL16, sT0), "v_mov_b32 v%d, s%d" % (vL8, sT1),
      "v_cmp_le_u32 vcc, 8, v%d" % L, "v_lshlrev_b32 v%d, 11, v%d" % (vPA, vPA), "v_add_u32 v%d, %d, v%d" % (vPA, F01, vPA),
      "v_cndmask_b32 v%d, v%d, v%d, vcc" % (vL16, vL16, vL8),
      "v_lshl_add_u32 v%d, v%d, 7, v%d" % (vPA, vL16, vPA),
      "v_lshlrev_b32 v%d, 4, v%d" % (vL16, L), "v_lshlrev_b32 v%d, 3, v%d" % (vL8, L), "v_add_u32 v%d, 4096, v%d" % (vL8, vL8),
      "s_cmp_eq_u32 s%d, 0" % sFIVE, "s_cselect_b32 s%d, 0x%x, s%d" % (sWOF + 4, OOB - 8192, sWOF + 4))
    late_setup(a); p3_addr(a, vP3)
    a("v_min_u32 v%d, 17, v%d" % (vPW, L), "v_lshlrev_b32 v%d, 2, v%d" % (vPW, vPW), "v_add_u32 v%d, %d, v%d" % (vPW, FW, vPW),
      "s_lshl2_add_u32 s%d, s%d, s%d" % (sT0, sXCD, sRT), "s_lshl2_add_u32 s%d, s%d, s%d" % (sT0, sT0, sKQ),
      "s_lshl_b32 s%d, s%d, 10" % (sT0, sT0), "s_add_u32 s%d, s%d, %d" % (sT0, sT0, FO),
      "v_min_u32 v%d, 7, v%d" % (vPO, L), "v_lshl_add_u32 v%d, v%d, 7, s%d" % (vPO, vPO, sT0),
      "s_lshl2_add_u32 s%d, s%d, s%d" % (sT0, sQI, sP), "s_lshl_b32 s%d, s%d, 5" % (sT0, sT0),
      "s_add_u32 s%d, s%d, s%d" % (sT0, sT0, sHEAD), "s_lshl_b32 s%d, s%d, 7" % (sT0, sT0),
      "s_add_u32 s%d, s%d, %d" % (sT0, sT0, FO), "s_cmp_eq_u32 s%d, 0" % sKH, "s_cselect_b32 s%d, 0x40000000, s%d" % (sPF, sT0))


def tlb_touch(a, cfg):
    l = a.uid("tlb")
    a("s_cmp_lg_u32 s%d, 7" % sWAVE, "s_cbranch_scc1 %s" % l,
      "v_and_b32 v2, 7, v%d" % vLANE, "v_mul_u32_u24 v2, %d, v2" % (4 * PITCH), "v_add_u32 v2, %d, v2" % (PITCH - 128),
      "v_and_b32 v3, 3, v%d" % vLANE, "v_mul_u32_u24 v3, %d, v3" % (16 * OTILE), "v_add_u32 v3, %d, v3" % (OBASE + OTILE - 128),
      "v_cmp_gt_u32 vcc, 8, v%d" % vLANE, "v_mov_b32 v4, %d" % (FW + 1024), "v_cmp_gt_u32 s[%d:%d], 12, v%d" % (sSAVE, sSAVE + 1, vLANE),
      "v_cndmask_b32 v2, v3, v2, vcc", "s_nop 0", "v_cndmask_b32 v2, v4, v2, s[%d:%d]" % (sSAVE, sSAVE + 1),
      "buffer_load_dword v44, v2, %s, 0 offen" % srd(sWS),
      "v_and_b32 v2, 3, v%d" % vLANE, "v_mul_u32_u24 v2, %d, v2" % (786432 - 128),
      "buffer_load_dword v45, v2, %s, 0 offen" % srd(sOUT), "%s:" % l)


vWW, vWC = 158, 159


def word_setup(a):
    a("s_and_b32 s%d, s%d, 1" % (sT0, sHEAD), "s_mul_i32 s%d, s%d, %d" % (sT0, sT0, (-2052) & 0xffffffff), "s_add_u32 s%d, s%d, 2052" % (sT0, sT0),
      "s_lshl3_add_u32 s%d, s%d, s%d" % (sT1, sWAVE, sT0), "v_mov_b32 v%d, s%d" % (vWW, sT1),
      "s_lshl_b32 s%d, s%d, 5" % (sT1, sKH), "s_add_u32 s%d, s%d, s%d" % (sT1, sT1, sT0),
      "v_and_b32 v%d, 3, v%d" % (vWC, vLANE), "v_lshl_add_u32 v%d, v%d, 3, s%d" % (vWC, vWC, sT1))


def word_set(a, stage, track=True, twice=False):
    a("s_mov_b64 exec, 1")
    x = "ds_write_b32 v%d, v0 offset:%d" % (vWW, 64 * stage)
    if twice: x = "ds_write2_b32 v%d, v0, v0 offset0:%d offset1:%d" % (vWW, 16 * stage, 16 * stage + 16)
    if track: a.lds(x)
    else: a(x)
    a("s_mov_b64 exec, -1")


def word_check(a, offs, colds, t=vT):
    xs = ["ds_read_b32 v%d, v%d offset:%d" % (t + k, vWC, o) for k, o in enumerate(offs)]
    def issue():
        for x in xs: a.lds(x, "word")
    def check(track=True):
        l = a.uid("word")
        if track: a.wait(lg="word")
        a("%s:" % l)
        for k in range(len(offs)): a("v_cmp_ne_u32 vcc, s%d, v%d" % (sTAG, t + k), "s_cbranch_vccnz %s_r" % l)
        a("%s_k:" % l)
        def cold():
            a("%s_r:" % l); spin_guard(a, l + "_k"); a("s_sleep 1", xs, "s_waitcnt lgkmcnt(0)", "s_branch %s" % l)
        colds.append(cold)
    return issue, check, xs


def gen_fused(cfg):
    NOPK[:] = cfg["nopk"]; FULL[0] = cfg["full"]; RES4[0] = cfg["res4"]
    a = Asm()
    name = NAME + "_kernel"
    head(a, name)
    prologue(a, "L_exit"); a(";STAMP 0")
    a("s_mov_b32 s%d, 0" % sSPIN, "s_mov_b32 s%d, 0x%x" % (sF1, OOB))
    a("s_mov_b32 s%d, 0" % sIDLE)
    p1_roles(a, "L_idle")
    def setup():
        a("L_setup:")
        p2_setup(a); p3_setup(a); fused_setup(a)
        a("s_cmp_lg_u32 s%d, 0" % sIDLE, "s_cbranch_scc1 L_idle2")
        a("s_lshl_b32 s%d, s%d, 11" % (sT0, sLINE), "s_lshl_b32 s%d, s%d, 7" % (sT1, sG), "s_add_u32 s%d, s%d, s%d" % (sT0, sT0, sT1),
          "s_add_u32 s%d, s%d, %d" % (sT0, sT0, F01),
          "s_cmp_eq_u32 s%d, 0" % sWAVE, "s_cselect_b32 s%d, s%d, s%d" % (sF1, sT0, sF1))
    p1_head(a, cfg, {"setup": setup, "setup2": lambda: flag_store(a, sF1, 0)})
    a("s_cmp_ge_u32 s%d, 9" % sLINE, "s_cbranch_scc1 L_p1v", "s_branch L_p1q")
    vm_head = list(a.vm)
    a("L_idle:"); a.vm = []; a.lg = []
    a("s_waitcnt lgkmcnt(0)")
    a("s_cmp_lg_u32 s2, %d" % MASTER, "s_cbranch_scc1 L_nomaster", "s_cmp_lg_u32 s%d, 0" % sWAVE, "s_cbranch_scc1 L_nomaster",
      "s_mov_b32 s%d, %d" % (sT0, FEPOCH), "buffer_load_dword v2, off, %s, s%d sc1" % (srd(sWS), sT0), "s_waitcnt vmcnt(0)",
      "v_readfirstlane_b32 s%d, v2" % sT1, "s_mul_i32 s%d, s%d, 0x41c64e6d" % (sT1, sT1), "s_add_u32 s%d, s%d, 12345" % (sT1, sT1),
      "s_cmp_eq_u32 s%d, 0" % sT1, "s_cselect_b32 s%d, 12345, s%d" % (sT1, sT1), "v_mov_b32 v2, s%d" % sT1, "s_mov_b64 exec, 1",
      "buffer_store_dword v2, off, %s, 0 sc1" % srd(sDBG), "buffer_store_dword v2, off, %s, s%d sc1" % (srd(sWS), sT0), "s_mov_b64 exec, -1",
      "L_nomaster:")
    if cfg["pf_code"]:
        a("s_getpc_b64 s[%d:%d]" % (sRET, sRET + 1), "L_pc:", "s_sub_u32 s%d, s%d, L_pc-%s" % (sRET, sRET, name), "s_subb_u32 s%d, s%d, 0" % (sRET + 1, sRET + 1),
          "s_cmp_lg_u32 s%d, 7" % sWAVE, "s_cbranch_scc1 L_nopf",
          "s_and_b32 s%d, s%d, 3" % (sT0, sJ), "v_lshl_add_u32 v2, v%d, 2, s%d" % (vLANE, sT0),
          "v_lshlrev_b32 v2, 7, v2", "v_min_u32 v2, L_codeend-%s-4, v2" % name, "global_load_dword v47, v2, s[%d:%d]" % (sRET, sRET + 1), "L_nopf:")
    if cfg["pf_x"]:
        l = a.uid("pf")
        a("s_and_b32 s%d, s%d, 3" % (sT0, sJ), "s_cmp_ge_u32 s%d, 4" % sWAVE, "s_cbranch_scc1 %s" % l,
          "s_lshr_b32 s%d, s%d, 1" % (sT1, sWAVE), "s_lshl1_add_u32 s%d, s%d, s%d" % (sT1, sT0, sT1),
          "s_lshr_b32 s%d, s%d, 2" % (sT2, sXCD), "s_mul_i32 s%d, s%d, 7" % (sT2, sT2), "s_and_b32 s%d, s%d, 2" % (sT3, sXCD),
          "s_lshl1_add_u32 s%d, s%d, s%d" % (sT3, sT3, sT1),
          "s_sub_u32 s%d, s%d, 5" % (sT4, sT3), "s_add_u32 s%d, s%d, 4" % (sT3, sT3), "s_cmp_lt_u32 s%d, 5" % sT1,
          "s_cselect_b32 s%d, 3, s%d" % (sT4, sT4), "s_cselect_b32 s%d, s%d, 8" % (sT3, sT3), "s_add_u32 s%d, s%d, s%d" % (sT2, sT2, sT4),
          "s_mul_i32 s%d, s%d, 3" % (sT4, sT2), "s_add_u32 s%d, s%d, s%d" % (sT3, sT3, sT4))
        rot_die(a, cfg, sT3, sT4)
        mod9(a, sT3, sT4)
        a("s_mul_i32 s%d, s%d, %d" % (sT3, sT3, 64 * 3456), "s_and_b32 s%d, s%d, 1" % (sT4, sWAVE), "s_lshl1_add_u32 s%d, s%d, s%d" % (sT2, sT2, sT4),
          "s_lshl_b32 s%d, s%d, 7" % (sT2, sT2), "s_add_u32 s%d, s%d, s%d" % (sT3, sT3, sT2),
          "v_mul_u32_u24 v2, 3456, v%d" % vLANE, "buffer_load_dword v47, v2, %s, s%d offen" % (srd(sW), sT3), "%s:" % l)
        a("s_barrier",
          "s_and_b32 s%d, s%d, 6" % (sT1, sXCD), "s_lshl1_add_u32 s%d, s%d, s%d" % (sT0, sT1, sT0), "s_and_b32 s%d, s%d, 1" % (sT1, sXCD),
          "s_lshl4_add_u32 s%d, s%d, s%d" % (sT0, sT1, sT0), "s_add_u32 s%d, s%d, 32" % (sT0, sT0), "s_mul_i32 s%d, s%d, %d" % (sT0, sT0, 32 * 1152),
          "s_cmp_ge_u32 s%d, 5" % sWAVE, "s_cselect_b32 s%d, 0x40000000, s%d" % (sT0, sT0),
          "v_min_u32 v2, 287, v0", "v_lshlrev_b32 v2, 7, v2", "buffer_load_dword v47, v2, %s, s%d offen" % (srd(sX), sT0))
    a("s_mov_b64 %s, %s" % (sr(sW, 2), sr(sWO, 2)), "s_mov_b32 s%d, 663552" % (sW + 2))
    a("s_mov_b32 s%d, 1" % sIDLE, "s_branch L_setup")
    def idle2():
      tag_issue(a); p2_init(a)
      wo_role(a, "L_nowo")
      a("s_lshl_b32 s%d, s%d, 2" % (sT0, sLINE), "s_add_u32 s%d, s%d, %d" % (sT0, sT0, FW - 4), "s_cmp_eq_u32 s%d, 0" % sWAVE, "s_cselect_b32 s%d, s%d, s%d" % (sF1, sT0, sF1))
      a("L_nowo:"); a.vm = ["tag"]; a.lg = []
    sF, sPo = cfg["flag_step"], cfg["poll_step"]
    colds = []
    def first_loads(n):
        l = a.uid("fl")
        keep = list(a.vm)
        a("s_cmp_%s_u32 s%d, 3" % (("eq", "lg")[n], sP), "s_cbranch_scc1 %s" % l)
        for k in range(3): kv_piece(a, 0, k)
        if n: a("%s:" % l)
        a("s_cmp_%s_u32 s%d, 2" % (("ge", "lt")[n], sP), "s_cbranch_scc1 %s_e" % l)
        for k in range(3, 5): kv_piece(a, 0, k)
        if n == 0:
            a("s_branch %s_e" % l, "%s:" % l); q_dma(a)
        a("%s_e:" % l)
        a.vm = keep
    for isv in (False, True):
        if cfg["align"]: a(".p2align 12")
        a("L_p1v:" if isv else "L_p1q:")
        a.vm = list(vm_head); a.lg = []
        hooks = {}
        hooks[("side", cfg["tag_step"])] = [lambda: tag_issue(a)]
        hooks[("step", cfg["tagc"])] = lambda: tag_check(a, colds)
        hooks[("waitfor", sF)] = [("st", 0)]
        hooks[(cfg["flag_pos"], sF)] = [lambda: flag_store(a, sF1, 1)]
        pi, pc = poll(a, vPA, colds, sleep=cfg["e_sleep"])
        tmp = Asm(); p2_init(tmp)
        ini = [x.strip() for x in tmp.l]
        st0, nst = cfg["init_steps"]
        n = -(-len(ini) // nst)
        for k in range(nst): hooks.setdefault(("side", st0 + k), []).extend((lambda x=x: a(x)) for x in ini[k * n:(k + 1) * n])
        if sPo < 18: hooks.setdefault(("side", sPo), []).insert(0, pi)
        else: hooks["pre_epi1"] = pi
        cs = cfg["check_step"]
        hooks[("step", cs)] = lambda: (pc(), a(";STAMP 8"))
        hooks[("bar", cs + 1)] = lambda: (first_loads(0), a(";STAMP 1"))
        hooks["pre_epi1"] = lambda: a(";STAMP 2")
        hooks["mid_epi1"] = lambda stores: (a("s_add_u32 s%d, s%d, %d" % (sST2, sST, 256 if isv else 2048)), first_loads(1))
        p1_body(a, isv, cfg, hooks)
        a("s_branch L_attn")
    def idle_rest():
        a("L_idle2:"); a.vm = []; a.lg = []
        idle2()
        pi, pc = poll(a, vPA, colds, sleep=cfg["idle_sleep"])
        tag_check(a, colds); a(";STAMP 16")
        if cfg["canary"]:
            a("s_mov_b64 exec, 0x100"); pi(); pc(); a("s_mov_b64 exec, -1")
            pi, pc = poll(a, vPA, colds, sleep=cfg["e_sleep"])
        pi(); pc(); a(";STAMP 8", "s_barrier"); first_loads(0); a("s_barrier"); first_loads(1)
        a("s_mov_b32 s%d, 0x40000000" % sST, "s_mov_b32 s%d, 0x40000000" % sST2, "v_mov_b32 v%d, 0" % vSTA)
        a("s_branch L_attn")
    if cfg["align"]: a(".p2align 12")
    a("L_attn:", ";STAMP 19"); a.vm = [("kv", 0)]; a.lg = []
    slows = []
    def slow(part, back, done):
        lab = a.uid("slowp"); slows.append((part, lab, back, done)); a("s_cbranch_vccnz %s" % lab)
    ev = {}
    skip = cfg.get("skip", "")
    def at(k, f, name=None):
        if name and name in skip.split(): return
        g = ev.get(k)
        ev[k] = f if g is None else (lambda: (g(), f()))
    def role(kh, f):
        def g():
            l = a.uid("role")
            a("s_cmp_lg_u32 s%d, %d" % (sKH, kh), "s_cbranch_scc1 %s" % l)
            keep = list(a.vm); f(); a.vm = keep
            a("%s:" % l)
        return g
    st1 = ["buffer_store_dwordx4 %s, v%d, %s, s%d offen sc1" % (vr(vACC[1] + 8 * n, 4), vSTA, srd(sWS), (sST, sST2)[n]) for n in range(2)]
    for k in range(2): at(cfg["st1"][k], lambda k=k: a.vmem(st1[k], "st1"))
    def b0():
        l = a.uid("b0")
        if "b0" in ev: ev["b0"]()
        n = len(a.vm) - 1
        if cfg["qdma"]: q_addr(a)
        a("s_setprio 3", "s_waitcnt vmcnt(%d)" % (5 + n), "s_cmp_eq_u32 s%d, 3" % sP, "s_cbranch_scc1 %s" % l, "s_waitcnt vmcnt(%d)" % (2 + n),
          "s_cmp_eq_u32 s%d, 2" % sP, "s_cbranch_scc1 %s" % l, "s_waitcnt vmcnt(%d)" % n, "%s:" % l, ";STAMP 4", "s_barrier", ";STAMP 6")
        if cfg["qdma"]: q_read(a)
    at(("pre", 0), b0)
    def stage(st, pos_set, pos_rd, pos_chk, offs=None, after=None):
        wi, wc, xs = word_check(a, offs or [64 * st], colds)
        at(pos_set, lambda: a.wait(vm=("kv", st)), "kv")
        at(pos_set, lambda: word_set(a, st), "word")
        at(pos_rd, wi, "word")
        at(pos_chk, wc, "word")
        if after: at(pos_chk, after)
    def spread(pos, st):
        if len(pos) == 2: pos = [pos[0]] * 3 + [pos[1]] * 2
        for k, p_ in enumerate(pos): at(p_, lambda k=k: kv_piece(a, st, k), "kv")
    spread(cfg["kv1"], 1)
    stage(0, cfg["w0"][0], cfg["w0"][1], ("prev", 2))
    stage(1, cfg["w1"][0], cfg["w1"][1], ("pre", 4))
    wi, wc, xs = word_check(a, [CHUNK, CHUNK + 32], colds)
    at(cfg["f1"][0], lambda: (a.wait(vm="st1"), word_set(a, CHUNK // 64)))
    at(cfg["f1"][1], wi); at(cfg["f1"][2], role(0, lambda wc=wc: (a("s_waitcnt lgkmcnt(0)"), wc(track=False))))
    at(cfg["f1"][2], lambda: flag_store(a, sF1, 2, word=True))
    pi, pc = poll(a, vPA, colds, off=4)
    at(cfg["pollL"][0], pi, "pollL")
    at(cfg["pollL"][1], pc, "pollL")
    at(cfg["pollL"][1], lambda: (a(";STAMP 9"), q_load(a, 1)))
    spread(cfg["kv2"], 2)
    ev["ql"] = lambda: a.wait(vm=("q", 1))
    stage(2, cfg["w2"][0], cfg["w2"][1], ("pre", 8))
    spread(cfg["kv3"], 3)
    assert cfg["w3"][0] >= (13, 0)
    stage(3, cfg["w3"][0], cfg["w3"][1], ("pre", 12))
    pi2, pc2 = poll(a, vPW, colds)
    at(cfg["wo"][0], pi2, "wo")
    at(cfg["wo"][1], pc2, "wo")
    u0 = cfg["wo"][2]
    k = 0
    for t in range(5):
        for m in range(5):
            if t == 4 and m == 0: u0, k = cfg["wo"][3], 0
            at((u0 + k // 3, (2, 3, 5)[k % 3]), lambda t=t, m=m: wo_load(a, [t], vL16, vL8, only=m), "wo")
            k += 1
    ns = cfg["nsolo"]
    assert ns == 6
    ue = 32 - ns - 1
    def send_e():
        l = a.uid("se")
        a("s_cmp_lg_u32 s%d, 0" % sKH, "s_cbranch_scc1 %s" % l); send_partial(a, 0); a("s_branch %s_e" % l, "%s:" % l)
        finalize(a, 0, slow, colds); a("%s_e:" % l)
        a("v_subrev_u32 v%d, %d, v%d" % (vSA, LDS_SPARE - 12 * CHUNK, vSA))
        word_set(a, 4, twice=True)
    at((ue, 3), send_e, "fin")
    at(cfg["poison"][1], lambda: poison(a), "fin")
    at(cfg["poison"][1], lambda: flag_store(a, sPF, 0))
    at(cfg["poison"][2], lambda: (a.wait(vm="poison"), flag_store(a, sPF, 1)))
    ofs = [(vO[0], vQ[0]), (vS[1], vS[1] + 16)]
    pi3, pc3 = poll(a, vPO, colds)
    for kh in range(2):
        at(cfg["opoll"][1 + kh][0], role(kh, pi3))
        at(cfg["opoll"][1 + kh][1], role(kh, lambda: (a("s_waitcnt vmcnt(0)"), pc3(), o_load(a, ofs[0], "oe", sOL))))
    assert cfg["hint"] > cfg["opoll"][2][1]
    acc = [vV, vS[0]]
    ta = vP3
    at(cfg["hint"], lambda: flag_store(a, sPF, 2))
    wi, wc, xs = word_check(a, [256, 288], colds, t=vQ[0] + 2)
    at((31, 3), wi)
    at((31, 5), lambda: [a.lds(x) for x in fin_reads(1)])
    p2_main(a, cfg, ev)
    a(";STAMP 7")
    if cfg["hint"] == (32, 0): flag_store(a, sPF, 2)
    wc()
    pi4, pc4 = poll(a, vPO, colds, sleep=cfg["h_sleep"], off=4)
    sOM = 35
    for i in range(3): a("s_add_u32 s%d, s%d, %d" % (sOM + i, sOL + i, 32 * OTILE))
    late = lambda: (a(";STAMP 13"), o_load(a, ofs[1], "ol", sOM))
    sGOT = 38
    a("s_mov_b32 s%d, 0" % sGOT, "s_cmp_eq_u32 s%d, 0" % sKH, "s_cbranch_scc1 L_xs")
    if cfg["try1"] == 2: word_set(a, 7)
    def xsend():
        a("L_xs:", "s_nop 2")
        send_partial(a, 1)
        a("s_waitcnt vmcnt(0)", "L_xw:", "ds_read_b32 v%d, v%d offset:480" % (vT, vWW), "s_waitcnt lgkmcnt(0)",
          "v_cmp_ne_u32 vcc, s%d, v%d" % (sTAG, vT), "s_cbranch_vccz L_xw3")
        spin_guard(a, "L_xw3"); a("s_sleep %d" % cfg["xw_sleep"] if cfg["xw_sleep"] else "s_nop 0", "s_branch L_xw")
        a("L_xw3:", "s_setprio %d" % cfg["xprio2"]); pi4()
        if cfg["try1"]:
            a("s_waitcnt vmcnt(0)", "v_cmp_ne_u32 vcc, s%d, v%d" % (sTAG, vPD), "s_cbranch_vccnz L_xw4", "s_mov_b32 s%d, 1" % sGOT)
            word_set(a, 7); late(); a("s_branch L_tail", "L_xw4:"); pi4()
        a("s_branch L_tail")
    colds.insert(0, xsend)
    a("v_xor_b32 v%d, 48, v%d" % (vPA, vWW))
    finalize(a, 1, slow, colds, prefetched=True)
    rdh = "ds_read_b32 v%d, v%d offset:448" % (vT, vPA)
    if cfg["try1"] != 2: word_set(a, 7)
    if cfg["yprio"]: a("s_setprio %d" % cfg["yprio"])
    a("s_waitcnt vmcnt(3)")
    a("L_tail:", ";STAMP 10")
    p3_mfma_all(a, ofs[0], acc[0], vT, colds, 0, ta, sOL)
    word_set(a, 6)
    a(";STAMP 11")
    a("s_cmp_eq_u32 s%d, 0" % sKH, "s_cbranch_scc1 L_hx")
    a("L_hy2:", rdh, "s_waitcnt lgkmcnt(0)", "v_cmp_ne_u32 vcc, s%d, v%d" % (sTAG, vT), "s_cbranch_vccnz L_hy3", "L_hz:")
    def hint_wait():
        a("L_hy3:"); spin_guard(a, "L_hz"); a("s_sleep 1", "s_branch L_hy2")
        a("L_hx:", "s_cmp_lg_u32 s%d, 0" % sGOT, "s_cbranch_scc1 L_hdone"); a.vm = ["poll"]; pc4(); word_set(a, 7); a("s_branch L_hz")
    colds.insert(0, hint_wait)
    late()
    a("L_hdone:")
    a.vm = []; a.lg = []
    wi, wc, xs = word_check(a, [384], colds)
    wi(); wc()
    a("s_cmp_eq_u32 s%d, 0" % sSHF)
    p3_finish(a, 0, ta, vO[0], cfg["outmod"], colds, cfg["fpk"][0])
    a(";STAMP 12")
    p3_mfma_all(a, ofs[1], acc[1], vT, colds, 1, ta, sOM)
    a(";STAMP 14")
    a("s_cmp_eq_u32 s%d, 0" % sSHF, "s_waitcnt lgkmcnt(0)", "s_barrier")
    p3_finish(a, 1, ta, vWO + 2, cfg["outmod"], colds, cfg["fpk"][1])
    a(";STAMP 15", ";STAMPWAIT", ";STAMP 5", ";STAMPEND", "L_exit:", "s_endpgm")
    colds.append(idle_rest)
    k = 0
    while k < len(colds):
        colds[k](); k += 1
    def reload():
        wo_load(a, range(5), vL16, vL8, track=False); a("s_waitcnt vmcnt(0)")
    for part, lab, back, done in slows: slow_path(a, part, lab, back, done, reload)
    a("L_codeend:")
    hdr = ["; @launch grid=(256,1,1) block=(512,1,1) lds=%d" % LDS_TOTAL]
    return finish(a, hdr, [name])


def finish(a, hdr, names):
    errs = lint(a.l)
    for e in errs: print("HAZARD", e, file=sys.stderr)
    out = hdr + ['.amdgcn_target "amdgcn-amd-amdhsa--gfx950"', ".text"] + a.l + ['.section .rodata,"a"']
    for n in names: out += [".p2align 6", kd(n)]
    return "\n".join(out) + "\n"


if __name__ == "__main__":
    mode = sys.argv[1] if len(sys.argv) > 1 else "split"
    out = sys.argv[2] if len(sys.argv) > 2 else "cdna_kernels/%s.s" % NAME
    cfg = dict(DEF)
    for kv in sys.argv[3:]:
        k, v = kv.split("=", 1); cfg[k] = eval(v)
    txt = {"fused": gen_fused}[mode](cfg)
    open(out, "w").write(txt)
    print("wrote", out, len(txt.split("\n")), "lines")
```

```python
import sys, struct, math
from hazard import lint

NAME = "standalone__mha_block__prompt"

PITCH = 221184 + 128
SEC = 73728
OBASE = 32 * PITCH
OTILE = 36864 + 128
WOBASE = OBASE + 64 * OTILE
FBASE = WOBASE + 36 * 4 * 4608
F01 = FBASE
FRND = 27 * 8 * 128
FW = FBASE + 57344
FEPOCH = FW + 512
FO = FBASE + 65536
WS_SIZE = FO + 131072
CHUNK = 4864
LDS_SPARE = 32 * CHUNK
LDS_TOTAL = 163840
SCALE = struct.unpack("<I", struct.pack("<f", math.log2(math.e) / math.sqrt(18.0)))[0]

sX, sW, sWO, sOUT, sWS, sDBG = 4, 8, 12, 16, 20, 24
sWAVE, sXCD, sJ = 28, 29, 30
sTAG = 31
sLINE, sG, sSEC = 32, 33, 34
sXOFF, sWOFF, sM0X, sSCALE, sM0W, sST = 35, 36, 37, 38, 39, 40
sHEAD, sQI, sKH, sP = 41, 42, 43, 44
sVMASK = 46
sDMASK = 48
sCH, sQOFF = 50, 51
sCM = 45
sST2 = 39
sRT, sCB, sKQ, sRH = 52, 53, 54, 55
sFIVE = 56
sT0, sT1, sT2, sT3, sT4, sT5 = 60, 61, 62, 63, 64, 65
sRET = 66
sSPIN = 68
sWOF = 70
sOCOL = 75
sLOOP = 79
sSHF, sC272, sC80 = 69, 82, 59
sSAVE = 80

def srd(s): return "s[%d:%d]" % (s, s + 3)
def vr(a, n=1): return "v%d" % a if n == 1 else "v[%d:%d]" % (a, a + n - 1)
def sr(a, n=1): return "s%d" % a if n == 1 else "s[%d:%d]" % (a, a + n - 1)

vLANE = 1
vQ = [2, 8]
vIDX = 14
vAK, vAR, vAV = 15, 16, 17
vDMA = 18
vQA, vQR = 22, 23
vT = 24
vSA, vSB, vOA, vOB = 26, 27, 28, 29
vP3 = 30
vPW, vPO = 36, 37
vPA, vPD, vL16, vL8 = 38, 39, 40, 41
vTAG = 0
vAK1 = 47
vXS = 8
vWS = 9
vXR = 11
vWR = 42
vSTA = 46
vACC = [48, 64]
vXF = [80, 96]
vWF = 112
vWO = 42
vV = 132
vK = 148
vKR = 156
vO = [160, 176]
vS = [192, 224]


class Asm:
    def __init__(self):
        self.l = []
        self.vm = []
        self.lg = []
        self.n = 0
        self.clock = 0
        self.lgt = []
        self.age = None

    def __call__(self, *lines):
        for s in lines:
            if isinstance(s, (list, tuple)):
                self(*s)
            elif s.endswith(":") or s.startswith((".", ";")):
                self.l.append(s)
            else:
                self.l.append("    " + s)

    def uid(self, p):
        self.n += 1
        return "L_%s_%d" % (p, self.n)

    def vmem(self, s, tag):
        self(s); self.vm.append(tag)
        assert len(self.vm) <= 63

    def lds(self, s, tag=None):
        self(s); self.lg.append(tag); self.lgt.append(self.clock)

    def _cnt(self, q, tags):
        if not isinstance(tags, (list, set)): tags = [tags]
        last = max([k for k, t in enumerate(q) if t in tags], default=-1)
        return None if last < 0 else len(q) - 1 - last

    def wait(self, vm=None, lg=None):
        parts = []
        if vm is not None:
            n = 0 if vm == "all" else self._cnt(self.vm, vm)
            if n is not None:
                parts.append("vmcnt(%d)" % n); self.vm = self.vm[len(self.vm) - n:]
        if lg is not None:
            n = 0 if lg == "all" else self._cnt(self.lg, lg)
            if n is not None:
                if self.age is not None:
                    while n > 0 and self.clock - self.lgt[len(self.lgt) - n] >= self.age: n -= 1
                n = min(n, 15)
                parts.append("lgkmcnt(%d)" % n); self.lg = self.lg[len(self.lg) - n:]
        if parts: self("s_waitcnt " + " ".join(parts))


def prologue(a, endlabel):
    a(";STAMPINIT", ";STAMP 3", "s_cmp_ge_u32 s2, 256", "s_cbranch_scc1 %s" % endlabel)
    for k, s in enumerate((sX, sW, sWO, sOUT, sDBG, sWS)):
        a("s_load_dwordx2 %s, s[0:1], %d" % (sr(s, 2), 8 * k))
    for s, n in ((sX, 2359296), (sW, 1990656), (sWO, 663552), (sOUT, 2359296), (sDBG, 256), (sWS, WS_SIZE)):
        a("s_mov_b32 s%d, %d" % (s + 2, n), "s_mov_b32 s%d, 0x00020000" % (s + 3))
    a("v_lshrrev_b32 v2, 6, v0", "v_and_b32 v%d, 63, v0" % vLANE, "v_readfirstlane_b32 s%d, v2" % sWAVE,
      "s_and_b32 s%d, s2, 7" % sXCD, "s_lshr_b32 s%d, s2, 3" % sJ)


def p1_roles(a, idle):
    a("s_cmp_ge_u32 s%d, 28" % sJ, "s_cbranch_scc1 %s" % idle,
      "s_lshr_b32 s%d, s%d, 1" % (sT1, sXCD), "s_mul_i32 s%d, s%d, 28" % (sT1, sT1), "s_add_u32 s%d, s%d, s%d" % (sT1, sT1, sJ),
      "s_lshr_b32 s%d, s%d, 3" % (sLINE, sT1), "s_and_b32 s%d, s%d, 7" % (sT5, sT1),
      "s_and_b32 s%d, s%d, 1" % (sG, sXCD), "s_lshl3_add_u32 s%d, s%d, s%d" % (sG, sG, sT5))


XBASE = 98304
def xslot(s): return XBASE + 8192 * (s % 8)
def wslot(s): return 16384 * (s % 6)


def mod9(a, d, t):
    a("s_mul_i32 s%d, s%d, 57" % (t, d), "s_lshr_b32 s%d, s%d, 9" % (t, t), "s_mul_i32 s%d, s%d, 9" % (t, t), "s_sub_u32 s%d, s%d, s%d" % (d, d, t))


def rot_die(a, cfg, d, t):
    if cfg["rotx"] == 1: a("s_lshr_b32 s%d, s%d, 1" % (t, sXCD), "s_add_u32 s%d, s%d, s%d" % (d, d, t))
    if cfg["rotx"] == 2: a("s_add_u32 s%d, s%d, s%d" % (d, d, sXCD))
    if cfg["rotx"] == 3:
        a("s_lshr_b32 s%d, s%d, 1" % (t, sXCD), "s_add_u32 s%d, s%d, s%d" % (d, d, t), "s_and_b32 s%d, s%d, 1" % (t, sXCD), "s_lshl2_add_u32 s%d, s%d, s%d" % (d, t, d))


def p1_issue(a, kind, s):
    if kind == "w":
        def f0():
            a("s_add_u32 m0, s%d, %d" % (sM0W, wslot(s)))
            if s: a("s_add_u32 s%d, s%d, %d" % (sWOFF, sWOFF, 64 * 3456), "s_cmp_eq_u32 s%d, %d" % (sWOFF, 576 * 3456), "s_cselect_b32 s%d, 0, s%d" % (sWOFF, sWOFF))
            else: a("s_nop 0")
            a.vmem("buffer_load_dwordx4 v%d, %s, s%d offen lds" % (vWS, srd(sW), sWOFF), ("w", s))
        def f1():
            a.vmem("buffer_load_dwordx4 v%d, %s, s%d offen offset:1024 lds" % (vWS + 1, srd(sW), sWOFF), ("w", s))
        return [f0, f1]
    def fx():
        a("s_add_u32 m0, s%d, %d" % (sM0X, xslot(s)))
        if s: a("s_add_u32 s%d, s%d, 128" % (sXOFF, sXOFF), "s_cmpk_eq_u32 s%d, 1152" % sXOFF, "s_cselect_b32 s%d, 0, s%d" % (sXOFF, sXOFF))
        else: a("s_nop 0")
        if s == 9: a("v_add_u32 v%d, %d, v%d" % (vXS, 1024 * 1152, vXS))
        a.vmem("buffer_load_dwordx4 v%d, %s, s%d offen lds" % (vXS, srd(sX), sXOFF), ("d", s))
    return [fx]


def p1_head(a, cfg, hooks):
    L = vLANE
    t0, t1, t2, t3 = 38, 39, 40, 41
    a("s_and_b32 s%d, s%d, 1" % (sT0, sWAVE), "s_lshl_b32 s%d, s%d, 2" % (sT1, sT0),
      "v_lshrrev_b32 v%d, 4, v%d" % (t0, L), "v_add_u32 v%d, s%d, v%d" % (t1, sT1, t0),
      "v_and_b32 v%d, 15, v%d" % (t2, L), "v_lshlrev_b32 v%d, 1, v%d" % (t3, t1), "v_xor_b32 v%d, v%d, v%d" % (t2, t2, t3),
      "s_mul_i32 s%d, s%d, %d" % (sT2, sWAVE, 8 * 3456), "s_lshl_b32 s%d, s%d, 8" % (sT3, sLINE), "s_add_u32 s%d, s%d, s%d" % (sT2, sT2, sT3),
      "v_mul_u32_u24 v%d, 3456, v%d" % (t0, t0), "v_lshl_add_u32 v%d, v%d, 4, s%d" % (vWS, t2, sT2),
      "s_cmp_eq_u32 s%d, 13" % sLINE, "s_cselect_b32 s%d, 8, 0" % sT3, "v_and_b32 v%d, s%d, v%d" % (t2, sT3, t2),
      "v_lshl_add_u32 v%d, v%d, 26, v%d" % (t0, t2, t0), "v_add_u32 v%d, v%d, v%d" % (vWS, vWS, t0),
      "v_add_u32 v%d, %d, v%d" % (vWS + 1, 4 * 3456 - 1024, vWS))
    a("s_mul_i32 s%d, s%d, 3" % (sT2, sLINE), "s_add_u32 s%d, s%d, s%d" % (sT2, sT2, sT5))
    rot_die(a, cfg, sT2, sT3)
    mod9(a, sT2, sT3)
    a("s_lshl_b32 s%d, s%d, 7" % (sXOFF, sT2), "s_mul_i32 s%d, s%d, %d" % (sWOFF, sT2, 64 * 3456),
      "s_lshl_b32 s%d, s%d, 10" % (sM0X, sWAVE), "s_lshl_b32 s%d, s%d, 11" % (sM0W, sWAVE))
    a("v_lshrrev_b32 v%d, 3, v%d" % (t0, L), "v_and_b32 v%d, 7, v%d" % (t2, L), "v_xor_b32 v%d, v%d, v%d" % (t2, t2, t1),
      "s_cmp_ge_u32 s%d, 9" % sLINE, "s_cselect_b32 s%d, 2, 0" % sT3, "s_cselect_b32 s%d, 4, 7" % sT4,
      "s_bfe_u32 s%d, s%d, 0x10001" % (sT1, sWAVE), "s_lshl_b32 s%d, s%d, s%d" % (sT1, sT1, sT3),
      "s_lshl4_add_u32 s%d, s%d, s%d" % (sT1, sT0, sT1), "s_and_b32 s%d, s%d, 4" % (sT2, sWAVE), "s_lshl3_add_u32 s%d, s%d, s%d" % (sT1, sT2, sT1),
      "s_lshl_b32 s%d, s%d, 6" % (sT2, sG), "s_add_u32 s%d, s%d, s%d" % (sT1, sT1, sT2),
      "v_and_b32 v%d, s%d, v%d" % (t3, sT4, t0), "v_add3_u32 v%d, v%d, v%d, s%d" % (t3, t3, t0, sT1),
      "v_mul_u32_u24 v%d, 1152, v%d" % (t3, t3), "v_lshl_add_u32 v%d, v%d, 4, v%d" % (vXS, t2, t3))
    a("s_waitcnt lgkmcnt(0)", ";STAMP 17")

    issue = lambda kind, s: p1_issue(a, kind, s)
    plan = cfg["plan"]
    assert sorted((k, s) for _, k, s in plan) == sorted([("w", s) for s in range(9)] + [("x", s) for s in range(18)])
    for b, kind, s in plan:
        assert b < s and (kind == "w" and (s < 6 or b >= s - 5) or kind == "x" and (s < 8 or b >= s - 7))
    pre = [(kind, s) for b, kind, s in plan if b < 0]
    for kind, s in pre[:cfg["npre"]]:
        for f in issue(kind, s): f()
    t0, t1, t2, t3 = 48, 49, 50, 51
    hooks["setup"]()

    a("s_lshr_b32 s%d, s%d, 2" % (sT0, sWAVE), "s_and_b32 s%d, s%d, 3" % (sT1, sWAVE),
      "s_lshl_b32 s%d, s%d, 12" % (sT2, sT0), "s_add_u32 s%d, s%d, %d" % (sT2, sT2, XBASE),
      "v_and_b32 v%d, 15, v%d" % (t0, L), "v_lshrrev_b32 v%d, 4, v%d" % (t1, L),
      "v_bfe_u32 v%d, v%d, 1, 3" % (t2, L), "v_xor_b32 v%d, v%d, v%d" % (t2, t2, t1),
      "v_lshlrev_b32 v%d, 4, v%d" % (t2, t2),
      "v_lshl_add_u32 v%d, v%d, 7, s%d" % (t3, t0, sT2),
      "v_add_u32 v%d, v%d, v%d" % (vXR, t2, t3), "v_xor_b32 v%d, 64, v%d" % (vXR + 1, vXR))
    a("v_bfe_u32 v%d, v%d, 2, 2" % (t2, L), "v_lshl_add_u32 v%d, v%d, 3, v%d" % (t2, t1, t2),
      "v_lshlrev_b32 v%d, 8, v%d" % (vWR, t2),
      "v_and_b32 v%d, 3, v%d" % (t2, L), "v_lshl_add_u32 v%d, v%d, 3, v%d" % (vWR, t2, vWR),
      "s_lshl_b32 s%d, s%d, 1" % (sT2, sT1),
      "v_bfe_u32 v%d, v%d, 2, 3" % (t2, L), "v_xor_b32 v%d, s%d, v%d" % (t2, sT2, t2),
      "v_lshl_add_u32 v%d, v%d, 5, v%d" % (vWR, t2, vWR),
      "v_xor_b32 v%d, 32, v%d" % (vWR + 1, vWR),
      "v_add_u32 v%d, 0x10000, v%d" % (vWR + 2, vWR), "v_add_u32 v%d, 0x10000, v%d" % (vWR + 3, vWR + 1))
    a("s_mul_i32 s%d, s%d, %d" % (sST, sG, PITCH), "v_lshlrev_b32 v%d, 4, v%d" % (t0, t0),
      "s_lshl2_add_u32 s%d, s%d, s%d" % (sT2, sLINE, sT1),
      "s_cmp_ge_u32 s%d, 54" % sT2, "s_cselect_b32 s%d, 0x40000000, s%d" % (sST, sST),
      "s_mov_b32 s%d, 0x%08x" % (sT4, SCALE), "s_cmp_lt_u32 s%d, 18" % sT2, "s_cselect_b32 s%d, s%d, 1.0" % (sSCALE, sT4),
      "s_movk_i32 s%d, 256" % sT4, "s_movk_i32 s%d, 512" % sT5, "s_cmp_ge_u32 s%d, 9" % sLINE,
      "s_cselect_b32 s%d, %d, s%d" % (sT4, 4 * 9216, sT4), "s_cselect_b32 s%d, 9216, s%d" % (sT5, sT5),
      "s_cselect_b32 s%d, 9, 12" % sT1, "s_cselect_b32 s%d, %d, 0" % (sT3, 2 * SEC - 18 * 1024),
      "s_mul_i32 s%d, s%d, s%d" % (sT0, sT0, sT4), "s_lshl_b32 s%d, s%d, s%d" % (sT2, sT2, sT1),
      "s_add_u32 s%d, s%d, s%d" % (sST, sST, sT3), "s_add_u32 s%d, s%d, s%d" % (sST, sST, sT2), "s_add_u32 s%d, s%d, s%d" % (sST, sST, sT0),
      "v_mad_u32_u24 v%d, v%d, s%d, v%d" % (vSTA, t1, sT5, t0))
    a(";STAMP 18")
    for kind, s in pre[cfg["npre"]:]:
        for f in issue(kind, s): f()
    hooks["setup2"]()


def p1_body(a, isv, cfg, hooks):
    issue = lambda kind, s: p1_issue(a, kind, s)
    plan = cfg["plan"]

    def reads(s):
        r = []
        for m in range(2):
            for t in range(2):
                r.append("ds_read_b128 %s, v%d offset:%d" % (vr(vXF[s % 2] + 8 * m + 4 * t, 4), vXR + m, xslot(s) - XBASE + 2048 * t))
                if s < 9:
                    for h in range(2):
                        r.append("ds_read_b64_tr_b16 %s, v%d offset:%d" % (vr(vWF + 16 * s + 8 * m + 4 * t + 2 * h, 2), vWR + t + 2 * (wslot(s) >> 16),
                                                                           (wslot(s) & 0xffff) + (32 * m + 4 * h) * 256))
        return [(lambda x=x: a.lds(x)) for x in r]

    def mfmas(s):
        r = []
        for m in range(2):
            for ft in range(2):
                for tt in range(2):
                    acc = vr(vACC[s // 9] + 8 * ft + 4 * tt, 4)
                    w = vr(vWF + 16 * (s % 9) + 8 * m + 4 * ft, 4); x = vr(vXF[s % 2] + 8 * m + 4 * tt, 4)
                    c = "0" if (s % 9 == 0 and m == 0) else acc
                    r.append("v_mfma_f32_16x16x32_bf16 %s, %s, %s, %s" % ((acc, x, w, c) if isv else (acc, w, x, c)))
        return r

    def store(r, n):
        a.vmem("buffer_store_dwordx4 %s, v%d, %s, s%d offen offset:%d sc1" % (vr(vACC[r] + 8 * n, 4), vSTA, srd(sWS), sST, (256 if isv else 2048) * n), ("st", r))

    def epilogue(r):
        acc = vACC[r]
        mid = hooks.get("mid_epi1") if r else None
        for n in range(2):
            if not isv:
                for i in range(8 * n, 8 * n + 8, 2): a("v_pk_mul_f32 %s, %s, %s op_sel_hi:[1,0]" % (vr(acc + i, 2), vr(acc + i, 2), sr(sSCALE, 2)))
            for i in range(4): a("v_cvt_pk_bf16_f32 v%d, v%d, v%d" % (acc + 8 * n + i, acc + 8 * n + 2 * i, acc + 8 * n + 2 * i + 1))
            if not mid: store(r, n)
        if mid: mid(lambda: (store(r, 0), store(r, 1)))
        if r == 0: a("s_add_u32 s%d, s%d, %d" % (sST, sST, 16 * PITCH))

    for s in range(18):
        extra = hooks.get(("waitfor", s), [])
        a.wait(vm=[("d", s)] + [("w", s)] + extra, lg="all")
        a("s_barrier")
        a(";STAMP %d" % (20 + s))
        hooks.get(("bar", s), lambda: None)()
        side = reads(s)
        xp = cfg.get("x_p1", "")
        if "noread" in xp: side = []
        if "nowread" in xp: side = side[0::3] if s < 9 else side
        dm = []
        for b, kind, s2 in plan:
            if b == s and "nodma" not in xp: dm += issue(kind, s2)
        if cfg["dmapos"] == 0 or s >= 9: side += dm
        elif cfg["dmapos"] == 1: side = dm + side
        else:
            k = max(1, len(side) // max(1, len(dm))); mix = []
            while side or dm:
                mix += side[:k] + dm[:1]; side = side[k:]; dm = dm[1:]
            side = mix
        mm = mfmas(s - 1) if s > 0 else []
        if cfg["early0"] and s == 9: mm = []
        if "nomfma" in xp: mm = []
        side = hooks.get(("side0", s), []) + side + hooks.get(("side", s), [])
        per = max(cfg["per1"], -(-len(side) // 8))
        for x in mm:
            a(x)
            for f in side[:per]: f()
            side = side[per:]
        for f in side: f()
        if cfg["early0"] and s == 8:
            a.wait(lg="all"); a(mfmas(8))
        if s == (8 if cfg["early0"] else 9):
            a("s_nop 5")
            epilogue(0)
            a(";STAMP 39")
        hooks.get(("step", s), lambda: None)()
    a.wait(lg="all")
    a(mfmas(17))
    hooks.get("pre_epi1", lambda: None)()
    a("s_nop 5")
    epilogue(1)
    a(";STAMP 38")
    hooks.get("post_epi1", lambda: None)()


def wo_role(a, skip):
    L = vLANE
    t0, t1, t2, t3 = 42, 43, 44, 45
    a("s_sub_u32 s%d, s2, 224" % sLINE, "s_cmp_ge_u32 s%d, 18" % sLINE, "s_cbranch_scc1 %s" % skip)
    a("s_lshl_b32 s%d, s%d, 3" % (sT0, sWAVE), "v_lshrrev_b32 v%d, 3, v%d" % (t0, L), "v_add_u32 v%d, s%d, v%d" % (t0, sT0, t0),
      "v_mul_u32_u24 v%d, 1152, v%d" % (t0, t0), "v_and_b32 v%d, 7, v%d" % (t1, L), "v_lshl_add_u32 v%d, v%d, 4, v%d" % (t0, t1, t0),
      "s_lshr_b32 s%d, s%d, 1" % (sT4, sLINE), "s_lshl_b32 s%d, s%d, 7" % (sT1, sT4), "s_and_b32 s%d, s%d, 1" % (sT5, sLINE),
      "s_mul_i32 s%d, s%d, %d" % (sT2, sT5, 288 * 1152), "s_add_u32 s%d, s%d, s%d" % (sT1, sT1, sT2),
      "s_lshl_b32 s%d, s%d, 10" % (sT2, sWAVE))
    for k in range(5):
        a("s_add_u32 m0, s%d, %d" % (sT2, 8192 * k))
        if k == 4: a("s_cmp_ge_u32 s%d, 4" % sWAVE, "s_cselect_b32 s%d, 0x40000000, s%d" % (sT1, sT1))
        else: a("s_nop 0")
        a.vmem("buffer_load_dwordx4 v%d, %s, s%d offen lds" % (t0, srd(sW), sT1), "wo")
        if k < 4: a("s_add_u32 s%d, s%d, %d" % (sT1, sT1, 64 * 1152))
    a("s_and_b32 s%d, s%d, 3" % (sT0, sWAVE), "s_lshr_b32 s%d, s%d, 2" % (sT1, sWAVE),
      "s_mul_i32 s%d, s%d, 144" % (sT3, sT1), "s_lshl_b32 s%d, s%d, 5" % (sT2, sT0),
      "v_lshrrev_b32 v%d, 5, v%d" % (t0, L), "v_mul_u32_u24 v%d, 18, v%d" % (t0, t0),
      "v_bfe_u32 v%d, v%d, 2, 3" % (t1, L),
      "v_add3_u32 v%d, v%d, v%d, s%d" % (t0, t0, t1, sT3),
      "v_and_b32 v%d, 3, v%d" % (t2, L), "v_lshl_add_u32 v%d, v%d, 3, s%d" % (t2, t2, sT2),
      "v_lshl_add_u32 v%d, v%d, 7, v%d" % (t0, t0, t2),
      "v_lshrrev_b32 v%d, 3, v%d" % (t1, L), "v_mul_u32_u24 v%d, 18, v%d" % (t1, t1),
      "v_bfe_u32 v%d, v%d, 2, 1" % (t3, L), "s_add_u32 s%d, s%d, 16" % (sT3, sT3),
      "v_add3_u32 v%d, v%d, v%d, s%d" % (t1, t1, t3, sT3),
      "v_lshl_add_u32 v%d, v%d, 7, v%d" % (t1, t1, t2))
    a("s_lshl2_add_u32 s%d, s%d, s%d" % (sT2, sT4, sT0), "s_lshl1_add_u32 s%d, s%d, s%d" % (sT2, sT2, sT5), "s_lshl1_add_u32 s%d, s%d, s%d" % (sT2, sT2, sT1),
      "s_mul_i32 s%d, s%d, 4608" % (sT2, sT2), "s_add_u32 s%d, s%d, %d" % (sT2, sT2, WOBASE), "s_add_u32 s%d, s%d, 4096" % (sT4, sT2),
      "v_lshlrev_b32 v%d, 4, v%d" % (t2, L), "v_lshlrev_b32 v%d, 3, v%d" % (t3, L))
    a.wait(vm="all"); a("s_barrier")
    for m in range(4):
        for h in range(2):
            a.lds("ds_read_b64_tr_b16 %s, v%d offset:%d" % (vr(48 + 4 * m + 2 * h, 2), t0, (36 * m + 8 * h) * 128))
    a.lds("ds_read_b64_tr_b16 v[64:65], v%d" % t1)
    a.wait(lg="all")
    for m in range(4):
        a.vmem("buffer_store_dwordx4 %s, v%d, %s, s%d offen offset:%d sc1" % (vr(48 + 4 * m, 4), t2, srd(sWS), sT2, 1024 * m), "st")
    a.vmem("buffer_store_dwordx2 v[64:65], v%d, %s, s%d offen sc1" % (t3, srd(sWS), sT4), "st")


def p2_setup(a):
    L = vLANE
    t0, t1, t2, t3 = 38, 39, 40, 41
    a("s_lshl_b32 s%d, s%d, 2" % (sHEAD, sXCD), "s_lshr_b32 s%d, s%d, 3" % (sT0, sJ), "s_add_u32 s%d, s%d, s%d" % (sHEAD, sHEAD, sT0),
      "s_and_b32 s%d, s%d, 7" % (sQI, sJ), "s_and_b32 s%d, s%d, 3" % (sP, sWAVE), "s_lshr_b32 s%d, s%d, 2" % (sKH, sWAVE),
      "s_mov_b32 s%d, 0x3ffff" % sVMASK, "s_mov_b32 s%d, 0x3ffff" % (sVMASK + 1),
      "s_mov_b32 s%d, -1" % sDMASK, "s_mov_b32 s%d, 0xffff" % (sDMASK + 1),
      "s_and_b32 s%d, s%d, 1" % (sT0, sHEAD),
      "s_lshr_b32 s%d, s%d, 1" % (sT1, sHEAD), "s_mul_i32 s%d, s%d, %d" % (sT1, sT1, 9 * 512))
    a("v_and_b32 v%d, 31, v%d" % (t0, L), "v_lshrrev_b32 v%d, 5, v%d" % (t1, L))
    a("s_lshl_b32 s%d, s%d, 11" % (sT2, sT0), "s_add_u32 s%d, s%d, s%d" % (sT2, sT2, sT1), "s_add_u32 s%d, s%d, %d" % (sT2, sT2, SEC),
      "v_lshl_add_u32 v%d, v%d, 4, s%d" % (vDMA, L, sT2),
      "s_mul_i32 s%d, s%d, 288" % (sT3, sHEAD))
    for k in (2, 3, 4):
        imm = 1024 * k if k < 4 else 0
        d = vDMA + k - 1
        a("v_add_u32 v%d, %d, v%d" % (t2, (64 * k - 160) & 0xffffffff, L))
        if k == 2: a("v_max_i32 v%d, 0, v%d" % (t2, t2))
        a("v_mul_u32_u24 v%d, 3641, v%d" % (t3, t2), "v_lshrrev_b32 v%d, 16, v%d" % (t3, t3),
          "v_mul_u32_u24 v%d, %d, v%d" % (t3, 9216 - 288, t3),
          "v_lshl_add_u32 v%d, v%d, 4, v%d" % (t3, t2, t3),
          "s_add_u32 s%d, s%d, %d" % (sT4, sT3, 2 * SEC - imm),
          "v_add_u32 v%d, s%d, v%d" % (d, sT4, t3))
        if k == 2:
            a("v_cmp_gt_u32 vcc, 32, v%d" % L, "s_nop 1", "v_cndmask_b32 v%d, v%d, v%d, vcc" % (d, d, vDMA))
    a("s_mul_i32 s%d, s%d, %d" % (sT2, sKH, CHUNK),
      "s_lshl_b32 s%d, s%d, 9" % (sT3, sT0), "s_add_u32 s%d, s%d, s%d" % (sT3, sT3, sT2),
      "v_lshlrev_b32 v%d, 10, v%d" % (t2, t1), "v_lshl_add_u32 v%d, v%d, 3, v%d" % (t2, t0, t2),
      "v_add_u32 v%d, s%d, v%d" % (vAK, sT3, t2),
      "s_mul_i32 s%d, s%d, %d" % (sT3, sT0, (4 - 2048) & 0xffffffff), "s_add_u32 s%d, s%d, 2048" % (sT3, sT3),
      "s_add_u32 s%d, s%d, s%d" % (sT3, sT3, sT2),
      "v_lshl_add_u32 v%d, v%d, 3, s%d" % (vAR, L, sT3),
      "s_add_u32 s%d, s%d, 2560" % (sT3, sT2),
      "v_mul_u32_u24 v%d, 288, v%d" % (t3, t1), "v_lshl_add_u32 v%d, v%d, 4, v%d" % (t3, t0, t3),
      "v_add_u32 v%d, s%d, v%d" % (vAV, sT3, t3))
    a("s_mul_i32 s%d, s%d, %d" % (sT3, sT0, 5 * 512), "s_add_u32 s%d, s%d, s%d" % (sT3, sT3, sT1),
      "v_add_u32 v%d, s%d, v%d" % (vQA, sT3, t2),
      "s_lshl_b32 s%d, s%d, 2" % (sT3, sT0), "s_add_u32 s%d, s%d, s%d" % (sT3, sT3, sT1), "s_add_u32 s%d, s%d, 2048" % (sT3, sT3),
      "v_lshl_add_u32 v%d, v%d, 3, s%d" % (vQR, t0, sT3),
      "s_lshl_b32 s%d, s%d, 1" % (sT3, sQI), "s_lshr_b32 s%d, s%d, 1" % (sT4, sP), "s_add_u32 s%d, s%d, s%d" % (sT3, sT3, sT4),
      "s_mul_i32 s%d, s%d, %d" % (sQOFF, sT3, PITCH), "s_and_b32 s%d, s%d, 1" % (sT4, sP), "s_lshl_b32 s%d, s%d, 8" % (sT4, sT4),
      "s_add_u32 s%d, s%d, s%d" % (sQOFF, sQOFF, sT4),
      "s_lshl1_add_u32 s%d, s%d, s%d" % (sT0, sP, sKH), "s_mul_i32 s%d, s%d, %d" % (sCM, sT0, CHUNK), "s_mul_i32 s%d, s%d, %d" % (sCH, sT0, PITCH),
      "v_mov_b32 v%d, 0xdddddddd" % vIDX, "v_mov_b32 v%d, 0" % (vQ[0] + 5), "v_mov_b32 v%d, 0" % (vQ[1] + 5))


def q_load(a, part):
    so = sQOFF
    if part:
        a("s_add_u32 s%d, s%d, %d" % (sT0, sQOFF, 16 * PITCH)); so = sT0
    q = vQ[part]
    a.vmem("buffer_load_dwordx2 %s, v%d, %s, s%d offen sc1" % (vr(q, 2), vQA, srd(sWS), so), ("q", part))
    a.vmem("buffer_load_dwordx2 %s, v%d, %s, s%d offen offset:512 sc1" % (vr(q + 2, 2), vQA, srd(sWS), so), ("q", part))
    a.vmem("buffer_load_dword v%d, v%d, %s, s%d offen sc1" % (q + 4, vQR, srd(sWS), so), ("q", part))


def kv_piece(a, st, k):
    if k == 0: a("s_add_u32 m0, s%d, %d" % (sCM, 8 * st * CHUNK), "s_add_u32 s%d, s%d, %d" % (sCH, sCH, 8 * PITCH) if st else "s_nop 0")
    if k < 4:
        a.vmem("buffer_load_dwordx4 v%d, %s, s%d offen offset:%d sc1 lds" % (vDMA + max(0, k - 1), srd(sWS), sCH, 1024 * k), ("kv", st))
    else:
        a("s_add_u32 m0, m0, 4096", "s_mov_b64 exec, %s" % sr(sDMASK, 2))
        a.vmem("buffer_load_dwordx4 v%d, %s, s%d offen sc1 lds" % (vDMA + 3, srd(sWS), sCH), ("kv", st))
        a("s_mov_b64 exec, -1")


def kv_dma(a, st):
    for k in range(5): kv_piece(a, st, k)


def q_dma(a):
    a("s_lshl1_add_u32 s%d, s%d, s%d" % (sT1, sQI, sKH), "s_mul_i32 s%d, s%d, %d" % (sT1, sT1, PITCH),
      "s_mul_i32 s%d, s%d, 2560" % (sT0, sKH), "s_add_u32 m0, s%d, %d" % (sT0, LDS_SPARE),
      "v_subrev_u32 v%d, %d, v%d" % (vT, SEC, vDMA))
    for k in range(3):
        if k == 2: a("s_mov_b32 exec_hi, 0")
        a("buffer_load_dwordx4 v%d, %s, s%d offen offset:%d sc1 lds" % (vT, srd(sWS), sT1, 1024 * k))
    a("s_mov_b64 exec, -1")


def q_addr(a):
    a("s_lshr_b32 s%d, s%d, 1" % (sT0, sP), "s_mul_i32 s%d, s%d, 2560" % (sT0, sT0), "s_and_b32 s%d, s%d, 1" % (sT1, sP), "s_lshl_b32 s%d, s%d, 8" % (sT1, sT1),
      "s_add_u32 s%d, s%d, s%d" % (sT0, sT0, sT1), "s_mul_i32 s%d, s%d, %d" % (sT1, sKH, CHUNK), "s_sub_u32 s%d, s%d, s%d" % (sT0, sT0, sT1),
      "s_add_u32 s%d, s%d, %d" % (sT0, sT0, LDS_SPARE),
      "v_add_u32 v%d, s%d, v%d" % (vT, sT0, vAK), "v_and_b32 v%d, 32, v%d" % (vT + 1, vLANE), "v_lshlrev_b32 v%d, 3, v%d" % (vT + 1, vT + 1),
      "v_sub_u32 v%d, v%d, v%d" % (vT + 1, vAR, vT + 1), "v_add_u32 v%d, s%d, v%d" % (vT + 1, sT0, vT + 1))


def q_read(a):
    q = vQ[0]
    a.lds("ds_read_b32 v%d, v%d" % (q + 4, vT + 1), "R")
    for h in range(2): a.lds("ds_read_b64 %s, v%d offset:%d" % (vr(q + 2 * h, 2), vT, 512 * h), ("K", 0))


def v_consts(a, base, t):
    a("s_mov_b32 s%d, 0x440000" % sSAVE, "s_mov_b32 s%d, 0x440000" % (sSAVE + 1), "v_mov_b32 v%d, 0x3f803f80" % t,
      "v_cndmask_b32 v%d, 0, v%d, %s" % (base, t, sr(sSAVE, 2)))
    a("v_mov_b32 v%d, v%d" % (base + 1, base))
    for i in range(1, 8): a("v_mov_b64 %s, %s" % (vr(base + 2 * i, 2), vr(base, 2)))


def p2_init(a):
    word_setup(a)
    v_consts(a, vV, vV + 2)
    a("v_mov_b32 v%d, 0" % (vKR + 1))
    for i in range(16): a("v_mov_b64 %s, 0" % vr(vO[0] + 2 * i, 2))


def p2_main(a, cfg, ev):
    ns = cfg["nsolo"]
    U = [(i, 0) for i in range(ns)] + [(i, q) for i in range(ns, 16) for q in range(2)] + [(i, 1) for i in range(ns)]
    if cfg["uswap"]: U[6:10] = [(6, 0), (7, 0), (7, 1), (6, 1)]
    N = len(U)
    base = {"k": 0, "r": 0, "v": 0, "k0": 0, "k1": 0}
    reg = {"k": vAK, "r": vAR, "v": vAV, "k0": vAK, "k1": vAK1}
    seen = set()

    def off(kind, i):
        if i not in seen:
            seen.add(i)
            if ("pre", i) in ev: ev[("pre", i)]()
        want = (i // 6) * 6
        if base[kind] != want:
            a("v_add_u32 v%d, 0x%x, v%d" % (reg[kind], ((want - base[kind]) * 2 * CHUNK) & 0xffffffff, reg[kind]))
            base[kind] = want
        return (i - want) * 2 * CHUNK

    def rR(i):
        o = off("r", i); a.lds("ds_read_b32 v%d, v%d offset:%d" % (vKR, vAR, o), "R")
    def rK(i, t):
        if cfg["k2"]:
            kind = "k%d" % t
            want = 0 if i < 13 else 13
            if base[kind] != want:
                a("v_add_u32 v%d, 0x%x, v%d" % (reg[kind], ((want - base[kind]) * 2 * CHUNK) & 0xffffffff, reg[kind])); base[kind] = want
            o = (i - want) * 19
            a.lds("ds_read2st64_b64 %s, v%d offset0:%d offset1:%d" % (vr(vK + 4 * t, 4), reg[kind], o, o + 1), ("K", t))
            return
        o = off("k", i)
        for h in range(2): a.lds("ds_read_b64 %s, v%d offset:%d" % (vr(vK + 4 * t + 2 * h, 2), vAK, o + 256 * t + 512 * h), ("K", t))
    def rV(i, fs):
        if ("prev", i) in ev: ev.pop(("prev", i))()
        o = off("v", i)
        if not cfg.get("x_nomask"): a("s_mov_b64 exec, %s" % sr(sVMASK, 2))
        for f in fs: a.lds("ds_read_b128 %s, v%d offset:%d" % (vr(vV + 4 * f, 4), vAV, o + 576 * f), ("V", f // 2))
        if not cfg.get("x_nomask"): a("s_mov_b64 exec, -1")
    def R(u):
        a.wait(lg="R")
        if U[u][1] == 1 and "ql" in ev: ev.pop("ql")()
        a("v_mfma_f32_32x32x4_2b_bf16 %s, %s, %s, 0" % (vr(vS[u % 2], 32), vr(vKR, 2), vr(vQ[U[u][1]] + 4, 2)))
    def M(u, t):
        a.wait(lg=("K", t))
        s = vr(vS[u % 2] + 16 * t, 16)
        a("v_mfma_f32_32x32x16_bf16 %s, %s, %s, %s" % (s, vr(vK + 4 * t, 4), vr(vQ[U[u][1]], 4), s))
    def P(u, f):
        a.wait(lg=("V", f // 2))
        a("v_smfmac_f32_32x32x32_bf16 %s, %s, %s, v%d" % (vr(vO[U[u][1]], 16), vr(vV + 4 * f, 4), vr(vS[u % 2] + 8 * f, 8), vIDX))
    ch = lambda u: U[u][0]
    newk = lambda u: u < N and ch(u) != ch(u - 1)

    rR(ch(0)); rK(ch(0), 0); rK(ch(0), 1)
    rV(ch(0), (0, 1, 2, 3))
    R(0)
    if newk(1): rR(ch(1))
    if "fill" in ev: ev["fill"]()
    a("s_nop 15" if "fill" not in ev else "s_nop 13", "s_nop 1")
    M(0, 0)
    if newk(1): rK(ch(1), 0)
    M(0, 1)
    if newk(1): rK(ch(1), 1)
    a("s_nop 7")
    pos = cfg["pos"]
    a.age = cfg["age"]
    for u in range(N):
        def op(j):
            if j == 0:
                if u > 0:
                    P(u - 1, 3)
                    if newk(u): rV(ch(u), (2, 3))
            elif j == 1:
                if u + 1 < N:
                    R(u + 1)
            elif j == 2: P(u, 0)
            elif j == 3:
                P(u, 1)
                if newk(u + 1): rV(ch(u + 1), (0, 1))
            elif j == 4 or j == 6:
                if u + 1 < N:
                    M(u + 1, (j - 4) // 2)
                    if newk(u + 2):
                        if j == 4: rR(ch(u + 2))
                        rK(ch(u + 2), (j - 4) // 2)
            elif j == 5: P(u, 2)
            if (u, j) in cfg.get("prio", {}): a("s_setprio %d" % cfg["prio"][(u, j)])
            if (u, j) in cfg.get("priox", {}):
                l = a.uid("px"); a("s_cmp_lg_u32 s%d, 0" % sKH, "s_cbranch_scc1 %s" % l, "s_setprio %d" % cfg["priox"][(u, j)], "%s:" % l)
            if (u, j) in ev: ev[(u, j)]()
        a(";STAMP %d" % (40 + u))
        for e in range(32):
            if e in pos: op(pos.index(e))
            a("v_exp_f32 v%d, v%d" % (vS[u % 2] + e, vS[u % 2] + e)); a.clock += 1
    a.age = None
    a("s_nop 1")
    P(N - 1, 3)
    return U


SCR_RES, SCR_ROFF = 12 * CHUNK, (0, 2 * CHUNK)
SCR_MOFF = (0, 0)
P3_BASE, P3_OFF = 15 * CHUNK, (0, 39936)
sOA, sOR = 34, 3
sOL = 12
sPF = 15
vFD = [vWO + 72, vS[0] + 20]


def late_setup(a):
    L = vLANE
    a("s_lshl_b32 s%d, s%d, 11" % (sT0, sP), "s_add_u32 s%d, s%d, %d" % (sT0, sT0, LDS_SPARE), "v_add_u32 v%d, s%d, v%d" % (vSA, sT0, vL16),
      "s_lshl_b32 s%d, s%d, 10" % (sT0, sP), "s_add_u32 s%d, s%d, %d" % (sT0, sT0, SCR_RES), "v_add_u32 v%d, s%d, v%d" % (vSB, sT0, vL16),
      "s_lshl2_add_u32 s%d, s%d, s%d" % (sT0, sQI, sP), "s_mul_i32 s%d, s%d, %d" % (sT0, sT0, OTILE), "s_add_u32 s%d, s%d, %d" % (sT0, sT0, OBASE),
      "s_cmp_eq_u32 s%d, 0" % sKH, "s_cselect_b32 s%d, 0x40000000, s%d" % (sT0, sT0),
      "s_lshl_b32 s%d, s%d, 10" % (sT1, sHEAD), "s_add_u32 s%d, s%d, s%d" % (sOA, sT1, sT0),
      "s_lshl_b32 s%d, s%d, 7" % (sT1, sHEAD), "s_add_u32 s%d, s%d, s%d" % (sOR, sT1, sT0), "s_add_u32 s%d, s%d, 32768" % (sOR, sOR),
      "v_lshrrev_b32 v%d, 4, v%d" % (vOB, L), "v_and_b32 v%d, 15, v%d" % (vT, L),
      "v_lshlrev_b32 v%d, 9, v%d" % (vOA, vOB), "v_lshl_add_u32 v%d, v%d, 4, v%d" % (vOA, vT, vOA),
      "v_lshlrev_b32 v%d, 8, v%d" % (vOB, vOB),
      ["v_and_b32 v%d, 7, v%d" % (vT + 1, vT), "v_lshl_add_u32 v%d, v%d, 4, v%d" % (vOB, vT + 1, vOB), "v_lshrrev_b32 v%d, 3, v%d" % (vT, vT)] if RES4[0] else [],
      "v_lshl_add_u32 v%d, v%d, 2, v%d" % (vOB, vT, vOB),
      "s_lshl2_add_u32 s%d, s%d, s%d" % (sT0, sXCD, sRT), "s_mul_i32 s%d, s%d, %d" % (sT0, sT0, OTILE), "s_add_u32 s%d, s%d, %d" % (sT0, sT0, OBASE),
      "s_lshl_b32 s%d, s%d, 5" % (sT1, sKQ), "s_add_u32 s%d, s%d, s%d" % (sT1, sT1, sRH), "s_lshl_b32 s%d, s%d, 8" % (sT1, sT1),
      "s_add_u32 s%d, s%d, s%d" % (sOL, sT1, sT0), "s_add_u32 s%d, s%d, 4096" % (sOL + 1, sOL),
      "s_lshl_b32 s%d, s%d, 10" % (sT1, sKQ), "s_lshl_b32 s%d, s%d, %d" % (sT2, sRH, 3 if RES4[0] else 6), "s_add_u32 s%d, s%d, s%d" % (sT1, sT1, sT2),
      "s_add_u32 s%d, s%d, s%d" % (sOL + 2, sT1, sT0), "s_add_u32 s%d, s%d, 32768" % (sOL + 2, sOL + 2))


RES4 = [0]


def o_store(a, d, t, part, em):
    sa, sb = sOA, sOR
    if part:
        a("s_add_u32 s%d, s%d, %d" % (sT1, sOA, 32 * OTILE), "s_add_u32 s%d, s%d, %d" % (sT2, sOR, 32 * OTILE)); sa, sb = sT1, sT2
    em("buffer_store_dwordx4 %s, v%d, %s, s%d offen sc1" % (vr(d, 4), vL16, srd(sWS), sa))
    if RES4[0]:
        a("s_mov_b64 exec, 0xff")
        em("buffer_store_dwordx4 %s, v%d, %s, s%d offen sc1" % (vr(t, 4), vL16, srd(sWS), sb))
        a("s_mov_b64 exec, -1")
        return
    a("s_mov_b32 exec_hi, 0")
    em("buffer_store_dword v%d, v%d, %s, s%d offen sc1" % (d + 4, t, srd(sWS), sb))
    a("s_mov_b64 exec, -1")


def poison(a):
    d = vFD[0]
    a("v_mov_b64 %s, -1" % vr(d, 2), "v_mov_b64 %s, -1" % vr(d + 2, 2))
    if not RES4[0]: a("v_mov_b32 v%d, -1" % (d + 4), "v_lshlrev_b32 v%d, 2, v%d" % (vT, vLANE))
    for part in range(2): o_store(a, d, d if RES4[0] else vT, part, lambda x: a.vmem(x, "poison"))


def send_partial(a, part):
    o = vO[part]
    a("v_mov_b32 v%d, s%d" % (o + 11, sTAG),
      "ds_write_b128 v%d, %s offset:%d" % (vSA, vr(o, 4), SCR_MOFF[part]), "ds_write_b128 v%d, %s offset:%d" % (vSA, vr(o + 4, 4), SCR_MOFF[part] + 1024),
      "ds_write_b128 v%d, %s offset:%d" % (vSB, vr(o + 8, 4), SCR_ROFF[part]))


def fin_reads(part):
    d = vFD[part]
    return ["ds_read_b128 %s, v%d offset:%d" % (vr(d + 8, 4), vSB, SCR_ROFF[part]),
            "ds_read_b128 %s, v%d offset:%d" % (vr(d, 4), vSA, SCR_MOFF[part]), "ds_read_b128 %s, v%d offset:%d" % (vr(d + 4, 4), vSA, SCR_MOFF[part] + 1024)]


NOPK = [0, 0]


def finalize(a, part, slow, colds, prefetched=False):
    o = vO[part]
    t = vT
    d = vFD[part]
    if not prefetched: a(fin_reads(part))
    again = a.uid("meet")
    a("s_mov_b32 s%d, 0" % sT5, "s_mov_b32 s%d, 0x37800000" % sT4,
      "%s:" % again, "s_waitcnt lgkmcnt(0)", "v_cmp_ne_u32 vcc, s%d, v%d" % (sTAG, d + 11), "s_cbranch_vccnz %s_r" % again, "%s_k:" % again)
    def cold():
        a("%s_r:" % again); spin_guard(a, again + "_k"); a("s_sleep 1", fin_reads(part), "s_branch %s" % again)
    colds.append(cold)
    pk = lambda op, x, y, z, m="": "v_pk_%s_f32 %s, %s, %s%s" % (op, vr(x, 2), vr(y, 2), vr(z, 2), m)
    if NOPK[part]: pk = lambda op, x, y, z, m="": ["v_%s_f32 v%d, v%d, v%d" % (op, x + i, y + i, z + (0 if m else i)) for i in range(2)]
    a("v_add_f32 v%d, v%d, v%d" % (o + 10, o + 10, d + 10), pk("add", o + 8, o + 8, d + 8))
    for i in (0, 2, 4, 6): a(pk("add", o + i, o + i, d + i))
    back = a.uid("norm")
    done = a.uid("normok")
    a("%s:" % back)
    a("v_rcp_f32 v%d, v%d" % (t, o + 10), "v_mov_b32 v%d, 0x71800000" % (d + 11))
    for i in range(0, 10, 2): a(pk("mul", d + i, o + i, t, " op_sel_hi:[1,0]"))
    a("v_med3_f32 v%d, v%d, s%d, v%d" % (d + 10, o + 10, sT4, d + 11), pk("add", t, d, d + 2))
    for i in (4, 6, 8): a(pk("add", t, t, d + i))
    a("v_add_f32 v%d, v%d, v%d" % (t, t, t + 1),
      "v_fma_f32 v%d, v%d, 0, v%d" % (t, t, o + 10),
      "v_cmp_neq_f32 vcc, v%d, v%d" % (d + 10, t))
    cv = lambda i, x: "v_cvt_pk_bf16_f32 v%d, v%d, v%d" % (x, d + 2 * i, d + 2 * i + 1)
    if RES4[0]:
        a(cv(4, d + 8), cv(0, d), cv(1, d + 1), "v_mov_b32_dpp v%d, v%d row_ror:8 row_mask:0xf bank_mask:0xf" % (d + 9, d + 8), cv(2, d + 2),
          "v_permlane16_swap_b32 v%d, v%d" % (d + 8, d + 10), cv(3, d + 3), "v_permlane16_swap_b32 v%d, v%d" % (d + 9, d + 11))
        slow(part, back, done)
        a("%s:" % done)
        o_store(a, d, d + 8, part, a)
        return
    for i in range(5): a(cv(i, d + i))
    slow(part, back, done)
    a("%s:" % done, "v_lshlrev_b32 v%d, 2, v%d" % (t, vLANE))
    o_store(a, d, t, part, a)


def slow_path(a, part, label, back, done, after):
    S, K, KR, V, m, ar, av = 44, 76, 84, 88, 104, 105, 106
    q = vQ[part]; o = vO[part]
    a("%s:" % label, "s_cmp_eq_u32 s%d, 0" % sT5, "s_cbranch_scc1 %s_go" % label)
    for i in range(12): a("v_min_u32 v%d, -2, v%d" % (vFD[part] + i, vFD[part] + i))
    a("s_branch %s" % done, "%s_go:" % label, "s_mov_b32 s%d, 1" % sT5)
    a("s_waitcnt vmcnt(0) lgkmcnt(0)")
    v_consts(a, V, m)
    a("v_mov_b32 v%d, 0" % (KR + 1))
    for i in range(16): a("v_mov_b32 v%d, 0" % (o + i))
    a("v_lshrrev_b32 v%d, 5, v%d" % (m, vLANE), "v_lshl_add_u32 v%d, v%d, 8, v%d" % (ar, m, vQR),
      "v_mul_u32_u24 v%d, 9216, v%d" % (av, m), "v_and_b32 v%d, 31, v%d" % (m, vLANE), "v_lshl_add_u32 v%d, v%d, 4, v%d" % (av, m, av),
      "s_mul_i32 s%d, s%d, 288" % (sT3, sHEAD), "s_add_u32 s%d, s%d, %d" % (sT3, sT3, SEC), "v_add_u32 v%d, s%d, v%d" % (av, sT3, av))
    for f in range(1, 4): a("v_add_u32 v%d, 18432, v%d" % (av + f, av + f - 1))
    a("v_mov_b32 v%d, 0xff800000" % m)
    for ps in range(2):
        lp = a.uid("slow")
        a("s_mov_b32 s%d, %d" % (sLOOP, SEC), "%s:" % lp)
        for t in range(2):
            for h in range(2):
                a("buffer_load_dwordx2 %s, v%d, %s, s%d offen offset:%d sc1" % (vr(K + 4 * t + 2 * h, 2), vQA, srd(sWS), sLOOP, 256 * t + 512 * h))
        a("buffer_load_dword v%d, v%d, %s, s%d offen sc1" % (KR, ar, srd(sWS), sLOOP))
        if ps:
            a("s_mov_b64 exec, %s" % sr(sVMASK, 2))
            for f in range(4): a("buffer_load_dwordx4 %s, v%d, %s, s%d offen sc1" % (vr(V + 4 * f, 4), av + f, srd(sWS), sLOOP))
            a("s_mov_b64 exec, -1")
        a("s_waitcnt vmcnt(0)",
          "v_mfma_f32_32x32x4_2b_bf16 %s, %s, %s, 0" % (vr(S, 32), vr(KR, 2), vr(q + 4, 2)), "s_nop 15", "s_nop 1")
        for t in range(2):
            a("v_mfma_f32_32x32x16_bf16 %s, %s, %s, %s" % (vr(S + 16 * t, 16), vr(K + 4 * t, 4), vr(q, 4), vr(S + 16 * t, 16)))
        a("s_nop 11")
        if ps == 0:
            for i in range(16): a("v_max3_f32 v%d, v%d, v%d, v%d" % (m, m, S + 2 * i, S + 2 * i + 1))
        else:
            for i in range(32): a("v_sub_f32 v%d, v%d, v%d" % (S + i, S + i, m))
            for i in range(32): a("v_exp_f32 v%d, v%d" % (S + i, S + i))
            a("s_nop 1")
            for f in range(4): a("v_smfmac_f32_32x32x32_bf16 %s, %s, %s, v%d" % (vr(o, 16), vr(V + 4 * f, 4), vr(S + 8 * f, 8), vIDX))
        a("s_add_u32 s%d, s%d, %d" % (sLOOP, sLOOP, PITCH), "s_cmp_lt_u32 s%d, %d" % (sLOOP, 32 * PITCH), "s_cbranch_scc1 %s" % lp)
        if ps == 0:
            a("v_mov_b32 v%d, v%d" % (S, m), "s_nop 1", "v_permlane32_swap_b32 v%d, v%d" % (S, m), "s_nop 1", "v_max_f32 v%d, v%d, v%d" % (m, m, S))
    a("s_nop 15")
    after()
    a("s_branch %s" % back)


ALIGNED = [1]


def p3_setup(a):
    a("s_and_b32 s%d, s%d, 3" % (sRT, sJ), "s_lshr_b32 s%d, s%d, 2" % (sCB, sJ),
      "s_lshr_b32 s%d, s%d, 2" % (sRH, sWAVE), "s_lshl1_add_u32 s%d, s%d, s%d" % (sKQ, sRH, sWAVE), "s_and_b32 s%d, s%d, 3" % (sKQ, sKQ),
      "s_and_b32 s%d, s%d, 1" % (sT0, sCB), "s_cmp_eq_u32 s%d, s%d" % (sT0, sRH), "s_cselect_b32 s%d, 1, 0" % sFIVE,
      ["s_lshl_b32 s%d, s%d, 2" % (sT0, sCB),
       "s_lshr_b32 s%d, s%d, 1" % (sT1, sCB), "s_add_u32 s%d, s%d, 32" % (sT1, sT1)]
      if ALIGNED[0] else
      ["s_lshr_b32 s%d, s%d, 1" % (sT1, sCB), "s_mul_i32 s%d, s%d, 9" % (sT1, sT1),
       "s_mul_i32 s%d, s%d, 5" % (sT0, sT0), "s_add_u32 s%d, s%d, s%d" % (sT0, sT0, sT1), "s_add_u32 s%d, s%d, 4" % (sT1, sT1)],
      "s_mul_i32 s%d, s%d, 4608" % (sT2, sKQ), "s_add_u32 s%d, s%d, %d" % (sT2, sT2, WOBASE),
      "s_mul_i32 s%d, s%d, %d" % (sT3, sT0, 4 * 4608), "s_add_u32 s%d, s%d, s%d" % (sWOF, sT3, sT2))
    for t in range(1, 4): a("s_add_u32 s%d, s%d, %d" % (sWOF + t, sWOF, 4 * 4608 * t))
    a("s_mul_i32 s%d, s%d, %d" % (sT3, sT1, 4 * 4608), "s_add_u32 s%d, s%d, s%d" % (sWOF + 4, sT3, sT2),
      "s_lshl2_add_u32 s%d, s%d, s%d" % (sT2, sXCD, sRT), "s_lshl1_add_u32 s%d, s%d, s%d" % (sT2, sT2, sRH),
      "s_mul_i32 s%d, s%d, %d" % (sT3, sT2, 16 * 1152), "s_lshl_b32 s%d, s%d, 5" % (sT1, sT1), "s_add_u32 s%d, s%d, s%d" % (sOCOL + 1, sT1, sT3),
      "s_lshl2_add_u32 s%d, s%d, s%d" % (sT2, sT2, sKQ), "s_mul_i32 s%d, s%d, %d" % (sT3, sT2, 4 * 1152),
      "s_lshl_b32 s%d, s%d, 5" % (sT0, sT0), "s_add_u32 s%d, s%d, s%d" % (sOCOL, sT0, sT3),
      "s_add_u32 s%d, s%d, %d" % (sOCOL + 2, sOCOL, 1024 * 1152), "s_add_u32 s%d, s%d, %d" % (sOCOL + 3, sOCOL + 1, 1024 * 1152),
      "s_cmp_eq_u32 s%d, 0" % sKQ, "s_cselect_b32 s%d, s%d, 0" % (sSHF, sFIVE),
      "s_movk_i32 s%d, 272" % sC272, "s_movk_i32 s%d, 80" % sC80)


def wo_load(a, tiles, t16, t8, track=True, only=None):
    em = a.vmem if track else (lambda s, tag: a(s))
    for t in tiles:
        for m in range(4):
            if only in (None, m): em("buffer_load_dwordx4 %s, v%d, %s, s%d offen offset:%d sc1" % (vr(vWO + 18 * t + 4 * m, 4), t16, srd(sWS), sWOF + t, 1024 * m), "wo")
        if only in (None, 4): em("buffer_load_dwordx2 %s, v%d, %s, s%d offen sc1" % (vr(vWO + 18 * t + 16, 2), t8, srd(sWS), sWOF + t), "wo")


def o_instr(of, g, so):
    main, res = of
    if g < 4: return ["buffer_load_dwordx4 %s, v%d, %s, s%d offen offset:%d sc1" % (vr(main + 4 * g, 4), vOA, srd(sWS), so + g // 2, 2048 * (g % 2))]
    return ["buffer_load_dword v%d, v%d, %s, s%d offen offset:%d sc1" % (res + e, vOB, srd(sWS), so + 2, 128 * e) for e in range(2)]


def o_load(a, of, tag, so):
    for g in range(5):
        for x in o_instr(of, g, so): a.vmem(x, tag)


def p3_mfma_all(a, of, acc, t, colds, part, ta, so):
    main, res = of
    top = a.uid("eall")
    chk = ["v_max_u32 v%d, v%d, v%d" % (t, res, res + 1)] + ["v_max3_u32 v%d, v%d, v%d, v%d" % (t, t, main + 2 * i, main + 2 * i + 1) for i in range(8)]
    chk += ["v_cmp_eq_u32 vcc, -1, v%d" % t]
    def cold():
        a("%s_r:" % top); spin_guard(a, top + "_t"); a("s_sleep 2")
        for g in range(5): a(o_instr(of, g, so))
        a("s_waitcnt vmcnt(0)", "s_branch %s" % top, "%s_t:" % top, "s_cmp_eq_u32 s%d, 0" % sFIVE, "s_branch %s_k" % top)
    colds.append(cold)
    def mm(k, g):
        c = vr(acc + 4 * k, 4)
        if g < 4: a("v_mfma_f32_16x16x32_bf16 %s, %s, %s, %s" % (c, vr(vWO + 18 * k + 4 * g, 4), vr(main + 4 * g, 4), c))
        else: a("v_mfma_f32_16x16x16_bf16 %s, %s, %s, 0" % (c, vr(vWO + 18 * k + 16, 2), vr(res, 2)))
    scr = P3_OFF[part]
    wr = lambda k: a("ds_write_b128 v%d, %s offset:%d" % (ta + (k // 4), vr(acc + 4 * k, 4), scr + (64 * k if k < 4 else 0)))
    a("%s:" % top)
    for n, k in enumerate((4, 0, 1, 2, 3)):
        mm(k, 4); a(chk[2 * n: 2 * n + 2])
    a("s_cmp_eq_u32 s%d, 0" % sFIVE, "s_cbranch_vccnz %s_r" % top, "%s_k:" % top, "s_cbranch_scc1 %s_5" % top)
    for g in range(4): mm(4, g)
    a("%s_5:" % top)
    for k in (0, 1):
        for g in range(4): mm(k, g)
    a("s_cbranch_scc1 %s_6" % top); wr(4); a("%s_6:" % top)
    for g in range(4): mm(2, g)
    wr(0)
    for g in range(3): mm(3, g)
    wr(1)
    mm(3, 3)
    a("s_nop 1"); wr(2); a("s_nop 4"); wr(3)


P3_ROW, P3_PART = 272, 16 * 272
P3_SH = 8 * P3_PART


def p3_addr(a, t):
    L = vLANE
    a("v_and_b32 v24, 15, v%d" % L, "v_lshrrev_b32 v%d, 4, v%d" % (t + 5, L),
      "s_lshl2_add_u32 s%d, s%d, s%d" % (sT0, sRH, sKQ), "s_mul_i32 s%d, s%d, %d" % (sT0, sT0, P3_PART), "s_add_u32 s%d, s%d, %d" % (sT0, sT0, P3_BASE),
      "v_lshl_add_u32 v%d, v%d, 4, s%d" % (t, t + 5, sT0), "v_mad_u32_u24 v%d, v24, s%d, v%d" % (t, sC272, t),
      "s_mul_i32 s%d, s%d, 1280" % (sT0, sKQ), "s_add_u32 s%d, s%d, %d" % (sT0, sT0, P3_BASE + P3_SH),
      "v_lshl_add_u32 v%d, v%d, 4, s%d" % (t + 1, t + 5, sT0), "v_mad_u32_u24 v%d, v24, s%d, v%d" % (t + 1, sC80, t + 1),
      "s_lshl4_add_u32 s%d, s%d, s%d" % (sT0, sRH, sKQ), "s_mul_i32 s%d, s%d, %d" % (sT0, sT0, 4 * P3_ROW), "s_add_u32 s%d, s%d, %d" % (sT0, sT0, P3_BASE),
      "v_lshl_add_u32 v%d, v24, 4, s%d" % (t + 2, sT0), "v_mad_u32_u24 v%d, v%d, s%d, v%d" % (t + 2, t + 5, sC272, t + 2),
      "v_mul_u32_u24 v%d, 1152, v%d" % (t + 4, t + 5), "v_lshl_add_u32 v%d, v24, 3, v%d" % (t + 4, t + 4),
      "v_lshrrev_b32 v24, 2, v%d" % L, "v_and_b32 v%d, 3, v%d" % (t + 5, L),
      "v_mul_u32_u24 v%d, 80, v24" % (t + 3), "v_lshl_add_u32 v%d, v%d, 4, v%d" % (t + 3, t + 5, t + 3), "v_add_u32 v%d, %d, v%d" % (t + 3, P3_BASE + P3_SH, t + 3),
      "v_mul_u32_u24 v24, 1152, v24", "v_lshl_add_u32 v%d, v%d, 3, v24" % (t + 5, t + 5))


def p3_finish(a, part, t, d, mod, colds, pk):
    def rd(src, step, x):
        for k in range(4): a("ds_read_b128 %s, v%d offset:%d" % (vr(x + 4 * k, 4), src, P3_OFF[part] + step * k))
    def fin(x, va, so, wait):
        for k in range(1, 4):
            if wait: a("s_waitcnt lgkmcnt(%d)" % (3 - k))
            if pk: a(["v_pk_add_f32 %s, %s, %s" % (vr(x + i, 2), vr(x + i, 2), vr(x + 4 * k + i, 2)) for i in (0, 2)])
            else: a(["v_add_f32 v%d, v%d, v%d" % (x + i, x + i, x + 4 * k + i) for i in range(4)])
        a("v_cvt_pk_bf16_f32 v%d, v%d, v%d" % (x, x, x + 1), "v_cvt_pk_bf16_f32 v%d, v%d, v%d" % (x + 1, x + 2, x + 3),
          "buffer_store_dwordx2 %s, v%d, %s, s%d offen%s" % (vr(x, 2), va, srd(sOUT), so + 2 * part, mod))
    skip = a.uid("no5r")
    a("s_cbranch_scc1 %s" % skip); rd(t + 3, 1280, d + 16); a("%s:" % skip)
    rd(t + 2, P3_PART, d)
    fin(d, t + 4, sOCOL, True)
    if part == 0:
        a("s_cbranch_scc0 %s_c" % skip, "s_waitcnt vmcnt(1)", "%s_b:" % skip)
        colds.insert(0, lambda: (a("%s_c:" % skip), fin(d + 16, t + 5, sOCOL + 1, False), a("s_waitcnt vmcnt(2)", "s_branch %s_b" % skip)))
    else:
        a("s_cbranch_scc1 %s_b" % skip); fin(d + 16, t + 5, sOCOL + 1, False); a("%s_b:" % skip)


def kd(name, lds=False):
    return """.amdhsa_kernel %s
  .amdhsa_next_free_vgpr 256
  .amdhsa_next_free_sgpr 96
  .amdhsa_accum_offset 256
  .amdhsa_group_segment_fixed_size 0
  .amdhsa_kernarg_size 48
  .amdhsa_user_sgpr_count 2
  .amdhsa_user_sgpr_kernarg_segment_ptr 1
  .amdhsa_system_sgpr_workgroup_id_x 1
  .amdhsa_float_denorm_mode_32 3
.end_amdhsa_kernel""" % name


def head(a, name):
    a(".globl %s" % name, ".p2align 12", ".p2align 8", ".type %s,@function" % name, "%s:" % name)


def plan2(wb, xb, pre="w0 x0 x1 w1 x2", xfirst=False):
    p = [(-1, t[0], int(t[1:])) for t in pre.split()]
    w0, x0 = 9 - len(wb), 18 - len(xb)
    for b in range(18):
        w = [(b, "w", s) for s in range(w0, 9) if wb[s - w0] == b]
        x = [(b, "x", s) for s in range(x0, 18) if xb[s - x0] == b]
        p += x + w if xfirst else w + x
    return p


DEF = dict(plan=plan2([0, 0, 1, 2, 3, 4, 5], [0, 1, 2, 3, 4, 5, 6, 6, 7, 7, 8, 9, 9, 10, 10]), early0=1, npre=4, dmapos=0, rotx=0, align=1, tag_step=4, flag_step=13, flag_pos='side0',
           poll_step=16, check_step=16, init_steps=(15, 3), e_sleep=0, pf_code=1, pf_x=1, idle_sleep=2, canary=1, per0=2, per1=1,
           nsolo=6, pos=[2, 6, 14, 18, 22, 26, 30],
           w0=[(1, 0), (1, 2)], kv1=['fill', (0, 1)], st1=[(0, 3), (0, 3)], w1=[(1, 6), (2, 3)], f1=[(2, 1), (2, 5), (2, 6)], pollL=[(5, 0), (6, 2)], kv2=[(6, 2), (6, 2), (6, 3), (6, 3), (6, 3)], w2=[(8, 2), (8, 3)], uswap=1, age=None, qdma=1, tagc=9, k2=0,
           kv3=[(8, 5), (8, 6), (9, 0), (9, 1), (9, 2)], w3=[(13, 2), (16, 3)], wo=[(11, 2), (13, 3), 14, 26], poison=[(9, 2), (10, 2), (25, 5)],
           opoll=[(26, 2), [(30, 3), (30, 6)], [(27, 3), (29, 0)]], hint=(31, 3), h_sleep=0, e_pipe=0, i_pipe=0, h_pipe=0, warm=1, nopk=[0, 0], xw_sleep=0, try1=0, res4=0, yprio=0, fpk=[0, 1], full=0, xprio2=0, outmod=[' nt', ''], aligned=1,
           prio={(0, 4): 2, (2, 2): 1, (6, 3): 0, (7, 5): 3, (26, 0): 2, (30, 3): 1, (31, 2): 0}, priox={(22, 0): 2})


sF0, sF1 = 57, 58
sIDLE = 83
OOB = 0x7ffff000
MASTER = 242


def spin_guard(a, out):
    a("s_add_u32 s%d, s%d, 1" % (sSPIN, sSPIN), "s_cmp_gt_u32 s%d, 0x80000" % sSPIN, "s_cbranch_scc1 %s" % out)


def tag_issue(a):
    a.vmem("buffer_load_dword v%d, off, %s, 0 sc1" % (vTAG, srd(sDBG)), "tag")


def tag_check(a, colds):
    lp = a.uid("tag")
    a.wait(vm="tag")
    a("%s:" % lp, "v_readfirstlane_b32 s%d, v%d" % (sTAG, vTAG), "s_cmp_eq_u32 s%d, 0" % sTAG, "s_cbranch_scc1 %s_r" % lp, "%s_k:" % lp)
    def cold():
        a("%s_r:" % lp); spin_guard(a, lp + "_k")
        a("s_sleep 4", "buffer_load_dword v%d, off, %s, 0 sc1" % (vTAG, srd(sDBG)), "s_waitcnt vmcnt(0)", "s_branch %s" % lp)
    colds.append(cold)


FULL = [1]


def flag_store(a, soff, level, track=True, word=False):
    if word or (level and not FULL[0]):
        a("s_mov_b64 exec, 1")
        x = "buffer_store_dword v%d, off, %s, s%d offset:%d sc1" % (vTAG, srd(sWS), soff, 4 * (level - 1))
    else:
        if level == 0: a("v_mov_b64 %s, 0" % vr(vT, 2))
        if level == 2: a("v_mov_b32 v%d, v%d" % (vT, vTAG), "v_mov_b32 v%d, v%d" % (vT + 1, vTAG))
        a("s_mov_b64 exec, 0xff")
        x = "buffer_store_dwordx4 %s, v%d, %s, s%d offen sc1" % (vr(vTAG if level == 1 else vT, 4), vL16, srd(sWS), soff)
    if track: a.vmem(x, "flag")
    else: a(x)
    a("s_mov_b64 exec, -1")


def poll(a, va, colds, sleep=2, off=0):
    x = "buffer_load_dword v%d, v%d, %s, 0 offen offset:%d sc1" % (vPD, va, srd(sWS), off)
    def issue(): a.vmem(x, "poll")
    def check(mask=None):
        lp = a.uid("poll")
        a.wait(vm="poll")
        a("%s:" % lp, "v_cmp_ne_u32 vcc, s%d, v%d" % (sTAG, vPD))
        if mask is None: a("s_cbranch_vccnz %s_r" % lp)
        else: a("s_and_b32 vcc_lo, vcc_lo, %s" % mask, "s_cbranch_scc1 %s_r" % lp)
        a("%s_k:" % lp)
        def cold():
            a("%s_r:" % lp); spin_guard(a, lp + "_k")
            if sleep: a("s_sleep %d" % sleep)
            a(x, "s_waitcnt vmcnt(0)", "s_branch %s" % lp)
        colds.append(cold)
    return issue, check


def fused_setup(a):
    L = vLANE
    a("s_lshr_b32 s%d, s%d, 1" % (sT0, sHEAD), "s_mul_i32 s%d, s%d, 36" % (sT0, sT0), "s_and_b32 s%d, s%d, 1" % (sT1, sHEAD),
      "s_lshl_b32 s%d, s%d, 4" % (sT1, sT1), "s_add_u32 s%d, s%d, s%d" % (sT0, sT0, sT1),
      "v_min_u32 v%d, 11, v%d" % (vL16, L),
      "v_and_b32 v%d, 1, v%d" % (vPA, vL16), "v_mul_u32_u24 v%d, 19, v%d" % (vPA, vPA), "v_add_u32 v%d, s%d, v%d" % (vPA, sT0, vPA),
      "v_lshrrev_b32 v%d, 2, v%d" % (vL8, vL16), "v_sub_u32 v%d, 2, v%d" % (vL8, vL8), "v_mul_u32_u24 v%d, 576, v%d" % (vL8, vL8),
      "v_add_u32 v%d, v%d, v%d" % (vPA, vPA, vL8), "v_lshrrev_b32 v%d, 7, v%d" % (vPA, vPA),
      "s_lshl1_add_u32 s%d, s%d, s%d" % (sT0, sP, sKH), "s_lshr_b32 s%d, s%d, 1" % (sT1, sP), "s_lshl1_add_u32 s%d, s%d, s%d" % (sT1, sQI, sT1),
      "v_and_b32 v%d, 2, v%d" % (vL16, vL16), "v_lshl_add_u32 v%d, v%d, 2, s%d" % (vL16, vL16, sT0), "v_mov_b32 v%d, s%d" % (vL8, sT1),
      "v_cmp_le_u32 vcc, 8, v%d" % L, "v_lshlrev_b32 v%d, 11, v%d" % (vPA, vPA), "v_add_u32 v%d, %d, v%d" % (vPA, F01, vPA),
      "v_cndmask_b32 v%d, v%d, v%d, vcc" % (vL16, vL16, vL8),
      "v_lshl_add_u32 v%d, v%d, 7, v%d" % (vPA, vL16, vPA),
      "v_lshlrev_b32 v%d, 4, v%d" % (vL16, L), "v_lshlrev_b32 v%d, 3, v%d" % (vL8, L), "v_add_u32 v%d, 4096, v%d" % (vL8, vL8),
      "s_cmp_eq_u32 s%d, 0" % sFIVE, "s_cselect_b32 s%d, 0x%x, s%d" % (sWOF + 4, OOB - 8192, sWOF + 4))
    late_setup(a); p3_addr(a, vP3)
    a("v_min_u32 v%d, 17, v%d" % (vPW, L), "v_lshlrev_b32 v%d, 2, v%d" % (vPW, vPW), "v_add_u32 v%d, %d, v%d" % (vPW, FW, vPW),
      "s_lshl2_add_u32 s%d, s%d, s%d" % (sT0, sXCD, sRT), "s_lshl2_add_u32 s%d, s%d, s%d" % (sT0, sT0, sKQ),
      "s_lshl_b32 s%d, s%d, 10" % (sT0, sT0), "s_add_u32 s%d, s%d, %d" % (sT0, sT0, FO),
      "v_min_u32 v%d, 7, v%d" % (vPO, L), "v_lshl_add_u32 v%d, v%d, 7, s%d" % (vPO, vPO, sT0),
      "s_lshl2_add_u32 s%d, s%d, s%d" % (sT0, sQI, sP), "s_lshl_b32 s%d, s%d, 5" % (sT0, sT0),
      "s_add_u32 s%d, s%d, s%d" % (sT0, sT0, sHEAD), "s_lshl_b32 s%d, s%d, 7" % (sT0, sT0),
      "s_add_u32 s%d, s%d, %d" % (sT0, sT0, FO), "s_cmp_eq_u32 s%d, 0" % sKH, "s_cselect_b32 s%d, 0x40000000, s%d" % (sPF, sT0))


def tlb_touch(a, cfg):
    l = a.uid("tlb")
    a("s_cmp_lg_u32 s%d, 7" % sWAVE, "s_cbranch_scc1 %s" % l,
      "v_and_b32 v2, 7, v%d" % vLANE, "v_mul_u32_u24 v2, %d, v2" % (4 * PITCH), "v_add_u32 v2, %d, v2" % (PITCH - 128),
      "v_and_b32 v3, 3, v%d" % vLANE, "v_mul_u32_u24 v3, %d, v3" % (16 * OTILE), "v_add_u32 v3, %d, v3" % (OBASE + OTILE - 128),
      "v_cmp_gt_u32 vcc, 8, v%d" % vLANE, "v_mov_b32 v4, %d" % (FW + 1024), "v_cmp_gt_u32 s[%d:%d], 12, v%d" % (sSAVE, sSAVE + 1, vLANE),
      "v_cndmask_b32 v2, v3, v2, vcc", "s_nop 0", "v_cndmask_b32 v2, v4, v2, s[%d:%d]" % (sSAVE, sSAVE + 1),
      "buffer_load_dword v44, v2, %s, 0 offen" % srd(sWS),
      "v_and_b32 v2, 3, v%d" % vLANE, "v_mul_u32_u24 v2, %d, v2" % (786432 - 128),
      "buffer_load_dword v45, v2, %s, 0 offen" % srd(sOUT), "%s:" % l)


vWW, vWC = 158, 159


def word_setup(a):
    a("s_and_b32 s%d, s%d, 1" % (sT0, sHEAD), "s_mul_i32 s%d, s%d, %d" % (sT0, sT0, (-2052) & 0xffffffff), "s_add_u32 s%d, s%d, 2052" % (sT0, sT0),
      "s_lshl3_add_u32 s%d, s%d, s%d" % (sT1, sWAVE, sT0), "v_mov_b32 v%d, s%d" % (vWW, sT1),
      "s_lshl_b32 s%d, s%d, 5" % (sT1, sKH), "s_add_u32 s%d, s%d, s%d" % (sT1, sT1, sT0),
      "v_and_b32 v%d, 3, v%d" % (vWC, vLANE), "v_lshl_add_u32 v%d, v%d, 3, s%d" % (vWC, vWC, sT1))


def word_set(a, stage, track=True, twice=False):
    a("s_mov_b64 exec, 1")
    x = "ds_write_b32 v%d, v0 offset:%d" % (vWW, 64 * stage)
    if twice: x = "ds_write2_b32 v%d, v0, v0 offset0:%d offset1:%d" % (vWW, 16 * stage, 16 * stage + 16)
    if track: a.lds(x)
    else: a(x)
    a("s_mov_b64 exec, -1")


def word_check(a, offs, colds, t=vT):
    xs = ["ds_read_b32 v%d, v%d offset:%d" % (t + k, vWC, o) for k, o in enumerate(offs)]
    def issue():
        for x in xs: a.lds(x, "word")
    def check(track=True):
        l = a.uid("word")
        if track: a.wait(lg="word")
        a("%s:" % l)
        for k in range(len(offs)): a("v_cmp_ne_u32 vcc, s%d, v%d" % (sTAG, t + k), "s_cbranch_vccnz %s_r" % l)
        a("%s_k:" % l)
        def cold():
            a("%s_r:" % l); spin_guard(a, l + "_k"); a("s_sleep 1", xs, "s_waitcnt lgkmcnt(0)", "s_branch %s" % l)
        colds.append(cold)
    return issue, check, xs


def gen_fused(cfg):
    NOPK[:] = cfg["nopk"]; FULL[0] = cfg["full"]; RES4[0] = cfg["res4"]; ALIGNED[0] = cfg["aligned"]
    a = Asm()
    name = NAME + "_kernel"
    head(a, name)
    prologue(a, "L_exit"); a(";STAMP 0")
    a("s_mov_b32 s%d, 0" % sSPIN, "s_mov_b32 s%d, 0x%x" % (sF1, OOB))
    a("s_mov_b32 s%d, 0" % sIDLE)
    p1_roles(a, "L_idle")
    def setup():
        a("L_setup:")
        p2_setup(a); p3_setup(a); fused_setup(a)
        a("s_cmp_lg_u32 s%d, 0" % sIDLE, "s_cbranch_scc1 L_idle2")
        a("s_lshl_b32 s%d, s%d, 11" % (sT0, sLINE), "s_lshl_b32 s%d, s%d, 7" % (sT1, sG), "s_add_u32 s%d, s%d, s%d" % (sT0, sT0, sT1),
          "s_add_u32 s%d, s%d, %d" % (sT0, sT0, F01),
          "s_cmp_eq_u32 s%d, 0" % sWAVE, "s_cselect_b32 s%d, s%d, s%d" % (sF1, sT0, sF1))
    p1_head(a, cfg, {"setup": setup, "setup2": lambda: flag_store(a, sF1, 0)})
    a("s_cmp_ge_u32 s%d, 9" % sLINE, "s_cbranch_scc1 L_p1v", "s_branch L_p1q")
    vm_head = list(a.vm)
    a("L_idle:"); a.vm = []; a.lg = []
    a("s_waitcnt lgkmcnt(0)")
    a("s_cmp_lg_u32 s2, %d" % MASTER, "s_cbranch_scc1 L_nomaster", "s_cmp_lg_u32 s%d, 0" % sWAVE, "s_cbranch_scc1 L_nomaster",
      "s_mov_b32 s%d, %d" % (sT0, FEPOCH), "buffer_load_dword v2, off, %s, s%d sc1" % (srd(sWS), sT0), "s_waitcnt vmcnt(0)",
      "v_readfirstlane_b32 s%d, v2" % sT1, "s_mul_i32 s%d, s%d, 0x41c64e6d" % (sT1, sT1), "s_add_u32 s%d, s%d, 12345" % (sT1, sT1),
      "s_cmp_eq_u32 s%d, 0" % sT1, "s_cselect_b32 s%d, 12345, s%d" % (sT1, sT1), "v_mov_b32 v2, s%d" % sT1, "s_mov_b64 exec, 1",
      "buffer_store_dword v2, off, %s, 0 sc1" % srd(sDBG), "buffer_store_dword v2, off, %s, s%d sc1" % (srd(sWS), sT0), "s_mov_b64 exec, -1",
      "L_nomaster:")
    if cfg["pf_code"]:
        a("s_getpc_b64 s[%d:%d]" % (sRET, sRET + 1), "L_pc:", "s_sub_u32 s%d, s%d, L_pc-%s" % (sRET, sRET, name), "s_subb_u32 s%d, s%d, 0" % (sRET + 1, sRET + 1),
          "s_cmp_lg_u32 s%d, 7" % sWAVE, "s_cbranch_scc1 L_nopf",
          "s_and_b32 s%d, s%d, 3" % (sT0, sJ), "v_lshl_add_u32 v2, v%d, 2, s%d" % (vLANE, sT0),
          "v_lshlrev_b32 v2, 7, v2", "v_min_u32 v2, L_codeend-%s-4, v2" % name, "global_load_dword v47, v2, s[%d:%d]" % (sRET, sRET + 1), "L_nopf:")
    if cfg["pf_x"]:
        l = a.uid("pf")
        a("s_and_b32 s%d, s%d, 3" % (sT0, sJ), "s_cmp_ge_u32 s%d, 4" % sWAVE, "s_cbranch_scc1 %s" % l,
          "s_lshr_b32 s%d, s%d, 1" % (sT1, sWAVE), "s_lshl1_add_u32 s%d, s%d, s%d" % (sT1, sT0, sT1),
          "s_lshr_b32 s%d, s%d, 2" % (sT2, sXCD), "s_mul_i32 s%d, s%d, 7" % (sT2, sT2), "s_and_b32 s%d, s%d, 2" % (sT3, sXCD),
          "s_lshl1_add_u32 s%d, s%d, s%d" % (sT3, sT3, sT1),
          "s_sub_u32 s%d, s%d, 5" % (sT4, sT3), "s_add_u32 s%d, s%d, 4" % (sT3, sT3), "s_cmp_lt_u32 s%d, 5" % sT1,
          "s_cselect_b32 s%d, 3, s%d" % (sT4, sT4), "s_cselect_b32 s%d, s%d, 8" % (sT3, sT3), "s_add_u32 s%d, s%d, s%d" % (sT2, sT2, sT4),
          "s_mul_i32 s%d, s%d, 3" % (sT4, sT2), "s_add_u32 s%d, s%d, s%d" % (sT3, sT3, sT4))
        rot_die(a, cfg, sT3, sT4)
        mod9(a, sT3, sT4)
        a("s_mul_i32 s%d, s%d, %d" % (sT3, sT3, 64 * 3456), "s_and_b32 s%d, s%d, 1" % (sT4, sWAVE), "s_lshl1_add_u32 s%d, s%d, s%d" % (sT2, sT2, sT4),
          "s_lshl_b32 s%d, s%d, 7" % (sT2, sT2), "s_add_u32 s%d, s%d, s%d" % (sT3, sT3, sT2),
          "v_mul_u32_u24 v2, 3456, v%d" % vLANE, "buffer_load_dword v47, v2, %s, s%d offen" % (srd(sW), sT3), "%s:" % l)
        a("s_barrier",
          "s_and_b32 s%d, s%d, 6" % (sT1, sXCD), "s_lshl1_add_u32 s%d, s%d, s%d" % (sT0, sT1, sT0), "s_and_b32 s%d, s%d, 1" % (sT1, sXCD),
          "s_lshl4_add_u32 s%d, s%d, s%d" % (sT0, sT1, sT0), "s_add_u32 s%d, s%d, 32" % (sT0, sT0), "s_mul_i32 s%d, s%d, %d" % (sT0, sT0, 32 * 1152),
          "s_cmp_ge_u32 s%d, 5" % sWAVE, "s_cselect_b32 s%d, 0x40000000, s%d" % (sT0, sT0),
          "v_min_u32 v2, 287, v0", "v_lshlrev_b32 v2, 7, v2", "buffer_load_dword v47, v2, %s, s%d offen" % (srd(sX), sT0))
    a("s_mov_b64 %s, %s" % (sr(sW, 2), sr(sWO, 2)), "s_mov_b32 s%d, 663552" % (sW + 2))
    a("s_mov_b32 s%d, 1" % sIDLE, "s_branch L_setup")
    def idle2():
      tag_issue(a); p2_init(a)
      wo_role(a, "L_nowo")
      a("s_lshl_b32 s%d, s%d, 2" % (sT0, sLINE), "s_add_u32 s%d, s%d, %d" % (sT0, sT0, FW - 4), "s_cmp_eq_u32 s%d, 0" % sWAVE, "s_cselect_b32 s%d, s%d, s%d" % (sF1, sT0, sF1))
      a("L_nowo:"); a.vm = ["tag"]; a.lg = []
    sF, sPo = cfg["flag_step"], cfg["poll_step"]
    colds = []
    def first_loads(n):
        l = a.uid("fl")
        keep = list(a.vm)
        a("s_cmp_%s_u32 s%d, 3" % (("eq", "lg")[n], sP), "s_cbranch_scc1 %s" % l)
        for k in range(3): kv_piece(a, 0, k)
        if n: a("%s:" % l)
        a("s_cmp_%s_u32 s%d, 2" % (("ge", "lt")[n], sP), "s_cbranch_scc1 %s_e" % l)
        for k in range(3, 5): kv_piece(a, 0, k)
        if n == 0:
            a("s_branch %s_e" % l, "%s:" % l); q_dma(a)
        a("%s_e:" % l)
        a.vm = keep
    for isv in (False, True):
        if cfg["align"]: a(".p2align 12")
        a("L_p1v:" if isv else "L_p1q:")
        a.vm = list(vm_head); a.lg = []
        hooks = {}
        hooks[("side", cfg["tag_step"])] = [lambda: tag_issue(a)]
        hooks[("step", cfg["tagc"])] = lambda: tag_check(a, colds)
        hooks[("waitfor", sF)] = [("st", 0)]
        hooks[(cfg["flag_pos"], sF)] = [lambda: flag_store(a, sF1, 1)]
        pi, pc = poll(a, vPA, colds, sleep=cfg["e_sleep"])
        tmp = Asm(); p2_init(tmp)
        ini = [x.strip() for x in tmp.l]
        st0, nst = cfg["init_steps"]
        n = -(-len(ini) // nst)
        for k in range(nst): hooks.setdefault(("side", st0 + k), []).extend((lambda x=x: a(x)) for x in ini[k * n:(k + 1) * n])
        if sPo < 18: hooks.setdefault(("side", sPo), []).insert(0, pi)
        else: hooks["pre_epi1"] = pi
        cs = cfg["check_step"]
        hooks[("step", cs)] = lambda: (pc(), a(";STAMP 8"))
        hooks[("bar", cs + 1)] = lambda: (first_loads(0), a(";STAMP 1"))
        hooks["pre_epi1"] = lambda: a(";STAMP 2")
        hooks["mid_epi1"] = lambda stores: (a("s_add_u32 s%d, s%d, %d" % (sST2, sST, 256 if isv else 2048)), first_loads(1))
        p1_body(a, isv, cfg, hooks)
        a("s_branch L_attn")
    def idle_rest():
        a("L_idle2:"); a.vm = []; a.lg = []
        idle2()
        pi, pc = poll(a, vPA, colds, sleep=cfg["idle_sleep"])
        tag_check(a, colds); a(";STAMP 16")
        if cfg["canary"]:
            a("s_mov_b64 exec, 0x100"); pi(); pc(); a("s_mov_b64 exec, -1")
            pi, pc = poll(a, vPA, colds, sleep=cfg["e_sleep"])
        pi(); pc(); a(";STAMP 8", "s_barrier"); first_loads(0); a("s_barrier"); first_loads(1)
        a("s_mov_b32 s%d, 0x40000000" % sST, "s_mov_b32 s%d, 0x40000000" % sST2, "v_mov_b32 v%d, 0" % vSTA)
        a("s_branch L_attn")
    if cfg["align"]: a(".p2align 12")
    a("L_attn:", ";STAMP 19"); a.vm = [("kv", 0)]; a.lg = []
    slows = []
    def slow(part, back, done):
        lab = a.uid("slowp"); slows.append((part, lab, back, done)); a("s_cbranch_vccnz %s" % lab)
    ev = {}
    skip = cfg.get("skip", "")
    def at(k, f, name=None):
        if name and name in skip.split(): return
        g = ev.get(k)
        ev[k] = f if g is None else (lambda: (g(), f()))
    def role(kh, f):
        def g():
            l = a.uid("role")
            a("s_cmp_lg_u32 s%d, %d" % (sKH, kh), "s_cbranch_scc1 %s" % l)
            keep = list(a.vm); f(); a.vm = keep
            a("%s:" % l)
        return g
    st1 = ["buffer_store_dwordx4 %s, v%d, %s, s%d offen sc1" % (vr(vACC[1] + 8 * n, 4), vSTA, srd(sWS), (sST, sST2)[n]) for n in range(2)]
    for k in range(2): at(cfg["st1"][k], lambda k=k: a.vmem(st1[k], "st1"))
    def b0():
        l = a.uid("b0")
        if "b0" in ev: ev["b0"]()
        n = len(a.vm) - 1
        if cfg["qdma"]: q_addr(a)
        a("s_setprio 3", "s_waitcnt vmcnt(%d)" % (5 + n), "s_cmp_eq_u32 s%d, 3" % sP, "s_cbranch_scc1 %s" % l, "s_waitcnt vmcnt(%d)" % (2 + n),
          "s_cmp_eq_u32 s%d, 2" % sP, "s_cbranch_scc1 %s" % l, "s_waitcnt vmcnt(%d)" % n, "%s:" % l, ";STAMP 4", "s_barrier", ";STAMP 6")
        if cfg["qdma"]: q_read(a)
    at(("pre", 0), b0)
    def stage(st, pos_set, pos_rd, pos_chk, offs=None, after=None):
        wi, wc, xs = word_check(a, offs or [64 * st], colds)
        at(pos_set, lambda: a.wait(vm=("kv", st)), "kv")
        at(pos_set, lambda: word_set(a, st), "word")
        at(pos_rd, wi, "word")
        at(pos_chk, wc, "word")
        if after: at(pos_chk, after)
    def spread(pos, st):
        if len(pos) == 2: pos = [pos[0]] * 3 + [pos[1]] * 2
        for k, p_ in enumerate(pos): at(p_, lambda k=k: kv_piece(a, st, k), "kv")
    spread(cfg["kv1"], 1)
    stage(0, cfg["w0"][0], cfg["w0"][1], ("prev", 2))
    stage(1, cfg["w1"][0], cfg["w1"][1], ("pre", 4))
    wi, wc, xs = word_check(a, [CHUNK, CHUNK + 32], colds)
    at(cfg["f1"][0], lambda: (a.wait(vm="st1"), word_set(a, CHUNK // 64)))
    at(cfg["f1"][1], wi); at(cfg["f1"][2], role(0, lambda wc=wc: (a("s_waitcnt lgkmcnt(0)"), wc(track=False))))
    at(cfg["f1"][2], lambda: flag_store(a, sF1, 2, word=True))
    pi, pc = poll(a, vPA, colds, off=4)
    at(cfg["pollL"][0], pi, "pollL")
    at(cfg["pollL"][1], pc, "pollL")
    at(cfg["pollL"][1], lambda: (a(";STAMP 9"), q_load(a, 1)))
    spread(cfg["kv2"], 2)
    ev["ql"] = lambda: a.wait(vm=("q", 1))
    stage(2, cfg["w2"][0], cfg["w2"][1], ("pre", 8))
    spread(cfg["kv3"], 3)
    assert cfg["w3"][0] >= (13, 0)
    stage(3, cfg["w3"][0], cfg["w3"][1], ("pre", 12))
    pi2, pc2 = poll(a, vPW, colds)
    at(cfg["wo"][0], pi2, "wo")
    at(cfg["wo"][1], pc2, "wo")
    u0 = cfg["wo"][2]
    k = 0
    for t in range(5):
        for m in range(5):
            if t == 4 and m == 0: u0, k = cfg["wo"][3], 0
            at((u0 + k // 3, (2, 3, 5)[k % 3]), lambda t=t, m=m: wo_load(a, [t], vL16, vL8, only=m), "wo")
            k += 1
    ns = cfg["nsolo"]
    assert ns == 6
    ue = 32 - ns - 1
    def send_e():
        l = a.uid("se")
        a("s_cmp_lg_u32 s%d, 0" % sKH, "s_cbranch_scc1 %s" % l); send_partial(a, 0); a("s_branch %s_e" % l, "%s:" % l)
        finalize(a, 0, slow, colds); a("%s_e:" % l)
        a("v_subrev_u32 v%d, %d, v%d" % (vSA, LDS_SPARE - 12 * CHUNK, vSA))
        word_set(a, 4, twice=True)
    at((ue, 3), send_e, "fin")
    at(cfg["poison"][1], lambda: poison(a), "fin")
    at(cfg["poison"][1], lambda: flag_store(a, sPF, 0))
    at(cfg["poison"][2], lambda: (a.wait(vm="poison"), flag_store(a, sPF, 1)))
    ofs = [(vO[0], vQ[0]), (vS[1], vS[1] + 16)]
    pi3, pc3 = poll(a, vPO, colds)
    for kh in range(2):
        at(cfg["opoll"][1 + kh][0], role(kh, pi3))
        at(cfg["opoll"][1 + kh][1], role(kh, lambda: (a("s_waitcnt vmcnt(0)"), pc3(), o_load(a, ofs[0], "oe", sOL))))
    assert cfg["hint"] > cfg["opoll"][2][1]
    acc = [vV, vS[0]]
    ta = vP3
    at(cfg["hint"], lambda: flag_store(a, sPF, 2))
    wi, wc, xs = word_check(a, [256, 288], colds, t=vQ[0] + 2)
    at((31, 3), wi)
    at((31, 5), lambda: [a.lds(x) for x in fin_reads(1)])
    p2_main(a, cfg, ev)
    a(";STAMP 7")
    if cfg["hint"] == (32, 0): flag_store(a, sPF, 2)
    wc()
    pi4, pc4 = poll(a, vPO, colds, sleep=cfg["h_sleep"], off=4)
    sOM = 35
    for i in range(3): a("s_add_u32 s%d, s%d, %d" % (sOM + i, sOL + i, 32 * OTILE))
    late = lambda: (a(";STAMP 13"), o_load(a, ofs[1], "ol", sOM))
    sGOT = 38
    a("s_mov_b32 s%d, 0" % sGOT, "s_cmp_eq_u32 s%d, 0" % sKH, "s_cbranch_scc1 L_xs")
    if cfg["try1"] == 2: word_set(a, 7)
    def xsend():
        a("L_xs:", "s_nop 2")
        send_partial(a, 1)
        a("s_waitcnt vmcnt(0)", "L_xw:", "ds_read_b32 v%d, v%d offset:480" % (vT, vWW), "s_waitcnt lgkmcnt(0)",
          "v_cmp_ne_u32 vcc, s%d, v%d" % (sTAG, vT), "s_cbranch_vccz L_xw3")
        spin_guard(a, "L_xw3"); a("s_sleep %d" % cfg["xw_sleep"] if cfg["xw_sleep"] else "s_nop 0", "s_branch L_xw")
        a("L_xw3:", "s_setprio %d" % cfg["xprio2"]); pi4()
        if cfg["try1"]:
            a("s_waitcnt vmcnt(0)", "v_cmp_ne_u32 vcc, s%d, v%d" % (sTAG, vPD), "s_cbranch_vccnz L_xw4", "s_mov_b32 s%d, 1" % sGOT)
            word_set(a, 7); late(); a("s_branch L_tail", "L_xw4:"); pi4()
        a("s_branch L_tail")
    colds.insert(0, xsend)
    a("v_xor_b32 v%d, 48, v%d" % (vPA, vWW))
    finalize(a, 1, slow, colds, prefetched=True)
    rdh = "ds_read_b32 v%d, v%d offset:448" % (vT, vPA)
    if cfg["try1"] != 2: word_set(a, 7)
    if cfg["yprio"]: a("s_setprio %d" % cfg["yprio"])
    a("s_waitcnt vmcnt(3)")
    a("L_tail:", ";STAMP 10")
    p3_mfma_all(a, ofs[0], acc[0], vT, colds, 0, ta, sOL)
    word_set(a, 6)
    a(";STAMP 11")
    a("s_cmp_eq_u32 s%d, 0" % sKH, "s_cbranch_scc1 L_hx")
    a("L_hy2:", rdh, "s_waitcnt lgkmcnt(0)", "v_cmp_ne_u32 vcc, s%d, v%d" % (sTAG, vT), "s_cbranch_vccnz L_hy3", "L_hz:")
    def hint_wait():
        a("L_hy3:"); spin_guard(a, "L_hz"); a("s_sleep 1", "s_branch L_hy2")
        a("L_hx:", "s_cmp_lg_u32 s%d, 0" % sGOT, "s_cbranch_scc1 L_hdone"); a.vm = ["poll"]; pc4(); word_set(a, 7); a("s_branch L_hz")
    colds.insert(0, hint_wait)
    late()
    a("L_hdone:")
    a.vm = []; a.lg = []
    wi, wc, xs = word_check(a, [384], colds)
    wi(); wc()
    a("s_cmp_eq_u32 s%d, 0" % sSHF)
    p3_finish(a, 0, ta, vO[0], cfg["outmod"][0], colds, cfg["fpk"][0])
    a(";STAMP 12")
    p3_mfma_all(a, ofs[1], acc[1], vT, colds, 1, ta, sOM)
    a(";STAMP 14")
    a("s_cmp_eq_u32 s%d, 0" % sSHF, "s_waitcnt lgkmcnt(0)", "s_barrier")
    p3_finish(a, 1, ta, vWO + 2, cfg["outmod"][1], colds, cfg["fpk"][1])
    a(";STAMP 15", ";STAMPWAIT", ";STAMP 5", ";STAMPEND", "L_exit:", "s_endpgm")
    colds.append(idle_rest)
    k = 0
    while k < len(colds):
        colds[k](); k += 1
    def reload():
        wo_load(a, range(5), vL16, vL8, track=False); a("s_waitcnt vmcnt(0)")
    for part, lab, back, done in slows: slow_path(a, part, lab, back, done, reload)
    a("L_codeend:")
    hdr = ["; @launch grid=(256,1,1) block=(512,1,1) lds=%d" % LDS_TOTAL]
    return finish(a, hdr, [name])


def finish(a, hdr, names):
    errs = lint(a.l)
    for e in errs: print("HAZARD", e, file=sys.stderr)
    out = hdr + ['.amdgcn_target "amdgcn-amd-amdhsa--gfx950"', ".text"] + a.l + ['.section .rodata,"a"']
    for n in names: out += [".p2align 6", kd(n)]
    return "\n".join(out) + "\n"


if __name__ == "__main__":
    mode = sys.argv[1] if len(sys.argv) > 1 else "split"
    out = sys.argv[2] if len(sys.argv) > 2 else "cdna_kernels/%s.s" % NAME
    cfg = dict(DEF)
    for kv in sys.argv[3:]:
        k, v = kv.split("=", 1); cfg[k] = eval(v)
    txt = {"fused": gen_fused}[mode](cfg)
    open(out, "w").write(txt)
    print("wrote", out, len(txt.split("\n")), "lines")
```

```python
import gen as G, hazard
txt = G.gen_fused(dict(G.DEF))
ref = open("cdna_kernels/%s.s.ref" % G.NAME).read().split("\n")
lay = [l for l in ref[:7]]
L = [l for l in txt.split("\n") if not l.startswith(";STAMP")]
doc = """; One persistent launch, 256 workgroups x 8 waves, one per CU (generated by my own script; phases below).
;  1. q/k/v projection: 224 workgroups, tile 128 columns x (64 early + 64 late tokens), W/x staged by LDS-DMA,
;     16x16x32 MFMA; results go write-through to d_ws, announced by per-tile flags that carry a per-launch tag.
;     The other 32 workgroups warm the caches and re-lay Wo out as MFMA fragments.
;  2. attention: workgroup = (head, 256 queries); K/V of the head resident in LDS; S^T = K Q^T (32x32x16 + 32x32x4 for
;     dims 16,17), exp2 in place, O^T += V^T P^T with the sparse MFMA reading the high halves of the f32 P registers;
;     a ones row of V^T gives the row sum.  Softmax is evaluated with a constant shift; a run-time guard (row sum outside
;     [2^-16, 2^120] or a non-finite output) redoes the tile with the true row max.
;     The two waves of a SIMD split the keys of one early and one late query tile and run separate instruction streams.
;  3. output projection: O is handed over through d_ws (early half behind a drained flag; late half in slots pre-marked
;     all-ones, every word checked), K split over four waves, partial sums reduced through LDS.""".split("\n")
out = lay + L[:1] + doc + L[1:]
open("cdna_kernels/%s.s" % G.NAME, "w").write("\n".join(out))
print("hazards:", hazard.lint(out))
```

```python
import sys, struct, math
from hazard import lint

NAME = "standalone__mha_block__prompt"

PITCH = 221184 + 128
SEC = 73728
OBASE = 32 * PITCH
OTILE = 36864 + 128
WOBASE = OBASE + 64 * OTILE
FBASE = WOBASE + 36 * 4 * 4608
F01 = FBASE
FRND = 27 * 8 * 128
FW = FBASE + 57344
FEPOCH = FW + 512
FO = FBASE + 65536
WS_SIZE = FO + 131072
CHUNK = 4864
LDS_SPARE = 32 * CHUNK
LDS_TOTAL = 163840
SCALE = struct.unpack("<I", struct.pack("<f", math.log2(math.e) / math.sqrt(18.0)))[0]

sX, sW, sWO, sOUT, sWS, sDBG = 4, 8, 12, 16, 20, 24
sWAVE, sXCD, sJ = 28, 29, 30
sTAG = 31
sLINE, sG, sSEC = 32, 33, 34
sXOFF, sWOFF, sM0X, sSCALE, sM0W, sST = 35, 36, 37, 38, 39, 40
sHEAD, sQI, sKH, sP = 41, 42, 43, 44
sVMASK = 46
sDMASK = 48
sCH, sQOFF = 50, 51
sCM = 45
sST2 = 39
sRT, sCB, sKQ, sRH = 52, 53, 54, 55
sFIVE = 56
sT0, sT1, sT2, sT3, sT4, sT5 = 60, 61, 62, 63, 64, 65
sRET = 66
sSPIN = 68
sWOF = 70
sOCOL = 75
sLOOP = 79
sSHF, sC272, sC80 = 69, 82, 59
sSAVE = 80

def srd(s): return "s[%d:%d]" % (s, s + 3)
def vr(a, n=1): return "v%d" % a if n == 1 else "v[%d:%d]" % (a, a + n - 1)
def sr(a, n=1): return "s%d" % a if n == 1 else "s[%d:%d]" % (a, a + n - 1)

vLANE = 1
vQ = [2, 8]
vIDX = 14
vAK, vAR, vAV = 15, 16, 17
vDMA = 18
vQA, vQR = 22, 23
vT = 24
vSA, vSB, vOA, vOB = 26, 27, 28, 29
vP3 = 30
vPW, vPO = 36, 37
vPA, vPD, vL16, vL8 = 38, 39, 40, 41
vTAG = 0
vAK1 = 47
vXS = 8
vWS = 9
vXR = 11
vWR = 42
vSTA = 46
vACC = [48, 64]
vXF = [80, 96]
vWF = 112
vWO = 42
vV = 132
vK = 148
vKR = 156
vO = [160, 176]
vS = [192, 224]


class Asm:
    def __init__(self):
        self.l = []
        self.vm = []
        self.lg = []
        self.n = 0
        self.clock = 0
        self.lgt = []
        self.age = None

    def __call__(self, *lines):
        for s in lines:
            if isinstance(s, (list, tuple)):
                self(*s)
            elif s.endswith(":") or s.startswith((".", ";")):
                self.l.append(s)
            else:
                self.l.append("    " + s)

    def uid(self, p):
        self.n += 1
        return "L_%s_%d" % (p, self.n)

    def vmem(self, s, tag):
        self(s); self.vm.append(tag)
        assert len(self.vm) <= 63

    def lds(self, s, tag=None):
        self(s); self.lg.append(tag); self.lgt.append(self.clock)

    def _cnt(self, q, tags):
        if not isinstance(tags, (list, set)): tags = [tags]
        last = max([k for k, t in enumerate(q) if t in tags], default=-1)
        return None if last < 0 else len(q) - 1 - last

    def wait(self, vm=None, lg=None):
        parts = []
        if vm is not None:
            n = 0 if vm == "all" else self._cnt(self.vm, vm)
            if n is not None:
                parts.append("vmcnt(%d)" % n); self.vm = self.vm[len(self.vm) - n:]
        if lg is not None:
            n = 0 if lg == "all" else self._cnt(self.lg, lg)
            if n is not None:
                if self.age is not None:
                    while n > 0 and self.clock - self.lgt[len(self.lgt) - n] >= self.age: n -= 1
                n = min(n, 15)
                parts.append("lgkmcnt(%d)" % n); self.lg = self.lg[len(self.lg) - n:]
        if parts: self("s_waitcnt " + " ".join(parts))


def prologue(a, endlabel):
    a(";STAMPINIT", ";STAMP 3", "s_cmp_ge_u32 s2, 256", "s_cbranch_scc1 %s" % endlabel)
    for k, s in enumerate((sX, sW, sWO, sOUT, sDBG, sWS)):
        a("s_load_dwordx2 %s, s[0:1], %d" % (sr(s, 2), 8 * k))
    for s, n in ((sX, 2359296), (sW, 1990656), (sWO, 663552), (sOUT, 2359296), (sDBG, 256), (sWS, WS_SIZE)):
        a("s_mov_b32 s%d, %d" % (s + 2, n), "s_mov_b32 s%d, 0x00020000" % (s + 3))
    a("v_lshrrev_b32 v2, 6, v0", "v_and_b32 v%d, 63, v0" % vLANE, "v_readfirstlane_b32 s%d, v2" % sWAVE,
      "s_and_b32 s%d, s2, 7" % sXCD, "s_lshr_b32 s%d, s2, 3" % sJ)


def p1_roles(a, idle):
    a("s_cmp_ge_u32 s%d, 28" % sJ, "s_cbranch_scc1 %s" % idle,
      "s_lshr_b32 s%d, s%d, 1" % (sT1, sXCD), "s_mul_i32 s%d, s%d, 28" % (sT1, sT1), "s_add_u32 s%d, s%d, s%d" % (sT1, sT1, sJ),
      "s_lshr_b32 s%d, s%d, 3" % (sLINE, sT1), "s_and_b32 s%d, s%d, 7" % (sT5, sT1),
      "s_and_b32 s%d, s%d, 1" % (sG, sXCD), "s_lshl3_add_u32 s%d, s%d, s%d" % (sG, sG, sT5))


XBASE = 98304
def xslot(s): return XBASE + 8192 * (s % 8)
def wslot(s): return 16384 * (s % 6)


def mod9(a, d, t):
    a("s_mul_i32 s%d, s%d, 57" % (t, d), "s_lshr_b32 s%d, s%d, 9" % (t, t), "s_mul_i32 s%d, s%d, 9" % (t, t), "s_sub_u32 s%d, s%d, s%d" % (d, d, t))


def rot_die(a, cfg, d, t):
    if cfg["rotx"] == 1: a("s_lshr_b32 s%d, s%d, 1" % (t, sXCD), "s_add_u32 s%d, s%d, s%d" % (d, d, t))
    if cfg["rotx"] == 2: a("s_add_u32 s%d, s%d, s%d" % (d, d, sXCD))
    if cfg["rotx"] == 3:
        a("s_lshr_b32 s%d, s%d, 1" % (t, sXCD), "s_add_u32 s%d, s%d, s%d" % (d, d, t), "s_and_b32 s%d, s%d, 1" % (t, sXCD), "s_lshl2_add_u32 s%d, s%d, s%d" % (d, t, d))


def p1_issue(a, kind, s):
    if kind == "w":
        def f0():
            a("s_add_u32 m0, s%d, %d" % (sM0W, wslot(s)))
            if s: a("s_add_u32 s%d, s%d, %d" % (sWOFF, sWOFF, 64 * 3456), "s_cmp_eq_u32 s%d, %d" % (sWOFF, 576 * 3456), "s_cselect_b32 s%d, 0, s%d" % (sWOFF, sWOFF))
            else: a("s_nop 0")
            a.vmem("buffer_load_dwordx4 v%d, %s, s%d offen lds" % (vWS, srd(sW), sWOFF), ("w", s))
        def f1():
            a.vmem("buffer_load_dwordx4 v%d, %s, s%d offen offset:1024 lds" % (vWS + 1, srd(sW), sWOFF), ("w", s))
        return [f0, f1]
    def fx():
        a("s_add_u32 m0, s%d, %d" % (sM0X, xslot(s)))
        if s: a("s_add_u32 s%d, s%d, 128" % (sXOFF, sXOFF), "s_cmpk_eq_u32 s%d, 1152" % sXOFF, "s_cselect_b32 s%d, 0, s%d" % (sXOFF, sXOFF))
        else: a("s_nop 0")
        if s == 9: a("v_add_u32 v%d, %d, v%d" % (vXS, 1024 * 1152, vXS))
        a.vmem("buffer_load_dwordx4 v%d, %s, s%d offen lds" % (vXS, srd(sX), sXOFF), ("d", s))
    return [fx]


def p1_head(a, cfg, hooks):
    L = vLANE
    t0, t1, t2, t3 = 38, 39, 40, 41
    a("s_and_b32 s%d, s%d, 1" % (sT0, sWAVE), "s_lshl_b32 s%d, s%d, 2" % (sT1, sT0),
      "v_lshrrev_b32 v%d, 4, v%d" % (t0, L), "v_add_u32 v%d, s%d, v%d" % (t1, sT1, t0),
      "v_and_b32 v%d, 15, v%d" % (t2, L), "v_lshlrev_b32 v%d, 1, v%d" % (t3, t1), "v_xor_b32 v%d, v%d, v%d" % (t2, t2, t3),
      "s_mul_i32 s%d, s%d, %d" % (sT2, sWAVE, 8 * 3456), "s_lshl_b32 s%d, s%d, 8" % (sT3, sLINE), "s_add_u32 s%d, s%d, s%d" % (sT2, sT2, sT3),
      "v_mul_u32_u24 v%d, 3456, v%d" % (t0, t0), "v_lshl_add_u32 v%d, v%d, 4, s%d" % (vWS, t2, sT2),
      "s_cmp_eq_u32 s%d, 13" % sLINE, "s_cselect_b32 s%d, 8, 0" % sT3, "v_and_b32 v%d, s%d, v%d" % (t2, sT3, t2),
      "v_lshl_add_u32 v%d, v%d, 26, v%d" % (t0, t2, t0), "v_add_u32 v%d, v%d, v%d" % (vWS, vWS, t0),
      "v_add_u32 v%d, %d, v%d" % (vWS + 1, 4 * 3456 - 1024, vWS))
    a("s_mul_i32 s%d, s%d, 3" % (sT2, sLINE), "s_add_u32 s%d, s%d, s%d" % (sT2, sT2, sT5))
    rot_die(a, cfg, sT2, sT3)
    mod9(a, sT2, sT3)
    a("s_lshl_b32 s%d, s%d, 7" % (sXOFF, sT2), "s_mul_i32 s%d, s%d, %d" % (sWOFF, sT2, 64 * 3456),
      "s_lshl_b32 s%d, s%d, 10" % (sM0X, sWAVE), "s_lshl_b32 s%d, s%d, 11" % (sM0W, sWAVE))
    a("v_lshrrev_b32 v%d, 3, v%d" % (t0, L), "v_and_b32 v%d, 7, v%d" % (t2, L), "v_xor_b32 v%d, v%d, v%d" % (t2, t2, t1),
      "s_cmp_ge_u32 s%d, 9" % sLINE, "s_cselect_b32 s%d, 2, 0" % sT3, "s_cselect_b32 s%d, 4, 7" % sT4,
      "s_bfe_u32 s%d, s%d, 0x10001" % (sT1, sWAVE), "s_lshl_b32 s%d, s%d, s%d" % (sT1, sT1, sT3),
      "s_lshl4_add_u32 s%d, s%d, s%d" % (sT1, sT0, sT1), "s_and_b32 s%d, s%d, 4" % (sT2, sWAVE), "s_lshl3_add_u32 s%d, s%d, s%d" % (sT1, sT2, sT1),
      "s_lshl_b32 s%d, s%d, 6" % (sT2, sG), "s_add_u32 s%d, s%d, s%d" % (sT1, sT1, sT2),
      "v_and_b32 v%d, s%d, v%d" % (t3, sT4, t0), "v_add3_u32 v%d, v%d, v%d, s%d" % (t3, t3, t0, sT1),
      "v_mul_u32_u24 v%d, 1152, v%d" % (t3, t3), "v_lshl_add_u32 v%d, v%d, 4, v%d" % (vXS, t2, t3))
    a("s_waitcnt lgkmcnt(0)", ";STAMP 17")

    issue = lambda kind, s: p1_issue(a, kind, s)
    plan = cfg["plan"]
    assert sorted((k, s) for _, k, s in plan) == sorted([("w", s) for s in range(9)] + [("x", s) for s in range(18)])
    for b, kind, s in plan:
        assert b < s and (kind == "w" and (s < 6 or b >= s - 5) or kind == "x" and (s < 8 or b >= s - 7))
    pre = [(kind, s) for b, kind, s in plan if b < 0]
    for kind, s in pre[:cfg["npre"]]:
        for f in issue(kind, s): f()
    t0, t1, t2, t3 = 48, 49, 50, 51
    hooks["setup"]()

    a("s_lshr_b32 s%d, s%d, 2" % (sT0, sWAVE), "s_and_b32 s%d, s%d, 3" % (sT1, sWAVE),
      "s_lshl_b32 s%d, s%d, 12" % (sT2, sT0), "s_add_u32 s%d, s%d, %d" % (sT2, sT2, XBASE),
      "v_and_b32 v%d, 15, v%d" % (t0, L), "v_lshrrev_b32 v%d, 4, v%d" % (t1, L),
      "v_bfe_u32 v%d, v%d, 1, 3" % (t2, L), "v_xor_b32 v%d, v%d, v%d" % (t2, t2, t1),
      "v_lshlrev_b32 v%d, 4, v%d" % (t2, t2),
      "v_lshl_add_u32 v%d, v%d, 7, s%d" % (t3, t0, sT2),
      "v_add_u32 v%d, v%d, v%d" % (vXR, t2, t3), "v_xor_b32 v%d, 64, v%d" % (vXR + 1, vXR))
    a("v_bfe_u32 v%d, v%d, 2, 2" % (t2, L), "v_lshl_add_u32 v%d, v%d, 3, v%d" % (t2, t1, t2),
      "v_lshlrev_b32 v%d, 8, v%d" % (vWR, t2),
      "v_and_b32 v%d, 3, v%d" % (t2, L), "v_lshl_add_u32 v%d, v%d, 3, v%d" % (vWR, t2, vWR),
      "s_lshl_b32 s%d, s%d, 1" % (sT2, sT1),
      "v_bfe_u32 v%d, v%d, 2, 3" % (t2, L), "v_xor_b32 v%d, s%d, v%d" % (t2, sT2, t2),
      "v_lshl_add_u32 v%d, v%d, 5, v%d" % (vWR, t2, vWR),
      "v_xor_b32 v%d, 32, v%d" % (vWR + 1, vWR),
      "v_add_u32 v%d, 0x10000, v%d" % (vWR + 2, vWR), "v_add_u32 v%d, 0x10000, v%d" % (vWR + 3, vWR + 1))
    a("s_mul_i32 s%d, s%d, %d" % (sST, sG, PITCH), "v_lshlrev_b32 v%d, 4, v%d" % (t0, t0),
      "s_lshl2_add_u32 s%d, s%d, s%d" % (sT2, sLINE, sT1),
      "s_cmp_ge_u32 s%d, 54" % sT2, "s_cselect_b32 s%d, 0x40000000, s%d" % (sST, sST),
      "s_mov_b32 s%d, 0x%08x" % (sT4, SCALE), "s_cmp_lt_u32 s%d, 18" % sT2, "s_cselect_b32 s%d, s%d, 1.0" % (sSCALE, sT4),
      "s_movk_i32 s%d, 256" % sT4, "s_movk_i32 s%d, 512" % sT5, "s_cmp_ge_u32 s%d, 9" % sLINE,
      "s_cselect_b32 s%d, %d, s%d" % (sT4, 4 * 9216, sT4), "s_cselect_b32 s%d, 9216, s%d" % (sT5, sT5),
      "s_cselect_b32 s%d, 9, 12" % sT1, "s_cselect_b32 s%d, %d, 0" % (sT3, 2 * SEC - 18 * 1024),
      "s_mul_i32 s%d, s%d, s%d" % (sT0, sT0, sT4), "s_lshl_b32 s%d, s%d, s%d" % (sT2, sT2, sT1),
      "s_add_u32 s%d, s%d, s%d" % (sST, sST, sT3), "s_add_u32 s%d, s%d, s%d" % (sST, sST, sT2), "s_add_u32 s%d, s%d, s%d" % (sST, sST, sT0),
      "v_mad_u32_u24 v%d, v%d, s%d, v%d" % (vSTA, t1, sT5, t0))
    a(";STAMP 18")
    for kind, s in pre[cfg["npre"]:]:
        for f in issue(kind, s): f()
    hooks["setup2"]()
    if cfg["p1prio"]:
        l = a.uid("pp"); a("s_cmp_lt_u32 s%d, 4" % sWAVE, "s_cbranch_scc1 %s" % l, "s_setprio 1", "%s:" % l)


def p1_body(a, isv, cfg, hooks):
    issue = lambda kind, s: p1_issue(a, kind, s)
    plan = cfg["plan"]

    def reads(s):
        r = []
        for m in range(2):
            for t in range(2):
                r.append("ds_read_b128 %s, v%d offset:%d" % (vr(vXF[s % 2] + 8 * m + 4 * t, 4), vXR + m, xslot(s) - XBASE + 2048 * t))
                if s < 9:
                    for h in range(2):
                        r.append("ds_read_b64_tr_b16 %s, v%d offset:%d" % (vr(vWF + 16 * s + 8 * m + 4 * t + 2 * h, 2), vWR + t + 2 * (wslot(s) >> 16),
                                                                           (wslot(s) & 0xffff) + (32 * m + 4 * h) * 256))
        return [(lambda x=x: a.lds(x)) for x in r]

    def mfmas(s):
        r = []
        for m in range(2):
            for ft in range(2):
                for tt in range(2):
                    acc = vr(vACC[s // 9] + 8 * ft + 4 * tt, 4)
                    w = vr(vWF + 16 * (s % 9) + 8 * m + 4 * ft, 4); x = vr(vXF[s % 2] + 8 * m + 4 * tt, 4)
                    c = "0" if (s % 9 == 0 and m == 0) else acc
                    r.append("v_mfma_f32_16x16x32_bf16 %s, %s, %s, %s" % ((acc, x, w, c) if isv else (acc, w, x, c)))
        return r

    def store(r, n):
        a.vmem("buffer_store_dwordx4 %s, v%d, %s, s%d offen offset:%d sc1" % (vr(vACC[r] + 8 * n, 4), vSTA, srd(sWS), sST, (256 if isv else 2048) * n), ("st", r))

    def epilogue(r):
        acc = vACC[r]
        mid = hooks.get("mid_epi1") if r else None
        for n in range(2):
            if not isv:
                for i in range(8 * n, 8 * n + 8, 2): a("v_pk_mul_f32 %s, %s, %s op_sel_hi:[1,0]" % (vr(acc + i, 2), vr(acc + i, 2), sr(sSCALE, 2)))
            for i in range(4): a("v_cvt_pk_bf16_f32 v%d, v%d, v%d" % (acc + 8 * n + i, acc + 8 * n + 2 * i, acc + 8 * n + 2 * i + 1))
            if not mid: store(r, n)
        if mid: mid(lambda: (store(r, 0), store(r, 1)))
        if r == 0: a("s_add_u32 s%d, s%d, %d" % (sST, sST, 16 * PITCH))

    for s in range(18):
        extra = hooks.get(("waitfor", s), [])
        a.wait(vm=[("d", s)] + [("w", s)] + extra, lg="all")
        a("s_barrier")
        a(";STAMP %d" % (20 + s))
        hooks.get(("bar", s), lambda: None)()
        side = reads(s)
        xp = cfg.get("x_p1", "")
        if "noread" in xp: side = []
        if "nowread" in xp: side = side[0::3] if s < 9 else side
        dm = []
        for b, kind, s2 in plan:
            if b == s and "nodma" not in xp: dm += issue(kind, s2)
        if cfg["dmapos"] == 0 or s >= 9: side += dm
        elif cfg["dmapos"] == 1: side = dm + side
        else:
            k = max(1, len(side) // max(1, len(dm))); mix = []
            while side or dm:
                mix += side[:k] + dm[:1]; side = side[k:]; dm = dm[1:]
            side = mix
        mm = mfmas(s - 1) if s > 0 else []
        if cfg["early0"] and s == 9: mm = []
        if "nomfma" in xp: mm = []
        side = hooks.get(("side0", s), []) + side + hooks.get(("side", s), [])
        per = max(cfg["per1"], -(-len(side) // 8))
        for x in mm:
            a(x)
            for f in side[:per]: f()
            side = side[per:]
        for f in side: f()
        if cfg["ftmaj"] and s == 8:
            a.wait(lg="all")
            mm = mfmas(8); a([mm[i] for i in (0, 1, 4, 5, 2, 3, 6, 7)])
            a("s_nop 3")
            epilogue(0)
            a(";STAMP 39")
        elif cfg["early0"] and s == 8:
            a.wait(lg="all"); a(mfmas(8))
        if s == (8 if cfg["early0"] else 9) and not cfg["ftmaj"]:
            a("s_nop 5")
            epilogue(0)
            a(";STAMP 39")
        hooks.get(("step", s), lambda: None)()
    a.wait(lg="all")
    a(mfmas(17))
    hooks.get("pre_epi1", lambda: None)()
    a("s_nop 5")
    epilogue(1)
    a(";STAMP 38")
    hooks.get("post_epi1", lambda: None)()


def wo_role(a, skip):
    L = vLANE
    t0, t1, t2, t3 = 42, 43, 44, 45
    a("s_sub_u32 s%d, s2, 224" % sLINE, "s_cmp_ge_u32 s%d, 18" % sLINE, "s_cbranch_scc1 %s" % skip)
    a("s_lshl_b32 s%d, s%d, 3" % (sT0, sWAVE), "v_lshrrev_b32 v%d, 3, v%d" % (t0, L), "v_add_u32 v%d, s%d, v%d" % (t0, sT0, t0),
      "v_mul_u32_u24 v%d, 1152, v%d" % (t0, t0), "v_and_b32 v%d, 7, v%d" % (t1, L), "v_lshl_add_u32 v%d, v%d, 4, v%d" % (t0, t1, t0),
      "s_lshr_b32 s%d, s%d, 1" % (sT4, sLINE), "s_lshl_b32 s%d, s%d, 7" % (sT1, sT4), "s_and_b32 s%d, s%d, 1" % (sT5, sLINE),
      "s_mul_i32 s%d, s%d, %d" % (sT2, sT5, 288 * 1152), "s_add_u32 s%d, s%d, s%d" % (sT1, sT1, sT2),
      "s_lshl_b32 s%d, s%d, 10" % (sT2, sWAVE))
    for k in range(5):
        a("s_add_u32 m0, s%d, %d" % (sT2, 8192 * k))
        if k == 4: a("s_cmp_ge_u32 s%d, 4" % sWAVE, "s_cselect_b32 s%d, 0x40000000, s%d" % (sT1, sT1))
        else: a("s_nop 0")
        a.vmem("buffer_load_dwordx4 v%d, %s, s%d offen lds" % (t0, srd(sW), sT1), "wo")
        if k < 4: a("s_add_u32 s%d, s%d, %d" % (sT1, sT1, 64 * 1152))
    a("s_and_b32 s%d, s%d, 3" % (sT0, sWAVE), "s_lshr_b32 s%d, s%d, 2" % (sT1, sWAVE),
      "s_mul_i32 s%d, s%d, 144" % (sT3, sT1), "s_lshl_b32 s%d, s%d, 5" % (sT2, sT0),
      "v_lshrrev_b32 v%d, 5, v%d" % (t0, L), "v_mul_u32_u24 v%d, 18, v%d" % (t0, t0),
      "v_bfe_u32 v%d, v%d, 2, 3" % (t1, L),
      "v_add3_u32 v%d, v%d, v%d, s%d" % (t0, t0, t1, sT3),
      "v_and_b32 v%d, 3, v%d" % (t2, L), "v_lshl_add_u32 v%d, v%d, 3, s%d" % (t2, t2, sT2),
      "v_lshl_add_u32 v%d, v%d, 7, v%d" % (t0, t0, t2),
      "v_lshrrev_b32 v%d, 3, v%d" % (t1, L), "v_mul_u32_u24 v%d, 18, v%d" % (t1, t1),
      "v_bfe_u32 v%d, v%d, 2, 1" % (t3, L), "s_add_u32 s%d, s%d, 16" % (sT3, sT3),
      "v_add3_u32 v%d, v%d, v%d, s%d" % (t1, t1, t3, sT3),
      "v_lshl_add_u32 v%d, v%d, 7, v%d" % (t1, t1, t2))
    a("s_lshl2_add_u32 s%d, s%d, s%d" % (sT2, sT4, sT0), "s_lshl1_add_u32 s%d, s%d, s%d" % (sT2, sT2, sT5), "s_lshl1_add_u32 s%d, s%d, s%d" % (sT2, sT2, sT1),
      "s_mul_i32 s%d, s%d, 4608" % (sT2, sT2), "s_add_u32 s%d, s%d, %d" % (sT2, sT2, WOBASE), "s_add_u32 s%d, s%d, 4096" % (sT4, sT2),
      "v_lshlrev_b32 v%d, 4, v%d" % (t2, L), "v_lshlrev_b32 v%d, 3, v%d" % (t3, L))
    a.wait(vm="all"); a("s_barrier")
    for m in range(4):
        for h in range(2):
            a.lds("ds_read_b64_tr_b16 %s, v%d offset:%d" % (vr(48 + 4 * m + 2 * h, 2), t0, (36 * m + 8 * h) * 128))
    a.lds("ds_read_b64_tr_b16 v[64:65], v%d" % t1)
    a.wait(lg="all")
    for m in range(4):
        a.vmem("buffer_store_dwordx4 %s, v%d, %s, s%d offen offset:%d sc1" % (vr(48 + 4 * m, 4), t2, srd(sWS), sT2, 1024 * m), "st")
    a.vmem("buffer_store_dwordx2 v[64:65], v%d, %s, s%d offen sc1" % (t3, srd(sWS), sT4), "st")


def p2_setup(a):
    L = vLANE
    t0, t1, t2, t3 = 38, 39, 40, 41
    a("s_lshl_b32 s%d, s%d, 2" % (sHEAD, sXCD), "s_lshr_b32 s%d, s%d, 3" % (sT0, sJ), "s_add_u32 s%d, s%d, s%d" % (sHEAD, sHEAD, sT0),
      "s_and_b32 s%d, s%d, 7" % (sQI, sJ), "s_and_b32 s%d, s%d, 3" % (sP, sWAVE), "s_lshr_b32 s%d, s%d, 2" % (sKH, sWAVE),
      "s_mov_b32 s%d, 0x3ffff" % sVMASK, "s_mov_b32 s%d, 0x3ffff" % (sVMASK + 1),
      "s_mov_b32 s%d, -1" % sDMASK, "s_mov_b32 s%d, 0xffff" % (sDMASK + 1),
      "s_and_b32 s%d, s%d, 1" % (sT0, sHEAD),
      "s_lshr_b32 s%d, s%d, 1" % (sT1, sHEAD), "s_mul_i32 s%d, s%d, %d" % (sT1, sT1, 9 * 512))
    a("v_and_b32 v%d, 31, v%d" % (t0, L), "v_lshrrev_b32 v%d, 5, v%d" % (t1, L))
    a("s_lshl_b32 s%d, s%d, 11" % (sT2, sT0), "s_add_u32 s%d, s%d, s%d" % (sT2, sT2, sT1), "s_add_u32 s%d, s%d, %d" % (sT2, sT2, SEC),
      "v_lshl_add_u32 v%d, v%d, 4, s%d" % (vDMA, L, sT2),
      "s_mul_i32 s%d, s%d, 288" % (sT3, sHEAD))
    for k in (2, 3, 4):
        imm = 1024 * k if k < 4 else 0
        d = vDMA + k - 1
        a("v_add_u32 v%d, %d, v%d" % (t2, (64 * k - 160) & 0xffffffff, L))
        if k == 2: a("v_max_i32 v%d, 0, v%d" % (t2, t2))
        a("v_mul_u32_u24 v%d, 3641, v%d" % (t3, t2), "v_lshrrev_b32 v%d, 16, v%d" % (t3, t3),
          "v_mul_u32_u24 v%d, %d, v%d" % (t3, 9216 - 288, t3),
          "v_lshl_add_u32 v%d, v%d, 4, v%d" % (t3, t2, t3),
          "s_add_u32 s%d, s%d, %d" % (sT4, sT3, 2 * SEC - imm),
          "v_add_u32 v%d, s%d, v%d" % (d, sT4, t3))
        if k == 2:
            a("v_cmp_gt_u32 vcc, 32, v%d" % L, "s_nop 1", "v_cndmask_b32 v%d, v%d, v%d, vcc" % (d, d, vDMA))
    a("s_mul_i32 s%d, s%d, %d" % (sT2, sKH, CHUNK),
      "s_lshl_b32 s%d, s%d, 9" % (sT3, sT0), "s_add_u32 s%d, s%d, s%d" % (sT3, sT3, sT2),
      "v_lshlrev_b32 v%d, 10, v%d" % (t2, t1), "v_lshl_add_u32 v%d, v%d, 3, v%d" % (t2, t0, t2),
      "v_add_u32 v%d, s%d, v%d" % (vAK, sT3, t2),
      "s_mul_i32 s%d, s%d, %d" % (sT3, sT0, (4 - 2048) & 0xffffffff), "s_add_u32 s%d, s%d, 2048" % (sT3, sT3),
      "s_add_u32 s%d, s%d, s%d" % (sT3, sT3, sT2),
      "v_lshl_add_u32 v%d, v%d, 3, s%d" % (vAR, L, sT3),
      "s_add_u32 s%d, s%d, 2560" % (sT3, sT2),
      "v_mul_u32_u24 v%d, 288, v%d" % (t3, t1), "v_lshl_add_u32 v%d, v%d, 4, v%d" % (t3, t0, t3),
      "v_add_u32 v%d, s%d, v%d" % (vAV, sT3, t3))
    a("s_mul_i32 s%d, s%d, %d" % (sT3, sT0, 5 * 512), "s_add_u32 s%d, s%d, s%d" % (sT3, sT3, sT1),
      "v_add_u32 v%d, s%d, v%d" % (vQA, sT3, t2),
      "s_lshl_b32 s%d, s%d, 2" % (sT3, sT0), "s_add_u32 s%d, s%d, s%d" % (sT3, sT3, sT1), "s_add_u32 s%d, s%d, 2048" % (sT3, sT3),
      "v_lshl_add_u32 v%d, v%d, 3, s%d" % (vQR, t0, sT3),
      "s_lshl_b32 s%d, s%d, 1" % (sT3, sQI), "s_lshr_b32 s%d, s%d, 1" % (sT4, sP), "s_add_u32 s%d, s%d, s%d" % (sT3, sT3, sT4),
      "s_mul_i32 s%d, s%d, %d" % (sQOFF, sT3, PITCH), "s_and_b32 s%d, s%d, 1" % (sT4, sP), "s_lshl_b32 s%d, s%d, 8" % (sT4, sT4),
      "s_add_u32 s%d, s%d, s%d" % (sQOFF, sQOFF, sT4),
      "s_lshl1_add_u32 s%d, s%d, s%d" % (sT0, sP, sKH), "s_mul_i32 s%d, s%d, %d" % (sCM, sT0, CHUNK), "s_mul_i32 s%d, s%d, %d" % (sCH, sT0, PITCH),
      "v_mov_b32 v%d, 0xdddddddd" % vIDX, "v_mov_b32 v%d, 0" % (vQ[0] + 5), "v_mov_b32 v%d, 0" % (vQ[1] + 5))


def q_load(a, part):
    so = sQOFF
    if part:
        a("s_add_u32 s%d, s%d, %d" % (sT0, sQOFF, 16 * PITCH)); so = sT0
    q = vQ[part]
    a.vmem("buffer_load_dwordx2 %s, v%d, %s, s%d offen sc1" % (vr(q, 2), vQA, srd(sWS), so), ("q", part))
    a.vmem("buffer_load_dwordx2 %s, v%d, %s, s%d offen offset:512 sc1" % (vr(q + 2, 2), vQA, srd(sWS), so), ("q", part))
    a.vmem("buffer_load_dword v%d, v%d, %s, s%d offen sc1" % (q + 4, vQR, srd(sWS), so), ("q", part))


def kv_piece(a, st, k):
    if k == 0: a("s_add_u32 m0, s%d, %d" % (sCM, 8 * st * CHUNK), "s_add_u32 s%d, s%d, %d" % (sCH, sCH, 8 * PITCH) if st else "s_nop 0")
    if k < 4:
        a.vmem("buffer_load_dwordx4 v%d, %s, s%d offen offset:%d sc1 lds" % (vDMA + max(0, k - 1), srd(sWS), sCH, 1024 * k), ("kv", st))
    else:
        a("s_add_u32 m0, m0, 4096", "s_mov_b64 exec, %s" % sr(sDMASK, 2))
        a.vmem("buffer_load_dwordx4 v%d, %s, s%d offen sc1 lds" % (vDMA + 3, srd(sWS), sCH), ("kv", st))
        a("s_mov_b64 exec, -1")


def kv_dma(a, st):
    for k in range(5): kv_piece(a, st, k)


def q_dma(a):
    a("s_lshl1_add_u32 s%d, s%d, s%d" % (sT1, sQI, sKH), "s_mul_i32 s%d, s%d, %d" % (sT1, sT1, PITCH),
      "s_mul_i32 s%d, s%d, 2560" % (sT0, sKH), "s_add_u32 m0, s%d, %d" % (sT0, LDS_SPARE),
      "v_subrev_u32 v%d, %d, v%d" % (vT, SEC, vDMA))
    for k in range(3):
        if k == 2: a("s_mov_b32 exec_hi, 0")
        a("buffer_load_dwordx4 v%d, %s, s%d offen offset:%d sc1 lds" % (vT, srd(sWS), sT1, 1024 * k))
    a("s_mov_b64 exec, -1")


def q_addr(a):
    a("s_lshr_b32 s%d, s%d, 1" % (sT0, sP), "s_mul_i32 s%d, s%d, 2560" % (sT0, sT0), "s_and_b32 s%d, s%d, 1" % (sT1, sP), "s_lshl_b32 s%d, s%d, 8" % (sT1, sT1),
      "s_add_u32 s%d, s%d, s%d" % (sT0, sT0, sT1), "s_mul_i32 s%d, s%d, %d" % (sT1, sKH, CHUNK), "s_sub_u32 s%d, s%d, s%d" % (sT0, sT0, sT1),
      "s_add_u32 s%d, s%d, %d" % (sT0, sT0, LDS_SPARE),
      "v_add_u32 v%d, s%d, v%d" % (vT, sT0, vAK), "v_and_b32 v%d, 32, v%d" % (vT + 1, vLANE), "v_lshlrev_b32 v%d, 3, v%d" % (vT + 1, vT + 1),
      "v_sub_u32 v%d, v%d, v%d" % (vT + 1, vAR, vT + 1), "v_add_u32 v%d, s%d, v%d" % (vT + 1, sT0, vT + 1))


def q_read(a):
    q = vQ[0]
    a.lds("ds_read_b32 v%d, v%d" % (q + 4, vT + 1), "R")
    for h in range(2): a.lds("ds_read_b64 %s, v%d offset:%d" % (vr(q + 2 * h, 2), vT, 512 * h), ("K", 0))


def v_consts(a, base, t):
    a("s_mov_b32 s%d, 0x440000" % sSAVE, "s_mov_b32 s%d, 0x440000" % (sSAVE + 1), "v_mov_b32 v%d, 0x3f803f80" % t,
      "v_cndmask_b32 v%d, 0, v%d, %s" % (base, t, sr(sSAVE, 2)))
    a("v_mov_b32 v%d, v%d" % (base + 1, base))
    for i in range(1, 8): a("v_mov_b64 %s, %s" % (vr(base + 2 * i, 2), vr(base, 2)))


def p2_init(a):
    word_setup(a)
    v_consts(a, vV, vV + 2)
    a("v_mov_b32 v%d, 0" % (vKR + 1))
    for i in range(16): a("v_mov_b64 %s, 0" % vr(vO[0] + 2 * i, 2))


def p2_main(a, cfg, ev):
    ns = cfg["nsolo"]
    U = [(i, 0) for i in range(ns)] + [(i, q) for i in range(ns, 16) for q in range(2)] + [(i, 1) for i in range(ns)]
    if cfg["uswap"]: U[6:10] = [(6, 0), (7, 0), (7, 1), (6, 1)]
    N = len(U)
    base = {"k": 0, "r": 0, "v": 0, "k0": 0, "k1": 0}
    reg = {"k": vAK, "r": vAR, "v": vAV, "k0": vAK, "k1": vAK1}
    seen = set()

    def off(kind, i):
        if i not in seen:
            seen.add(i)
            if ("pre", i) in ev: ev[("pre", i)]()
        want = (i // 6) * 6
        if base[kind] != want:
            a("v_add_u32 v%d, 0x%x, v%d" % (reg[kind], ((want - base[kind]) * 2 * CHUNK) & 0xffffffff, reg[kind]))
            base[kind] = want
        return (i - want) * 2 * CHUNK

    def rR(i):
        o = off("r", i); a.lds("ds_read_b32 v%d, v%d offset:%d" % (vKR, vAR, o), "R")
    def rK(i, t):
        if cfg["k2"]:
            kind = "k%d" % t
            want = 0 if i < 13 else 13
            if base[kind] != want:
                a("v_add_u32 v%d, 0x%x, v%d" % (reg[kind], ((want - base[kind]) * 2 * CHUNK) & 0xffffffff, reg[kind])); base[kind] = want
            o = (i - want) * 19
            a.lds("ds_read2st64_b64 %s, v%d offset0:%d offset1:%d" % (vr(vK + 4 * t, 4), reg[kind], o, o + 1), ("K", t))
            return
        o = off("k", i)
        for h in range(2): a.lds("ds_read_b64 %s, v%d offset:%d" % (vr(vK + 4 * t + 2 * h, 2), vAK, o + 256 * t + 512 * h), ("K", t))
    def rV(i, fs):
        if ("prev", i) in ev: ev.pop(("prev", i))()
        o = off("v", i)
        if not cfg.get("x_nomask"): a("s_mov_b64 exec, %s" % sr(sVMASK, 2))
        for f in fs: a.lds("ds_read_b128 %s, v%d offset:%d" % (vr(vV + 4 * f, 4), vAV, o + 576 * f), ("V", f // 2))
        if not cfg.get("x_nomask"): a("s_mov_b64 exec, -1")
    def R(u):
        a.wait(lg="R")
        if U[u][1] == 1 and "ql" in ev: ev.pop("ql")()
        a("v_mfma_f32_32x32x4_2b_bf16 %s, %s, %s, 0" % (vr(vS[u % 2], 32), vr(vKR, 2), vr(vQ[U[u][1]] + 4, 2)))
    def M(u, t):
        a.wait(lg=("K", t))
        s = vr(vS[u % 2] + 16 * t, 16)
        a("v_mfma_f32_32x32x16_bf16 %s, %s, %s, %s" % (s, vr(vK + 4 * t, 4), vr(vQ[U[u][1]], 4), s))
    def P(u, f):
        a.wait(lg=("V", f // 2))
        a("v_smfmac_f32_32x32x32_bf16 %s, %s, %s, v%d" % (vr(vO[U[u][1]], 16), vr(vV + 4 * f, 4), vr(vS[u % 2] + 8 * f, 8), vIDX))
    ch = lambda u: U[u][0]
    newk = lambda u: u < N and ch(u) != ch(u - 1)

    rR(ch(0)); rK(ch(0), 0); rK(ch(0), 1)
    rV(ch(0), (0, 1, 2, 3))
    R(0)
    if newk(1): rR(ch(1))
    if "fill" in ev: ev["fill"]()
    a("s_nop 15" if "fill" not in ev else "s_nop 13", "s_nop 1")
    M(0, 0)
    if newk(1): rK(ch(1), 0)
    M(0, 1)
    if newk(1): rK(ch(1), 1)
    a("s_nop 7")
    pos = cfg["pos"]
    a.age = cfg["age"]
    for u in range(N):
        def op(j):
            if j == 0:
                if u > 0:
                    P(u - 1, 3)
                    if newk(u): rV(ch(u), (2, 3))
            elif j == 1:
                if u + 1 < N:
                    R(u + 1)
            elif j == 2: P(u, 0)
            elif j == 3:
                P(u, 1)
                if newk(u + 1): rV(ch(u + 1), (0, 1))
            elif j == 4 or j == 6:
                if u + 1 < N:
                    M(u + 1, (j - 4) // 2)
                    if newk(u + 2):
                        if j == 4: rR(ch(u + 2))
                        rK(ch(u + 2), (j - 4) // 2)
            elif j == 5: P(u, 2)
            if (u, j) in cfg.get("prio", {}): a("s_setprio %d" % cfg["prio"][(u, j)])
            if (u, j) in cfg.get("priox", {}):
                l = a.uid("px"); a("s_cmp_lg_u32 s%d, 0" % sKH, "s_cbranch_scc1 %s" % l, "s_setprio %d" % cfg["priox"][(u, j)], "%s:" % l)
            if (u, j) in ev: ev[(u, j)]()
        a(";STAMP %d" % (40 + u))
        for e in range(32):
            if e in pos: op(pos.index(e))
            a("v_exp_f32 v%d, v%d" % (vS[u % 2] + e, vS[u % 2] + e)); a.clock += 1
    a.age = None
    a("s_nop 1")
    P(N - 1, 3)
    return U


SCR_RES, SCR_ROFF = 12 * CHUNK, (0, 2 * CHUNK)
SCR_MOFF = (0, 0)
P3_BASE, P3_OFF = 15 * CHUNK, (39936, 0)
sOA, sOR = 34, 3
sOL = 12
sPF = 15
vFD = [vWO + 72, vWO + 72]


def late_setup(a):
    L = vLANE
    a("s_lshl_b32 s%d, s%d, 11" % (sT0, sP), "s_add_u32 s%d, s%d, %d" % (sT0, sT0, LDS_SPARE), "v_add_u32 v%d, s%d, v%d" % (vSA, sT0, vL16),
      "s_lshl_b32 s%d, s%d, 10" % (sT0, sP), "s_add_u32 s%d, s%d, %d" % (sT0, sT0, SCR_RES), "v_add_u32 v%d, s%d, v%d" % (vSB, sT0, vL16),
      "s_lshl2_add_u32 s%d, s%d, s%d" % (sT0, sQI, sP), "s_mul_i32 s%d, s%d, %d" % (sT0, sT0, OTILE), "s_add_u32 s%d, s%d, %d" % (sT0, sT0, OBASE),
      "s_lshl_b32 s%d, s%d, 10" % (sT1, sHEAD), "s_add_u32 s%d, s%d, s%d" % (sOA, sT1, sT0),
      "s_lshl_b32 s%d, s%d, 7" % (sT1, sHEAD), "s_add_u32 s%d, s%d, s%d" % (sOR, sT1, sT0), "s_add_u32 s%d, s%d, 32768" % (sOR, sOR),
      "v_lshrrev_b32 v%d, 4, v%d" % (vOB, L), "v_and_b32 v%d, 15, v%d" % (vT, L), "s_lshl_b32 s%d, s%d, 4" % (sT1, sRH), "v_add_u32 v%d, s%d, v%d" % (vT, sT1, vT),
      "v_lshlrev_b32 v%d, 9, v%d" % (vOA, vOB), "v_lshl_add_u32 v%d, v%d, 4, v%d" % (vOA, vT, vOA),
      "v_lshlrev_b32 v%d, 8, v%d" % (vOB, vOB), "v_lshl_add_u32 v%d, v%d, 2, v%d" % (vOB, vT, vOB),
      "s_lshl2_add_u32 s%d, s%d, s%d" % (sT0, sXCD, sRT), "s_mul_i32 s%d, s%d, %d" % (sT0, sT0, OTILE), "s_add_u32 s%d, s%d, %d" % (sT0, sT0, OBASE),
      "s_lshl_b32 s%d, s%d, 13" % (sT1, sKQ), "s_add_u32 s%d, s%d, s%d" % (sOL, sT1, sT0), "s_add_u32 s%d, s%d, 4096" % (sOL + 1, sOL),
      "s_lshl_b32 s%d, s%d, 10" % (sT1, sKQ), "s_add_u32 s%d, s%d, s%d" % (sOL + 2, sT1, sT0), "s_add_u32 s%d, s%d, 32768" % (sOL + 2, sOL + 2))


RES4 = [0]


def o_store(a, d, t, part, em):
    sa, sb = sOA, sOR
    if part:
        a("s_add_u32 s%d, s%d, %d" % (sT1, sOA, 32 * OTILE), "s_add_u32 s%d, s%d, %d" % (sT2, sOR, 32 * OTILE)); sa, sb = sT1, sT2
    em("buffer_store_dwordx4 %s, v%d, %s, s%d offen sc1" % (vr(d, 4), vL16, srd(sWS), sa))
    if RES4[0]:
        a("s_mov_b64 exec, 0xff")
        em("buffer_store_dwordx4 %s, v%d, %s, s%d offen sc1" % (vr(t, 4), vL16, srd(sWS), sb))
        a("s_mov_b64 exec, -1")
        return
    a("s_mov_b32 exec_hi, 0")
    em("buffer_store_dword v%d, v%d, %s, s%d offen sc1" % (d + 4, t, srd(sWS), sb))
    a("s_mov_b64 exec, -1")


def poison(a, parts=(0, 1)):
    d = vFD[0]
    a("v_mov_b64 %s, -1" % vr(d, 2), "v_mov_b64 %s, -1" % vr(d + 2, 2))
    if not RES4[0]: a("v_mov_b32 v%d, -1" % (d + 4), "v_lshlrev_b32 v%d, 2, v%d" % (vT, vLANE))
    for part in parts: o_store(a, d, d if RES4[0] else vT, part, lambda x: a.vmem(x, "poison"))


def send_partial(a, part):
    o = vO[part]
    a("v_mov_b32 v%d, s%d" % (o + 11, sTAG),
      "ds_write_b128 v%d, %s offset:%d" % (vSA, vr(o, 4), SCR_MOFF[part]), "ds_write_b128 v%d, %s offset:%d" % (vSA, vr(o + 4, 4), SCR_MOFF[part] + 1024),
      "ds_write_b128 v%d, %s offset:%d" % (vSB, vr(o + 8, 4), SCR_ROFF[part]))


def fin_reads(part):
    d = vFD[part]
    return ["ds_read_b128 %s, v%d offset:%d" % (vr(d + 8, 4), vSB, SCR_ROFF[part]),
            "ds_read_b128 %s, v%d offset:%d" % (vr(d, 4), vSA, SCR_MOFF[part]), "ds_read_b128 %s, v%d offset:%d" % (vr(d + 4, 4), vSA, SCR_MOFF[part] + 1024)]


NOPK = [0, 0]


def finalize(a, part, slow, colds, prefetched=False, before_store=None):
    o = vO[part]
    t = vT
    d = vFD[part]
    if not prefetched: a(fin_reads(part))
    again = a.uid("meet")
    a("s_mov_b32 s%d, 0" % sT5, "s_mov_b32 s%d, 0x37800000" % sT4,
      "%s:" % again, "s_waitcnt lgkmcnt(0)", "v_cmp_ne_u32 vcc, s%d, v%d" % (sTAG, d + 11), "s_cbranch_vccnz %s_r" % again, "%s_k:" % again)
    def cold():
        a("%s_r:" % again); spin_guard(a, again + "_k"); a("s_sleep 1", fin_reads(part), "s_branch %s" % again)
    colds.append(cold)
    pk = lambda op, x, y, z, m="": "v_pk_%s_f32 %s, %s, %s%s" % (op, vr(x, 2), vr(y, 2), vr(z, 2), m)
    if NOPK[part]: pk = lambda op, x, y, z, m="": ["v_%s_f32 v%d, v%d, v%d" % (op, x + i, y + i, z + (0 if m else i)) for i in range(2)]
    a("v_add_f32 v%d, v%d, v%d" % (o + 10, o + 10, d + 10), pk("add", o + 8, o + 8, d + 8))
    for i in (0, 2, 4, 6): a(pk("add", o + i, o + i, d + i))
    back = a.uid("norm")
    done = a.uid("normok")
    a("%s:" % back)
    a("v_rcp_f32 v%d, v%d" % (t, o + 10), "v_mov_b32 v%d, 0x71800000" % (d + 11))
    for i in range(0, 10, 2): a(pk("mul", d + i, o + i, t, " op_sel_hi:[1,0]"))
    a("v_med3_f32 v%d, v%d, s%d, v%d" % (d + 10, o + 10, sT4, d + 11), pk("add", t, d, d + 2))
    for i in (4, 6, 8): a(pk("add", t, t, d + i))
    a("v_add_f32 v%d, v%d, v%d" % (t, t, t + 1),
      "v_fma_f32 v%d, v%d, 0, v%d" % (t, t, o + 10),
      "v_cmp_neq_f32 vcc, v%d, v%d" % (d + 10, t))
    if before_store: before_store()
    cv = lambda i, x: "v_cvt_pk_bf16_f32 v%d, v%d, v%d" % (x, d + 2 * i, d + 2 * i + 1)
    if RES4[0]:
        a(cv(4, d + 8), cv(0, d), cv(1, d + 1), "v_mov_b32_dpp v%d, v%d row_ror:8 row_mask:0xf bank_mask:0xf" % (d + 9, d + 8), cv(2, d + 2),
          "v_permlane16_swap_b32 v%d, v%d" % (d + 8, d + 10), cv(3, d + 3), "v_permlane16_swap_b32 v%d, v%d" % (d + 9, d + 11))
        slow(part, back, done)
        a("%s:" % done)
        o_store(a, d, d + 8, part, a)
        return
    for i in range(5): a(cv(i, d + i))
    slow(part, back, done)
    a("%s:" % done, "v_lshlrev_b32 v%d, 2, v%d" % (t, vLANE))
    o_store(a, d, t, part, a)


def slow_path(a, part, label, back, done, after):
    S, K, KR, V, m, ar, av = 44, 76, 84, 88, 104, 105, 106
    q = vQ[part]; o = vO[part]
    a("%s:" % label, "s_cmp_eq_u32 s%d, 0" % sT5, "s_cbranch_scc1 %s_go" % label)
    for i in range(12): a("v_min_u32 v%d, -2, v%d" % (vFD[part] + i, vFD[part] + i))
    a("s_branch %s" % done, "%s_go:" % label, "s_mov_b32 s%d, 1" % sT5)
    a("s_waitcnt vmcnt(0) lgkmcnt(0)")
    v_consts(a, V, m)
    a("v_mov_b32 v%d, 0" % (KR + 1))
    for i in range(16): a("v_mov_b32 v%d, 0" % (o + i))
    a("v_lshrrev_b32 v%d, 5, v%d" % (m, vLANE), "v_lshl_add_u32 v%d, v%d, 8, v%d" % (ar, m, vQR),
      "v_mul_u32_u24 v%d, 9216, v%d" % (av, m), "v_and_b32 v%d, 31, v%d" % (m, vLANE), "v_lshl_add_u32 v%d, v%d, 4, v%d" % (av, m, av),
      "s_mul_i32 s%d, s%d, 288" % (sT3, sHEAD), "s_add_u32 s%d, s%d, %d" % (sT3, sT3, SEC), "v_add_u32 v%d, s%d, v%d" % (av, sT3, av))
    for f in range(1, 4): a("v_add_u32 v%d, 18432, v%d" % (av + f, av + f - 1))
    a("v_mov_b32 v%d, 0xff800000" % m)
    for ps in range(2):
        lp = a.uid("slow")
        a("s_mov_b32 s%d, %d" % (sLOOP, SEC), "%s:" % lp)
        for t in range(2):
            for h in range(2):
                a("buffer_load_dwordx2 %s, v%d, %s, s%d offen offset:%d sc1" % (vr(K + 4 * t + 2 * h, 2), vQA, srd(sWS), sLOOP, 256 * t + 512 * h))
        a("buffer_load_dword v%d, v%d, %s, s%d offen sc1" % (KR, ar, srd(sWS), sLOOP))
        if ps:
            a("s_mov_b64 exec, %s" % sr(sVMASK, 2))
            for f in range(4): a("buffer_load_dwordx4 %s, v%d, %s, s%d offen sc1" % (vr(V + 4 * f, 4), av + f, srd(sWS), sLOOP))
            a("s_mov_b64 exec, -1")
        a("s_waitcnt vmcnt(0)",
          "v_mfma_f32_32x32x4_2b_bf16 %s, %s, %s, 0" % (vr(S, 32), vr(KR, 2), vr(q + 4, 2)), "s_nop 15", "s_nop 1")
        for t in range(2):
            a("v_mfma_f32_32x32x16_bf16 %s, %s, %s, %s" % (vr(S + 16 * t, 16), vr(K + 4 * t, 4), vr(q, 4), vr(S + 16 * t, 16)))
        a("s_nop 11")
        if ps == 0:
            for i in range(16): a("v_max3_f32 v%d, v%d, v%d, v%d" % (m, m, S + 2 * i, S + 2 * i + 1))
        else:
            for i in range(32): a("v_sub_f32 v%d, v%d, v%d" % (S + i, S + i, m))
            for i in range(32): a("v_exp_f32 v%d, v%d" % (S + i, S + i))
            a("s_nop 1")
            for f in range(4): a("v_smfmac_f32_32x32x32_bf16 %s, %s, %s, v%d" % (vr(o, 16), vr(V + 4 * f, 4), vr(S + 8 * f, 8), vIDX))
        a("s_add_u32 s%d, s%d, %d" % (sLOOP, sLOOP, PITCH), "s_cmp_lt_u32 s%d, %d" % (sLOOP, 32 * PITCH), "s_cbranch_scc1 %s" % lp)
        if ps == 0:
            a("v_mov_b32 v%d, v%d" % (S, m), "s_nop 1", "v_permlane32_swap_b32 v%d, v%d" % (S, m), "s_nop 1", "v_max_f32 v%d, v%d, v%d" % (m, m, S))
    a("s_nop 15")
    after()
    a("s_branch %s" % back)


def p3_setup(a):
    a("s_and_b32 s%d, s%d, 3" % (sRT, sJ), "s_lshr_b32 s%d, s%d, 2" % (sCB, sJ),
      "s_and_b32 s%d, s%d, 3" % (sKQ, sWAVE), "s_and_b32 s%d, s%d, 1" % (sRH, sCB),
      "s_lshl_b32 s%d, s%d, 2" % (sT0, sCB), "s_lshr_b32 s%d, s%d, 1" % (sT1, sCB), "s_add_u32 s%d, s%d, 32" % (sT1, sT1),
      "s_mul_i32 s%d, s%d, 4608" % (sT2, sKQ), "s_add_u32 s%d, s%d, %d" % (sT2, sT2, WOBASE),
      "s_mul_i32 s%d, s%d, %d" % (sT3, sT0, 4 * 4608), "s_add_u32 s%d, s%d, s%d" % (sWOF, sT3, sT2))
    for t in range(1, 4): a("s_add_u32 s%d, s%d, %d" % (sWOF + t, sWOF, 4 * 4608 * t))
    a("s_mul_i32 s%d, s%d, %d" % (sT3, sT1, 4 * 4608), "s_add_u32 s%d, s%d, s%d" % (sWOF + 4, sT3, sT2),
      "s_lshl2_add_u32 s%d, s%d, s%d" % (sT2, sXCD, sRT), "s_lshl1_add_u32 s%d, s%d, s%d" % (sT2, sT2, sRH),
      "s_mul_i32 s%d, s%d, %d" % (sT3, sT2, 16 * 1152), "s_lshl_b32 s%d, s%d, 5" % (sT1, sT1), "s_add_u32 s%d, s%d, s%d" % (sOCOL + 2, sT1, sT3),
      "s_mul_i32 s%d, s%d, %d" % (sT4, sKQ, 4 * 1152), "s_lshl_b32 s%d, s%d, 5" % (sT0, sT0), "s_add_u32 s%d, s%d, s%d" % (sT0, sT0, sT4),
      "s_add_u32 s%d, s%d, s%d" % (sOCOL, sT0, sT3),
      "s_xor_b32 s%d, s%d, 1" % (sT2, sT2), "s_mul_i32 s%d, s%d, %d" % (sT3, sT2, 16 * 1152), "s_add_u32 s%d, s%d, s%d" % (sOCOL + 1, sT0, sT3),
      "s_movk_i32 s%d, 272" % sC272, "s_movk_i32 s%d, 80" % sC80)


def wo_load(a, tiles, t16, t8, track=True, only=None):
    em = a.vmem if track else (lambda s, tag: a(s))
    for t in tiles:
        for m in range(4):
            if only in (None, m): em("buffer_load_dwordx4 %s, v%d, %s, s%d offen offset:%d sc1" % (vr(vWO + 18 * t + 4 * m, 4), t16, srd(sWS), sWOF + t, 1024 * m), "wo")
        if only in (None, 4): em("buffer_load_dwordx2 %s, v%d, %s, s%d offen sc1" % (vr(vWO + 18 * t + 16, 2), t8, srd(sWS), sWOF + t), "wo")


vOA2, vOB2 = 18, 19
vAC = [vV, vO[1]]
vAC4 = vV + 16


def o_instr(of, hh, g, so):
    main, res = of[hh]
    if g < 4: return ["buffer_load_dwordx4 %s, v%d, %s, s%d offen offset:%d sc1" % (vr(main + 4 * g, 4), (vOA, vOA2)[hh], srd(sWS), so + g // 2, 2048 * (g % 2))]
    return ["buffer_load_dword v%d, v%d, %s, s%d offen offset:%d sc1" % (res + e, (vOB, vOB2)[hh], srd(sWS), so + 2, 128 * e) for e in range(2)]


def o_load(a, of, items, so, tag):
    for hh, g in items:
        for x in o_instr(of, hh, g, so): a.vmem(x, (tag, hh))


RSLEEP = [2]


def o_check(a, of, items, so, colds, reload=None):
    regs = []
    for hh, g in items: regs += list(range(of[hh][0] + 4 * g, of[hh][0] + 4 * g + 4)) if g < 4 else [of[hh][1], of[hh][1] + 1]
    t = vT
    chk = ["v_max_u32 v%d, v%d, v%d" % (t, regs[0], regs[1])] + ["v_max3_u32 v%d, v%d, v%d, v%d" % (t, t, regs[i], regs[i + 1]) for i in range(2, len(regs), 2)]
    chk.append("v_cmp_eq_u32 vcc, -1, v%d" % t)
    l = a.uid("ochk")
    def cold():
        a("%s_r:" % l); spin_guard(a, l + "_k")
        if RSLEEP[0]: a("s_sleep %d" % RSLEEP[0])
        for hh, g in (reload or items): a(o_instr(of, hh, g, so))
        a("s_waitcnt vmcnt(0)", chk, "s_cbranch_vccnz %s_r" % l, "s_branch %s_k" % l)
    colds.append(cold)
    return chk, ["s_cbranch_vccnz %s_r" % l, "%s_k:" % l]


def p3_mm(of, hh, k, g, first):
    main, res = of[hh]
    c = vr(vAC4 if k == 4 else vAC[hh] + 4 * k, 4)
    if g < 4: return "v_mfma_f32_16x16x32_bf16 %s, %s, %s, %s" % (c, vr(vWO + 18 * k + 4 * g, 4), vr(main + 4 * g, 4), "0" if first else c)
    return "v_mfma_f32_16x16x16_bf16 %s, %s, %s, %s" % (c, vr(vWO + 18 * k + 16, 2), vr(res, 2), "0" if first else c)


def p3_half(a, of, hh, gs, first, part, pend, side=()):
    tiles = (4, 0, 1, 2, 3) if hh == 0 else (0, 1, 2, 3)
    side = list(side)
    def emit(x):
        a(x)
        n = 1
        if side: a(side.pop(0)); n += 1
        for p_ in pend: p_[0] -= n
        if pend and pend[0][0] <= 0:
            a(pend.pop(0)[1])
            for p_ in pend: p_[0] -= 1
    if 4 in gs:
        for k in tiles: emit(p3_mm(of, hh, k, 4, first))
        first = False
        if len(side) < 2: a("s_nop 2")
    for k in tiles:
        for n, g in enumerate([g for g in gs if g < 4]): emit(p3_mm(of, hh, k, g, first and n == 0))
        if part is not None:
            if k == 4: w = "ds_write_b128 v%d, %s offset:%d" % (vP3 + 1, vr(vAC4, 4), P3_OFF[part])
            else: w = "ds_write_b128 v%d, %s offset:%d" % (vP3, vr(vAC[hh] + 4 * k, 4), P3_OFF[part] + 4 * P3_PART * hh + 64 * k)
            pend.append([8, w])
    a(side)


def p3_flush(a, pend):
    while pend:
        n = pend[0][0]
        if n > 0:
            a("s_nop %d" % (n - 1))
            for p_ in pend: p_[0] -= n
        a(pend.pop(0)[1])
        for p_ in pend: p_[0] -= 1


P3_ROW, P3_PART = 272, 16 * 272
P3_SH = 8 * P3_PART


def p3_addr(a, t):
    L = vLANE
    a("v_and_b32 v24, 15, v%d" % L, "v_lshrrev_b32 v%d, 4, v%d" % (t + 5, L),
      "s_mul_i32 s%d, s%d, %d" % (sT0, sKQ, P3_PART), "s_add_u32 s%d, s%d, %d" % (sT0, sT0, P3_BASE),
      "v_lshl_add_u32 v%d, v%d, 4, s%d" % (t, t + 5, sT0), "v_mad_u32_u24 v%d, v24, s%d, v%d" % (t, sC272, t),
      "s_mul_i32 s%d, s%d, 1280" % (sT0, sKQ), "s_add_u32 s%d, s%d, %d" % (sT0, sT0, P3_BASE + P3_SH),
      "v_lshl_add_u32 v%d, v%d, 4, s%d" % (t + 1, t + 5, sT0), "v_mad_u32_u24 v%d, v24, s%d, v%d" % (t + 1, sC80, t + 1),
      "s_lshl4_add_u32 s%d, s%d, s%d" % (sT0, sKH, sKQ), "s_mul_i32 s%d, s%d, %d" % (sT0, sT0, 4 * P3_ROW), "s_add_u32 s%d, s%d, %d" % (sT0, sT0, P3_BASE),
      "v_lshl_add_u32 v%d, v24, 4, s%d" % (t + 2, sT0), "v_mad_u32_u24 v%d, v%d, s%d, v%d" % (t + 2, t + 5, sC272, t + 2),
      "v_mul_u32_u24 v%d, 1152, v%d" % (t + 4, t + 5), "v_lshl_add_u32 v%d, v24, 3, v%d" % (t + 4, t + 4),
      "v_lshrrev_b32 v24, 2, v%d" % L, "v_and_b32 v%d, 3, v%d" % (t + 5, L),
      "v_mul_u32_u24 v%d, 80, v24" % (t + 3), "v_lshl_add_u32 v%d, v%d, 4, v%d" % (t + 3, t + 5, t + 3), "v_add_u32 v%d, %d, v%d" % (t + 3, P3_BASE + P3_SH, t + 3),
      "v_mul_u32_u24 v24, 1152, v24", "v_lshl_add_u32 v%d, v%d, 3, v24" % (t + 5, t + 5))


def p3_finish(a, part, cls, halves, d, pk, colds):
    t = vP3
    def rd(src, off, step, x):
        for k in range(4): a("ds_read_b128 %s, v%d offset:%d" % (vr(x + 4 * k, 4), src, P3_OFF[part] + off + step * k))
    def fin(x, va, so, left):
        for k in range(1, 4):
            if left is not None: a("s_waitcnt lgkmcnt(%d)" % (left + 3 - k))
            if pk: a(["v_pk_add_f32 %s, %s, %s" % (vr(x + i, 2), vr(x + i, 2), vr(x + 4 * k + i, 2)) for i in (0, 2)])
            else: a(["v_add_f32 v%d, v%d, v%d" % (x + i, x + i, x + 4 * k + i) for i in range(4)])
        a("v_cvt_pk_bf16_f32 v%d, v%d, v%d" % (x, x, x + 1), "v_cvt_pk_bf16_f32 v%d, v%d, v%d" % (x + 1, x + 2, x + 3),
          "buffer_store_dwordx2 %s, v%d, %s, s%d offen" % (vr(x, 2), va, srd(sOUT), so))
    def body(shared):
        for n, hh in enumerate(halves): rd(t + 2, 4 * P3_PART * (hh - cls), P3_PART, d + 16 * n)
        if shared: rd(t + 3, 0, 1280, d + 32)
        for n, hh in enumerate(halves): fin(d + 16 * n, t + 4, sOCOL + hh, 4 * (len(halves) - 1 - n + shared))
        if shared: fin(d + 32, t + 5, sOCOL + 2, 0)
    return body


def kd(name, lds=False):
    return """.amdhsa_kernel %s
  .amdhsa_next_free_vgpr 256
  .amdhsa_next_free_sgpr 96
  .amdhsa_accum_offset 256
  .amdhsa_group_segment_fixed_size 0
  .amdhsa_kernarg_size 48
  .amdhsa_user_sgpr_count 2
  .amdhsa_user_sgpr_kernarg_segment_ptr 1
  .amdhsa_system_sgpr_workgroup_id_x 1
  .amdhsa_float_denorm_mode_32 3
.end_amdhsa_kernel""" % name


def head(a, name):
    a(".globl %s" % name, ".p2align 12", ".p2align 8", ".type %s,@function" % name, "%s:" % name)


def plan2(wb, xb, pre="w0 x0 x1 w1 x2", xfirst=False):
    p = [(-1, t[0], int(t[1:])) for t in pre.split()]
    w0, x0 = 9 - len(wb), 18 - len(xb)
    for b in range(18):
        w = [(b, "w", s) for s in range(w0, 9) if wb[s - w0] == b]
        x = [(b, "x", s) for s in range(x0, 18) if xb[s - x0] == b]
        p += x + w if xfirst else w + x
    return p


DEF = dict(plan=plan2([0, 0, 1, 2, 3, 4, 5], [0, 1, 2, 3, 4, 5, 6, 6, 7, 7, 8, 9, 9, 10, 10]), early0=1, npre=4, dmapos=0, p1prio=0, ftmaj=0, rotx=0, align=1, tag_step=4, flag_step=13, flag_pos='side0',
           poll_step=16, check_step=16, init_steps=(15, 3), e_sleep=0, pf_code=1, pf_x=1, idle_sleep=2, canary=1, per0=2, per1=1,
           nsolo=6, pos=[2, 6, 14, 18, 22, 26, 30],
           w0=[(1, 0), (1, 2)], kv1=['fill', (0, 1)], st1=[(0, 3), (0, 3)], w1=[(1, 6), (2, 3)], f1=[(2, 1), (2, 5), (2, 6)], pollL=[(5, 0), (6, 2)], kv2=[(6, 2), (6, 2), (6, 3), (6, 3), (6, 3)], w2=[(8, 2), (8, 3)], uswap=1, age=None, qdma=1, tagc=9, k2=0,
           kv3=[(8, 5), (8, 6), (9, 0), (9, 1), (9, 2)], w3=[(13, 2), (16, 3)], wo=[(11, 2), (13, 3), 14, (2, 3, 5)], poison=[0, (10, 2), (26, 2)],
           opoll=[(30, 5), (31, 1), (31, 1)], two=(31, 3), both=1, rsleep=1, emark=0, c1lag=4, w7early=0, hint=(31, 4), h_sleep=0, e_pipe=0, i_pipe=0, h_pipe=0, warm=1, nopk=[0, 0], xw_sleep=0, try1=0, res4=0, yprio=0, fpk=[0, 1], full=0, xprio2=0, outmod=['', ''],
           prio={(0, 4): 2, (2, 2): 1, (6, 3): 0, (7, 5): 3, (26, 0): 2, (30, 5): 1, (31, 2): 0}, priox={(22, 0): 2})


sF0, sF1 = 57, 58
sIDLE = 83
OOB = 0x7ffff000
MASTER = 242


def spin_guard(a, out):
    a("s_add_u32 s%d, s%d, 1" % (sSPIN, sSPIN), "s_cmp_gt_u32 s%d, 0x80000" % sSPIN, "s_cbranch_scc1 %s" % out)


def tag_issue(a):
    a.vmem("buffer_load_dword v%d, off, %s, 0 sc1" % (vTAG, srd(sDBG)), "tag")


def tag_check(a, colds):
    lp = a.uid("tag")
    a.wait(vm="tag")
    a("%s:" % lp, "v_readfirstlane_b32 s%d, v%d" % (sTAG, vTAG), "s_cmp_eq_u32 s%d, 0" % sTAG, "s_cbranch_scc1 %s_r" % lp, "%s_k:" % lp)
    def cold():
        a("%s_r:" % lp); spin_guard(a, lp + "_k")
        a("s_sleep 4", "buffer_load_dword v%d, off, %s, 0 sc1" % (vTAG, srd(sDBG)), "s_waitcnt vmcnt(0)", "s_branch %s" % lp)
    colds.append(cold)


FULL = [1]


def flag_store(a, soff, level, track=True, word=False):
    if word or (level and not FULL[0]):
        a("s_mov_b64 exec, 1")
        x = "buffer_store_dword v%d, off, %s, s%d offset:%d sc1" % (vTAG, srd(sWS), soff, 4 * (level - 1))
    else:
        if level == 0: a("v_mov_b64 %s, 0" % vr(vT, 2))
        if level == 2: a("v_mov_b32 v%d, v%d" % (vT, vTAG), "v_mov_b32 v%d, v%d" % (vT + 1, vTAG))
        a("s_mov_b64 exec, 0xff")
        x = "buffer_store_dwordx4 %s, v%d, %s, s%d offen sc1" % (vr(vTAG if level == 1 else vT, 4), vL16, srd(sWS), soff)
    if track: a.vmem(x, "flag")
    else: a(x)
    a("s_mov_b64 exec, -1")


def poll(a, va, colds, sleep=2, off=0):
    x = "buffer_load_dword v%d, v%d, %s, 0 offen offset:%d sc1" % (vPD, va, srd(sWS), off)
    def issue(): a.vmem(x, "poll")
    def check(mask=None):
        lp = a.uid("poll")
        a.wait(vm="poll")
        a("%s:" % lp, "v_cmp_ne_u32 vcc, s%d, v%d" % (sTAG, vPD))
        if mask is None: a("s_cbranch_vccnz %s_r" % lp)
        else: a("s_and_b32 vcc_lo, vcc_lo, %s" % mask, "s_cbranch_scc1 %s_r" % lp)
        a("%s_k:" % lp)
        def cold():
            a("%s_r:" % lp); spin_guard(a, lp + "_k")
            if sleep: a("s_sleep %d" % sleep)
            a(x, "s_waitcnt vmcnt(0)", "s_branch %s" % lp)
        colds.append(cold)
    return issue, check


def fused_setup(a):
    L = vLANE
    a("s_lshr_b32 s%d, s%d, 1" % (sT0, sHEAD), "s_mul_i32 s%d, s%d, 36" % (sT0, sT0), "s_and_b32 s%d, s%d, 1" % (sT1, sHEAD),
      "s_lshl_b32 s%d, s%d, 4" % (sT1, sT1), "s_add_u32 s%d, s%d, s%d" % (sT0, sT0, sT1),
      "v_min_u32 v%d, 11, v%d" % (vL16, L),
      "v_and_b32 v%d, 1, v%d" % (vPA, vL16), "v_mul_u32_u24 v%d, 19, v%d" % (vPA, vPA), "v_add_u32 v%d, s%d, v%d" % (vPA, sT0, vPA),
      "v_lshrrev_b32 v%d, 2, v%d" % (vL8, vL16), "v_sub_u32 v%d, 2, v%d" % (vL8, vL8), "v_mul_u32_u24 v%d, 576, v%d" % (vL8, vL8),
      "v_add_u32 v%d, v%d, v%d" % (vPA, vPA, vL8), "v_lshrrev_b32 v%d, 7, v%d" % (vPA, vPA),
      "s_lshl1_add_u32 s%d, s%d, s%d" % (sT0, sP, sKH), "s_lshr_b32 s%d, s%d, 1" % (sT1, sP), "s_lshl1_add_u32 s%d, s%d, s%d" % (sT1, sQI, sT1),
      "v_and_b32 v%d, 2, v%d" % (vL16, vL16), "v_lshl_add_u32 v%d, v%d, 2, s%d" % (vL16, vL16, sT0), "v_mov_b32 v%d, s%d" % (vL8, sT1),
      "v_cmp_le_u32 vcc, 8, v%d" % L, "v_lshlrev_b32 v%d, 11, v%d" % (vPA, vPA), "v_add_u32 v%d, %d, v%d" % (vPA, F01, vPA),
      "v_cndmask_b32 v%d, v%d, v%d, vcc" % (vL16, vL16, vL8),
      "v_lshl_add_u32 v%d, v%d, 7, v%d" % (vPA, vL16, vPA),
      "v_lshlrev_b32 v%d, 4, v%d" % (vL16, L), "v_lshlrev_b32 v%d, 3, v%d" % (vL8, L), "v_add_u32 v%d, 4096, v%d" % (vL8, vL8))
    late_setup(a); p3_addr(a, vP3)
    a("v_min_u32 v%d, 17, v%d" % (vPW, L), "v_lshlrev_b32 v%d, 2, v%d" % (vPW, vPW), "v_add_u32 v%d, %d, v%d" % (vPW, FW, vPW),
      "s_lshl2_add_u32 s%d, s%d, s%d" % (sT0, sXCD, sRT), "s_lshl2_add_u32 s%d, s%d, s%d" % (sT0, sT0, sKQ),
      "s_lshl_b32 s%d, s%d, 10" % (sT0, sT0), "s_add_u32 s%d, s%d, %d" % (sT0, sT0, FO),
      "v_min_u32 v%d, 7, v%d" % (vPO, L), "v_lshl_add_u32 v%d, v%d, 7, s%d" % (vPO, vPO, sT0),
      "s_lshl2_add_u32 s%d, s%d, s%d" % (sT0, sQI, sP), "s_lshl_b32 s%d, s%d, 5" % (sT0, sT0),
      "s_add_u32 s%d, s%d, s%d" % (sT0, sT0, sHEAD), "s_lshl_b32 s%d, s%d, 7" % (sT0, sT0),
      "s_add_u32 s%d, s%d, %d" % (sPF, sT0, FO))


def tlb_touch(a, cfg):
    l = a.uid("tlb")
    a("s_cmp_lg_u32 s%d, 7" % sWAVE, "s_cbranch_scc1 %s" % l,
      "v_and_b32 v2, 7, v%d" % vLANE, "v_mul_u32_u24 v2, %d, v2" % (4 * PITCH), "v_add_u32 v2, %d, v2" % (PITCH - 128),
      "v_and_b32 v3, 3, v%d" % vLANE, "v_mul_u32_u24 v3, %d, v3" % (16 * OTILE), "v_add_u32 v3, %d, v3" % (OBASE + OTILE - 128),
      "v_cmp_gt_u32 vcc, 8, v%d" % vLANE, "v_mov_b32 v4, %d" % (FW + 1024), "v_cmp_gt_u32 s[%d:%d], 12, v%d" % (sSAVE, sSAVE + 1, vLANE),
      "v_cndmask_b32 v2, v3, v2, vcc", "s_nop 0", "v_cndmask_b32 v2, v4, v2, s[%d:%d]" % (sSAVE, sSAVE + 1),
      "buffer_load_dword v44, v2, %s, 0 offen" % srd(sWS),
      "v_and_b32 v2, 3, v%d" % vLANE, "v_mul_u32_u24 v2, %d, v2" % (786432 - 128),
      "buffer_load_dword v45, v2, %s, 0 offen" % srd(sOUT), "%s:" % l)


vWW, vWC = 158, 159


def word_setup(a):
    a("s_and_b32 s%d, s%d, 1" % (sT0, sHEAD), "s_mul_i32 s%d, s%d, %d" % (sT0, sT0, (-2052) & 0xffffffff), "s_add_u32 s%d, s%d, 2052" % (sT0, sT0),
      "s_lshl3_add_u32 s%d, s%d, s%d" % (sT1, sWAVE, sT0), "v_mov_b32 v%d, s%d" % (vWW, sT1),
      "s_lshl_b32 s%d, s%d, 5" % (sT1, sKH), "s_add_u32 s%d, s%d, s%d" % (sT1, sT1, sT0),
      "v_and_b32 v%d, 3, v%d" % (vWC, vLANE), "v_lshl_add_u32 v%d, v%d, 3, s%d" % (vWC, vWC, sT1))


def word_set(a, stage, track=True, twice=False):
    a("s_mov_b64 exec, 1")
    x = "ds_write_b32 v%d, v0 offset:%d" % (vWW, 64 * stage)
    if twice: x = "ds_write2_b32 v%d, v0, v0 offset0:%d offset1:%d" % (vWW, 16 * stage, 16 * stage + 16)
    if track: a.lds(x)
    else: a(x)
    a("s_mov_b64 exec, -1")


def word_check(a, offs, colds, t=vT):
    xs = ["ds_read_b32 v%d, v%d offset:%d" % (t + k, vWC, o) for k, o in enumerate(offs)]
    def issue():
        for x in xs: a.lds(x, "word")
    def check(track=True):
        l = a.uid("word")
        if track: a.wait(lg="word")
        a("%s:" % l)
        for k in range(len(offs)): a("v_cmp_ne_u32 vcc, s%d, v%d" % (sTAG, t + k), "s_cbranch_vccnz %s_r" % l)
        a("%s_k:" % l)
        def cold():
            a("%s_r:" % l); spin_guard(a, l + "_k"); a("s_sleep 1", xs, "s_waitcnt lgkmcnt(0)", "s_branch %s" % l)
        colds.append(cold)
    return issue, check, xs


def gen_fused(cfg):
    NOPK[:] = cfg["nopk"]; FULL[0] = cfg["full"]; RES4[0] = cfg["res4"]; RSLEEP[0] = cfg["rsleep"]
    a = Asm()
    name = NAME + "_kernel"
    head(a, name)
    prologue(a, "L_exit"); a(";STAMP 0")
    a("s_mov_b32 s%d, 0" % sSPIN, "s_mov_b32 s%d, 0x%x" % (sF1, OOB))
    a("s_mov_b32 s%d, 0" % sIDLE)
    p1_roles(a, "L_idle")
    def setup():
        a("L_setup:")
        p2_setup(a); p3_setup(a); fused_setup(a)
        a("s_cmp_lg_u32 s%d, 0" % sIDLE, "s_cbranch_scc1 L_idle2")
        a("s_lshl_b32 s%d, s%d, 11" % (sT0, sLINE), "s_lshl_b32 s%d, s%d, 7" % (sT1, sG), "s_add_u32 s%d, s%d, s%d" % (sT0, sT0, sT1),
          "s_add_u32 s%d, s%d, %d" % (sT0, sT0, F01),
          "s_cmp_eq_u32 s%d, 0" % sWAVE, "s_cselect_b32 s%d, s%d, s%d" % (sF1, sT0, sF1))
    p1_head(a, cfg, {"setup": setup, "setup2": lambda: flag_store(a, sF1, 0)})
    a("s_cmp_ge_u32 s%d, 9" % sLINE, "s_cbranch_scc1 L_p1v", "s_branch L_p1q")
    vm_head = list(a.vm)
    a("L_idle:"); a.vm = []; a.lg = []
    a("s_waitcnt lgkmcnt(0)")
    a("s_cmp_lg_u32 s2, %d" % MASTER, "s_cbranch_scc1 L_nomaster", "s_cmp_lg_u32 s%d, 0" % sWAVE, "s_cbranch_scc1 L_nomaster",
      "s_mov_b32 s%d, %d" % (sT0, FEPOCH), "buffer_load_dword v2, off, %s, s%d sc1" % (srd(sWS), sT0), "s_waitcnt vmcnt(0)",
      "v_readfirstlane_b32 s%d, v2" % sT1, "s_mul_i32 s%d, s%d, 0x41c64e6d" % (sT1, sT1), "s_add_u32 s%d, s%d, 12345" % (sT1, sT1),
      "s_cmp_eq_u32 s%d, 0" % sT1, "s_cselect_b32 s%d, 12345, s%d" % (sT1, sT1), "v_mov_b32 v2, s%d" % sT1, "s_mov_b64 exec, 1",
      "buffer_store_dword v2, off, %s, 0 sc1" % srd(sDBG), "buffer_store_dword v2, off, %s, s%d sc1" % (srd(sWS), sT0), "s_mov_b64 exec, -1",
      "L_nomaster:")
    if cfg["pf_code"]:
        a("s_getpc_b64 s[%d:%d]" % (sRET, sRET + 1), "L_pc:", "s_sub_u32 s%d, s%d, L_pc-%s" % (sRET, sRET, name), "s_subb_u32 s%d, s%d, 0" % (sRET + 1, sRET + 1),
          "s_cmp_lt_u32 s%d, 6" % sWAVE, "s_cbranch_scc1 L_nopf",
          "s_and_b32 s%d, s%d, 3" % (sT0, sJ), "v_and_b32 v2, 127, v0", "v_lshl_add_u32 v2, v2, 2, s%d" % sT0,
          "v_lshlrev_b32 v2, 7, v2", "v_min_u32 v2, L_pfend-%s-4, v2" % name, "global_load_dword v47, v2, s[%d:%d]" % (sRET, sRET + 1), "L_nopf:")
    if cfg["pf_x"]:
        l = a.uid("pf")
        a("s_and_b32 s%d, s%d, 3" % (sT0, sJ), "s_cmp_ge_u32 s%d, 4" % sWAVE, "s_cbranch_scc1 %s" % l,
          "s_lshr_b32 s%d, s%d, 1" % (sT1, sWAVE), "s_lshl1_add_u32 s%d, s%d, s%d" % (sT1, sT0, sT1),
          "s_lshr_b32 s%d, s%d, 2" % (sT2, sXCD), "s_mul_i32 s%d, s%d, 7" % (sT2, sT2), "s_and_b32 s%d, s%d, 2" % (sT3, sXCD),
          "s_lshl1_add_u32 s%d, s%d, s%d" % (sT3, sT3, sT1),
          "s_sub_u32 s%d, s%d, 5" % (sT4, sT3), "s_add_u32 s%d, s%d, 4" % (sT3, sT3), "s_cmp_lt_u32 s%d, 5" % sT1,
          "s_cselect_b32 s%d, 3, s%d" % (sT4, sT4), "s_cselect_b32 s%d, s%d, 8" % (sT3, sT3), "s_add_u32 s%d, s%d, s%d" % (sT2, sT2, sT4),
          "s_mul_i32 s%d, s%d, 3" % (sT4, sT2), "s_add_u32 s%d, s%d, s%d" % (sT3, sT3, sT4))
        rot_die(a, cfg, sT3, sT4)
        mod9(a, sT3, sT4)
        a("s_mul_i32 s%d, s%d, %d" % (sT3, sT3, 64 * 3456), "s_and_b32 s%d, s%d, 1" % (sT4, sWAVE), "s_lshl1_add_u32 s%d, s%d, s%d" % (sT2, sT2, sT4),
          "s_lshl_b32 s%d, s%d, 7" % (sT2, sT2), "s_add_u32 s%d, s%d, s%d" % (sT3, sT3, sT2),
          "v_mul_u32_u24 v2, 3456, v%d" % vLANE, "buffer_load_dword v47, v2, %s, s%d offen" % (srd(sW), sT3), "%s:" % l)
        a("s_barrier",
          "s_and_b32 s%d, s%d, 6" % (sT1, sXCD), "s_lshl1_add_u32 s%d, s%d, s%d" % (sT0, sT1, sT0), "s_and_b32 s%d, s%d, 1" % (sT1, sXCD),
          "s_lshl4_add_u32 s%d, s%d, s%d" % (sT0, sT1, sT0), "s_add_u32 s%d, s%d, 32" % (sT0, sT0), "s_mul_i32 s%d, s%d, %d" % (sT0, sT0, 32 * 1152),
          "s_cmp_ge_u32 s%d, 5" % sWAVE, "s_cselect_b32 s%d, 0x40000000, s%d" % (sT0, sT0),
          "v_min_u32 v2, 287, v0", "v_lshlrev_b32 v2, 7, v2", "buffer_load_dword v47, v2, %s, s%d offen" % (srd(sX), sT0))
    a("s_mov_b64 %s, %s" % (sr(sW, 2), sr(sWO, 2)), "s_mov_b32 s%d, 663552" % (sW + 2))
    a("s_mov_b32 s%d, 1" % sIDLE, "s_branch L_setup")
    def idle2():
      tag_issue(a); p2_init(a)
      wo_role(a, "L_nowo")
      a("s_lshl_b32 s%d, s%d, 2" % (sT0, sLINE), "s_add_u32 s%d, s%d, %d" % (sT0, sT0, FW - 4), "s_cmp_eq_u32 s%d, 0" % sWAVE, "s_cselect_b32 s%d, s%d, s%d" % (sF1, sT0, sF1))
      a("L_nowo:"); a.vm = ["tag"]; a.lg = []
    sF, sPo = cfg["flag_step"], cfg["poll_step"]
    colds = []
    def first_loads(n):
        l = a.uid("fl")
        keep = list(a.vm)
        a("s_cmp_%s_u32 s%d, 3" % (("eq", "lg")[n], sP), "s_cbranch_scc1 %s" % l)
        for k in range(3): kv_piece(a, 0, k)
        if n: a("%s:" % l)
        a("s_cmp_%s_u32 s%d, 2" % (("ge", "lt")[n], sP), "s_cbranch_scc1 %s_e" % l)
        for k in range(3, 5): kv_piece(a, 0, k)
        if n == 0:
            a("s_branch %s_e" % l, "%s:" % l); q_dma(a)
        a("%s_e:" % l)
        a.vm = keep
    for isv in (False, True):
        if cfg["align"]: a(".p2align 12")
        a("L_p1v:" if isv else "L_p1q:")
        a.vm = list(vm_head); a.lg = []
        hooks = {}
        hooks[("side", cfg["tag_step"])] = [lambda: tag_issue(a)]
        hooks[("step", cfg["tagc"])] = lambda: tag_check(a, colds)
        hooks[("waitfor", sF)] = [("st", 0)]
        hooks[(cfg["flag_pos"], sF)] = [lambda: flag_store(a, sF1, 1)]
        pi, pc = poll(a, vPA, colds, sleep=cfg["e_sleep"])
        tmp = Asm(); p2_init(tmp)
        ini = [x.strip() for x in tmp.l]
        st0, nst = cfg["init_steps"]
        n = -(-len(ini) // nst)
        for k in range(nst): hooks.setdefault(("side", st0 + k), []).extend((lambda x=x: a(x)) for x in ini[k * n:(k + 1) * n])
        if sPo < 18: hooks.setdefault(("side", sPo), []).insert(0, pi)
        else: hooks["pre_epi1"] = pi
        cs = cfg["check_step"]
        hooks[("step", cs)] = lambda: (pc(), a(";STAMP 8"))
        hooks[("bar", cs + 1)] = lambda: (first_loads(0), a(";STAMP 1"))
        hooks["pre_epi1"] = lambda: a(";STAMP 2")
        hooks["mid_epi1"] = lambda stores: (a("s_add_u32 s%d, s%d, %d" % (sST2, sST, 256 if isv else 2048)), first_loads(1))
        p1_body(a, isv, cfg, hooks)
        a("s_branch L_attn")
    def idle_rest():
        a("L_idle2:"); a.vm = []; a.lg = []
        idle2()
        pi, pc = poll(a, vPA, colds, sleep=cfg["idle_sleep"])
        tag_check(a, colds); a(";STAMP 16")
        if cfg["canary"]:
            a("s_mov_b64 exec, 0x100"); pi(); pc(); a("s_mov_b64 exec, -1")
            pi, pc = poll(a, vPA, colds, sleep=cfg["e_sleep"])
        pi(); pc(); a(";STAMP 8", "s_barrier"); first_loads(0); a("s_barrier"); first_loads(1)
        a("s_mov_b32 s%d, 0x40000000" % sST, "s_mov_b32 s%d, 0x40000000" % sST2, "v_mov_b32 v%d, 0" % vSTA)
        a("s_branch L_attn")
    if cfg["align"]: a(".p2align 12")
    a("L_attn:", ";STAMP 19", "s_cmp_lg_u32 s%d, 0" % sKH, "s_cbranch_scc1 L_attn1")
    slows = []
    def slow(part, back, done):
        lab = a.uid("slowp"); slows.append((part, lab, back, done)); a("s_cbranch_vccnz %s" % lab)
    skip = cfg.get("skip", "")
    st1 = ["buffer_store_dwordx4 %s, v%d, %s, s%d offen sc1" % (vr(vACC[1] + 8 * n, 4), vSTA, srd(sWS), (sST, sST2)[n]) for n in range(2)]
    def run_colds(cs):
        k = 0
        while k < len(cs):
            cs[k](); k += 1

    def attn(cls):
        colds = []
        cf = dict(cfg); cf.update(cfg.get("XY"[cls], {}))
        cf["prio"] = dict(cf["prio"])
        if cls == 0: cf["prio"].update(cf["priox"])
        cf["priox"] = {}
        a.vm = [("kv", 0)]; a.lg = []
        ev = {}
        def at(k, f, name=None):
            if name and name in skip.split(): return
            g = ev.get(k)
            ev[k] = f if g is None else (lambda: (g(), f()))
        for k in range(2): at(cf["st1"][k], lambda k=k: a.vmem(st1[k], "st1"))
        def b0():
            l = a.uid("b0")
            q_addr(a)
            a("s_setprio 3", "s_waitcnt vmcnt(5)", "s_cmp_eq_u32 s%d, 3" % sP, "s_cbranch_scc1 %s" % l, "s_waitcnt vmcnt(2)",
              "s_cmp_eq_u32 s%d, 2" % sP, "s_cbranch_scc1 %s" % l, "s_waitcnt vmcnt(0)", "%s:" % l, ";STAMP 4", "s_barrier", ";STAMP 6")
            q_read(a)
        at(("pre", 0), b0)
        def stage(st, pos_set, pos_rd, pos_chk):
            wi, wc, xs = word_check(a, [64 * st], colds)
            at(pos_set, lambda: (a.wait(vm=("kv", st)), word_set(a, st)))
            at(pos_rd, wi); at(pos_chk, wc)
        def spread(pos, st):
            if len(pos) == 2: pos = [pos[0]] * 3 + [pos[1]] * 2
            for k, p_ in enumerate(pos): at(p_, lambda k=k: kv_piece(a, st, k))
        spread(cf["kv1"], 1)
        stage(0, cf["w0"][0], cf["w0"][1], ("prev", 2))
        stage(1, cf["w1"][0], cf["w1"][1], ("pre", 4))
        at(cf["f1"][0], lambda: (a.wait(vm="st1"), word_set(a, CHUNK // 64)))
        if cls == 0:
            wi, wc, xs = word_check(a, [CHUNK, CHUNK + 32], colds)
            at(cf["f1"][1], wi); at(cf["f1"][2], lambda wc=wc: (wc(), flag_store(a, sF1, 2, word=True)))
        pi, pc = poll(a, vPA, colds, off=4)
        at(cf["pollL"][0], pi)
        at(cf["pollL"][1], lambda: (pc(), a(";STAMP 9"), q_load(a, 1)))
        spread(cf["kv2"], 2)
        ev["ql"] = lambda: a.wait(vm=("q", 1))
        stage(2, cf["w2"][0], cf["w2"][1], ("pre", 8))
        spread(cf["kv3"], 3)
        assert cf["w3"][0] >= (13, 0) and cf["nsolo"] == 6
        stage(3, cf["w3"][0], cf["w3"][1], ("pre", 12))
        def meet():
            if cls == 0: send_partial(a, 0)
            else:
                a.wait(vm="poison"); finalize(a, 0, slow, colds); a.lg = []
            a("v_subrev_u32 v%d, %d, v%d" % (vSA, LDS_SPARE - 12 * CHUNK, vSA))
            word_set(a, 4)
        at((25, 3), meet)
        ofe = [(vO[0], vQ[0]), (vS[0], vS[0] + 16)]
        ofl = [(vS[1], vK + 4), (vS[1] + 16, vK + 6)]
        if cls == 1:
            at(cf["poison"][1], lambda: (poison(a, (0, 1) if cf["emark"] else (1,)), flag_store(a, sPF, 0)))
            at(cf["poison"][2], lambda: (cf["emark"] or a.wait(vm="all"), flag_store(a, sPF, 1)))
            at(cf["hint"], lambda: flag_store(a, sPF, 2))
            at((31, 5), lambda: [a.lds(x) for x in fin_reads(1)])
            p2_main(a, cf, ev)
            a(";STAMP 7", "v_subrev_u32 v%d, 32, v%d" % (vWC, vWC))
            if cf["hint"] == (32, 0): flag_store(a, sPF, 2); a("s_nop 2")
            else: a("s_nop 5")
            finalize(a, 1, slow, colds, prefetched=True, before_store=(lambda: word_set(a, 7)) if cf["w7early"] else None)
            if not cf["w7early"]: word_set(a, 7)
            if cf["hint"] == (33, 0): flag_store(a, sPF, 2)
            a(";STAMP 10"); a.lg = []
            wi, wc, xs = word_check(a, [384], colds)
            wi(); wc()
            a("s_cmp_eq_u32 s%d, 0" % sKQ, "s_cbranch_scc1 L_ysh")
            for shared in range(2):
                if shared: a("L_ysh:")
                p3_finish(a, 0, 1, (1, 0), vS[0], cf["fpk"][0], colds)(shared)
                a(";STAMP 12")
                for i in (1, 2): a("s_add_u32 s%d, s%d, %d" % (sOCOL + i, sOCOL + i, 1024 * 1152))
                a("s_setprio %d" % shared, "s_barrier")
                p3_finish(a, 1, 1, (1,), vWO + 2, cf["fpk"][1], colds)(shared)
                a(";STAMP 15", ";STAMPWAIT", ";STAMP 5", ";STAMPEND", "s_endpgm")
        else:
            pi2, pc2 = poll(a, vPW, colds)
            at(cf["wo"][0], pi2, "wo"); at(cf["wo"][1], pc2, "wo")
            for k in range(25):
                n = cf["wo"][3]
                at((cf["wo"][2] + k // len(n), n[k % len(n)]), lambda k=k: wo_load(a, [k // 5], vL16, vL8, only=k % 5), "wo")
            sOM = 35
            at(cf["w3"][0], lambda: a("v_xor_b32 v%d, 0x100, v%d" % (vOA2, vOA), "v_xor_b32 v%d, 64, v%d" % (vOB2, vOB),
                                      ["s_add_u32 s%d, s%d, %d" % (sOM + i, sOL + i, 32 * OTILE) for i in range(3)],
                                      "s_add_u32 s%d, s%d, %d" % (sOCOL, sOCOL, 1024 * 1152)))
            pi3, pc3 = poll(a, vPO, colds)
            G5 = (4, 0, 1, 2, 3)
            at(cf["opoll"][0], pi3)
            at(cf["opoll"][1], lambda: (pc3(), o_load(a, ofe, [(0, g) for g in G5], sOL, "oe")))
            assert cf["opoll"][2] >= (31, 0)
            at(cf["opoll"][2], lambda: o_load(a, ofe, [(1, g) for g in G5], sOL, "oe"))
            wi, wc, xs = word_check(a, [256, 288], colds, t=vQ[0] + 2)
            at((31, 3), wi)
            pi4, pc4 = poll(a, vPO, colds, sleep=cf["h_sleep"], off=4)
            two = cf["two"]
            S1 = [(hh, g) for hh in range(2) for g in (0, 1)]
            S2 = [(hh, g) for hh in range(2) for g in ((4, 2, 3) if two else G5)]
            if two: at(cf["two"], pi4)
            p2_main(a, cf, ev)
            a(";STAMP 7")
            wc(); a("s_nop 7")
            send_partial(a, 1)
            sG1, sG2 = 38, 39
            c0 = c1 = b0_ = b1_ = []
            if cf["emark"]:
                c0, b0_ = o_check(a, ofe, [(0, g) for g in G5], sOL, colds)
                c1, b1_ = o_check(a, ofe, [(1, g) for g in G5], sOL, colds)
            a.wait(vm="all")
            a(c0, b0_)
            if two:
                a("s_mov_b32 s%d, 0" % sG1, "v_cmp_ne_u32 vcc, s%d, v%d" % (sTAG, vPD), "s_and_b32 vcc_lo, vcc_lo, 15", "s_cbranch_scc1 L_xw", "s_mov_b32 s%d, 1" % sG1)
                o_load(a, ofl, S1, sOM, "o1")
            a("L_xw:", "ds_read_b32 v%d, v%d offset:480" % (vT, vWW), "s_waitcnt lgkmcnt(0)",
              "v_cmp_ne_u32 vcc, s%d, v%d" % (sTAG, vT), "s_cbranch_vccnz L_xw2", "L_xw3:", ";STAMP 10")
            colds.append(lambda: (a("L_xw2:"), spin_guard(a, "L_xw3"), a("s_branch L_xw")))
            a.vm = []; pi4()
            pend = []
            p3_half(a, ofe, 0, G5, True, 0, pend, c1)
            a(b1_)
            p3_half(a, ofe, 1, G5, True, 0, pend)
            p3_flush(a, pend)
            word_set(a, 6)
            a(";STAMP 11")
            if two:
                a("s_cmp_eq_u32 s%d, 0" % sG1, "s_cbranch_scc1 L_g1", "s_waitcnt vmcnt(0)", "L_g1k:")
                def g1():
                    a("L_g1:"); a.vm = ["poll"]; pc4("15"); o_load(a, ofl, S1, sOM, "o1"); a("s_branch L_g1k")
                colds.append(g1)
                a("s_mov_b32 s%d, 1" % sG2, "v_cmp_ne_u32 vcc, s%d, v%d" % (sTAG, vPD), "s_cbranch_vccnz L_g2", ";STAMP 13")
                a.vm = []; o_load(a, ofl, S2, sOM, "o2")
                a("s_waitcnt vmcnt(8)", "L_g2k:")
                colds.append(lambda: (a("L_g2:", "s_mov_b32 s%d, 0" % sG2), pi4(), a("s_waitcnt vmcnt(1)", "s_branch L_g2k")))
                c, b = o_check(a, ofl, S1, sOM, colds)
                a(c, b)
                for hh in range(2): p3_half(a, ofl, hh, (0, 1), True, None, pend)
                a("s_cmp_eq_u32 s%d, 0" % sG2, "s_cbranch_scc1 L_g3", "L_g3k:")
                def g3():
                    keep = list(a.vm)
                    a("L_g3:"); a.vm = ["poll"]; pc4(); a(";STAMP 13"); o_load(a, ofl, S2, sOM, "o2"); a("s_branch L_g3k")
                colds.append(g3)
            else:
                pc4(); a(";STAMP 13")
                o_load(a, ofl, S2, sOM, "o2")
            gs = [g for hh, g in S2 if hh == 0]
            c0, b0_ = o_check(a, ofl, [(0, g) for g in gs], sOM, colds, S2 if cf["both"] else None)
            c1, b1_ = o_check(a, ofl, [(1, g) for g in gs], sOM, colds)
            a.wait(vm=("o2", 0)); a(";STAMP 12", c0, b0_)
            nside = cf["c1lag"]
            p3_half(a, ofl, 0, gs, not two, 1, pend, ["s_nop 0"] * nside + ["s_waitcnt vmcnt(0)"] + c1)
            a(b1_)
            p3_half(a, ofl, 1, gs, not two, 1, pend)
            p3_flush(a, pend)
            a(";STAMP 14", "s_waitcnt lgkmcnt(0)", "s_barrier")
            p3_finish(a, 1, 0, (0,), vWO + 2, cf["fpk"][1], colds)(0)
            a("L_end:", ";STAMP 15", ";STAMPWAIT", ";STAMP 5", ";STAMPEND", "L_exit:", "s_endpgm")
        run_colds(colds)

    attn(0)
    if cfg["align"]: a(".p2align 12")
    a("L_attn1:")
    attn(1)
    colds.append(idle_rest)
    run_colds(colds)
    a("L_pfend:")
    for part, lab, back, done in slows: slow_path(a, part, lab, back, done, lambda: None)
    hdr = ["; @launch grid=(256,1,1) block=(512,1,1) lds=%d" % LDS_TOTAL]
    return finish(a, hdr, [name])


def finish(a, hdr, names):
    errs = lint(a.l)
    for e in errs: print("HAZARD", e, file=sys.stderr)
    out = hdr + ['.amdgcn_target "amdgcn-amd-amdhsa--gfx950"', ".text"] + a.l + ['.section .rodata,"a"']
    for n in names: out += [".p2align 6", kd(n)]
    return "\n".join(out) + "\n"


if __name__ == "__main__":
    mode = sys.argv[1] if len(sys.argv) > 1 else "split"
    out = sys.argv[2] if len(sys.argv) > 2 else "cdna_kernels/%s.s" % NAME
    cfg = dict(DEF)
    for kv in sys.argv[3:]:
        k, v = kv.split("=", 1); cfg[k] = eval(v)
    txt = {"fused": gen_fused}[mode](cfg)
    open(out, "w").write(txt)
    print("wrote", out, len(txt.split("\n")), "lines")
```

```python
import sys, struct, math
from hazard import lint

NAME = "standalone__mha_block__prompt"

PITCH = 221184 + 128
SEC = 73728
OBASE = 32 * PITCH
OTILE = 36864 + 128
WOBASE = OBASE + 64 * OTILE
FBASE = WOBASE + 36 * 4 * 4608
F01 = FBASE
FRND = 27 * 8 * 128
FW = FBASE + 57344
FEPOCH = FW + 512
FO = FBASE + 65536
WS_SIZE = FO + 131072
CHUNK = 4864
LDS_SPARE = 32 * CHUNK
LDS_TOTAL = 163840
SCALE = struct.unpack("<I", struct.pack("<f", math.log2(math.e) / math.sqrt(18.0)))[0]

sX, sW, sWO, sOUT, sWS, sDBG = 4, 8, 12, 16, 20, 24
sWAVE, sXCD, sJ = 28, 29, 30
sTAG = 31
sLINE, sG, sSEC = 32, 33, 34
sXOFF, sWOFF, sM0X, sSCALE, sM0W, sST = 35, 36, 37, 38, 39, 40
sHEAD, sQI, sKH, sP = 41, 42, 43, 44
sVMASK = 46
sDMASK = 48
sCH, sQOFF = 50, 51
sCM = 45
sST2 = 39
sRT, sCB, sKQ, sRH = 52, 53, 54, 55
sFIVE = 56
sT0, sT1, sT2, sT3, sT4, sT5 = 60, 61, 62, 63, 64, 65
sRET = 66
sSPIN = 68
sWOF = 70
sOCOL = 75
sLOOP = 79
sSHF, sC272, sC80 = 69, 82, 59
sSAVE = 80

def srd(s): return "s[%d:%d]" % (s, s + 3)
def vr(a, n=1): return "v%d" % a if n == 1 else "v[%d:%d]" % (a, a + n - 1)
def sr(a, n=1): return "s%d" % a if n == 1 else "s[%d:%d]" % (a, a + n - 1)

vLANE = 1
vQ = [2, 8]
vIDX = 14
vAK, vAR, vAV = 15, 16, 17
vDMA = 18
vQA, vQR = 22, 23
vT = 24
vSA, vSB, vOA, vOB = 26, 27, 28, 29
vP3 = 30
vPW, vPO = 36, 37
vPA, vPD, vL16, vL8 = 38, 39, 40, 41
vTAG = 0
vAK1 = 47
vXS = 8
vWS = 9
vXR = 11
vWR = 42
vSTA = 46
vACC = [48, 64]
vXF = [80, 96]
vWF = 112
vWO = 42
vV = 132
vK = 148
vKR = 156
vO = [160, 176]
vS = [192, 224]


class Asm:
    def __init__(self):
        self.l = []
        self.vm = []
        self.lg = []
        self.n = 0
        self.clock = 0
        self.lgt = []
        self.age = None

    def __call__(self, *lines):
        for s in lines:
            if isinstance(s, (list, tuple)):
                self(*s)
            elif s.endswith(":") or s.startswith((".", ";")):
                self.l.append(s)
            else:
                self.l.append("    " + s)

    def uid(self, p):
        self.n += 1
        return "L_%s_%d" % (p, self.n)

    def vmem(self, s, tag):
        self(s); self.vm.append(tag)
        assert len(self.vm) <= 63

    def lds(self, s, tag=None):
        self(s); self.lg.append(tag); self.lgt.append(self.clock)

    def _cnt(self, q, tags):
        if not isinstance(tags, (list, set)): tags = [tags]
        last = max([k for k, t in enumerate(q) if t in tags], default=-1)
        return None if last < 0 else len(q) - 1 - last

    def wait(self, vm=None, lg=None):
        parts = []
        if vm is not None:
            n = 0 if vm == "all" else self._cnt(self.vm, vm)
            if n is not None:
                parts.append("vmcnt(%d)" % n); self.vm = self.vm[len(self.vm) - n:]
        if lg is not None:
            n = 0 if lg == "all" else self._cnt(self.lg, lg)
            if n is not None:
                if self.age is not None:
                    while n > 0 and self.clock - self.lgt[len(self.lgt) - n] >= self.age: n -= 1
                n = min(n, 15)
                parts.append("lgkmcnt(%d)" % n); self.lg = self.lg[len(self.lg) - n:]
        if parts: self("s_waitcnt " + " ".join(parts))


def prologue(a, endlabel):
    a(";STAMPINIT", ";STAMP 3", "s_cmp_ge_u32 s2, 256", "s_cbranch_scc1 %s" % endlabel)
    for k, s in enumerate((sX, sW, sWO, sOUT, sDBG, sWS)):
        a("s_load_dwordx2 %s, s[0:1], %d" % (sr(s, 2), 8 * k))
    for s, n in ((sX, 2359296), (sW, 1990656), (sWO, 663552), (sOUT, 2359296), (sDBG, 256), (sWS, WS_SIZE)):
        a("s_mov_b32 s%d, %d" % (s + 2, n), "s_mov_b32 s%d, 0x00020000" % (s + 3))
    a("v_lshrrev_b32 v2, 6, v0", "v_and_b32 v%d, 63, v0" % vLANE, "v_readfirstlane_b32 s%d, v2" % sWAVE,
      "s_and_b32 s%d, s2, 7" % sXCD, "s_lshr_b32 s%d, s2, 3" % sJ)


def p1_roles(a, idle):
    a("s_cmp_ge_u32 s%d, 28" % sJ, "s_cbranch_scc1 %s" % idle,
      "s_lshr_b32 s%d, s%d, 1" % (sT1, sXCD), "s_mul_i32 s%d, s%d, 28" % (sT1, sT1), "s_add_u32 s%d, s%d, s%d" % (sT1, sT1, sJ),
      "s_lshr_b32 s%d, s%d, 3" % (sLINE, sT1), "s_and_b32 s%d, s%d, 7" % (sT5, sT1),
      "s_and_b32 s%d, s%d, 1" % (sG, sXCD), "s_lshl3_add_u32 s%d, s%d, s%d" % (sG, sG, sT5))


XBASE = 98304
def xslot(s): return XBASE + 8192 * (s % 8)
def wslot(s): return 16384 * (s % 6)


def mod9(a, d, t):
    a("s_mul_i32 s%d, s%d, 57" % (t, d), "s_lshr_b32 s%d, s%d, 9" % (t, t), "s_mul_i32 s%d, s%d, 9" % (t, t), "s_sub_u32 s%d, s%d, s%d" % (d, d, t))


def rot_die(a, cfg, d, t):
    if cfg["rotx"] == 1: a("s_lshr_b32 s%d, s%d, 1" % (t, sXCD), "s_add_u32 s%d, s%d, s%d" % (d, d, t))
    if cfg["rotx"] == 2: a("s_add_u32 s%d, s%d, s%d" % (d, d, sXCD))
    if cfg["rotx"] == 3:
        a("s_lshr_b32 s%d, s%d, 1" % (t, sXCD), "s_add_u32 s%d, s%d, s%d" % (d, d, t), "s_and_b32 s%d, s%d, 1" % (t, sXCD), "s_lshl2_add_u32 s%d, s%d, s%d" % (d, t, d))


def p1_issue(a, kind, s):
    if kind == "w":
        def f0():
            a("s_add_u32 m0, s%d, %d" % (sM0W, wslot(s)))
            if s: a("s_add_u32 s%d, s%d, %d" % (sWOFF, sWOFF, 64 * 3456), "s_cmp_eq_u32 s%d, %d" % (sWOFF, 576 * 3456), "s_cselect_b32 s%d, 0, s%d" % (sWOFF, sWOFF))
            else: a("s_nop 0")
            a.vmem("buffer_load_dwordx4 v%d, %s, s%d offen lds" % (vWS, srd(sW), sWOFF), ("w", s))
        def f1():
            a.vmem("buffer_load_dwordx4 v%d, %s, s%d offen offset:1024 lds" % (vWS + 1, srd(sW), sWOFF), ("w", s))
        return [f0, f1]
    def fx():
        a("s_add_u32 m0, s%d, %d" % (sM0X, xslot(s)))
        if s: a("s_add_u32 s%d, s%d, 128" % (sXOFF, sXOFF), "s_cmpk_eq_u32 s%d, 1152" % sXOFF, "s_cselect_b32 s%d, 0, s%d" % (sXOFF, sXOFF))
        else: a("s_nop 0")
        if s == 9: a("v_add_u32 v%d, %d, v%d" % (vXS, 1024 * 1152, vXS))
        a.vmem("buffer_load_dwordx4 v%d, %s, s%d offen lds" % (vXS, srd(sX), sXOFF), ("d", s))
    return [fx]


def p1_head(a, cfg, hooks):
    L = vLANE
    t0, t1, t2, t3 = 38, 39, 40, 41
    a("s_and_b32 s%d, s%d, 1" % (sT0, sWAVE), "s_lshl_b32 s%d, s%d, 2" % (sT1, sT0),
      "v_lshrrev_b32 v%d, 4, v%d" % (t0, L), "v_add_u32 v%d, s%d, v%d" % (t1, sT1, t0),
      "v_and_b32 v%d, 15, v%d" % (t2, L), "v_lshlrev_b32 v%d, 1, v%d" % (t3, t1), "v_xor_b32 v%d, v%d, v%d" % (t2, t2, t3),
      "s_mul_i32 s%d, s%d, %d" % (sT2, sWAVE, 8 * 3456), "s_lshl_b32 s%d, s%d, 8" % (sT3, sLINE), "s_add_u32 s%d, s%d, s%d" % (sT2, sT2, sT3),
      "v_mul_u32_u24 v%d, 3456, v%d" % (t0, t0), "v_lshl_add_u32 v%d, v%d, 4, s%d" % (vWS, t2, sT2),
      "s_cmp_eq_u32 s%d, 13" % sLINE, "s_cselect_b32 s%d, 8, 0" % sT3, "v_and_b32 v%d, s%d, v%d" % (t2, sT3, t2),
      "v_lshl_add_u32 v%d, v%d, 26, v%d" % (t0, t2, t0), "v_add_u32 v%d, v%d, v%d" % (vWS, vWS, t0),
      "v_add_u32 v%d, %d, v%d" % (vWS + 1, 4 * 3456 - 1024, vWS))
    a("s_mul_i32 s%d, s%d, 3" % (sT2, sLINE), "s_add_u32 s%d, s%d, s%d" % (sT2, sT2, sT5))
    rot_die(a, cfg, sT2, sT3)
    mod9(a, sT2, sT3)
    a("s_lshl_b32 s%d, s%d, 7" % (sXOFF, sT2), "s_mul_i32 s%d, s%d, %d" % (sWOFF, sT2, 64 * 3456),
      "s_lshl_b32 s%d, s%d, 10" % (sM0X, sWAVE), "s_lshl_b32 s%d, s%d, 11" % (sM0W, sWAVE))
    a("v_lshrrev_b32 v%d, 3, v%d" % (t0, L), "v_and_b32 v%d, 7, v%d" % (t2, L), "v_xor_b32 v%d, v%d, v%d" % (t2, t2, t1),
      "s_cmp_ge_u32 s%d, 9" % sLINE, "s_cselect_b32 s%d, 2, 0" % sT3, "s_cselect_b32 s%d, 4, 7" % sT4,
      "s_bfe_u32 s%d, s%d, 0x10001" % (sT1, sWAVE), "s_lshl_b32 s%d, s%d, s%d" % (sT1, sT1, sT3),
      "s_lshl4_add_u32 s%d, s%d, s%d" % (sT1, sT0, sT1), "s_and_b32 s%d, s%d, 4" % (sT2, sWAVE), "s_lshl3_add_u32 s%d, s%d, s%d" % (sT1, sT2, sT1),
      "s_lshl_b32 s%d, s%d, 6" % (sT2, sG), "s_add_u32 s%d, s%d, s%d" % (sT1, sT1, sT2),
      "v_and_b32 v%d, s%d, v%d" % (t3, sT4, t0), "v_add3_u32 v%d, v%d, v%d, s%d" % (t3, t3, t0, sT1),
      "v_mul_u32_u24 v%d, 1152, v%d" % (t3, t3), "v_lshl_add_u32 v%d, v%d, 4, v%d" % (vXS, t2, t3))
    a("s_waitcnt lgkmcnt(0)", ";STAMP 17")

    issue = lambda kind, s: p1_issue(a, kind, s)
    plan = cfg["plan"]
    assert sorted((k, s) for _, k, s in plan) == sorted([("w", s) for s in range(9)] + [("x", s) for s in range(18)])
    for b, kind, s in plan:
        assert b < s and (kind == "w" and (s < 6 or b >= s - 5) or kind == "x" and (s < 8 or b >= s - 7))
    pre = [(kind, s) for b, kind, s in plan if b < 0]
    for kind, s in pre[:cfg["npre"]]:
        for f in issue(kind, s): f()
    t0, t1, t2, t3 = 48, 49, 50, 51
    hooks["setup"]()

    a("s_lshr_b32 s%d, s%d, 2" % (sT0, sWAVE), "s_and_b32 s%d, s%d, 3" % (sT1, sWAVE),
      "s_lshl_b32 s%d, s%d, 12" % (sT2, sT0), "s_add_u32 s%d, s%d, %d" % (sT2, sT2, XBASE),
      "v_and_b32 v%d, 15, v%d" % (t0, L), "v_lshrrev_b32 v%d, 4, v%d" % (t1, L),
      "v_bfe_u32 v%d, v%d, 1, 3" % (t2, L), "v_xor_b32 v%d, v%d, v%d" % (t2, t2, t1),
      "v_lshlrev_b32 v%d, 4, v%d" % (t2, t2),
      "v_lshl_add_u32 v%d, v%d, 7, s%d" % (t3, t0, sT2),
      "v_add_u32 v%d, v%d, v%d" % (vXR, t2, t3), "v_xor_b32 v%d, 64, v%d" % (vXR + 1, vXR))
    a("v_bfe_u32 v%d, v%d, 2, 2" % (t2, L), "v_lshl_add_u32 v%d, v%d, 3, v%d" % (t2, t1, t2),
      "v_lshlrev_b32 v%d, 8, v%d" % (vWR, t2),
      "v_and_b32 v%d, 3, v%d" % (t2, L), "v_lshl_add_u32 v%d, v%d, 3, v%d" % (vWR, t2, vWR),
      "s_lshl_b32 s%d, s%d, 1" % (sT2, sT1),
      "v_bfe_u32 v%d, v%d, 2, 3" % (t2, L), "v_xor_b32 v%d, s%d, v%d" % (t2, sT2, t2),
      "v_lshl_add_u32 v%d, v%d, 5, v%d" % (vWR, t2, vWR),
      "v_xor_b32 v%d, 32, v%d" % (vWR + 1, vWR),
      "v_add_u32 v%d, 0x10000, v%d" % (vWR + 2, vWR), "v_add_u32 v%d, 0x10000, v%d" % (vWR + 3, vWR + 1))
    a("s_mul_i32 s%d, s%d, %d" % (sST, sG, PITCH), "v_lshlrev_b32 v%d, 4, v%d" % (t0, t0),
      "s_lshl2_add_u32 s%d, s%d, s%d" % (sT2, sLINE, sT1),
      "s_cmp_ge_u32 s%d, 54" % sT2, "s_cselect_b32 s%d, 0x40000000, s%d" % (sST, sST),
      "s_mov_b32 s%d, 0x%08x" % (sT4, SCALE), "s_cmp_lt_u32 s%d, 18" % sT2, "s_cselect_b32 s%d, s%d, 1.0" % (sSCALE, sT4),
      "s_movk_i32 s%d, 256" % sT4, "s_movk_i32 s%d, 512" % sT5, "s_cmp_ge_u32 s%d, 9" % sLINE,
      "s_cselect_b32 s%d, %d, s%d" % (sT4, 4 * 9216, sT4), "s_cselect_b32 s%d, 9216, s%d" % (sT5, sT5),
      "s_cselect_b32 s%d, 9, 12" % sT1, "s_cselect_b32 s%d, %d, 0" % (sT3, 2 * SEC - 18 * 1024),
      "s_mul_i32 s%d, s%d, s%d" % (sT0, sT0, sT4), "s_lshl_b32 s%d, s%d, s%d" % (sT2, sT2, sT1),
      "s_add_u32 s%d, s%d, s%d" % (sST, sST, sT3), "s_add_u32 s%d, s%d, s%d" % (sST, sST, sT2), "s_add_u32 s%d, s%d, s%d" % (sST, sST, sT0),
      "v_mad_u32_u24 v%d, v%d, s%d, v%d" % (vSTA, t1, sT5, t0))
    a(";STAMP 18")
    for kind, s in pre[cfg["npre"]:]:
        for f in issue(kind, s): f()
    hooks["setup2"]()
    if cfg["p1prio"]:
        l = a.uid("pp"); a("s_cmp_lt_u32 s%d, 4" % sWAVE, "s_cbranch_scc1 %s" % l, "s_setprio 1", "%s:" % l)


def p1_body(a, isv, cfg, hooks):
    issue = lambda kind, s: p1_issue(a, kind, s)
    plan = cfg["plan"]

    def reads(s):
        r = []
        for m in range(2):
            for t in range(2):
                r.append("ds_read_b128 %s, v%d offset:%d" % (vr(vXF[s % 2] + 8 * m + 4 * t, 4), vXR + m, xslot(s) - XBASE + 2048 * t))
                if s < 9:
                    for h in range(2):
                        r.append("ds_read_b64_tr_b16 %s, v%d offset:%d" % (vr(vWF + 16 * s + 8 * m + 4 * t + 2 * h, 2), vWR + t + 2 * (wslot(s) >> 16),
                                                                           (wslot(s) & 0xffff) + (32 * m + 4 * h) * 256))
        return [(lambda x=x: a.lds(x)) for x in r]

    def mfmas(s):
        r = []
        for m in range(2):
            for ft in range(2):
                for tt in ((1, 0) if cfg["snake"] and ft else (0, 1)):
                    acc = vr(vACC[s // 9] + 8 * ft + 4 * tt, 4)
                    w = vr(vWF + 16 * (s % 9) + 8 * m + 4 * ft, 4); x = vr(vXF[s % 2] + 8 * m + 4 * tt, 4)
                    c = "0" if (s % 9 == 0 and m == 0) else acc
                    r.append("v_mfma_f32_16x16x32_bf16 %s, %s, %s, %s" % ((acc, x, w, c) if isv else (acc, w, x, c)))
        return r

    def store(r, n):
        a.vmem("buffer_store_dwordx4 %s, v%d, %s, s%d offen offset:%d sc1" % (vr(vACC[r] + 8 * n, 4), vSTA, srd(sWS), sST, (256 if isv else 2048) * n), ("st", r))

    def epilogue(r):
        acc = vACC[r]
        mid = hooks.get("mid_epi1") if r else None
        for n in range(2):
            if not isv:
                for i in range(8 * n, 8 * n + 8, 2): a("v_pk_mul_f32 %s, %s, %s op_sel_hi:[1,0]" % (vr(acc + i, 2), vr(acc + i, 2), sr(sSCALE, 2)))
            for i in range(4): a("v_cvt_pk_bf16_f32 v%d, v%d, v%d" % (acc + 8 * n + i, acc + 8 * n + 2 * i, acc + 8 * n + 2 * i + 1))
            if not mid: store(r, n)
        if mid: mid(lambda: (store(r, 0), store(r, 1)))
        if r == 0: a("s_add_u32 s%d, s%d, %d" % (sST, sST, 16 * PITCH))

    for s in range(18):
        extra = hooks.get(("waitfor", s), [])
        a.wait(vm=[("d", s)] + [("w", s)] + extra, lg="all")
        a("s_barrier")
        a(";STAMP %d" % (20 + s))
        hooks.get(("bar", s), lambda: None)()
        side = reads(s)
        xp = cfg.get("x_p1", "")
        if "noread" in xp: side = []
        if "nowread" in xp: side = side[0::3] if s < 9 else side
        dm = []
        for b, kind, s2 in plan:
            if b == s and "nodma" not in xp: dm += issue(kind, s2)
        if cfg["dmapos"] == 0 or s >= 9: side += dm
        elif cfg["dmapos"] == 1: side = dm + side
        else:
            k = max(1, len(side) // max(1, len(dm))); mix = []
            while side or dm:
                mix += side[:k] + dm[:1]; side = side[k:]; dm = dm[1:]
            side = mix
        mm = mfmas(s - 1) if s > 0 else []
        if cfg["early0"] and s == 9: mm = []
        if "nomfma" in xp: mm = []
        side = hooks.get(("side0", s), []) + side + hooks.get(("side", s), [])
        per = max(cfg["per1"], -(-len(side) // 8))
        for x in mm:
            a(x)
            for f in side[:per]: f()
            side = side[per:]
        for f in side: f()
        if cfg["ftmaj"] and s == 8:
            a.wait(lg="all")
            mm = mfmas(8); a([mm[i] for i in (0, 1, 4, 5, 2, 3, 6, 7)])
            a("s_nop 3")
            epilogue(0)
            a(";STAMP 39")
        elif cfg["early0"] and s == 8:
            a.wait(lg="all"); a(mfmas(8))
        if s == (8 if cfg["early0"] else 9) and not cfg["ftmaj"]:
            a("s_nop 5")
            epilogue(0)
            a(";STAMP 39")
        hooks.get(("step", s), lambda: None)()
    a.wait(lg="all")
    a(mfmas(17))
    hooks.get("pre_epi1", lambda: None)()
    a("s_nop 5")
    epilogue(1)
    a(";STAMP 38")
    hooks.get("post_epi1", lambda: None)()


def wo_role(a, skip):
    L = vLANE
    t0, t1, t2, t3 = 42, 43, 44, 45
    a("s_sub_u32 s%d, s2, 224" % sLINE, "s_cmp_ge_u32 s%d, 18" % sLINE, "s_cbranch_scc1 %s" % skip)
    a("s_lshl_b32 s%d, s%d, 3" % (sT0, sWAVE), "v_lshrrev_b32 v%d, 3, v%d" % (t0, L), "v_add_u32 v%d, s%d, v%d" % (t0, sT0, t0),
      "v_mul_u32_u24 v%d, 1152, v%d" % (t0, t0), "v_and_b32 v%d, 7, v%d" % (t1, L), "v_lshl_add_u32 v%d, v%d, 4, v%d" % (t0, t1, t0),
      "s_lshr_b32 s%d, s%d, 1" % (sT4, sLINE), "s_lshl_b32 s%d, s%d, 7" % (sT1, sT4), "s_and_b32 s%d, s%d, 1" % (sT5, sLINE),
      "s_mul_i32 s%d, s%d, %d" % (sT2, sT5, 288 * 1152), "s_add_u32 s%d, s%d, s%d" % (sT1, sT1, sT2),
      "s_lshl_b32 s%d, s%d, 10" % (sT2, sWAVE))
    for k in range(5):
        a("s_add_u32 m0, s%d, %d" % (sT2, 8192 * k))
        if k == 4: a("s_cmp_ge_u32 s%d, 4" % sWAVE, "s_cselect_b32 s%d, 0x40000000, s%d" % (sT1, sT1))
        else: a("s_nop 0")
        a.vmem("buffer_load_dwordx4 v%d, %s, s%d offen lds" % (t0, srd(sW), sT1), "wo")
        if k < 4: a("s_add_u32 s%d, s%d, %d" % (sT1, sT1, 64 * 1152))
    a("s_and_b32 s%d, s%d, 3" % (sT0, sWAVE), "s_lshr_b32 s%d, s%d, 2" % (sT1, sWAVE),
      "s_mul_i32 s%d, s%d, 144" % (sT3, sT1), "s_lshl_b32 s%d, s%d, 5" % (sT2, sT0),
      "v_lshrrev_b32 v%d, 5, v%d" % (t0, L), "v_mul_u32_u24 v%d, 18, v%d" % (t0, t0),
      "v_bfe_u32 v%d, v%d, 2, 3" % (t1, L),
      "v_add3_u32 v%d, v%d, v%d, s%d" % (t0, t0, t1, sT3),
      "v_and_b32 v%d, 3, v%d" % (t2, L), "v_lshl_add_u32 v%d, v%d, 3, s%d" % (t2, t2, sT2),
      "v_lshl_add_u32 v%d, v%d, 7, v%d" % (t0, t0, t2),
      "v_lshrrev_b32 v%d, 3, v%d" % (t1, L), "v_mul_u32_u24 v%d, 18, v%d" % (t1, t1),
      "v_bfe_u32 v%d, v%d, 2, 1" % (t3, L), "s_add_u32 s%d, s%d, 16" % (sT3, sT3),
      "v_add3_u32 v%d, v%d, v%d, s%d" % (t1, t1, t3, sT3),
      "v_lshl_add_u32 v%d, v%d, 7, v%d" % (t1, t1, t2))
    a("s_lshl2_add_u32 s%d, s%d, s%d" % (sT2, sT4, sT0), "s_lshl1_add_u32 s%d, s%d, s%d" % (sT2, sT2, sT5), "s_lshl1_add_u32 s%d, s%d, s%d" % (sT2, sT2, sT1),
      "s_mul_i32 s%d, s%d, 4608" % (sT2, sT2), "s_add_u32 s%d, s%d, %d" % (sT2, sT2, WOBASE), "s_add_u32 s%d, s%d, 4096" % (sT4, sT2),
      "v_lshlrev_b32 v%d, 4, v%d" % (t2, L), "v_lshlrev_b32 v%d, 3, v%d" % (t3, L))
    a.wait(vm="all"); a("s_barrier")
    for m in range(4):
        for h in range(2):
            a.lds("ds_read_b64_tr_b16 %s, v%d offset:%d" % (vr(48 + 4 * m + 2 * h, 2), t0, (36 * m + 8 * h) * 128))
    a.lds("ds_read_b64_tr_b16 v[64:65], v%d" % t1)
    a.wait(lg="all")
    for m in range(4):
        a.vmem("buffer_store_dwordx4 %s, v%d, %s, s%d offen offset:%d sc1" % (vr(48 + 4 * m, 4), t2, srd(sWS), sT2, 1024 * m), "st")
    a.vmem("buffer_store_dwordx2 v[64:65], v%d, %s, s%d offen sc1" % (t3, srd(sWS), sT4), "st")


SHIFT = [0]


def p2_setup(a):
    L = vLANE
    t0, t1, t2, t3 = 38, 39, 40, 41
    a("s_lshl_b32 s%d, s%d, 2" % (sHEAD, sXCD), "s_lshr_b32 s%d, s%d, 3" % (sT0, sJ), "s_add_u32 s%d, s%d, s%d" % (sHEAD, sHEAD, sT0),
      "s_and_b32 s%d, s%d, 7" % (sQI, sJ), "s_and_b32 s%d, s%d, 3" % (sP, sWAVE), "s_lshr_b32 s%d, s%d, 2" % (sKH, sWAVE),
      "s_mov_b32 s%d, 0x3ffff" % sVMASK, "s_mov_b32 s%d, 0x3ffff" % (sVMASK + 1),
      "s_mov_b32 s%d, -1" % sDMASK, "s_mov_b32 s%d, 0xffff" % (sDMASK + 1),
      "s_and_b32 s%d, s%d, 1" % (sT0, sHEAD),
      "s_lshr_b32 s%d, s%d, 1" % (sT1, sHEAD), "s_mul_i32 s%d, s%d, %d" % (sT1, sT1, 9 * 512))
    a("v_and_b32 v%d, 31, v%d" % (t0, L), "v_lshrrev_b32 v%d, 5, v%d" % (t1, L))
    a("s_lshl_b32 s%d, s%d, 11" % (sT2, sT0), "s_add_u32 s%d, s%d, s%d" % (sT2, sT2, sT1), "s_add_u32 s%d, s%d, %d" % (sT2, sT2, SEC),
      "v_lshl_add_u32 v%d, v%d, 4, s%d" % (vDMA, L, sT2),
      "s_mul_i32 s%d, s%d, 288" % (sT3, sHEAD))
    for k in (2, 3, 4):
        imm = 1024 * k if k < 4 else 0
        d = vDMA + k - 1
        a("v_add_u32 v%d, %d, v%d" % (t2, (64 * k - 160) & 0xffffffff, L))
        if k == 2: a("v_max_i32 v%d, 0, v%d" % (t2, t2))
        a("v_mul_u32_u24 v%d, 3641, v%d" % (t3, t2), "v_lshrrev_b32 v%d, 16, v%d" % (t3, t3),
          "v_mul_u32_u24 v%d, %d, v%d" % (t3, 9216 - 288, t3),
          "v_lshl_add_u32 v%d, v%d, 4, v%d" % (t3, t2, t3),
          "s_add_u32 s%d, s%d, %d" % (sT4, sT3, 2 * SEC - imm),
          "v_add_u32 v%d, s%d, v%d" % (d, sT4, t3))
        if k == 2:
            a("v_cmp_gt_u32 vcc, 32, v%d" % L, "s_nop 1", "v_cndmask_b32 v%d, v%d, v%d, vcc" % (d, d, vDMA))
    a("s_mul_i32 s%d, s%d, %d" % (sT2, sKH, CHUNK),
      "s_lshl_b32 s%d, s%d, 9" % (sT3, sT0), "s_add_u32 s%d, s%d, s%d" % (sT3, sT3, sT2),
      "v_lshlrev_b32 v%d, 10, v%d" % (t2, t1), "v_lshl_add_u32 v%d, v%d, 3, v%d" % (t2, t0, t2),
      "v_add_u32 v%d, s%d, v%d" % (vAK, sT3, t2),
      "s_mul_i32 s%d, s%d, %d" % (sT3, sT0, (4 - 2048) & 0xffffffff), "s_add_u32 s%d, s%d, 2048" % (sT3, sT3),
      "s_add_u32 s%d, s%d, s%d" % (sT3, sT3, sT2),
      "v_lshl_add_u32 v%d, v%d, 3, s%d" % (vAR, L, sT3),
      "s_add_u32 s%d, s%d, 2560" % (sT3, sT2),
      "v_mul_u32_u24 v%d, 288, v%d" % (t3, t1), "v_lshl_add_u32 v%d, v%d, 4, v%d" % (t3, t0, t3),
      "v_add_u32 v%d, s%d, v%d" % (vAV, sT3, t3))
    a("s_mul_i32 s%d, s%d, %d" % (sT3, sT0, 5 * 512), "s_add_u32 s%d, s%d, s%d" % (sT3, sT3, sT1),
      "v_add_u32 v%d, s%d, v%d" % (vQA, sT3, t2),
      "s_lshl_b32 s%d, s%d, 2" % (sT3, sT0), "s_add_u32 s%d, s%d, s%d" % (sT3, sT3, sT1), "s_add_u32 s%d, s%d, 2048" % (sT3, sT3),
      "v_lshl_add_u32 v%d, v%d, 3, s%d" % (vQR, t0, sT3),
      "s_lshl_b32 s%d, s%d, 1" % (sT3, sQI), "s_lshr_b32 s%d, s%d, 1" % (sT4, sP), "s_add_u32 s%d, s%d, s%d" % (sT3, sT3, sT4),
      "s_mul_i32 s%d, s%d, %d" % (sQOFF, sT3, PITCH), "s_and_b32 s%d, s%d, 1" % (sT4, sP), "s_lshl_b32 s%d, s%d, 8" % (sT4, sT4),
      "s_add_u32 s%d, s%d, s%d" % (sQOFF, sQOFF, sT4),
      "s_lshl1_add_u32 s%d, s%d, s%d" % (sT0, sP, sKH), "s_mul_i32 s%d, s%d, %d" % (sCM, sT0, CHUNK), "s_mul_i32 s%d, s%d, %d" % (sCH, sT0, PITCH),
      "v_mov_b32 v%d, 0xdddddddd" % vIDX, "v_mov_b32 v%d, 0x%x" % (vQ[0] + 5, SHIFT[0]), "v_mov_b32 v%d, 0x%x" % (vQ[1] + 5, SHIFT[0]))


def q_load(a, part):
    so = sQOFF
    if part:
        a("s_add_u32 s%d, s%d, %d" % (sT0, sQOFF, 16 * PITCH)); so = sT0
    q = vQ[part]
    a.vmem("buffer_load_dwordx2 %s, v%d, %s, s%d offen sc1" % (vr(q, 2), vQA, srd(sWS), so), ("q", part))
    a.vmem("buffer_load_dwordx2 %s, v%d, %s, s%d offen offset:512 sc1" % (vr(q + 2, 2), vQA, srd(sWS), so), ("q", part))
    a.vmem("buffer_load_dword v%d, v%d, %s, s%d offen sc1" % (q + 4, vQR, srd(sWS), so), ("q", part))


def kv_piece(a, st, k):
    if k == 0: a("s_add_u32 m0, s%d, %d" % (sCM, 8 * st * CHUNK), "s_add_u32 s%d, s%d, %d" % (sCH, sCH, 8 * PITCH) if st else "s_nop 0")
    if k < 4:
        a.vmem("buffer_load_dwordx4 v%d, %s, s%d offen offset:%d sc1 lds" % (vDMA + max(0, k - 1), srd(sWS), sCH, 1024 * k), ("kv", st))
    else:
        a("s_add_u32 m0, m0, 4096", "s_mov_b64 exec, %s" % sr(sDMASK, 2))
        a.vmem("buffer_load_dwordx4 v%d, %s, s%d offen sc1 lds" % (vDMA + 3, srd(sWS), sCH), ("kv", st))
        a("s_mov_b64 exec, -1")


def kv_dma(a, st):
    for k in range(5): kv_piece(a, st, k)


def q_dma(a):
    a("s_lshl1_add_u32 s%d, s%d, s%d" % (sT1, sQI, sKH), "s_mul_i32 s%d, s%d, %d" % (sT1, sT1, PITCH),
      "s_mul_i32 s%d, s%d, 2560" % (sT0, sKH), "s_add_u32 m0, s%d, %d" % (sT0, LDS_SPARE),
      "v_subrev_u32 v%d, %d, v%d" % (vT, SEC, vDMA))
    for k in range(3):
        if k == 2: a("s_mov_b32 exec_hi, 0")
        a("buffer_load_dwordx4 v%d, %s, s%d offen offset:%d sc1 lds" % (vT, srd(sWS), sT1, 1024 * k))
    a("s_mov_b64 exec, -1")


def q_addr(a):
    a("s_lshr_b32 s%d, s%d, 1" % (sT0, sP), "s_mul_i32 s%d, s%d, 2560" % (sT0, sT0), "s_and_b32 s%d, s%d, 1" % (sT1, sP), "s_lshl_b32 s%d, s%d, 8" % (sT1, sT1),
      "s_add_u32 s%d, s%d, s%d" % (sT0, sT0, sT1), "s_mul_i32 s%d, s%d, %d" % (sT1, sKH, CHUNK), "s_sub_u32 s%d, s%d, s%d" % (sT0, sT0, sT1),
      "s_add_u32 s%d, s%d, %d" % (sT0, sT0, LDS_SPARE),
      "v_add_u32 v%d, s%d, v%d" % (vT, sT0, vAK), "v_and_b32 v%d, 32, v%d" % (vT + 1, vLANE), "v_lshlrev_b32 v%d, 3, v%d" % (vT + 1, vT + 1),
      "v_sub_u32 v%d, v%d, v%d" % (vT + 1, vAR, vT + 1), "v_add_u32 v%d, s%d, v%d" % (vT + 1, sT0, vT + 1))


def q_read(a):
    q = vQ[0]
    a.lds("ds_read_b32 v%d, v%d" % (q + 4, vT + 1), "R")
    for h in range(2): a.lds("ds_read_b64 %s, v%d offset:%d" % (vr(q + 2 * h, 2), vT, 512 * h), ("K", 0))


ONE = [0]


def v_consts(a, base, t):
    m = 0x40000 if ONE[0] else 0x440000
    a("s_mov_b32 s%d, 0x%x" % (sSAVE, m), "s_mov_b32 s%d, 0x%x" % (sSAVE + 1, m), "v_mov_b32 v%d, 0x3f803f80" % t,
      "v_cndmask_b32 v%d, 0, v%d, %s" % (base, t, sr(sSAVE, 2)))
    a("v_mov_b32 v%d, v%d" % (base + 1, base))
    for i in range(1, 8): a("v_mov_b64 %s, %s" % (vr(base + 2 * i, 2), vr(base, 2)))


def p2_init(a):
    word_setup(a)
    v_consts(a, vV, vV + 2)
    a("v_mov_b32 v%d, 0x%x" % (vKR + 1, 0x3f80 if SHIFT[0] else 0))
    for i in range(16): a("v_mov_b64 %s, 0" % vr(vO[0] + 2 * i, 2))


def p2_main(a, cfg, ev):
    ns = cfg["nsolo"]
    U = [(i, 0) for i in range(ns)] + [(i, q) for i in range(ns, 16) for q in range(2)] + [(i, 1) for i in range(ns)]
    if cfg["uswap"]: U[6:10] = [(6, 0), (7, 0), (7, 1), (6, 1)]
    N = len(U)
    base = {"k": 0, "r": 0, "v": 0, "k0": 0, "k1": 0}
    reg = {"k": vAK, "r": vAR, "v": vAV, "k0": vAK, "k1": vAK1}
    seen = set()

    def off(kind, i):
        if i not in seen:
            seen.add(i)
            if ("pre", i) in ev: ev[("pre", i)]()
        want = (i // 6) * 6
        if base[kind] != want:
            a("v_add_u32 v%d, 0x%x, v%d" % (reg[kind], ((want - base[kind]) * 2 * CHUNK) & 0xffffffff, reg[kind]))
            base[kind] = want
        return (i - want) * 2 * CHUNK

    def rR(i):
        o = off("r", i); a.lds("ds_read_b32 v%d, v%d offset:%d" % (vKR, vAR, o), "R")
    def rK(i, t):
        if cfg["k2"]:
            kind = "k%d" % t
            want = 0 if i < 13 else 13
            if base[kind] != want:
                a("v_add_u32 v%d, 0x%x, v%d" % (reg[kind], ((want - base[kind]) * 2 * CHUNK) & 0xffffffff, reg[kind])); base[kind] = want
            o = (i - want) * 19
            a.lds("ds_read2st64_b64 %s, v%d offset0:%d offset1:%d" % (vr(vK + 4 * t, 4), reg[kind], o, o + 1), ("K", t))
            return
        o = off("k", i)
        for h in range(2): a.lds("ds_read_b64 %s, v%d offset:%d" % (vr(vK + 4 * t + 2 * h, 2), vAK, o + 256 * t + 512 * h), ("K", t))
    def rV(i, fs):
        if ("prev", i) in ev: ev.pop(("prev", i))()
        o = off("v", i)
        if not cfg.get("x_nomask"): a("s_mov_b64 exec, %s" % sr(sVMASK, 2))
        for f in fs: a.lds("ds_read_b128 %s, v%d offset:%d" % (vr(vV + 4 * f, 4), vAV, o + 576 * f), ("V", f // 2))
        if not cfg.get("x_nomask"): a("s_mov_b64 exec, -1")
    def R(u):
        a.wait(lg="R")
        if U[u][1] == 1 and "ql" in ev: ev.pop("ql")()
        a("v_mfma_f32_32x32x4_2b_bf16 %s, %s, %s, 0" % (vr(vS[u % 2], 32), vr(vKR, 2), vr(vQ[U[u][1]] + 4, 2)))
    def M(u, t):
        a.wait(lg=("K", t))
        s = vr(vS[u % 2] + 16 * t, 16)
        a("v_mfma_f32_32x32x16_bf16 %s, %s, %s, %s" % (s, vr(vK + 4 * t, 4), vr(vQ[U[u][1]], 4), s))
    def P(u, f):
        a.wait(lg=("V", f // 2))
        a("v_smfmac_f32_32x32x32_bf16 %s, %s, %s, v%d" % (vr(vO[U[u][1]], 16), vr(vV + 4 * f, 4), vr(vS[u % 2] + 8 * f, 8), vIDX))
    ch = lambda u: U[u][0]
    newk = lambda u: u < N and ch(u) != ch(u - 1)

    rR(ch(0)); rK(ch(0), 0); rK(ch(0), 1)
    rV(ch(0), (0, 1, 2, 3))
    R(0)
    if newk(1): rR(ch(1))
    n0 = len(a.l)
    if "fill" in ev: ev["fill"]()
    gap = 17 - (len(a.l) - n0)
    while gap > 0:
        a("s_nop %d" % (min(gap, 16) - 1)); gap -= 16
    M(0, 0)
    if newk(1): rK(ch(1), 0)
    M(0, 1)
    if newk(1): rK(ch(1), 1)
    a("s_nop 7")
    pos = cfg["pos"]
    a.age = cfg["age"]
    for u in range(N):
        def op(j):
            if j == 0:
                if u > 0:
                    P(u - 1, 3)
                    if newk(u): rV(ch(u), (2, 3))
            elif j == 1:
                if u + 1 < N:
                    R(u + 1)
            elif j == 2: P(u, 0)
            elif j == 3:
                P(u, 1)
                if newk(u + 1): rV(ch(u + 1), (0, 1))
            elif j == 4 or j == 6:
                if u + 1 < N:
                    M(u + 1, (j - 4) // 2)
                    if newk(u + 2):
                        if j == 4: rR(ch(u + 2))
                        rK(ch(u + 2), (j - 4) // 2)
            elif j == 5: P(u, 2)
            if (u, j) in cfg.get("prio", {}): a("s_setprio %d" % cfg["prio"][(u, j)])
            if (u, j) in cfg.get("priox", {}):
                l = a.uid("px"); a("s_cmp_lg_u32 s%d, 0" % sKH, "s_cbranch_scc1 %s" % l, "s_setprio %d" % cfg["priox"][(u, j)], "%s:" % l)
            if (u, j) in ev: ev[(u, j)]()
        a(";STAMP %d" % (40 + u))
        for e in range(32):
            if e in pos: op(pos.index(e))
            a("v_exp_f32 v%d, v%d" % (vS[u % 2] + e, vS[u % 2] + e)); a.clock += 1
    a.age = None
    a("s_nop 1")
    P(N - 1, 3)
    return U


SCR_RES, SCR_ROFF = 12 * CHUNK, (0, 2 * CHUNK)
SCR_MOFF = (0, 0)
P3_BASE, P3_OFF = 15 * CHUNK, (39936, 0)
sOA, sOR = 34, 3
sOL = 12
sPF = 15
vFD = [vWO + 72, vWO + 72]


def late_setup(a):
    L = vLANE
    a("s_lshl_b32 s%d, s%d, 11" % (sT0, sP), "s_add_u32 s%d, s%d, %d" % (sT0, sT0, LDS_SPARE), "v_add_u32 v%d, s%d, v%d" % (vSA, sT0, vL16),
      "s_lshl_b32 s%d, s%d, 10" % (sT0, sP), "s_add_u32 s%d, s%d, %d" % (sT0, sT0, SCR_RES), "v_add_u32 v%d, s%d, v%d" % (vSB, sT0, vL16),
      "s_lshl2_add_u32 s%d, s%d, s%d" % (sT0, sQI, sP), "s_mul_i32 s%d, s%d, %d" % (sT0, sT0, OTILE), "s_add_u32 s%d, s%d, %d" % (sT0, sT0, OBASE),
      "s_lshl_b32 s%d, s%d, 10" % (sT1, sHEAD), "s_add_u32 s%d, s%d, s%d" % (sOA, sT1, sT0),
      "s_lshl_b32 s%d, s%d, 7" % (sT1, sHEAD), "s_add_u32 s%d, s%d, s%d" % (sOR, sT1, sT0), "s_add_u32 s%d, s%d, 32768" % (sOR, sOR),
      "v_lshrrev_b32 v%d, 4, v%d" % (vOB, L), "v_and_b32 v%d, 15, v%d" % (vT, L), "s_lshl_b32 s%d, s%d, 4" % (sT1, sRH), "v_add_u32 v%d, s%d, v%d" % (vT, sT1, vT),
      "v_lshlrev_b32 v%d, 9, v%d" % (vOA, vOB), "v_lshl_add_u32 v%d, v%d, 4, v%d" % (vOA, vT, vOA),
      "v_lshlrev_b32 v%d, 8, v%d" % (vOB, vOB), "v_lshl_add_u32 v%d, v%d, 2, v%d" % (vOB, vT, vOB),
      "s_lshl2_add_u32 s%d, s%d, s%d" % (sT0, sXCD, sRT), "s_mul_i32 s%d, s%d, %d" % (sT0, sT0, OTILE), "s_add_u32 s%d, s%d, %d" % (sT0, sT0, OBASE),
      "s_lshl_b32 s%d, s%d, 13" % (sT1, sKQ), "s_add_u32 s%d, s%d, s%d" % (sOL, sT1, sT0), "s_add_u32 s%d, s%d, 4096" % (sOL + 1, sOL),
      "s_lshl_b32 s%d, s%d, 10" % (sT1, sKQ), "s_add_u32 s%d, s%d, s%d" % (sOL + 2, sT1, sT0), "s_add_u32 s%d, s%d, 32768" % (sOL + 2, sOL + 2))


RES4 = [0]


def o_store(a, d, t, part, em):
    sa, sb = sOA, sOR
    if part:
        a("s_add_u32 s%d, s%d, %d" % (sT1, sOA, 32 * OTILE), "s_add_u32 s%d, s%d, %d" % (sT2, sOR, 32 * OTILE)); sa, sb = sT1, sT2
    em("buffer_store_dwordx4 %s, v%d, %s, s%d offen sc1" % (vr(d, 4), vL16, srd(sWS), sa))
    if RES4[0]:
        a("s_mov_b64 exec, 0xff")
        em("buffer_store_dwordx4 %s, v%d, %s, s%d offen sc1" % (vr(t, 4), vL16, srd(sWS), sb))
        a("s_mov_b64 exec, -1")
        return
    a("s_mov_b32 exec_hi, 0")
    em("buffer_store_dword v%d, v%d, %s, s%d offen sc1" % (d + 4, t, srd(sWS), sb))
    a("s_mov_b64 exec, -1")


def poison(a, parts=(0, 1)):
    d = vFD[0]
    a("v_mov_b64 %s, -1" % vr(d, 2), "v_mov_b64 %s, -1" % vr(d + 2, 2))
    if not RES4[0]: a("v_mov_b32 v%d, -1" % (d + 4), "v_lshlrev_b32 v%d, 2, v%d" % (vT, vLANE))
    for part in parts: o_store(a, d, d if RES4[0] else vT, part, lambda x: a.vmem(x, "poison"))


def send_partial(a, part):
    o = vO[part]
    a("v_mov_b32 v%d, s%d" % (o + 11, sTAG),
      "ds_write_b128 v%d, %s offset:%d" % (vSA, vr(o, 4), SCR_MOFF[part]), "ds_write_b128 v%d, %s offset:%d" % (vSA, vr(o + 4, 4), SCR_MOFF[part] + 1024),
      "ds_write_b128 v%d, %s offset:%d" % (vSB, vr(o + 8, 4), SCR_ROFF[part]))


def fin_reads(part):
    d = vFD[part]
    return ["ds_read_b128 %s, v%d offset:%d" % (vr(d + 8, 4), vSB, SCR_ROFF[part]),
            "ds_read_b128 %s, v%d offset:%d" % (vr(d, 4), vSA, SCR_MOFF[part]), "ds_read_b128 %s, v%d offset:%d" % (vr(d + 4, 4), vSA, SCR_MOFF[part] + 1024)]


NOPK = [0, 0]
BIAS = [0]
vTH = vWO + 88


def o_bias(a, cls):
    x = vWO + 84
    def rd(): a("v_mov_b32 v%d, 2560" % x); a.lds("ds_read_b128 %s, v%d" % (vr(x, 4), x), "bias")
    def init():
        a.wait(lg="bias")
        k = struct.unpack("<I", struct.pack("<f", (1.35 if cls else -1.35) * 2.0 ** BIAS[0]))[0]
        o = vO[0]
        a("v_max3_f32 v%d, abs(v%d), abs(v%d), abs(v%d)" % (x, x, x + 1, x + 2), "v_max_f32 v%d, abs(v%d), v%d" % (x, x + 3, x),
          "v_and_b32 v%d, 0x7f800000, v%d" % (x, x), "v_mul_f32 v%d, 0x%x, v%d" % (o, k, x), "v_mul_f32 v%d, 0x%x, v%d" % (o + 1, k, x))
        if cls: a("v_mul_f32 v%d, 0x3b800000, v%d" % (vTH, o))
        for r in (o + 2, o + 4, o + 6, o + 8) + tuple(range(vO[1], vO[1] + 10, 2)): a("v_mov_b64 %s, %s" % (vr(r, 2), vr(o, 2)))
    return rd, init


def finalize(a, part, slow, colds, prefetched=False, before_store=None):
    o = vO[part]
    t = vT
    d = vFD[part]
    if not prefetched: a(fin_reads(part))
    again = a.uid("meet")
    a("s_mov_b32 s%d, 0" % sT5, "s_mov_b32 s%d, 0x37800000" % sT4,
      "%s:" % again, "s_waitcnt lgkmcnt(0)", "v_cmp_ne_u32 vcc, s%d, v%d" % (sTAG, d + 11), "s_cbranch_vccnz %s_r" % again, "%s_k:" % again)
    def cold():
        a("%s_r:" % again); spin_guard(a, again + "_k"); a("s_sleep 1", fin_reads(part), "s_branch %s" % again)
    colds.append(cold)
    pk = lambda op, x, y, z, m="": "v_pk_%s_f32 %s, %s, %s%s" % (op, vr(x, 2), vr(y, 2), vr(z, 2), m)
    if NOPK[part]: pk = lambda op, x, y, z, m="": ["v_%s_f32 v%d, v%d, v%d" % (op, x + i, y + i, z + (0 if m else i)) for i in range(2)]
    if ONE[0]:
        a("v_add_f32 v%d, v%d, v%d" % (o + 11, o + 10, d + 10), "v_add_f32 v%d, v%d, v%d" % (o + 10, o + 10, d + 10), pk("add", o + 8, o + 8, d + 8), pk("add", o, o, d),
          "v_permlane32_swap_b32 v%d, v%d" % (o + 10, o + 11))
        for i in (2, 4, 6): a(pk("add", o + i, o + i, d + i))
    else:
        a("v_add_f32 v%d, v%d, v%d" % (o + 10, o + 10, d + 10), pk("add", o + 8, o + 8, d + 8))
        for i in (0, 2, 4, 6): a(pk("add", o + i, o + i, d + i))
    back = a.uid("norm")
    done = a.uid("normok")
    a("%s:" % back)
    a("v_rcp_f32 v%d, v%d" % (t, o + 10), "v_mov_b32 v%d, 0x7b800000" % (d + 11))
    for i in range(0, 10, 2): a(pk("mul", d + i, o + i, t, " op_sel_hi:[1,0]"))
    a("v_med3_f32 v%d, v%d, s%d, v%d" % (d + 10, o + 10, sT4, d + 11))
    if BIAS[0]:
        a(["v_add_f32 v%d, abs(v%d), abs(v%d)" % (t + k, o + 2 * k, o + 2 * k + 1) for k in range(2)])
        for i in range(4, 10): a("v_add_f32 v%d, v%d, abs(v%d)" % (t + i % 2, t + i % 2, o + i))
        a("v_add_f32 v%d, v%d, v%d" % (t, t, t + 1), "v_cmp_lt_f32 %s, v%d, v%d" % (sr(sSAVE, 2), t, vTH))
    else:
        a(pk("add", t, d, d + 2))
        for i in (4, 6, 8): a(pk("add", t, t, d + i))
        a("v_add_f32 v%d, v%d, v%d" % (t, t, t + 1))
    a("v_fma_f32 v%d, v%d, 0, v%d" % (t, t, o + 10),
      "v_cmp_neq_f32 vcc, v%d, v%d" % (d + 10, t))
    if before_store: before_store()
    cv = lambda i, x: "v_cvt_pk_bf16_f32 v%d, v%d, v%d" % (x, d + 2 * i, d + 2 * i + 1)
    if RES4[0]:
        a(cv(4, d + 8), cv(0, d), cv(1, d + 1), "v_mov_b32_dpp v%d, v%d row_ror:8 row_mask:0xf bank_mask:0xf" % (d + 9, d + 8), cv(2, d + 2),
          "v_permlane16_swap_b32 v%d, v%d" % (d + 8, d + 10), cv(3, d + 3), "v_permlane16_swap_b32 v%d, v%d" % (d + 9, d + 11))
        slow(part, back, done)
        a("%s:" % done)
        o_store(a, d, d + 8, part, a)
        return
    for i in range(5):
        a(cv(i, d + i))
        if i == 2 and BIAS[0]: a("s_or_b64 vcc, vcc, %s" % sr(sSAVE, 2))
    slow(part, back, done)
    a("%s:" % done, "v_lshlrev_b32 v%d, 2, v%d" % (t, vLANE))
    o_store(a, d, t, part, a)


def slow_path(a, part, label, back, done, after):
    S, K, KR, V, m, ar, av = 44, 76, 84, 88, 104, 105, 106
    q = vQ[part]; o = vO[part]
    a("%s:" % label, "s_cmp_eq_u32 s%d, 0" % sT5, "s_cbranch_scc1 %s_go" % label)
    for i in range(12): a("v_min_u32 v%d, -2, v%d" % (vFD[part] + i, vFD[part] + i))
    a("s_branch %s" % done, "%s_go:" % label, "s_mov_b32 s%d, 1" % sT5)
    a("s_waitcnt vmcnt(0) lgkmcnt(0)")
    v_consts(a, V, m)
    a("v_mov_b32 v%d, 0" % (KR + 1))
    for i in range(16): a("v_mov_b32 v%d, 0" % (o + i))
    a("v_lshrrev_b32 v%d, 5, v%d" % (m, vLANE), "v_lshl_add_u32 v%d, v%d, 8, v%d" % (ar, m, vQR),
      "v_mul_u32_u24 v%d, 9216, v%d" % (av, m), "v_and_b32 v%d, 31, v%d" % (m, vLANE), "v_lshl_add_u32 v%d, v%d, 4, v%d" % (av, m, av),
      "s_mul_i32 s%d, s%d, 288" % (sT3, sHEAD), "s_add_u32 s%d, s%d, %d" % (sT3, sT3, SEC), "v_add_u32 v%d, s%d, v%d" % (av, sT3, av))
    for f in range(1, 4): a("v_add_u32 v%d, 18432, v%d" % (av + f, av + f - 1))
    a("v_mov_b32 v%d, 0xff800000" % m)
    for ps in range(2):
        lp = a.uid("slow")
        a("s_mov_b32 s%d, %d" % (sLOOP, SEC), "%s:" % lp)
        for t in range(2):
            for h in range(2):
                a("buffer_load_dwordx2 %s, v%d, %s, s%d offen offset:%d sc1" % (vr(K + 4 * t + 2 * h, 2), vQA, srd(sWS), sLOOP, 256 * t + 512 * h))
        a("buffer_load_dword v%d, v%d, %s, s%d offen sc1" % (KR, ar, srd(sWS), sLOOP))
        if ps:
            a("s_mov_b64 exec, %s" % sr(sVMASK, 2))
            for f in range(4): a("buffer_load_dwordx4 %s, v%d, %s, s%d offen sc1" % (vr(V + 4 * f, 4), av + f, srd(sWS), sLOOP))
            a("s_mov_b64 exec, -1")
        a("s_waitcnt vmcnt(0)",
          "v_mfma_f32_32x32x4_2b_bf16 %s, %s, %s, 0" % (vr(S, 32), vr(KR, 2), vr(q + 4, 2)), "s_nop 15", "s_nop 1")
        for t in range(2):
            a("v_mfma_f32_32x32x16_bf16 %s, %s, %s, %s" % (vr(S + 16 * t, 16), vr(K + 4 * t, 4), vr(q, 4), vr(S + 16 * t, 16)))
        a("s_nop 11")
        if ps == 0:
            for i in range(16): a("v_max3_f32 v%d, v%d, v%d, v%d" % (m, m, S + 2 * i, S + 2 * i + 1))
        else:
            for i in range(32): a("v_sub_f32 v%d, v%d, v%d" % (S + i, S + i, m))
            for i in range(32): a("v_exp_f32 v%d, v%d" % (S + i, S + i))
            a("s_nop 1")
            for f in range(4): a("v_smfmac_f32_32x32x32_bf16 %s, %s, %s, v%d" % (vr(o, 16), vr(V + 4 * f, 4), vr(S + 8 * f, 8), vIDX))
        a("s_add_u32 s%d, s%d, %d" % (sLOOP, sLOOP, PITCH), "s_cmp_lt_u32 s%d, %d" % (sLOOP, 32 * PITCH), "s_cbranch_scc1 %s" % lp)
        if ps == 0:
            a("v_mov_b32 v%d, v%d" % (S, m), "s_nop 1", "v_permlane32_swap_b32 v%d, v%d" % (S, m), "s_nop 1", "v_max_f32 v%d, v%d, v%d" % (m, m, S))
    a("s_nop 15")
    if ONE[0]: a("v_mov_b32 v%d, v%d" % (o + 11, o + 10), "s_nop 1", "v_permlane32_swap_b32 v%d, v%d" % (o + 10, o + 11), "s_nop 1")
    after()
    a("s_branch %s" % back)


def p3_setup(a):
    a("s_and_b32 s%d, s%d, 3" % (sRT, sJ), "s_lshr_b32 s%d, s%d, 2" % (sCB, sJ),
      "s_and_b32 s%d, s%d, 3" % (sKQ, sWAVE), "s_and_b32 s%d, s%d, 1" % (sRH, sCB),
      "s_lshl_b32 s%d, s%d, 2" % (sT0, sCB), "s_lshr_b32 s%d, s%d, 1" % (sT1, sCB), "s_add_u32 s%d, s%d, 32" % (sT1, sT1),
      "s_mul_i32 s%d, s%d, 4608" % (sT2, sKQ), "s_add_u32 s%d, s%d, %d" % (sT2, sT2, WOBASE),
      "s_mul_i32 s%d, s%d, %d" % (sT3, sT0, 4 * 4608), "s_add_u32 s%d, s%d, s%d" % (sWOF, sT3, sT2))
    for t in range(1, 4): a("s_add_u32 s%d, s%d, %d" % (sWOF + t, sWOF, 4 * 4608 * t))
    a("s_mul_i32 s%d, s%d, %d" % (sT3, sT1, 4 * 4608), "s_add_u32 s%d, s%d, s%d" % (sWOF + 4, sT3, sT2),
      "s_lshl2_add_u32 s%d, s%d, s%d" % (sT2, sXCD, sRT), "s_lshl1_add_u32 s%d, s%d, s%d" % (sT2, sT2, sRH),
      "s_mul_i32 s%d, s%d, %d" % (sT3, sT2, 16 * 1152), "s_lshl_b32 s%d, s%d, 5" % (sT1, sT1), "s_add_u32 s%d, s%d, s%d" % (sOCOL + 2, sT1, sT3),
      "s_mul_i32 s%d, s%d, %d" % (sT4, sKQ, 4 * 1152), "s_lshl_b32 s%d, s%d, 5" % (sT0, sT0), "s_add_u32 s%d, s%d, s%d" % (sT0, sT0, sT4),
      "s_add_u32 s%d, s%d, s%d" % (sOCOL, sT0, sT3),
      "s_xor_b32 s%d, s%d, 1" % (sT2, sT2), "s_mul_i32 s%d, s%d, %d" % (sT3, sT2, 16 * 1152), "s_add_u32 s%d, s%d, s%d" % (sOCOL + 1, sT0, sT3),
      "s_movk_i32 s%d, 272" % sC272, "s_movk_i32 s%d, 80" % sC80)


def wo_load(a, tiles, t16, t8, track=True, only=None):
    em = a.vmem if track else (lambda s, tag: a(s))
    for t in tiles:
        for m in range(4):
            if only in (None, m): em("buffer_load_dwordx4 %s, v%d, %s, s%d offen offset:%d sc1" % (vr(vWO + 18 * t + 4 * m, 4), t16, srd(sWS), sWOF + t, 1024 * m), "wo")
        if only in (None, 4): em("buffer_load_dwordx2 %s, v%d, %s, s%d offen sc1" % (vr(vWO + 18 * t + 16, 2), t8, srd(sWS), sWOF + t), "wo")


vOA2, vOB2 = 18, 19
vAC = [vV, vO[1]]
vAC4 = vV + 16


def o_instr(of, hh, g, so):
    main, res = of[hh]
    if g < 4: return ["buffer_load_dwordx4 %s, v%d, %s, s%d offen offset:%d sc1" % (vr(main + 4 * g, 4), (vOA, vOA2)[hh], srd(sWS), so + g // 2, 2048 * (g % 2))]
    return ["buffer_load_dword v%d, v%d, %s, s%d offen offset:%d sc1" % (res + e, (vOB, vOB2)[hh], srd(sWS), so + 2, 128 * e) for e in range(2)]


def o_load(a, of, items, so, tag):
    for hh, g in items:
        for x in o_instr(of, hh, g, so): a.vmem(x, (tag, hh))


RSLEEP = [2]


def o_check(a, of, items, so, colds, reload=None):
    regs = []
    for hh, g in items: regs += list(range(of[hh][0] + 4 * g, of[hh][0] + 4 * g + 4)) if g < 4 else [of[hh][1], of[hh][1] + 1]
    t = vT
    chk = ["v_max_u32 v%d, v%d, v%d" % (t, regs[0], regs[1])] + ["v_max3_u32 v%d, v%d, v%d, v%d" % (t, t, regs[i], regs[i + 1]) for i in range(2, len(regs), 2)]
    chk.append("v_cmp_eq_u32 vcc, -1, v%d" % t)
    l = a.uid("ochk")
    def cold():
        a("%s_r:" % l); spin_guard(a, l + "_k")
        if RSLEEP[0]: a("s_sleep %d" % RSLEEP[0])
        for hh, g in (reload or items): a(o_instr(of, hh, g, so))
        a("s_waitcnt vmcnt(0)", chk, "s_cbranch_vccnz %s_r" % l, "s_branch %s_k" % l)
    colds.append(cold)
    return chk, ["s_cbranch_vccnz %s_r" % l, "%s_k:" % l]


def p3_mm(of, hh, k, g, first):
    main, res = of[hh]
    c = vr(vAC4 if k == 4 else vAC[hh] + 4 * k, 4)
    if g < 4: return "v_mfma_f32_16x16x32_bf16 %s, %s, %s, %s" % (c, vr(vWO + 18 * k + 4 * g, 4), vr(main + 4 * g, 4), "0" if first else c)
    return "v_mfma_f32_16x16x16_bf16 %s, %s, %s, %s" % (c, vr(vWO + 18 * k + 16, 2), vr(res, 2), "0" if first else c)


def p3_half(a, of, hh, gs, first, part, pend, side=()):
    tiles = (4, 0, 1, 2, 3) if hh == 0 else (0, 1, 2, 3)
    side = list(side)
    def emit(x):
        a(x)
        n = 1
        if side:
            y = side.pop(0)
            if y: a(y); n += 1
        for p_ in pend: p_[0] -= n
        if pend and pend[0][0] <= 0:
            a(pend.pop(0)[1])
            for p_ in pend: p_[0] -= 1
    if 4 in gs:
        n0 = len(a.l)
        for k in tiles: emit(p3_mm(of, hh, k, 4, first))
        first = False
        gap = 6 - (len(a.l) - n0 - 1)
        if gap > 0:
            a("s_nop %d" % (gap - 1))
            for p_ in pend: p_[0] -= gap
    for k in tiles:
        for n, g in enumerate([g for g in gs if g < 4]): emit(p3_mm(of, hh, k, g, first and n == 0))
        if part is not None:
            if k == 4: w = "ds_write_b128 v%d, %s offset:%d" % (vP3 + 1, vr(vAC4, 4), P3_OFF[part])
            else: w = "ds_write_b128 v%d, %s offset:%d" % (vP3, vr(vAC[hh] + 4 * k, 4), P3_OFF[part] + 4 * P3_PART * hh + 64 * k)
            pend.append([8, w])
    a(side)


def p3_last(a, of, pend, side, br):
    T = [(0, k) for k in (4, 0, 1, 2, 3)] + [(1, k) for k in range(4)]
    side = list(side)
    def emit(x):
        a(x); n = 1
        if side:
            y = side.pop(0)
            if y: a(y); n += 1
        for p_ in pend: p_[0] -= n
        if pend and pend[0][0] <= 0:
            a(pend.pop(0)[1])
            for p_ in pend: p_[0] -= 1
    n0 = len(a.l)
    for i in range(3): emit(p3_mm(of, T[i][0], T[i][1], 4, False))
    gap = 6 - (len(a.l) - n0 - 1)
    if gap > 0: a("s_nop %d" % (gap - 1))
    for i, (hh, k) in enumerate(T):
        for g in (2, 3): emit(p3_mm(of, hh, k, g, False))
        if k == 4: w = "ds_write_b128 v%d, %s offset:%d" % (vP3 + 1, vr(vAC4, 4), P3_OFF[1])
        else: w = "ds_write_b128 v%d, %s offset:%d" % (vP3, vr(vAC[hh] + 4 * k, 4), P3_OFF[1] + 4 * P3_PART * hh + 64 * k)
        pend.append([8, w])
        if i + 3 < len(T):
            if i + 3 == 5:
                a([y for y in side if y], br); side = []
            emit(p3_mm(of, T[i + 3][0], T[i + 3][1], 4, False))


def p3_flush(a, pend):
    while pend:
        n = pend[0][0]
        if n > 0:
            a("s_nop %d" % (n - 1))
            for p_ in pend: p_[0] -= n
        a(pend.pop(0)[1])
        for p_ in pend: p_[0] -= 1


P3_ROW, P3_PART = 272, 16 * 272
P3_SH = 8 * P3_PART


def p3_addr(a, t):
    L = vLANE
    a("v_and_b32 v24, 15, v%d" % L, "v_lshrrev_b32 v%d, 4, v%d" % (t + 5, L),
      "s_mul_i32 s%d, s%d, %d" % (sT0, sKQ, P3_PART), "s_add_u32 s%d, s%d, %d" % (sT0, sT0, P3_BASE),
      "v_lshl_add_u32 v%d, v%d, 4, s%d" % (t, t + 5, sT0), "v_mad_u32_u24 v%d, v24, s%d, v%d" % (t, sC272, t),
      "s_mul_i32 s%d, s%d, 1280" % (sT0, sKQ), "s_add_u32 s%d, s%d, %d" % (sT0, sT0, P3_BASE + P3_SH),
      "v_lshl_add_u32 v%d, v%d, 4, s%d" % (t + 1, t + 5, sT0), "v_mad_u32_u24 v%d, v24, s%d, v%d" % (t + 1, sC80, t + 1),
      "s_lshl4_add_u32 s%d, s%d, s%d" % (sT0, sKH, sKQ), "s_mul_i32 s%d, s%d, %d" % (sT0, sT0, 4 * P3_ROW), "s_add_u32 s%d, s%d, %d" % (sT0, sT0, P3_BASE),
      "v_lshl_add_u32 v%d, v24, 4, s%d" % (t + 2, sT0), "v_mad_u32_u24 v%d, v%d, s%d, v%d" % (t + 2, t + 5, sC272, t + 2),
      "v_mul_u32_u24 v%d, 1152, v%d" % (t + 4, t + 5), "v_lshl_add_u32 v%d, v24, 3, v%d" % (t + 4, t + 4),
      "v_lshrrev_b32 v24, 2, v%d" % L, "v_and_b32 v%d, 3, v%d" % (t + 5, L),
      "v_mul_u32_u24 v%d, 80, v24" % (t + 3), "v_lshl_add_u32 v%d, v%d, 4, v%d" % (t + 3, t + 5, t + 3), "v_add_u32 v%d, %d, v%d" % (t + 3, P3_BASE + P3_SH, t + 3),
      "v_mul_u32_u24 v24, 1152, v24", "v_lshl_add_u32 v%d, v%d, 3, v24" % (t + 5, t + 5))


def p3_finish(a, part, cls, halves, d, pk, colds):
    t = vP3
    def rd(src, off, step, x):
        for k in range(4): a("ds_read_b128 %s, v%d offset:%d" % (vr(x + 4 * k, 4), src, P3_OFF[part] + off + step * k))
    def fin(x, va, so, left):
        for k in range(1, 4):
            if left is not None: a("s_waitcnt lgkmcnt(%d)" % (left + 3 - k))
            if pk: a(["v_pk_add_f32 %s, %s, %s" % (vr(x + i, 2), vr(x + i, 2), vr(x + 4 * k + i, 2)) for i in (0, 2)])
            else: a(["v_add_f32 v%d, v%d, v%d" % (x + i, x + i, x + 4 * k + i) for i in range(4)])
        a("v_cvt_pk_bf16_f32 v%d, v%d, v%d" % (x, x, x + 1), "v_cvt_pk_bf16_f32 v%d, v%d, v%d" % (x + 1, x + 2, x + 3),
          "buffer_store_dwordx2 %s, v%d, %s, s%d offen" % (vr(x, 2), va, srd(sOUT), so))
    def body(shared):
        for n, hh in enumerate(halves): rd(t + 2, 4 * P3_PART * (hh - cls), P3_PART, d + 16 * n)
        if shared: rd(t + 3, 0, 1280, d + 32)
        for n, hh in enumerate(halves): fin(d + 16 * n, t + 4, sOCOL + hh, 4 * (len(halves) - 1 - n + shared))
        if shared: fin(d + 32, t + 5, sOCOL + 2, 0)
    return body


def kd(name, lds=False):
    return """.amdhsa_kernel %s
  .amdhsa_next_free_vgpr 256
  .amdhsa_next_free_sgpr 96
  .amdhsa_accum_offset 256
  .amdhsa_group_segment_fixed_size 0
  .amdhsa_kernarg_size 48
  .amdhsa_user_sgpr_count 2
  .amdhsa_user_sgpr_kernarg_segment_ptr 1
  .amdhsa_system_sgpr_workgroup_id_x 1
  .amdhsa_float_denorm_mode_32 3
.end_amdhsa_kernel""" % name


def head(a, name):
    a(".globl %s" % name, ".p2align 12", ".p2align 8", ".type %s,@function" % name, "%s:" % name)


def plan2(wb, xb, pre="w0 x0 x1 w1 x2", xfirst=False):
    p = [(-1, t[0], int(t[1:])) for t in pre.split()]
    w0, x0 = 9 - len(wb), 18 - len(xb)
    for b in range(18):
        w = [(b, "w", s) for s in range(w0, 9) if wb[s - w0] == b]
        x = [(b, "x", s) for s in range(x0, 18) if xb[s - x0] == b]
        p += x + w if xfirst else w + x
    return p


DEF = dict(plan=plan2([0, 0, 1, 2, 3, 4, 5], [0, 1, 2, 3, 4, 5, 6, 6, 7, 7, 8, 9, 9, 10, 10]), early0=1, npre=4, dmapos=0, p1prio=0, ftmaj=0, rotx=0, align=1, tag_step=4, flag_step=13, flag_pos='side0',
           poll_step=16, check_step=16, init_steps=(15, 3), e_sleep=0, pf_code=1, pf_x=1, idle_sleep=2, canary=1, per0=2, per1=1,
           nsolo=6, pos=[2, 6, 14, 18, 22, 26, 30],
           w0=[(1, 0), (1, 2)], kv1=['fill', (0, 1)], st1=[(0, 3), (0, 3)], w1=[(1, 6), (2, 3)], f1=[(2, 1), (2, 5), (2, 6)], pollL=[(5, 0), (6, 2)], kv2=[(6, 2), (6, 2), (6, 3), (6, 3), (6, 3)], w2=[(8, 2), (8, 3)], uswap=1, age=None, qdma=1, tagc=9, k2=0,
           kv3=[(8, 5), (8, 6), (9, 0), (9, 1), (9, 2)], w3=[(13, 2), (16, 3)], wo=[(11, 2), (13, 3), 14, (2, 3, 5)], poison=[0, (10, 2), (26, 2)],
           opoll=[(30, 5), (31, 1), (31, 1)], two=(31, 3), both=1, rsleep=1, emark=0, c1lag=4, pipe3=0, near=1, shift=42.5, one=0, bias=0, snake=0, w7early=0, hint=(31, 4), h_sleep=0, e_pipe=0, i_pipe=0, h_pipe=0, warm=1, nopk=[0, 0], xw_sleep=0, try1=0, res4=0, yprio=0, fpk=[0, 1], full=0, xprio2=0, outmod=['', ''],
           prio={(0, 4): 2, (2, 2): 1, (6, 3): 0, (7, 5): 3, (26, 0): 2, (30, 5): 1, (31, 2): 0}, priox={(22, 0): 2})


sF0, sF1 = 57, 58
sIDLE = 83
OOB = 0x7ffff000
MASTER = 242


def spin_guard(a, out):
    a("s_add_u32 s%d, s%d, 1" % (sSPIN, sSPIN), "s_cmp_gt_u32 s%d, 0x80000" % sSPIN, "s_cbranch_scc1 %s" % out)


def tag_issue(a):
    a.vmem("buffer_load_dword v%d, off, %s, 0 sc1" % (vTAG, srd(sDBG)), "tag")


def tag_check(a, colds):
    lp = a.uid("tag")
    a.wait(vm="tag")
    a("%s:" % lp, "v_readfirstlane_b32 s%d, v%d" % (sTAG, vTAG), "s_cmp_eq_u32 s%d, 0" % sTAG, "s_cbranch_scc1 %s_r" % lp, "%s_k:" % lp)
    def cold():
        a("%s_r:" % lp); spin_guard(a, lp + "_k")
        a("s_sleep 4", "buffer_load_dword v%d, off, %s, 0 sc1" % (vTAG, srd(sDBG)), "s_waitcnt vmcnt(0)", "s_branch %s" % lp)
    colds.append(cold)


FULL = [1]


def flag_store(a, soff, level, track=True, word=False):
    if word or (level and not FULL[0]):
        a("s_mov_b64 exec, 1")
        x = "buffer_store_dword v%d, off, %s, s%d offset:%d sc1" % (vTAG, srd(sWS), soff, 4 * (level - 1))
    else:
        if level == 0: a("v_mov_b64 %s, 0" % vr(vT, 2))
        if level == 2: a("v_mov_b32 v%d, v%d" % (vT, vTAG), "v_mov_b32 v%d, v%d" % (vT + 1, vTAG))
        a("s_mov_b64 exec, 0xff")
        x = "buffer_store_dwordx4 %s, v%d, %s, s%d offen sc1" % (vr(vTAG if level == 1 else vT, 4), vL16, srd(sWS), soff)
    if track: a.vmem(x, "flag")
    else: a(x)
    a("s_mov_b64 exec, -1")


def poll(a, va, colds, sleep=2, off=0):
    x = "buffer_load_dword v%d, v%d, %s, 0 offen offset:%d sc1" % (vPD, va, srd(sWS), off)
    def issue(): a.vmem(x, "poll")
    def check(mask=None):
        lp = a.uid("poll")
        a.wait(vm="poll")
        a("%s:" % lp, "v_cmp_ne_u32 vcc, s%d, v%d" % (sTAG, vPD))
        if mask is None: a("s_cbranch_vccnz %s_r" % lp)
        else: a("s_and_b32 vcc_lo, vcc_lo, %s" % mask, "s_cbranch_scc1 %s_r" % lp)
        a("%s_k:" % lp)
        def cold():
            a("%s_r:" % lp); spin_guard(a, lp + "_k")
            if sleep: a("s_sleep %d" % sleep)
            a(x, "s_waitcnt vmcnt(0)", "s_branch %s" % lp)
        colds.append(cold)
    return issue, check


def fused_setup(a):
    L = vLANE
    a("s_lshr_b32 s%d, s%d, 1" % (sT0, sHEAD), "s_mul_i32 s%d, s%d, 36" % (sT0, sT0), "s_and_b32 s%d, s%d, 1" % (sT1, sHEAD),
      "s_lshl_b32 s%d, s%d, 4" % (sT1, sT1), "s_add_u32 s%d, s%d, s%d" % (sT0, sT0, sT1),
      "v_min_u32 v%d, 11, v%d" % (vL16, L),
      "v_and_b32 v%d, 1, v%d" % (vPA, vL16), "v_mul_u32_u24 v%d, 19, v%d" % (vPA, vPA), "v_add_u32 v%d, s%d, v%d" % (vPA, sT0, vPA),
      "v_lshrrev_b32 v%d, 2, v%d" % (vL8, vL16), "v_sub_u32 v%d, 2, v%d" % (vL8, vL8), "v_mul_u32_u24 v%d, 576, v%d" % (vL8, vL8),
      "v_add_u32 v%d, v%d, v%d" % (vPA, vPA, vL8), "v_lshrrev_b32 v%d, 7, v%d" % (vPA, vPA),
      "s_lshl1_add_u32 s%d, s%d, s%d" % (sT0, sP, sKH), "s_lshr_b32 s%d, s%d, 1" % (sT1, sP), "s_lshl1_add_u32 s%d, s%d, s%d" % (sT1, sQI, sT1),
      "v_and_b32 v%d, 2, v%d" % (vL16, vL16), "v_lshl_add_u32 v%d, v%d, 2, s%d" % (vL16, vL16, sT0), "v_mov_b32 v%d, s%d" % (vL8, sT1),
      "v_cmp_le_u32 vcc, 8, v%d" % L, "v_lshlrev_b32 v%d, 11, v%d" % (vPA, vPA), "v_add_u32 v%d, %d, v%d" % (vPA, F01, vPA),
      "v_cndmask_b32 v%d, v%d, v%d, vcc" % (vL16, vL16, vL8),
      "v_lshl_add_u32 v%d, v%d, 7, v%d" % (vPA, vL16, vPA),
      "v_lshlrev_b32 v%d, 4, v%d" % (vL16, L), "v_lshlrev_b32 v%d, 3, v%d" % (vL8, L), "v_add_u32 v%d, 4096, v%d" % (vL8, vL8))
    late_setup(a); p3_addr(a, vP3)
    a("v_min_u32 v%d, 17, v%d" % (vPW, L), "v_lshlrev_b32 v%d, 2, v%d" % (vPW, vPW), "v_add_u32 v%d, %d, v%d" % (vPW, FW, vPW),
      "s_lshl2_add_u32 s%d, s%d, s%d" % (sT0, sXCD, sRT), "s_lshl2_add_u32 s%d, s%d, s%d" % (sT0, sT0, sKQ),
      "s_lshl_b32 s%d, s%d, 10" % (sT0, sT0), "s_add_u32 s%d, s%d, %d" % (sT0, sT0, FO),
      "v_min_u32 v%d, 7, v%d" % (vPO, L), "v_lshl_add_u32 v%d, v%d, 7, s%d" % (vPO, vPO, sT0),
      "s_lshl2_add_u32 s%d, s%d, s%d" % (sT0, sQI, sP), "s_lshl_b32 s%d, s%d, 5" % (sT0, sT0),
      "s_add_u32 s%d, s%d, s%d" % (sT0, sT0, sHEAD), "s_lshl_b32 s%d, s%d, 7" % (sT0, sT0),
      "s_add_u32 s%d, s%d, %d" % (sPF, sT0, FO))


def tlb_touch(a, cfg):
    l = a.uid("tlb")
    a("s_cmp_lg_u32 s%d, 7" % sWAVE, "s_cbranch_scc1 %s" % l,
      "v_and_b32 v2, 7, v%d" % vLANE, "v_mul_u32_u24 v2, %d, v2" % (4 * PITCH), "v_add_u32 v2, %d, v2" % (PITCH - 128),
      "v_and_b32 v3, 3, v%d" % vLANE, "v_mul_u32_u24 v3, %d, v3" % (16 * OTILE), "v_add_u32 v3, %d, v3" % (OBASE + OTILE - 128),
      "v_cmp_gt_u32 vcc, 8, v%d" % vLANE, "v_mov_b32 v4, %d" % (FW + 1024), "v_cmp_gt_u32 s[%d:%d], 12, v%d" % (sSAVE, sSAVE + 1, vLANE),
      "v_cndmask_b32 v2, v3, v2, vcc", "s_nop 0", "v_cndmask_b32 v2, v4, v2, s[%d:%d]" % (sSAVE, sSAVE + 1),
      "buffer_load_dword v44, v2, %s, 0 offen" % srd(sWS),
      "v_and_b32 v2, 3, v%d" % vLANE, "v_mul_u32_u24 v2, %d, v2" % (786432 - 128),
      "buffer_load_dword v45, v2, %s, 0 offen" % srd(sOUT), "%s:" % l)


vWW, vWC = 158, 159


def word_setup(a):
    a("s_and_b32 s%d, s%d, 1" % (sT0, sHEAD), "s_mul_i32 s%d, s%d, %d" % (sT0, sT0, (-2052) & 0xffffffff), "s_add_u32 s%d, s%d, 2052" % (sT0, sT0),
      "s_lshl3_add_u32 s%d, s%d, s%d" % (sT1, sWAVE, sT0), "v_mov_b32 v%d, s%d" % (vWW, sT1),
      "s_lshl_b32 s%d, s%d, 5" % (sT1, sKH), "s_add_u32 s%d, s%d, s%d" % (sT1, sT1, sT0),
      "v_and_b32 v%d, 3, v%d" % (vWC, vLANE), "v_lshl_add_u32 v%d, v%d, 3, s%d" % (vWC, vWC, sT1))


def word_set(a, stage, track=True, twice=False):
    a("s_mov_b64 exec, 1")
    x = "ds_write_b32 v%d, v0 offset:%d" % (vWW, 64 * stage)
    if twice: x = "ds_write2_b32 v%d, v0, v0 offset0:%d offset1:%d" % (vWW, 16 * stage, 16 * stage + 16)
    if track: a.lds(x)
    else: a(x)
    a("s_mov_b64 exec, -1")


def word_check(a, offs, colds, t=vT):
    xs = ["ds_read_b32 v%d, v%d offset:%d" % (t + k, vWC, o) for k, o in enumerate(offs)]
    def issue():
        for x in xs: a.lds(x, "word")
    def check(track=True):
        l = a.uid("word")
        if track: a.wait(lg="word")
        a("%s:" % l)
        for k in range(len(offs)): a("v_cmp_ne_u32 vcc, s%d, v%d" % (sTAG, t + k), "s_cbranch_vccnz %s_r" % l)
        a("%s_k:" % l)
        def cold():
            a("%s_r:" % l); spin_guard(a, l + "_k"); a("s_sleep 1", xs, "s_waitcnt lgkmcnt(0)", "s_branch %s" % l)
        colds.append(cold)
    return issue, check, xs


def gen_fused(cfg):
    NOPK[:] = cfg["nopk"]; FULL[0] = cfg["full"]; RES4[0] = cfg["res4"]; RSLEEP[0] = cfg["rsleep"]; ONE[0] = cfg["one"]; BIAS[0] = cfg["bias"]
    SHIFT[0] = struct.unpack("<I", struct.pack("<f", cfg["shift"]))[0] >> 16
    a = Asm()
    name = NAME + "_kernel"
    head(a, name)
    prologue(a, "L_exit"); a(";STAMP 0")
    a("s_mov_b32 s%d, 0" % sSPIN, "s_mov_b32 s%d, 0x%x" % (sF1, OOB))
    a("s_mov_b32 s%d, 0" % sIDLE)
    p1_roles(a, "L_idle")
    def setup():
        a("L_setup:")
        p2_setup(a); p3_setup(a); fused_setup(a)
        a("s_cmp_lg_u32 s%d, 0" % sIDLE, "s_cbranch_scc1 L_idle2")
        a("s_lshl_b32 s%d, s%d, 11" % (sT0, sLINE), "s_lshl_b32 s%d, s%d, 7" % (sT1, sG), "s_add_u32 s%d, s%d, s%d" % (sT0, sT0, sT1),
          "s_add_u32 s%d, s%d, %d" % (sT0, sT0, F01),
          "s_cmp_eq_u32 s%d, 0" % sWAVE, "s_cselect_b32 s%d, s%d, s%d" % (sF1, sT0, sF1))
    p1_head(a, cfg, {"setup": setup, "setup2": lambda: flag_store(a, sF1, 0)})
    a("s_cmp_ge_u32 s%d, 9" % sLINE, "s_cbranch_scc1 L_p1v", "s_branch L_p1q")
    vm_head = list(a.vm)
    a("L_idle:"); a.vm = []; a.lg = []
    a("s_waitcnt lgkmcnt(0)")
    a("s_cmp_lg_u32 s2, %d" % MASTER, "s_cbranch_scc1 L_nomaster", "s_cmp_lg_u32 s%d, 0" % sWAVE, "s_cbranch_scc1 L_nomaster",
      "s_mov_b32 s%d, %d" % (sT0, FEPOCH), "buffer_load_dword v2, off, %s, s%d sc1" % (srd(sWS), sT0), "s_waitcnt vmcnt(0)",
      "v_readfirstlane_b32 s%d, v2" % sT1, "s_mul_i32 s%d, s%d, 0x41c64e6d" % (sT1, sT1), "s_add_u32 s%d, s%d, 12345" % (sT1, sT1),
      "s_cmp_eq_u32 s%d, 0" % sT1, "s_cselect_b32 s%d, 12345, s%d" % (sT1, sT1), "v_mov_b32 v2, s%d" % sT1, "s_mov_b64 exec, 1",
      "buffer_store_dword v2, off, %s, 0 sc1" % srd(sDBG), "buffer_store_dword v2, off, %s, s%d sc1" % (srd(sWS), sT0), "s_mov_b64 exec, -1",
      "L_nomaster:")
    if cfg["pf_code"]:
        a("s_getpc_b64 s[%d:%d]" % (sRET, sRET + 1), "L_pc:", "s_sub_u32 s%d, s%d, L_pc-%s" % (sRET, sRET, name), "s_subb_u32 s%d, s%d, 0" % (sRET + 1, sRET + 1),
          "s_cmp_lt_u32 s%d, 6" % sWAVE, "s_cbranch_scc1 L_nopf",
          "s_and_b32 s%d, s%d, 3" % (sT0, sJ), "v_and_b32 v2, 127, v0", "v_lshl_add_u32 v2, v2, 2, s%d" % sT0,
          "v_lshlrev_b32 v2, 7, v2", "v_min_u32 v2, L_pfend-%s-4, v2" % name, "global_load_dword v47, v2, s[%d:%d]" % (sRET, sRET + 1), "L_nopf:")
    if cfg["pf_x"]:
        l = a.uid("pf")
        a("s_and_b32 s%d, s%d, 3" % (sT0, sJ), "s_cmp_ge_u32 s%d, 4" % sWAVE, "s_cbranch_scc1 %s" % l,
          "s_lshr_b32 s%d, s%d, 1" % (sT1, sWAVE), "s_lshl1_add_u32 s%d, s%d, s%d" % (sT1, sT0, sT1),
          "s_lshr_b32 s%d, s%d, 2" % (sT2, sXCD), "s_mul_i32 s%d, s%d, 7" % (sT2, sT2), "s_and_b32 s%d, s%d, 2" % (sT3, sXCD),
          "s_lshl1_add_u32 s%d, s%d, s%d" % (sT3, sT3, sT1),
          "s_sub_u32 s%d, s%d, 5" % (sT4, sT3), "s_add_u32 s%d, s%d, 4" % (sT3, sT3), "s_cmp_lt_u32 s%d, 5" % sT1,
          "s_cselect_b32 s%d, 3, s%d" % (sT4, sT4), "s_cselect_b32 s%d, s%d, 8" % (sT3, sT3), "s_add_u32 s%d, s%d, s%d" % (sT2, sT2, sT4),
          "s_mul_i32 s%d, s%d, 3" % (sT4, sT2), "s_add_u32 s%d, s%d, s%d" % (sT3, sT3, sT4))
        rot_die(a, cfg, sT3, sT4)
        mod9(a, sT3, sT4)
        a("s_mul_i32 s%d, s%d, %d" % (sT3, sT3, 64 * 3456), "s_and_b32 s%d, s%d, 1" % (sT4, sWAVE), "s_lshl1_add_u32 s%d, s%d, s%d" % (sT2, sT2, sT4),
          "s_lshl_b32 s%d, s%d, 7" % (sT2, sT2), "s_add_u32 s%d, s%d, s%d" % (sT3, sT3, sT2),
          "v_mul_u32_u24 v2, 3456, v%d" % vLANE, "buffer_load_dword v47, v2, %s, s%d offen" % (srd(sW), sT3), "%s:" % l)
        a("s_barrier",
          "s_and_b32 s%d, s%d, 6" % (sT1, sXCD), "s_lshl1_add_u32 s%d, s%d, s%d" % (sT0, sT1, sT0), "s_and_b32 s%d, s%d, 1" % (sT1, sXCD),
          "s_lshl4_add_u32 s%d, s%d, s%d" % (sT0, sT1, sT0), "s_add_u32 s%d, s%d, 32" % (sT0, sT0), "s_mul_i32 s%d, s%d, %d" % (sT0, sT0, 32 * 1152),
          "s_cmp_ge_u32 s%d, 5" % sWAVE, "s_cselect_b32 s%d, 0x40000000, s%d" % (sT0, sT0),
          "v_min_u32 v2, 287, v0", "v_lshlrev_b32 v2, 7, v2", "buffer_load_dword v47, v2, %s, s%d offen" % (srd(sX), sT0))
    a("s_mov_b64 %s, %s" % (sr(sW, 2), sr(sWO, 2)), "s_mov_b32 s%d, 663552" % (sW + 2))
    a("s_mov_b32 s%d, 1" % sIDLE, "s_branch L_setup")
    def idle2():
      tag_issue(a); p2_init(a)
      wo_role(a, "L_nowo")
      a("s_lshl_b32 s%d, s%d, 2" % (sT0, sLINE), "s_add_u32 s%d, s%d, %d" % (sT0, sT0, FW - 4), "s_cmp_eq_u32 s%d, 0" % sWAVE, "s_cselect_b32 s%d, s%d, s%d" % (sF1, sT0, sF1))
      a("L_nowo:"); a.vm = ["tag"]; a.lg = []
    sF, sPo = cfg["flag_step"], cfg["poll_step"]
    colds = []
    def first_loads(n):
        l = a.uid("fl")
        keep = list(a.vm)
        a("s_cmp_%s_u32 s%d, 3" % (("eq", "lg")[n], sP), "s_cbranch_scc1 %s" % l)
        for k in range(3): kv_piece(a, 0, k)
        if n: a("%s:" % l)
        a("s_cmp_%s_u32 s%d, 2" % (("ge", "lt")[n], sP), "s_cbranch_scc1 %s_e" % l)
        for k in range(3, 5): kv_piece(a, 0, k)
        if n == 0:
            a("s_branch %s_e" % l, "%s:" % l); q_dma(a)
        a("%s_e:" % l)
        a.vm = keep
    for isv in (False, True):
        if cfg["align"]: a(".p2align 12")
        a("L_p1v:" if isv else "L_p1q:")
        a.vm = list(vm_head); a.lg = []
        hooks = {}
        hooks[("side", cfg["tag_step"])] = [lambda: tag_issue(a)]
        hooks[("step", cfg["tagc"])] = lambda: tag_check(a, colds)
        hooks[("waitfor", sF)] = [("st", 0)]
        hooks[(cfg["flag_pos"], sF)] = [lambda: flag_store(a, sF1, 1)]
        pi, pc = poll(a, vPA, colds, sleep=cfg["e_sleep"])
        tmp = Asm(); p2_init(tmp)
        ini = [x.strip() for x in tmp.l]
        st0, nst = cfg["init_steps"]
        n = -(-len(ini) // nst)
        for k in range(nst): hooks.setdefault(("side", st0 + k), []).extend((lambda x=x: a(x)) for x in ini[k * n:(k + 1) * n])
        if sPo < 18: hooks.setdefault(("side", sPo), []).insert(0, pi)
        else: hooks["pre_epi1"] = pi
        cs = cfg["check_step"]
        hooks[("step", cs)] = lambda: (pc(), a(";STAMP 8"))
        hooks[("bar", cs + 1)] = lambda: (first_loads(0), a(";STAMP 1"))
        hooks["pre_epi1"] = lambda: a(";STAMP 2")
        hooks["mid_epi1"] = lambda stores: (a("s_add_u32 s%d, s%d, %d" % (sST2, sST, 256 if isv else 2048)), first_loads(1))
        p1_body(a, isv, cfg, hooks)
        if cfg["near"]:
            a("s_cmp_lg_u32 s%d, 0" % sKH, "s_cbranch_scc1 L_attn1", "s_branch L_attn0")
            while colds: colds.pop()()
        else: a("s_branch L_attn")
    def idle_rest():
        a("L_idle2:"); a.vm = []; a.lg = []
        idle2()
        pi, pc = poll(a, vPA, colds, sleep=cfg["idle_sleep"])
        tag_check(a, colds); a(";STAMP 16")
        if cfg["canary"]:
            a("s_mov_b64 exec, 0x100"); pi(); pc(); a("s_mov_b64 exec, -1")
            pi, pc = poll(a, vPA, colds, sleep=cfg["e_sleep"])
        pi(); pc(); a(";STAMP 8", "s_barrier"); first_loads(0); a("s_barrier"); first_loads(1)
        a("s_mov_b32 s%d, 0x40000000" % sST, "s_mov_b32 s%d, 0x40000000" % sST2, "v_mov_b32 v%d, 0" % vSTA)
        a("s_branch L_attn")
    if cfg["align"]: a(".p2align 12")
    a("L_attn:", ";STAMP 19", "s_cmp_lg_u32 s%d, 0" % sKH, "s_cbranch_scc1 L_attn1", "L_attn0:")
    slows = []
    def slow(part, back, done):
        lab = a.uid("slowp"); slows.append((part, lab, back, done)); a("s_cbranch_vccnz %s" % lab)
    skip = cfg.get("skip", "")
    st1 = ["buffer_store_dwordx4 %s, v%d, %s, s%d offen sc1" % (vr(vACC[1] + 8 * n, 4), vSTA, srd(sWS), (sST, sST2)[n]) for n in range(2)]
    def run_colds(cs):
        k = 0
        while k < len(cs):
            cs[k](); k += 1

    def attn(cls):
        colds = []
        cf = dict(cfg); cf.update(cfg.get("XY"[cls], {}))
        cf["prio"] = dict(cf["prio"])
        if cls == 0: cf["prio"].update(cf["priox"])
        cf["priox"] = {}
        a.vm = [("kv", 0)]; a.lg = []
        ev = {}
        def at(k, f, name=None):
            if name and name in skip.split(): return
            g = ev.get(k)
            ev[k] = f if g is None else (lambda: (g(), f()))
        for k in range(2): at(cf["st1"][k], lambda k=k: a.vmem(st1[k], "st1"))
        def b0():
            l = a.uid("b0")
            q_addr(a)
            a("s_setprio 3", "s_waitcnt vmcnt(5)", "s_cmp_eq_u32 s%d, 3" % sP, "s_cbranch_scc1 %s" % l, "s_waitcnt vmcnt(2)",
              "s_cmp_eq_u32 s%d, 2" % sP, "s_cbranch_scc1 %s" % l, "s_waitcnt vmcnt(0)", "%s:" % l, ";STAMP 4", "s_barrier", ";STAMP 6")
            q_read(a)
            if BIAS[0]: brd()
        at(("pre", 0), b0)
        brd, binit = o_bias(a, cls)
        if BIAS[0]: at("fill", binit)
        def stage(st, pos_set, pos_rd, pos_chk):
            wi, wc, xs = word_check(a, [64 * st], colds)
            at(pos_set, lambda: (a.wait(vm=("kv", st)), word_set(a, st)))
            at(pos_rd, wi); at(pos_chk, wc)
        def spread(pos, st):
            if len(pos) == 2: pos = [pos[0]] * 3 + [pos[1]] * 2
            for k, p_ in enumerate(pos): at(p_, lambda k=k: kv_piece(a, st, k))
        spread(cf["kv1"], 1)
        stage(0, cf["w0"][0], cf["w0"][1], ("prev", 2))
        stage(1, cf["w1"][0], cf["w1"][1], ("pre", 4))
        at(cf["f1"][0], lambda: (a.wait(vm="st1"), word_set(a, CHUNK // 64)))
        if cls == 0:
            wi, wc, xs = word_check(a, [CHUNK, CHUNK + 32], colds)
            at(cf["f1"][1], wi); at(cf["f1"][2], lambda wc=wc: (wc(), flag_store(a, sF1, 2, word=True)))
        pi, pc = poll(a, vPA, colds, off=4)
        at(cf["pollL"][0], pi)
        at(cf["pollL"][1], lambda: (pc(), a(";STAMP 9"), q_load(a, 1)))
        spread(cf["kv2"], 2)
        ev["ql"] = lambda: a.wait(vm=("q", 1))
        stage(2, cf["w2"][0], cf["w2"][1], ("pre", 8))
        spread(cf["kv3"], 3)
        assert cf["w3"][0] >= (13, 0) and cf["nsolo"] == 6
        stage(3, cf["w3"][0], cf["w3"][1], ("pre", 12))
        def meet():
            if cls == 0: send_partial(a, 0)
            else:
                a.wait(vm="poison"); finalize(a, 0, slow, colds); a.lg = []
            a("v_subrev_u32 v%d, %d, v%d" % (vSA, LDS_SPARE - 12 * CHUNK, vSA))
            word_set(a, 4)
        at((25, 3), meet)
        ofe = [(vO[0], vQ[0]), (vS[0], vS[0] + 16)]
        ofl = [(vS[1], vK + 4), (vS[1] + 16, vK + 6)]
        if cls == 1:
            at(cf["poison"][1], lambda: (poison(a, (0, 1) if cf["emark"] else (1,)), flag_store(a, sPF, 0)))
            at(cf["poison"][2], lambda: (cf["emark"] or a.wait(vm="all"), flag_store(a, sPF, 1)))
            at(cf["hint"], lambda: flag_store(a, sPF, 2))
            at((31, 5), lambda: [a.lds(x) for x in fin_reads(1)])
            p2_main(a, cf, ev)
            a(";STAMP 7", "v_subrev_u32 v%d, 32, v%d" % (vWC, vWC))
            if cf["hint"] == (32, 0): flag_store(a, sPF, 2); a("s_nop 2")
            else: a("s_nop 5")
            finalize(a, 1, slow, colds, prefetched=True, before_store=(lambda: word_set(a, 7)) if cf["w7early"] else None)
            if not cf["w7early"]: word_set(a, 7)
            if cf["hint"] == (33, 0): flag_store(a, sPF, 2)
            a(";STAMP 10"); a.lg = []
            wi, wc, xs = word_check(a, [384], colds)
            wi(); wc()
            a("s_cmp_eq_u32 s%d, 0" % sKQ, "s_cbranch_scc1 L_ysh")
            for shared in range(2):
                if shared: a("L_ysh:")
                p3_finish(a, 0, 1, (1, 0), vS[0], cf["fpk"][0], colds)(shared)
                a(";STAMP 12")
                for i in (1, 2): a("s_add_u32 s%d, s%d, %d" % (sOCOL + i, sOCOL + i, 1024 * 1152))
                a("s_setprio %d" % shared, "s_barrier")
                p3_finish(a, 1, 1, (1,), vWO + 2, cf["fpk"][1], colds)(shared)
                a(";STAMP 15", ";STAMPWAIT", ";STAMP 5", ";STAMPEND", "s_endpgm")
        else:
            pi2, pc2 = poll(a, vPW, colds)
            at(cf["wo"][0], pi2, "wo"); at(cf["wo"][1], pc2, "wo")
            for k in range(25):
                n = cf["wo"][3]
                at((cf["wo"][2] + k // len(n), n[k % len(n)]), lambda k=k: wo_load(a, [k // 5], vL16, vL8, only=k % 5), "wo")
            sOM = 35
            at(cf["w3"][0], lambda: a("v_xor_b32 v%d, 0x100, v%d" % (vOA2, vOA), "v_xor_b32 v%d, 64, v%d" % (vOB2, vOB),
                                      ["s_add_u32 s%d, s%d, %d" % (sOM + i, sOL + i, 32 * OTILE) for i in range(3)],
                                      "s_add_u32 s%d, s%d, %d" % (sOCOL, sOCOL, 1024 * 1152)))
            pi3, pc3 = poll(a, vPO, colds)
            G5 = (4, 0, 1, 2, 3)
            at(cf["opoll"][0], pi3)
            at(cf["opoll"][1], lambda: (pc3(), o_load(a, ofe, [(0, g) for g in G5], sOL, "oe")))
            assert cf["opoll"][2] >= (31, 0)
            at(cf["opoll"][2], lambda: o_load(a, ofe, [(1, g) for g in G5], sOL, "oe"))
            wi, wc, xs = word_check(a, [256, 288], colds, t=vQ[0] + 2)
            at((31, 3), wi)
            pi4, pc4 = poll(a, vPO, colds, sleep=cf["h_sleep"], off=4)
            two = cf["two"]
            S1 = [(hh, g) for hh in range(2) for g in (0, 1)]
            S2 = [(hh, g) for hh in range(2) for g in ((4, 2, 3) if two else G5)]
            if two: at(cf["two"], pi4)
            p2_main(a, cf, ev)
            a(";STAMP 7")
            wc(); a("s_nop 7")
            send_partial(a, 1)
            sG1, sG2 = 38, 39
            c0 = c1 = b0_ = b1_ = []
            if cf["emark"]:
                c0, b0_ = o_check(a, ofe, [(0, g) for g in G5], sOL, colds)
                c1, b1_ = o_check(a, ofe, [(1, g) for g in G5], sOL, colds)
            a.wait(vm="all")
            a(c0, b0_)
            if two:
                a("s_mov_b32 s%d, 0" % sG1, "v_cmp_ne_u32 vcc, s%d, v%d" % (sTAG, vPD), "s_and_b32 vcc_lo, vcc_lo, 15", "s_cbranch_scc1 L_xw", "s_mov_b32 s%d, 1" % sG1)
                o_load(a, ofl, S1, sOM, "o1")
            a("L_xw:", "ds_read_b32 v%d, v%d offset:480" % (vT, vWW), "s_waitcnt lgkmcnt(0)",
              "v_cmp_ne_u32 vcc, s%d, v%d" % (sTAG, vT), "s_cbranch_vccnz L_xw2", "L_xw3:", ";STAMP 10")
            colds.append(lambda: (a("L_xw2:"), spin_guard(a, "L_xw3"), a("s_branch L_xw")))
            a.vm = []; pi4()
            pend = []
            p3_half(a, ofe, 0, G5, True, 0, pend, c1)
            a(b1_)
            p3_half(a, ofe, 1, G5, True, 0, pend)
            p3_flush(a, pend)
            word_set(a, 6)
            a(";STAMP 11")
            if two:
                a("s_cmp_eq_u32 s%d, 0" % sG1, "s_cbranch_scc1 L_g1", "s_waitcnt vmcnt(0)", "L_g1k:")
                def g1():
                    a("L_g1:"); a.vm = ["poll"]; pc4("15"); o_load(a, ofl, S1, sOM, "o1"); a("s_branch L_g1k")
                colds.append(g1)
                a("s_mov_b32 s%d, 1" % sG2, "v_cmp_ne_u32 vcc, s%d, v%d" % (sTAG, vPD), "s_cbranch_vccnz L_g2", ";STAMP 13")
                a.vm = []; o_load(a, ofl, S2, sOM, "o2")
                a("s_waitcnt vmcnt(8)", "L_g2k:")
                colds.append(lambda: (a("L_g2:", "s_mov_b32 s%d, 0" % sG2), pi4(), a("s_waitcnt vmcnt(1)", "s_branch L_g2k")))
                c, b = o_check(a, ofl, S1, sOM, colds)
                a(c, b)
                for hh in range(2): p3_half(a, ofl, hh, (0, 1), True, None, pend)
                a("s_cmp_eq_u32 s%d, 0" % sG2, "s_cbranch_scc1 L_g3", "L_g3k:")
                def g3():
                    keep = list(a.vm)
                    a("L_g3:"); a.vm = ["poll"]; pc4(); a(";STAMP 13"); o_load(a, ofl, S2, sOM, "o2"); a("s_branch L_g3k")
                colds.append(g3)
            else:
                pc4(); a(";STAMP 13")
                o_load(a, ofl, S2, sOM, "o2")
            gs = [g for hh, g in S2 if hh == 0]
            c0, b0_ = o_check(a, ofl, [(0, g) for g in gs], sOM, colds, S2 if cf["both"] else None)
            c1, b1_ = o_check(a, ofl, [(1, g) for g in gs], sOM, colds)
            a.wait(vm=("o2", 0)); a(";STAMP 12", c0, b0_)
            nside = cf["c1lag"]
            if two and cf["pipe3"]: p3_last(a, ofl, pend, [None] * nside + ["s_waitcnt vmcnt(0)"] + c1, b1_)
            else:
                p3_half(a, ofl, 0, gs, not two, 1, pend, [None] * nside + ["s_waitcnt vmcnt(0)"] + c1)
                a(b1_)
                p3_half(a, ofl, 1, gs, not two, 1, pend)
            p3_flush(a, pend)
            a(";STAMP 14", "s_waitcnt lgkmcnt(0)", "s_barrier")
            p3_finish(a, 1, 0, (0,), vWO + 2, cf["fpk"][1], colds)(0)
            a("L_end:", ";STAMP 15", ";STAMPWAIT", ";STAMP 5", ";STAMPEND", "L_exit:", "s_endpgm")
        run_colds(colds)

    attn(0)
    if cfg["align"]: a(".p2align 12")
    a("L_attn1:")
    attn(1)
    colds.append(idle_rest)
    run_colds(colds)
    a("L_pfend:")
    for part, lab, back, done in slows: slow_path(a, part, lab, back, done, lambda: None)
    hdr = ["; @launch grid=(256,1,1) block=(512,1,1) lds=%d" % LDS_TOTAL]
    return finish(a, hdr, [name])


def finish(a, hdr, names):
    errs = lint(a.l)
    for e in errs: print("HAZARD", e, file=sys.stderr)
    out = hdr + ['.amdgcn_target "amdgcn-amd-amdhsa--gfx950"', ".text"] + a.l + ['.section .rodata,"a"']
    for n in names: out += [".p2align 6", kd(n)]
    return "\n".join(out) + "\n"


if __name__ == "__main__":
    mode = sys.argv[1] if len(sys.argv) > 1 else "split"
    out = sys.argv[2] if len(sys.argv) > 2 else "cdna_kernels/%s.s" % NAME
    cfg = dict(DEF)
    for kv in sys.argv[3:]:
        k, v = kv.split("=", 1); cfg[k] = eval(v)
    txt = {"fused": gen_fused}[mode](cfg)
    open(out, "w").write(txt)
    print("wrote", out, len(txt.split("\n")), "lines")
```

```python
import sys, struct, math
from hazard import lint

NAME = "standalone__mha_block__prompt"

PITCH = 221184 + 128
SEC = 73728
OBASE = 32 * PITCH
OTILE = 36864 + 128
WOBASE = OBASE + 64 * OTILE
FBASE = WOBASE + 36 * 4 * 4608
F01 = FBASE
FRND = 27 * 8 * 128
FW = FBASE + 57344
FEPOCH = FW + 512
FO = FBASE + 65536
WS_SIZE = FO + 131072
CHUNK = 4864
LDS_SPARE = 32 * CHUNK
LDS_TOTAL = 163840
SCALE = struct.unpack("<I", struct.pack("<f", math.log2(math.e) / math.sqrt(18.0)))[0]

sX, sW, sWO, sOUT, sWS, sDBG = 4, 8, 12, 16, 20, 24
sWAVE, sXCD, sJ = 28, 29, 30
sTAG = 31
sLINE, sG, sSEC = 32, 33, 34
sXOFF, sWOFF, sM0X, sSCALE, sM0W, sST = 35, 36, 37, 38, 39, 40
sHEAD, sQI, sKH, sP = 41, 42, 43, 44
sVMASK = 46
sDMASK = 48
sCH, sQOFF = 50, 51
sCM = 45
sST2 = 39
sRT, sCB, sKQ, sRH = 52, 53, 54, 55
sFIVE = 56
sT0, sT1, sT2, sT3, sT4, sT5 = 60, 61, 62, 63, 64, 65
sRET = 66
sSPIN = 68
sWOF = 70
sOCOL = 75
sLOOP = 79
sSHF, sC272, sC80 = 69, 82, 59
sSAVE = 80

def srd(s): return "s[%d:%d]" % (s, s + 3)
def vr(a, n=1): return "v%d" % a if n == 1 else "v[%d:%d]" % (a, a + n - 1)
def sr(a, n=1): return "s%d" % a if n == 1 else "s[%d:%d]" % (a, a + n - 1)

vLANE = 1
vQ = [2, 8]
vIDX = 14
vAK, vAR, vAV = 15, 16, 17
vDMA = 18
vQA, vQR = 22, 23
vT = 24
vSA, vSB, vOA, vOB = 26, 27, 28, 29
vP3 = 30
vPW, vPO = 36, 37
vPA, vPD, vL16, vL8 = 38, 39, 40, 41
vTAG = 0
vAK1 = 47
vXS = 8
vWS = 9
vXR = 11
vWR = 42
vSTA = 46
vACC = [48, 64]
vXF = [80, 96]
vWF = 112
vWO = 42
vV = 132
vK = 148
vKR = 156
vO = [160, 176]
vS = [192, 224]


class Asm:
    def __init__(self):
        self.l = []
        self.vm = []
        self.lg = []
        self.n = 0
        self.clock = 0
        self.lgt = []
        self.age = None

    def __call__(self, *lines):
        for s in lines:
            if isinstance(s, (list, tuple)):
                self(*s)
            elif s.endswith(":") or s.startswith((".", ";")):
                self.l.append(s)
            else:
                self.l.append("    " + s)

    def uid(self, p):
        self.n += 1
        return "L_%s_%d" % (p, self.n)

    def vmem(self, s, tag):
        self(s); self.vm.append(tag)
        assert len(self.vm) <= 63

    def lds(self, s, tag=None):
        self(s); self.lg.append(tag); self.lgt.append(self.clock)

    def _cnt(self, q, tags):
        if not isinstance(tags, (list, set)): tags = [tags]
        last = max([k for k, t in enumerate(q) if t in tags], default=-1)
        return None if last < 0 else len(q) - 1 - last

    def wait(self, vm=None, lg=None):
        parts = []
        if vm is not None:
            n = 0 if vm == "all" else self._cnt(self.vm, vm)
            if n is not None:
                parts.append("vmcnt(%d)" % n); self.vm = self.vm[len(self.vm) - n:]
        if lg is not None:
            n = 0 if lg == "all" else self._cnt(self.lg, lg)
            if n is not None:
                if self.age is not None:
                    while n > 0 and self.clock - self.lgt[len(self.lgt) - n] >= self.age: n -= 1
                n = min(n, 15)
                parts.append("lgkmcnt(%d)" % n); self.lg = self.lg[len(self.lg) - n:]
        if parts: self("s_waitcnt " + " ".join(parts))


def prologue(a, endlabel):
    a(";STAMPINIT", ";STAMP 3", "s_cmp_ge_u32 s2, 256", "s_cbranch_scc1 %s" % endlabel)
    for k, s in enumerate((sX, sW, sWO, sOUT, sDBG, sWS)):
        a("s_load_dwordx2 %s, s[0:1], %d" % (sr(s, 2), 8 * k))
    for s, n in ((sX, 2359296), (sW, 1990656), (sWO, 663552), (sOUT, 2359296), (sDBG, 256), (sWS, WS_SIZE)):
        a("s_mov_b32 s%d, %d" % (s + 2, n), "s_mov_b32 s%d, 0x00020000" % (s + 3))
    a("v_lshrrev_b32 v2, 6, v0", "v_and_b32 v%d, 63, v0" % vLANE, "v_readfirstlane_b32 s%d, v2" % sWAVE,
      "s_and_b32 s%d, s2, 7" % sXCD, "s_lshr_b32 s%d, s2, 3" % sJ)


def p1_roles(a, idle):
    a("s_cmp_ge_u32 s%d, 28" % sJ, "s_cbranch_scc1 %s" % idle,
      "s_lshr_b32 s%d, s%d, 1" % (sT1, sXCD), "s_mul_i32 s%d, s%d, 28" % (sT1, sT1), "s_add_u32 s%d, s%d, s%d" % (sT1, sT1, sJ),
      "s_lshr_b32 s%d, s%d, 3" % (sLINE, sT1), "s_and_b32 s%d, s%d, 7" % (sT5, sT1),
      "s_and_b32 s%d, s%d, 1" % (sG, sXCD), "s_lshl3_add_u32 s%d, s%d, s%d" % (sG, sG, sT5))


XBASE = 98304
def xslot(s): return XBASE + 8192 * (s % 8)
def wslot(s): return 16384 * (s % 6)


def mod9(a, d, t):
    a("s_mul_i32 s%d, s%d, 57" % (t, d), "s_lshr_b32 s%d, s%d, 9" % (t, t), "s_mul_i32 s%d, s%d, 9" % (t, t), "s_sub_u32 s%d, s%d, s%d" % (d, d, t))


def rot_die(a, cfg, d, t):
    if cfg["rotx"] == 1: a("s_lshr_b32 s%d, s%d, 1" % (t, sXCD), "s_add_u32 s%d, s%d, s%d" % (d, d, t))
    if cfg["rotx"] == 2: a("s_add_u32 s%d, s%d, s%d" % (d, d, sXCD))
    if cfg["rotx"] == 3:
        a("s_lshr_b32 s%d, s%d, 1" % (t, sXCD), "s_add_u32 s%d, s%d, s%d" % (d, d, t), "s_and_b32 s%d, s%d, 1" % (t, sXCD), "s_lshl2_add_u32 s%d, s%d, s%d" % (d, t, d))


def p1_issue(a, kind, s):
    if kind == "w":
        def f0():
            a("s_add_u32 m0, s%d, %d" % (sM0W, wslot(s)))
            if s: a("s_add_u32 s%d, s%d, %d" % (sWOFF, sWOFF, 64 * 3456), "s_cmp_eq_u32 s%d, %d" % (sWOFF, 576 * 3456), "s_cselect_b32 s%d, 0, s%d" % (sWOFF, sWOFF))
            else: a("s_nop 0")
            a.vmem("buffer_load_dwordx4 v%d, %s, s%d offen lds" % (vWS, srd(sW), sWOFF), ("w", s))
        def f1():
            a.vmem("buffer_load_dwordx4 v%d, %s, s%d offen offset:1024 lds" % (vWS + 1, srd(sW), sWOFF), ("w", s))
        return [f0, f1]
    def fx():
        a("s_add_u32 m0, s%d, %d" % (sM0X, xslot(s)))
        if s: a("s_add_u32 s%d, s%d, 128" % (sXOFF, sXOFF), "s_cmpk_eq_u32 s%d, 1152" % sXOFF, "s_cselect_b32 s%d, 0, s%d" % (sXOFF, sXOFF))
        else: a("s_nop 0")
        if s == 9: a("v_add_u32 v%d, %d, v%d" % (vXS, 1024 * 1152, vXS))
        a.vmem("buffer_load_dwordx4 v%d, %s, s%d offen lds" % (vXS, srd(sX), sXOFF), ("d", s))
    return [fx]


def p1_head(a, cfg, hooks):
    L = vLANE
    t0, t1, t2, t3 = 38, 39, 40, 41
    a("s_and_b32 s%d, s%d, 1" % (sT0, sWAVE), "s_lshl_b32 s%d, s%d, 2" % (sT1, sT0),
      "v_lshrrev_b32 v%d, 4, v%d" % (t0, L), "v_add_u32 v%d, s%d, v%d" % (t1, sT1, t0),
      "v_and_b32 v%d, 15, v%d" % (t2, L), "v_lshlrev_b32 v%d, 1, v%d" % (t3, t1), "v_xor_b32 v%d, v%d, v%d" % (t2, t2, t3),
      "s_mul_i32 s%d, s%d, %d" % (sT2, sWAVE, 8 * 3456), "s_lshl_b32 s%d, s%d, 8" % (sT3, sLINE), "s_add_u32 s%d, s%d, s%d" % (sT2, sT2, sT3),
      "v_mul_u32_u24 v%d, 3456, v%d" % (t0, t0), "v_lshl_add_u32 v%d, v%d, 4, s%d" % (vWS, t2, sT2),
      "s_cmp_eq_u32 s%d, 13" % sLINE, "s_cselect_b32 s%d, 8, 0" % sT3, "v_and_b32 v%d, s%d, v%d" % (t2, sT3, t2),
      "v_lshl_add_u32 v%d, v%d, 26, v%d" % (t0, t2, t0), "v_add_u32 v%d, v%d, v%d" % (vWS, vWS, t0),
      "v_add_u32 v%d, %d, v%d" % (vWS + 1, 4 * 3456 - 1024, vWS))
    a("s_mul_i32 s%d, s%d, 3" % (sT2, sLINE), "s_add_u32 s%d, s%d, s%d" % (sT2, sT2, sT5))
    rot_die(a, cfg, sT2, sT3)
    mod9(a, sT2, sT3)
    a("s_lshl_b32 s%d, s%d, 7" % (sXOFF, sT2), "s_mul_i32 s%d, s%d, %d" % (sWOFF, sT2, 64 * 3456),
      "s_lshl_b32 s%d, s%d, 10" % (sM0X, sWAVE), "s_lshl_b32 s%d, s%d, 11" % (sM0W, sWAVE))
    a("v_lshrrev_b32 v%d, 3, v%d" % (t0, L), "v_and_b32 v%d, 7, v%d" % (t2, L), "v_xor_b32 v%d, v%d, v%d" % (t2, t2, t1),
      "s_cmp_ge_u32 s%d, 9" % sLINE, "s_cselect_b32 s%d, 2, 0" % sT3, "s_cselect_b32 s%d, 4, 7" % sT4,
      "s_bfe_u32 s%d, s%d, 0x10001" % (sT1, sWAVE), "s_lshl_b32 s%d, s%d, s%d" % (sT1, sT1, sT3),
      "s_lshl4_add_u32 s%d, s%d, s%d" % (sT1, sT0, sT1), "s_and_b32 s%d, s%d, 4" % (sT2, sWAVE), "s_lshl3_add_u32 s%d, s%d, s%d" % (sT1, sT2, sT1),
      "s_lshl_b32 s%d, s%d, 6" % (sT2, sG), "s_add_u32 s%d, s%d, s%d" % (sT1, sT1, sT2),
      "v_and_b32 v%d, s%d, v%d" % (t3, sT4, t0), "v_add3_u32 v%d, v%d, v%d, s%d" % (t3, t3, t0, sT1),
      "v_mul_u32_u24 v%d, 1152, v%d" % (t3, t3), "v_lshl_add_u32 v%d, v%d, 4, v%d" % (vXS, t2, t3))
    a("s_waitcnt lgkmcnt(0)", ";STAMP 17")

    issue = lambda kind, s: p1_issue(a, kind, s)
    plan = cfg["plan"]
    assert sorted((k, s) for _, k, s in plan) == sorted([("w", s) for s in range(9)] + [("x", s) for s in range(18)])
    for b, kind, s in plan:
        assert b < s and (kind == "w" and (s < 6 or b >= s - 5) or kind == "x" and (s < 8 or b >= s - 7))
    pre = [(kind, s) for b, kind, s in plan if b < 0]
    for kind, s in pre[:cfg["npre"]]:
        for f in issue(kind, s): f()
    t0, t1, t2, t3 = 48, 49, 50, 51
    hooks["setup"]()

    a("s_lshr_b32 s%d, s%d, 2" % (sT0, sWAVE), "s_and_b32 s%d, s%d, 3" % (sT1, sWAVE),
      "s_lshl_b32 s%d, s%d, 12" % (sT2, sT0), "s_add_u32 s%d, s%d, %d" % (sT2, sT2, XBASE),
      "v_and_b32 v%d, 15, v%d" % (t0, L), "v_lshrrev_b32 v%d, 4, v%d" % (t1, L),
      "v_bfe_u32 v%d, v%d, 1, 3" % (t2, L), "v_xor_b32 v%d, v%d, v%d" % (t2, t2, t1),
      "v_lshlrev_b32 v%d, 4, v%d" % (t2, t2),
      "v_lshl_add_u32 v%d, v%d, 7, s%d" % (t3, t0, sT2),
      "v_add_u32 v%d, v%d, v%d" % (vXR, t2, t3), "v_xor_b32 v%d, 64, v%d" % (vXR + 1, vXR))
    a("v_bfe_u32 v%d, v%d, 2, 2" % (t2, L), "v_lshl_add_u32 v%d, v%d, 3, v%d" % (t2, t1, t2),
      "v_lshlrev_b32 v%d, 8, v%d" % (vWR, t2),
      "v_and_b32 v%d, 3, v%d" % (t2, L), "v_lshl_add_u32 v%d, v%d, 3, v%d" % (vWR, t2, vWR),
      "s_lshl_b32 s%d, s%d, 1" % (sT2, sT1),
      "v_bfe_u32 v%d, v%d, 2, 3" % (t2, L), "v_xor_b32 v%d, s%d, v%d" % (t2, sT2, t2),
      "v_lshl_add_u32 v%d, v%d, 5, v%d" % (vWR, t2, vWR),
      "v_xor_b32 v%d, 32, v%d" % (vWR + 1, vWR),
      "v_add_u32 v%d, 0x10000, v%d" % (vWR + 2, vWR), "v_add_u32 v%d, 0x10000, v%d" % (vWR + 3, vWR + 1))
    a("s_mul_i32 s%d, s%d, %d" % (sST, sG, PITCH), "v_lshlrev_b32 v%d, 4, v%d" % (t0, t0),
      "s_lshl2_add_u32 s%d, s%d, s%d" % (sT2, sLINE, sT1),
      "s_cmp_ge_u32 s%d, 54" % sT2, "s_cselect_b32 s%d, 0x40000000, s%d" % (sST, sST),
      "s_mov_b32 s%d, 0x%08x" % (sT4, SCALE), "s_cmp_lt_u32 s%d, 18" % sT2, "s_cselect_b32 s%d, s%d, 1.0" % (sSCALE, sT4),
      "s_movk_i32 s%d, 256" % sT4, "s_movk_i32 s%d, 512" % sT5, "s_cmp_ge_u32 s%d, 9" % sLINE,
      "s_cselect_b32 s%d, %d, s%d" % (sT4, 4 * 9216, sT4), "s_cselect_b32 s%d, 9216, s%d" % (sT5, sT5),
      "s_cselect_b32 s%d, 9, 12" % sT1, "s_cselect_b32 s%d, %d, 0" % (sT3, 2 * SEC - 18 * 1024),
      "s_mul_i32 s%d, s%d, s%d" % (sT0, sT0, sT4), "s_lshl_b32 s%d, s%d, s%d" % (sT2, sT2, sT1),
      "s_add_u32 s%d, s%d, s%d" % (sST, sST, sT3), "s_add_u32 s%d, s%d, s%d" % (sST, sST, sT2), "s_add_u32 s%d, s%d, s%d" % (sST, sST, sT0),
      "v_mad_u32_u24 v%d, v%d, s%d, v%d" % (vSTA, t1, sT5, t0))
    a(";STAMP 18")
    for kind, s in pre[cfg["npre"]:]:
        for f in issue(kind, s): f()
    hooks["setup2"]()
    if cfg["p1prio"]:
        l = a.uid("pp"); a("s_cmp_lt_u32 s%d, 4" % sWAVE, "s_cbranch_scc1 %s" % l, "s_setprio 1", "%s:" % l)


def p1_body(a, isv, cfg, hooks):
    issue = lambda kind, s: p1_issue(a, kind, s)
    plan = cfg["plan"]

    def reads(s):
        r = []
        for m in range(2):
            for t in range(2):
                r.append("ds_read_b128 %s, v%d offset:%d" % (vr(vXF[s % 2] + 8 * m + 4 * t, 4), vXR + m, xslot(s) - XBASE + 2048 * t))
                if s < 9:
                    for h in range(2):
                        r.append("ds_read_b64_tr_b16 %s, v%d offset:%d" % (vr(vWF + 16 * s + 8 * m + 4 * t + 2 * h, 2), vWR + t + 2 * (wslot(s) >> 16),
                                                                           (wslot(s) & 0xffff) + (32 * m + 4 * h) * 256))
        return [(lambda x=x: a.lds(x)) for x in r]

    def mfmas(s):
        r = []
        for m in range(2):
            for ft in range(2):
                for tt in ((1, 0) if cfg["snake"] and ft else (0, 1)):
                    acc = vr(vACC[s // 9] + 8 * ft + 4 * tt, 4)
                    w = vr(vWF + 16 * (s % 9) + 8 * m + 4 * ft, 4); x = vr(vXF[s % 2] + 8 * m + 4 * tt, 4)
                    c = cfg.get("x_c0", "0") if (s % 9 == 0 and m == 0) else acc
                    r.append("v_mfma_f32_16x16x32_bf16 %s, %s, %s, %s" % ((acc, x, w, c) if isv else (acc, w, x, c)))
        return r

    def store(r, n):
        a.vmem("buffer_store_dwordx4 %s, v%d, %s, s%d offen offset:%d sc1" % (vr(vACC[r] + 8 * n, 4), vSTA, srd(sWS), sST, (256 if isv else 2048) * n), ("st", r))

    def epilogue(r):
        acc = vACC[r]
        mid = hooks.get("mid_epi1") if r else None
        for n in range(2):
            if not isv:
                for i in range(8 * n, 8 * n + 8, 2): a("v_pk_mul_f32 %s, %s, %s op_sel_hi:[1,0]" % (vr(acc + i, 2), vr(acc + i, 2), sr(sSCALE, 2)))
            for i in range(4): a("v_cvt_pk_bf16_f32 v%d, v%d, v%d" % (acc + 8 * n + i, acc + 8 * n + 2 * i, acc + 8 * n + 2 * i + 1))
            if not mid: store(r, n)
        if mid: mid(lambda: (store(r, 0), store(r, 1)))
        if r == 0: a("s_add_u32 s%d, s%d, %d" % (sST, sST, 16 * PITCH))

    for s in range(18):
        extra = hooks.get(("waitfor", s), [])
        a.wait(vm=[("d", s)] + [("w", s)] + extra, lg="all")
        a("s_barrier")
        a(";STAMP %d" % (20 + s))
        hooks.get(("bar", s), lambda: None)()
        side = reads(s)
        xp = cfg.get("x_p1", "")
        if "noread" in xp: side = []
        if "nowread" in xp: side = side[0::3] if s < 9 else side
        dm = []
        for b, kind, s2 in plan:
            if b == s and "nodma" not in xp: dm += issue(kind, s2)
        if cfg["dmapos"] == 0 or s >= 9: side += dm
        elif cfg["dmapos"] == 1: side = dm + side
        else:
            k = max(1, len(side) // max(1, len(dm))); mix = []
            while side or dm:
                mix += side[:k] + dm[:1]; side = side[k:]; dm = dm[1:]
            side = mix
        mm = mfmas(s - 1) if s > 0 else []
        if cfg["early0"] and s == 9: mm = []
        if "nomfma" in xp: mm = []
        side = hooks.get(("side0", s), []) + side + hooks.get(("side", s), [])
        per = max(cfg["per1"], -(-len(side) // 8))
        for x in mm:
            a(x)
            for f in side[:per]: f()
            side = side[per:]
        for f in side: f()
        if cfg["ftmaj"] and s == 8:
            a.wait(lg="all")
            mm = mfmas(8); a([mm[i] for i in (0, 1, 4, 5, 2, 3, 6, 7)])
            a("s_nop 3")
            epilogue(0)
            a(";STAMP 39")
        elif cfg["early0"] and s == 8:
            a.wait(lg="all"); a(mfmas(8))
        if s == (8 if cfg["early0"] else 9) and not cfg["ftmaj"]:
            a("s_nop 5")
            epilogue(0)
            a(";STAMP 39")
        hooks.get(("step", s), lambda: None)()
    a.wait(lg="all")
    a(mfmas(17))
    hooks.get("pre_epi1", lambda: None)()
    a("s_nop 5")
    epilogue(1)
    a(";STAMP 38")
    hooks.get("post_epi1", lambda: None)()


def wo_role(a, skip):
    L = vLANE
    t0, t1, t2, t3 = 42, 43, 44, 45
    a("s_sub_u32 s%d, s2, 224" % sLINE, "s_cmp_ge_u32 s%d, 18" % sLINE, "s_cbranch_scc1 %s" % skip)
    a("s_lshl_b32 s%d, s%d, 3" % (sT0, sWAVE), "v_lshrrev_b32 v%d, 3, v%d" % (t0, L), "v_add_u32 v%d, s%d, v%d" % (t0, sT0, t0),
      "v_mul_u32_u24 v%d, 1152, v%d" % (t0, t0), "v_and_b32 v%d, 7, v%d" % (t1, L), "v_lshl_add_u32 v%d, v%d, 4, v%d" % (t0, t1, t0),
      "s_lshr_b32 s%d, s%d, 1" % (sT4, sLINE), "s_lshl_b32 s%d, s%d, 7" % (sT1, sT4), "s_and_b32 s%d, s%d, 1" % (sT5, sLINE),
      "s_mul_i32 s%d, s%d, %d" % (sT2, sT5, 288 * 1152), "s_add_u32 s%d, s%d, s%d" % (sT1, sT1, sT2),
      "s_lshl_b32 s%d, s%d, 10" % (sT2, sWAVE))
    for k in range(5):
        a("s_add_u32 m0, s%d, %d" % (sT2, 8192 * k))
        if k == 4: a("s_cmp_ge_u32 s%d, 4" % sWAVE, "s_cselect_b32 s%d, 0x40000000, s%d" % (sT1, sT1))
        else: a("s_nop 0")
        a.vmem("buffer_load_dwordx4 v%d, %s, s%d offen lds" % (t0, srd(sW), sT1), "wo")
        if k < 4: a("s_add_u32 s%d, s%d, %d" % (sT1, sT1, 64 * 1152))
    a("s_and_b32 s%d, s%d, 3" % (sT0, sWAVE), "s_lshr_b32 s%d, s%d, 2" % (sT1, sWAVE),
      "s_mul_i32 s%d, s%d, 144" % (sT3, sT1), "s_lshl_b32 s%d, s%d, 5" % (sT2, sT0),
      "v_lshrrev_b32 v%d, 5, v%d" % (t0, L), "v_mul_u32_u24 v%d, 18, v%d" % (t0, t0),
      "v_bfe_u32 v%d, v%d, 2, 3" % (t1, L),
      "v_add3_u32 v%d, v%d, v%d, s%d" % (t0, t0, t1, sT3),
      "v_and_b32 v%d, 3, v%d" % (t2, L), "v_lshl_add_u32 v%d, v%d, 3, s%d" % (t2, t2, sT2),
      "v_lshl_add_u32 v%d, v%d, 7, v%d" % (t0, t0, t2),
      "v_lshrrev_b32 v%d, 3, v%d" % (t1, L), "v_mul_u32_u24 v%d, 18, v%d" % (t1, t1),
      "v_bfe_u32 v%d, v%d, 2, 1" % (t3, L), "s_add_u32 s%d, s%d, 16" % (sT3, sT3),
      "v_add3_u32 v%d, v%d, v%d, s%d" % (t1, t1, t3, sT3),
      "v_lshl_add_u32 v%d, v%d, 7, v%d" % (t1, t1, t2))
    a("s_lshl2_add_u32 s%d, s%d, s%d" % (sT2, sT4, sT0), "s_lshl1_add_u32 s%d, s%d, s%d" % (sT2, sT2, sT5), "s_lshl1_add_u32 s%d, s%d, s%d" % (sT2, sT2, sT1),
      "s_mul_i32 s%d, s%d, 4608" % (sT2, sT2), "s_add_u32 s%d, s%d, %d" % (sT2, sT2, WOBASE), "s_add_u32 s%d, s%d, 4096" % (sT4, sT2),
      "v_lshlrev_b32 v%d, 4, v%d" % (t2, L), "v_lshlrev_b32 v%d, 3, v%d" % (t3, L))
    a.wait(vm="all"); a("s_barrier")
    for m in range(4):
        for h in range(2):
            a.lds("ds_read_b64_tr_b16 %s, v%d offset:%d" % (vr(48 + 4 * m + 2 * h, 2), t0, (36 * m + 8 * h) * 128))
    a.lds("ds_read_b64_tr_b16 v[64:65], v%d" % t1)
    a.wait(lg="all")
    for m in range(4):
        a.vmem("buffer_store_dwordx4 %s, v%d, %s, s%d offen offset:%d sc1" % (vr(48 + 4 * m, 4), t2, srd(sWS), sT2, 1024 * m), "st")
    a.vmem("buffer_store_dwordx2 v[64:65], v%d, %s, s%d offen sc1" % (t3, srd(sWS), sT4), "st")


SHIFT = [0]


def p2_setup(a):
    L = vLANE
    t0, t1, t2, t3 = 38, 39, 40, 41
    a("s_lshl_b32 s%d, s%d, 2" % (sHEAD, sXCD), "s_lshr_b32 s%d, s%d, 3" % (sT0, sJ), "s_add_u32 s%d, s%d, s%d" % (sHEAD, sHEAD, sT0),
      "s_and_b32 s%d, s%d, 7" % (sQI, sJ), "s_and_b32 s%d, s%d, 3" % (sP, sWAVE), "s_lshr_b32 s%d, s%d, 2" % (sKH, sWAVE),
      "s_mov_b32 s%d, 0x3ffff" % sVMASK, "s_mov_b32 s%d, 0x3ffff" % (sVMASK + 1),
      "s_mov_b32 s%d, -1" % sDMASK, "s_mov_b32 s%d, 0xffff" % (sDMASK + 1),
      "s_and_b32 s%d, s%d, 1" % (sT0, sHEAD),
      "s_lshr_b32 s%d, s%d, 1" % (sT1, sHEAD), "s_mul_i32 s%d, s%d, %d" % (sT1, sT1, 9 * 512))
    a("v_and_b32 v%d, 31, v%d" % (t0, L), "v_lshrrev_b32 v%d, 5, v%d" % (t1, L))
    a("s_lshl_b32 s%d, s%d, 11" % (sT2, sT0), "s_add_u32 s%d, s%d, s%d" % (sT2, sT2, sT1), "s_add_u32 s%d, s%d, %d" % (sT2, sT2, SEC),
      "v_lshl_add_u32 v%d, v%d, 4, s%d" % (vDMA, L, sT2),
      "s_mul_i32 s%d, s%d, 288" % (sT3, sHEAD))
    for k in (2, 3, 4):
        imm = 1024 * k if k < 4 else 0
        d = vDMA + k - 1
        a("v_add_u32 v%d, %d, v%d" % (t2, (64 * k - 160) & 0xffffffff, L))
        if k == 2: a("v_max_i32 v%d, 0, v%d" % (t2, t2))
        a("v_mul_u32_u24 v%d, 3641, v%d" % (t3, t2), "v_lshrrev_b32 v%d, 16, v%d" % (t3, t3),
          "v_mul_u32_u24 v%d, %d, v%d" % (t3, 9216 - 288, t3),
          "v_lshl_add_u32 v%d, v%d, 4, v%d" % (t3, t2, t3),
          "s_add_u32 s%d, s%d, %d" % (sT4, sT3, 2 * SEC - imm),
          "v_add_u32 v%d, s%d, v%d" % (d, sT4, t3))
        if k == 2:
            a("v_cmp_gt_u32 vcc, 32, v%d" % L, "s_nop 1", "v_cndmask_b32 v%d, v%d, v%d, vcc" % (d, d, vDMA))
    a("s_mul_i32 s%d, s%d, %d" % (sT2, sKH, CHUNK),
      "s_lshl_b32 s%d, s%d, 9" % (sT3, sT0), "s_add_u32 s%d, s%d, s%d" % (sT3, sT3, sT2),
      "v_lshlrev_b32 v%d, 10, v%d" % (t2, t1), "v_lshl_add_u32 v%d, v%d, 3, v%d" % (t2, t0, t2),
      "v_add_u32 v%d, s%d, v%d" % (vAK, sT3, t2),
      "s_mul_i32 s%d, s%d, %d" % (sT3, sT0, (4 - 2048) & 0xffffffff), "s_add_u32 s%d, s%d, 2048" % (sT3, sT3),
      "s_add_u32 s%d, s%d, s%d" % (sT3, sT3, sT2),
      "v_lshl_add_u32 v%d, v%d, 3, s%d" % (vAR, L, sT3),
      "s_add_u32 s%d, s%d, 2560" % (sT3, sT2),
      "v_mul_u32_u24 v%d, 288, v%d" % (t3, t1), "v_lshl_add_u32 v%d, v%d, 4, v%d" % (t3, t0, t3),
      "v_add_u32 v%d, s%d, v%d" % (vAV, sT3, t3))
    a("s_mul_i32 s%d, s%d, %d" % (sT3, sT0, 5 * 512), "s_add_u32 s%d, s%d, s%d" % (sT3, sT3, sT1),
      "v_add_u32 v%d, s%d, v%d" % (vQA, sT3, t2),
      "s_lshl_b32 s%d, s%d, 2" % (sT3, sT0), "s_add_u32 s%d, s%d, s%d" % (sT3, sT3, sT1), "s_add_u32 s%d, s%d, 2048" % (sT3, sT3),
      "v_lshl_add_u32 v%d, v%d, 3, s%d" % (vQR, t0, sT3),
      "s_lshl_b32 s%d, s%d, 1" % (sT3, sQI), "s_lshr_b32 s%d, s%d, 1" % (sT4, sP), "s_add_u32 s%d, s%d, s%d" % (sT3, sT3, sT4),
      "s_mul_i32 s%d, s%d, %d" % (sQOFF, sT3, PITCH), "s_and_b32 s%d, s%d, 1" % (sT4, sP), "s_lshl_b32 s%d, s%d, 8" % (sT4, sT4),
      "s_add_u32 s%d, s%d, s%d" % (sQOFF, sQOFF, sT4),
      "s_lshl1_add_u32 s%d, s%d, s%d" % (sT0, sP, sKH), "s_mul_i32 s%d, s%d, %d" % (sCM, sT0, CHUNK), "s_mul_i32 s%d, s%d, %d" % (sCH, sT0, PITCH),
      "v_mov_b32 v%d, 0xdddddddd" % vIDX, "v_mov_b32 v%d, 0x%x" % (vQ[0] + 5, SHIFT[0]), "v_mov_b32 v%d, 0x%x" % (vQ[1] + 5, SHIFT[0]))


def q_load(a, part):
    so = sQOFF
    if part:
        a("s_add_u32 s%d, s%d, %d" % (sT0, sQOFF, 16 * PITCH)); so = sT0
    q = vQ[part]
    a.vmem("buffer_load_dwordx2 %s, v%d, %s, s%d offen sc1" % (vr(q, 2), vQA, srd(sWS), so), ("q", part))
    a.vmem("buffer_load_dwordx2 %s, v%d, %s, s%d offen offset:512 sc1" % (vr(q + 2, 2), vQA, srd(sWS), so), ("q", part))
    a.vmem("buffer_load_dword v%d, v%d, %s, s%d offen sc1" % (q + 4, vQR, srd(sWS), so), ("q", part))


def kv_piece(a, st, k):
    if k == 0: a("s_add_u32 m0, s%d, %d" % (sCM, 8 * st * CHUNK), "s_add_u32 s%d, s%d, %d" % (sCH, sCH, 8 * PITCH) if st else "s_nop 0")
    if k < 4:
        a.vmem("buffer_load_dwordx4 v%d, %s, s%d offen offset:%d sc1 lds" % (vDMA + max(0, k - 1), srd(sWS), sCH, 1024 * k), ("kv", st))
    else:
        a("s_add_u32 m0, m0, 4096", "s_mov_b64 exec, %s" % sr(sDMASK, 2))
        a.vmem("buffer_load_dwordx4 v%d, %s, s%d offen sc1 lds" % (vDMA + 3, srd(sWS), sCH), ("kv", st))
        a("s_mov_b64 exec, -1")


def kv_dma(a, st):
    for k in range(5): kv_piece(a, st, k)


def q_dma(a):
    a("s_lshl1_add_u32 s%d, s%d, s%d" % (sT1, sQI, sKH), "s_mul_i32 s%d, s%d, %d" % (sT1, sT1, PITCH),
      "s_mul_i32 s%d, s%d, 2560" % (sT0, sKH), "s_add_u32 m0, s%d, %d" % (sT0, LDS_SPARE),
      "v_subrev_u32 v%d, %d, v%d" % (vT, SEC, vDMA))
    for k in range(3):
        if k == 2: a("s_mov_b32 exec_hi, 0")
        a("buffer_load_dwordx4 v%d, %s, s%d offen offset:%d sc1 lds" % (vT, srd(sWS), sT1, 1024 * k))
    a("s_mov_b64 exec, -1")


def q_addr(a):
    a("s_lshr_b32 s%d, s%d, 1" % (sT0, sP), "s_mul_i32 s%d, s%d, 2560" % (sT0, sT0), "s_and_b32 s%d, s%d, 1" % (sT1, sP), "s_lshl_b32 s%d, s%d, 8" % (sT1, sT1),
      "s_add_u32 s%d, s%d, s%d" % (sT0, sT0, sT1), "s_mul_i32 s%d, s%d, %d" % (sT1, sKH, CHUNK), "s_sub_u32 s%d, s%d, s%d" % (sT0, sT0, sT1),
      "s_add_u32 s%d, s%d, %d" % (sT0, sT0, LDS_SPARE),
      "v_add_u32 v%d, s%d, v%d" % (vT, sT0, vAK), "v_and_b32 v%d, 32, v%d" % (vT + 1, vLANE), "v_lshlrev_b32 v%d, 3, v%d" % (vT + 1, vT + 1),
      "v_sub_u32 v%d, v%d, v%d" % (vT + 1, vAR, vT + 1), "v_add_u32 v%d, s%d, v%d" % (vT + 1, sT0, vT + 1))


def q_read(a):
    q = vQ[0]
    a.lds("ds_read_b32 v%d, v%d" % (q + 4, vT + 1), "R")
    for h in range(2): a.lds("ds_read_b64 %s, v%d offset:%d" % (vr(q + 2 * h, 2), vT, 512 * h), ("K", 0))


ONE = [0]


def v_consts(a, base, t):
    m = 0x40000 if ONE[0] else 0x440000
    a("s_mov_b32 s%d, 0x%x" % (sSAVE, m), "s_mov_b32 s%d, 0x%x" % (sSAVE + 1, m), "v_mov_b32 v%d, 0x3f803f80" % t,
      "v_cndmask_b32 v%d, 0, v%d, %s" % (base, t, sr(sSAVE, 2)))
    a("v_mov_b32 v%d, v%d" % (base + 1, base))
    for i in range(1, 8): a("v_mov_b64 %s, %s" % (vr(base + 2 * i, 2), vr(base, 2)))


def p2_init(a):
    word_setup(a)
    v_consts(a, vV, vV + 2)
    a("v_mov_b32 v%d, 0x%x" % (vKR + 1, 0x3f80 if SHIFT[0] else 0))
    for i in range(16): a("v_mov_b64 %s, 0" % vr(vO[0] + 2 * i, 2))


def p2_main(a, cfg, ev):
    ns = cfg["nsolo"]
    U = [(i, 0) for i in range(ns)] + [(i, q) for i in range(ns, 16) for q in range(2)] + [(i, 1) for i in range(ns)]
    if cfg["uswap"]: U[6:10] = [(6, 0), (7, 0), (7, 1), (6, 1)]
    N = len(U)
    base = {"k": 0, "r": 0, "v": 0, "k0": 0, "k1": 0}
    reg = {"k": vAK, "r": vAR, "v": vAV, "k0": vAK, "k1": vAK1}
    seen = set()

    def off(kind, i):
        if i not in seen:
            seen.add(i)
            if ("pre", i) in ev: ev[("pre", i)]()
        want = (i // 6) * 6
        if base[kind] != want:
            a("v_add_u32 v%d, 0x%x, v%d" % (reg[kind], ((want - base[kind]) * 2 * CHUNK) & 0xffffffff, reg[kind]))
            base[kind] = want
        return (i - want) * 2 * CHUNK

    def rR(i):
        o = off("r", i); a.lds("ds_read_b32 v%d, v%d offset:%d" % (vKR, vAR, o), "R")
    def rK(i, t):
        if cfg["k2"]:
            kind = "k%d" % t
            want = 0 if i < 13 else 13
            if base[kind] != want:
                a("v_add_u32 v%d, 0x%x, v%d" % (reg[kind], ((want - base[kind]) * 2 * CHUNK) & 0xffffffff, reg[kind])); base[kind] = want
            o = (i - want) * 19
            a.lds("ds_read2st64_b64 %s, v%d offset0:%d offset1:%d" % (vr(vK + 4 * t, 4), reg[kind], o, o + 1), ("K", t))
            return
        o = off("k", i)
        for h in range(2): a.lds("ds_read_b64 %s, v%d offset:%d" % (vr(vK + 4 * t + 2 * h, 2), vAK, o + 256 * t + 512 * h), ("K", t))
    def rV(i, fs):
        if ("prev", i) in ev: ev.pop(("prev", i))()
        o = off("v", i)
        if not cfg.get("x_nomask"): a("s_mov_b64 exec, %s" % sr(sVMASK, 2))
        for f in fs: a.lds("ds_read_b128 %s, v%d offset:%d" % (vr(vV + 4 * f, 4), vAV, o + 576 * f), ("V", f // 2))
        if not cfg.get("x_nomask"): a("s_mov_b64 exec, -1")
    def R(u):
        a.wait(lg="R")
        if U[u][1] == 1 and "ql" in ev: ev.pop("ql")()
        a("v_mfma_f32_32x32x4_2b_bf16 %s, %s, %s, 0" % (vr(vS[u % 2], 32), vr(vKR, 2), vr(vQ[U[u][1]] + 4, 2)))
    def M(u, t):
        a.wait(lg=("K", t))
        s = vr(vS[u % 2] + 16 * t, 16)
        a("v_mfma_f32_32x32x16_bf16 %s, %s, %s, %s" % (s, vr(vK + 4 * t, 4), vr(vQ[U[u][1]], 4), s))
    def P(u, f):
        a.wait(lg=("V", f // 2))
        a("v_smfmac_f32_32x32x32_bf16 %s, %s, %s, v%d" % (vr(vO[U[u][1]], 16), vr(vV + 4 * f, 4), vr(vS[u % 2] + 8 * f, 8), vIDX))
    ch = lambda u: U[u][0]
    newk = lambda u: u < N and ch(u) != ch(u - 1)

    rR(ch(0)); rK(ch(0), 0); rK(ch(0), 1)
    rV(ch(0), (0, 1, 2, 3))
    R(0)
    if newk(1): rR(ch(1))
    n0 = len(a.l)
    if "fill" in ev: ev["fill"]()
    gap = 17 - (len(a.l) - n0)
    while gap > 0:
        a("s_nop %d" % (min(gap, 16) - 1)); gap -= 16
    M(0, 0)
    if newk(1): rK(ch(1), 0)
    M(0, 1)
    if newk(1): rK(ch(1), 1)
    a("s_nop 7")
    pos = cfg["pos"]
    a.age = cfg["age"]
    for u in range(N):
        def op(j):
            if j == 0:
                if u > 0:
                    P(u - 1, 3)
                    if newk(u): rV(ch(u), (2, 3))
            elif j == 1:
                if u + 1 < N:
                    R(u + 1)
            elif j == 2: P(u, 0)
            elif j == 3:
                P(u, 1)
                if newk(u + 1): rV(ch(u + 1), (0, 1))
            elif j == 4 or j == 6:
                if u + 1 < N:
                    M(u + 1, (j - 4) // 2)
                    if newk(u + 2):
                        if j == 4: rR(ch(u + 2))
                        rK(ch(u + 2), (j - 4) // 2)
            elif j == 5: P(u, 2)
            if (u, j) in cfg.get("prio", {}): a("s_setprio %d" % cfg["prio"][(u, j)])
            if (u, j) in cfg.get("priox", {}):
                l = a.uid("px"); a("s_cmp_lg_u32 s%d, 0" % sKH, "s_cbranch_scc1 %s" % l, "s_setprio %d" % cfg["priox"][(u, j)], "%s:" % l)
            if (u, j) in ev: ev[(u, j)]()
        a(";STAMP %d" % (40 + u))
        for e in range(32):
            if e in pos: op(pos.index(e))
            a("%s v%d, v%d" % (cfg["expop"], vS[u % 2] + e, vS[u % 2] + e)); a.clock += 1
    a.age = None
    a("s_nop 1")
    P(N - 1, 3)
    return U


SCR_RES, SCR_ROFF = 12 * CHUNK, (0, 2 * CHUNK)
SCR_MOFF = (0, 0)
P3_BASE, P3_OFF = 15 * CHUNK, (39936, 0)
sOA, sOR = 34, 3
sOL = 12
sPF = 15
vFD = [vWO + 72, vWO + 72]


def late_setup(a):
    L = vLANE
    a("s_lshl_b32 s%d, s%d, 11" % (sT0, sP), "s_add_u32 s%d, s%d, %d" % (sT0, sT0, LDS_SPARE), "v_add_u32 v%d, s%d, v%d" % (vSA, sT0, vL16),
      "s_lshl_b32 s%d, s%d, 10" % (sT0, sP), "s_add_u32 s%d, s%d, %d" % (sT0, sT0, SCR_RES), "v_add_u32 v%d, s%d, v%d" % (vSB, sT0, vL16),
      "s_lshl2_add_u32 s%d, s%d, s%d" % (sT0, sQI, sP), "s_mul_i32 s%d, s%d, %d" % (sT0, sT0, OTILE), "s_add_u32 s%d, s%d, %d" % (sT0, sT0, OBASE),
      "s_lshl_b32 s%d, s%d, 10" % (sT1, sHEAD), "s_add_u32 s%d, s%d, s%d" % (sOA, sT1, sT0),
      "s_lshl_b32 s%d, s%d, 7" % (sT1, sHEAD), "s_add_u32 s%d, s%d, s%d" % (sOR, sT1, sT0), "s_add_u32 s%d, s%d, 32768" % (sOR, sOR),
      "v_lshrrev_b32 v%d, 4, v%d" % (vOB, L), "v_and_b32 v%d, 15, v%d" % (vT, L), "s_lshl_b32 s%d, s%d, 4" % (sT1, sRH), "v_add_u32 v%d, s%d, v%d" % (vT, sT1, vT),
      "v_lshlrev_b32 v%d, 9, v%d" % (vOA, vOB), "v_lshl_add_u32 v%d, v%d, 4, v%d" % (vOA, vT, vOA),
      "v_lshlrev_b32 v%d, 8, v%d" % (vOB, vOB), "v_lshl_add_u32 v%d, v%d, 2, v%d" % (vOB, vT, vOB),
      "s_lshl2_add_u32 s%d, s%d, s%d" % (sT0, sXCD, sRT), "s_mul_i32 s%d, s%d, %d" % (sT0, sT0, OTILE), "s_add_u32 s%d, s%d, %d" % (sT0, sT0, OBASE),
      "s_lshl_b32 s%d, s%d, 13" % (sT1, sKQ), "s_add_u32 s%d, s%d, s%d" % (sOL, sT1, sT0), "s_add_u32 s%d, s%d, 4096" % (sOL + 1, sOL),
      "s_lshl_b32 s%d, s%d, 10" % (sT1, sKQ), "s_add_u32 s%d, s%d, s%d" % (sOL + 2, sT1, sT0), "s_add_u32 s%d, s%d, 32768" % (sOL + 2, sOL + 2))


RES4 = [0]


def o_store(a, d, t, part, em):
    sa, sb = sOA, sOR
    if part:
        a("s_add_u32 s%d, s%d, %d" % (sT1, sOA, 32 * OTILE), "s_add_u32 s%d, s%d, %d" % (sT2, sOR, 32 * OTILE)); sa, sb = sT1, sT2
    em("buffer_store_dwordx4 %s, v%d, %s, s%d offen sc1" % (vr(d, 4), vL16, srd(sWS), sa))
    if RES4[0]:
        a("s_mov_b64 exec, 0xff")
        em("buffer_store_dwordx4 %s, v%d, %s, s%d offen sc1" % (vr(t, 4), vL16, srd(sWS), sb))
        a("s_mov_b64 exec, -1")
        return
    a("s_mov_b32 exec_hi, 0")
    em("buffer_store_dword v%d, v%d, %s, s%d offen sc1" % (d + 4, t, srd(sWS), sb))
    a("s_mov_b64 exec, -1")


def poison(a, parts=(0, 1)):
    d = vFD[0]
    a("v_mov_b64 %s, -1" % vr(d, 2), "v_mov_b64 %s, -1" % vr(d + 2, 2))
    if not RES4[0]: a("v_mov_b32 v%d, -1" % (d + 4), "v_lshlrev_b32 v%d, 2, v%d" % (vT, vLANE))
    for part in parts: o_store(a, d, d if RES4[0] else vT, part, lambda x: a.vmem(x, "poison"))


def send_partial(a, part):
    o = vO[part]
    a("v_mov_b32 v%d, s%d" % (o + 11, sTAG),
      "ds_write_b128 v%d, %s offset:%d" % (vSA, vr(o, 4), SCR_MOFF[part]), "ds_write_b128 v%d, %s offset:%d" % (vSA, vr(o + 4, 4), SCR_MOFF[part] + 1024),
      "ds_write_b128 v%d, %s offset:%d" % (vSB, vr(o + 8, 4), SCR_ROFF[part]))


def fin_reads(part):
    d = vFD[part]
    return ["ds_read_b128 %s, v%d offset:%d" % (vr(d + 8, 4), vSB, SCR_ROFF[part]),
            "ds_read_b128 %s, v%d offset:%d" % (vr(d, 4), vSA, SCR_MOFF[part]), "ds_read_b128 %s, v%d offset:%d" % (vr(d + 4, 4), vSA, SCR_MOFF[part] + 1024)]


NOPK = [0, 0]
BIAS = [0]
vTH = vWO + 88


def o_bias(a, cls):
    x = vWO + 84
    def rd(): a("v_mov_b32 v%d, 2560" % x); a.lds("ds_read_b128 %s, v%d" % (vr(x, 4), x), "bias")
    def init():
        a.wait(lg="bias")
        k = struct.unpack("<I", struct.pack("<f", (1.35 if cls else -1.35) * 2.0 ** BIAS[0]))[0]
        o = vO[0]
        a("v_max3_f32 v%d, abs(v%d), abs(v%d), abs(v%d)" % (x, x, x + 1, x + 2), "v_max_f32 v%d, abs(v%d), v%d" % (x, x + 3, x),
          "v_and_b32 v%d, 0x7f800000, v%d" % (x, x), "v_mul_f32 v%d, 0x%x, v%d" % (o, k, x), "v_mul_f32 v%d, 0x%x, v%d" % (o + 1, k, x))
        if cls: a("v_mul_f32 v%d, 0x3b800000, v%d" % (vTH, o))
        for r in (o + 2, o + 4, o + 6, o + 8) + tuple(range(vO[1], vO[1] + 10, 2)): a("v_mov_b64 %s, %s" % (vr(r, 2), vr(o, 2)))
    return rd, init


def finalize(a, part, slow, colds, prefetched=False, before_store=None):
    o = vO[part]
    t = vT
    d = vFD[part]
    if not prefetched: a(fin_reads(part))
    again = a.uid("meet")
    a("s_mov_b32 s%d, 0" % sT5, "s_mov_b32 s%d, 0x37800000" % sT4,
      "%s:" % again, "s_waitcnt lgkmcnt(0)", "v_cmp_ne_u32 vcc, s%d, v%d" % (sTAG, d + 11), "s_cbranch_vccnz %s_r" % again, "%s_k:" % again)
    def cold():
        a("%s_r:" % again); spin_guard(a, again + "_k"); a("s_sleep 1", fin_reads(part), "s_branch %s" % again)
    colds.append(cold)
    pk = lambda op, x, y, z, m="": "v_pk_%s_f32 %s, %s, %s%s" % (op, vr(x, 2), vr(y, 2), vr(z, 2), m)
    if NOPK[part]: pk = lambda op, x, y, z, m="": ["v_%s_f32 v%d, v%d, v%d" % (op, x + i, y + i, z + (0 if m else i)) for i in range(2)]
    if ONE[0]:
        a("v_add_f32 v%d, v%d, v%d" % (o + 11, o + 10, d + 10), "v_add_f32 v%d, v%d, v%d" % (o + 10, o + 10, d + 10), pk("add", o + 8, o + 8, d + 8), pk("add", o, o, d),
          "v_permlane32_swap_b32 v%d, v%d" % (o + 10, o + 11))
        for i in (2, 4, 6): a(pk("add", o + i, o + i, d + i))
    else:
        a("v_add_f32 v%d, v%d, v%d" % (o + 10, o + 10, d + 10), pk("add", o + 8, o + 8, d + 8))
        for i in (0, 2, 4, 6): a(pk("add", o + i, o + i, d + i))
    back = a.uid("norm")
    done = a.uid("normok")
    a("%s:" % back)
    a("v_rcp_f32 v%d, v%d" % (t, o + 10), "v_mov_b32 v%d, 0x7b800000" % (d + 11))
    for i in range(0, 10, 2): a(pk("mul", d + i, o + i, t, " op_sel_hi:[1,0]"))
    a("v_med3_f32 v%d, v%d, s%d, v%d" % (d + 10, o + 10, sT4, d + 11))
    if BIAS[0]:
        a(["v_add_f32 v%d, abs(v%d), abs(v%d)" % (t + k, o + 2 * k, o + 2 * k + 1) for k in range(2)])
        for i in range(4, 10): a("v_add_f32 v%d, v%d, abs(v%d)" % (t + i % 2, t + i % 2, o + i))
        a("v_add_f32 v%d, v%d, v%d" % (t, t, t + 1), "v_cmp_lt_f32 %s, v%d, v%d" % (sr(sSAVE, 2), t, vTH))
    else:
        a(pk("add", t, d, d + 2))
        for i in (4, 6, 8): a(pk("add", t, t, d + i))
        a("v_add_f32 v%d, v%d, v%d" % (t, t, t + 1))
    a("v_fma_f32 v%d, v%d, 0, v%d" % (t, t, o + 10),
      "v_cmp_neq_f32 vcc, v%d, v%d" % (d + 10, t))
    if before_store: before_store()
    cv = lambda i, x: "v_cvt_pk_bf16_f32 v%d, v%d, v%d" % (x, d + 2 * i, d + 2 * i + 1)
    if RES4[0]:
        a(cv(4, d + 8), cv(0, d), cv(1, d + 1), "v_mov_b32_dpp v%d, v%d row_ror:8 row_mask:0xf bank_mask:0xf" % (d + 9, d + 8), cv(2, d + 2),
          "v_permlane16_swap_b32 v%d, v%d" % (d + 8, d + 10), cv(3, d + 3), "v_permlane16_swap_b32 v%d, v%d" % (d + 9, d + 11))
        slow(part, back, done)
        a("%s:" % done)
        o_store(a, d, d + 8, part, a)
        return
    for i in range(5):
        a(cv(i, d + i))
        if i == 2 and BIAS[0]: a("s_or_b64 vcc, vcc, %s" % sr(sSAVE, 2))
    slow(part, back, done)
    a("%s:" % done, "v_lshlrev_b32 v%d, 2, v%d" % (t, vLANE))
    o_store(a, d, t, part, a)


def slow_path(a, part, label, back, done, after):
    S, K, KR, V, m, ar, av = 44, 76, 84, 88, 104, 105, 106
    q = vQ[part]; o = vO[part]
    a("%s:" % label, "s_cmp_eq_u32 s%d, 0" % sT5, "s_cbranch_scc1 %s_go" % label)
    for i in range(12): a("v_min_u32 v%d, -2, v%d" % (vFD[part] + i, vFD[part] + i))
    a("s_branch %s" % done, "%s_go:" % label, "s_mov_b32 s%d, 1" % sT5)
    a("s_waitcnt vmcnt(0) lgkmcnt(0)")
    v_consts(a, V, m)
    a("v_mov_b32 v%d, 0" % (KR + 1))
    for i in range(16): a("v_mov_b32 v%d, 0" % (o + i))
    a("v_lshrrev_b32 v%d, 5, v%d" % (m, vLANE), "v_lshl_add_u32 v%d, v%d, 8, v%d" % (ar, m, vQR),
      "v_mul_u32_u24 v%d, 9216, v%d" % (av, m), "v_and_b32 v%d, 31, v%d" % (m, vLANE), "v_lshl_add_u32 v%d, v%d, 4, v%d" % (av, m, av),
      "s_mul_i32 s%d, s%d, 288" % (sT3, sHEAD), "s_add_u32 s%d, s%d, %d" % (sT3, sT3, SEC), "v_add_u32 v%d, s%d, v%d" % (av, sT3, av))
    for f in range(1, 4): a("v_add_u32 v%d, 18432, v%d" % (av + f, av + f - 1))
    a("v_mov_b32 v%d, 0xff800000" % m)
    for ps in range(2):
        lp = a.uid("slow")
        a("s_mov_b32 s%d, %d" % (sLOOP, SEC), "%s:" % lp)
        for t in range(2):
            for h in range(2):
                a("buffer_load_dwordx2 %s, v%d, %s, s%d offen offset:%d sc1" % (vr(K + 4 * t + 2 * h, 2), vQA, srd(sWS), sLOOP, 256 * t + 512 * h))
        a("buffer_load_dword v%d, v%d, %s, s%d offen sc1" % (KR, ar, srd(sWS), sLOOP))
        if ps:
            a("s_mov_b64 exec, %s" % sr(sVMASK, 2))
            for f in range(4): a("buffer_load_dwordx4 %s, v%d, %s, s%d offen sc1" % (vr(V + 4 * f, 4), av + f, srd(sWS), sLOOP))
            a("s_mov_b64 exec, -1")
        a("s_waitcnt vmcnt(0)",
          "v_mfma_f32_32x32x4_2b_bf16 %s, %s, %s, 0" % (vr(S, 32), vr(KR, 2), vr(q + 4, 2)), "s_nop 15", "s_nop 1")
        for t in range(2):
            a("v_mfma_f32_32x32x16_bf16 %s, %s, %s, %s" % (vr(S + 16 * t, 16), vr(K + 4 * t, 4), vr(q, 4), vr(S + 16 * t, 16)))
        a("s_nop 11")
        if ps == 0:
            for i in range(16): a("v_max3_f32 v%d, v%d, v%d, v%d" % (m, m, S + 2 * i, S + 2 * i + 1))
        else:
            for i in range(32): a("v_sub_f32 v%d, v%d, v%d" % (S + i, S + i, m))
            for i in range(32): a("v_exp_f32 v%d, v%d" % (S + i, S + i))
            a("s_nop 1")
            for f in range(4): a("v_smfmac_f32_32x32x32_bf16 %s, %s, %s, v%d" % (vr(o, 16), vr(V + 4 * f, 4), vr(S + 8 * f, 8), vIDX))
        a("s_add_u32 s%d, s%d, %d" % (sLOOP, sLOOP, PITCH), "s_cmp_lt_u32 s%d, %d" % (sLOOP, 32 * PITCH), "s_cbranch_scc1 %s" % lp)
        if ps == 0:
            a("v_mov_b32 v%d, v%d" % (S, m), "s_nop 1", "v_permlane32_swap_b32 v%d, v%d" % (S, m), "s_nop 1", "v_max_f32 v%d, v%d, v%d" % (m, m, S))
    a("s_nop 15")
    if ONE[0]: a("v_mov_b32 v%d, v%d" % (o + 11, o + 10), "s_nop 1", "v_permlane32_swap_b32 v%d, v%d" % (o + 10, o + 11), "s_nop 1")
    after()
    a("s_branch %s" % back)


def p3_setup(a):
    a("s_and_b32 s%d, s%d, 3" % (sRT, sJ), "s_lshr_b32 s%d, s%d, 2" % (sCB, sJ),
      "s_and_b32 s%d, s%d, 3" % (sKQ, sWAVE), "s_and_b32 s%d, s%d, 1" % (sRH, sCB),
      "s_lshl_b32 s%d, s%d, 2" % (sT0, sCB), "s_lshr_b32 s%d, s%d, 1" % (sT1, sCB), "s_add_u32 s%d, s%d, 32" % (sT1, sT1),
      "s_mul_i32 s%d, s%d, 4608" % (sT2, sKQ), "s_add_u32 s%d, s%d, %d" % (sT2, sT2, WOBASE),
      "s_mul_i32 s%d, s%d, %d" % (sT3, sT0, 4 * 4608), "s_add_u32 s%d, s%d, s%d" % (sWOF, sT3, sT2))
    for t in range(1, 4): a("s_add_u32 s%d, s%d, %d" % (sWOF + t, sWOF, 4 * 4608 * t))
    a("s_mul_i32 s%d, s%d, %d" % (sT3, sT1, 4 * 4608), "s_add_u32 s%d, s%d, s%d" % (sWOF + 4, sT3, sT2),
      "s_lshl2_add_u32 s%d, s%d, s%d" % (sT2, sXCD, sRT), "s_lshl1_add_u32 s%d, s%d, s%d" % (sT2, sT2, sRH),
      "s_mul_i32 s%d, s%d, %d" % (sT3, sT2, 16 * 1152), "s_lshl_b32 s%d, s%d, 5" % (sT1, sT1), "s_add_u32 s%d, s%d, s%d" % (sOCOL + 2, sT1, sT3),
      "s_mul_i32 s%d, s%d, %d" % (sT4, sKQ, 4 * 1152), "s_lshl_b32 s%d, s%d, 5" % (sT0, sT0), "s_add_u32 s%d, s%d, s%d" % (sT0, sT0, sT4),
      "s_add_u32 s%d, s%d, s%d" % (sOCOL, sT0, sT3),
      "s_xor_b32 s%d, s%d, 1" % (sT2, sT2), "s_mul_i32 s%d, s%d, %d" % (sT3, sT2, 16 * 1152), "s_add_u32 s%d, s%d, s%d" % (sOCOL + 1, sT0, sT3),
      "s_movk_i32 s%d, 272" % sC272, "s_movk_i32 s%d, 80" % sC80)


def wo_load(a, tiles, t16, t8, track=True, only=None):
    em = a.vmem if track else (lambda s, tag: a(s))
    for t in tiles:
        for m in range(4):
            if only in (None, m): em("buffer_load_dwordx4 %s, v%d, %s, s%d offen offset:%d sc1" % (vr(vWO + 18 * t + 4 * m, 4), t16, srd(sWS), sWOF + t, 1024 * m), "wo")
        if only in (None, 4): em("buffer_load_dwordx2 %s, v%d, %s, s%d offen sc1" % (vr(vWO + 18 * t + 16, 2), t8, srd(sWS), sWOF + t), "wo")


vOA2, vOB2 = 18, 19
vAC = [vV, vO[1]]
vAC4 = vV + 16


def o_instr(of, hh, g, so):
    main, res = of[hh]
    if g < 4: return ["buffer_load_dwordx4 %s, v%d, %s, s%d offen offset:%d sc1" % (vr(main + 4 * g, 4), (vOA, vOA2)[hh], srd(sWS), so + g // 2, 2048 * (g % 2))]
    return ["buffer_load_dword v%d, v%d, %s, s%d offen offset:%d sc1" % (res + e, (vOB, vOB2)[hh], srd(sWS), so + 2, 128 * e) for e in range(2)]


def o_load(a, of, items, so, tag):
    for hh, g in items:
        for x in o_instr(of, hh, g, so): a.vmem(x, (tag, hh))


RSLEEP = [2]


def o_check(a, of, items, so, colds, reload=None):
    regs = []
    for hh, g in items: regs += list(range(of[hh][0] + 4 * g, of[hh][0] + 4 * g + 4)) if g < 4 else [of[hh][1], of[hh][1] + 1]
    t = vT
    chk = ["v_max_u32 v%d, v%d, v%d" % (t, regs[0], regs[1])] + ["v_max3_u32 v%d, v%d, v%d, v%d" % (t, t, regs[i], regs[i + 1]) for i in range(2, len(regs), 2)]
    chk.append("v_cmp_eq_u32 vcc, -1, v%d" % t)
    l = a.uid("ochk")
    def cold():
        a("%s_r:" % l); spin_guard(a, l + "_k")
        if RSLEEP[0]: a("s_sleep %d" % RSLEEP[0])
        for hh, g in (reload or items): a(o_instr(of, hh, g, so))
        a("s_waitcnt vmcnt(0)", chk, "s_cbranch_vccnz %s_r" % l, "s_branch %s_k" % l)
    colds.append(cold)
    return chk, ["s_cbranch_vccnz %s_r" % l, "%s_k:" % l]


def p3_mm(of, hh, k, g, first):
    main, res = of[hh]
    c = vr(vAC4 if k == 4 else vAC[hh] + 4 * k, 4)
    if g < 4: return "v_mfma_f32_16x16x32_bf16 %s, %s, %s, %s" % (c, vr(vWO + 18 * k + 4 * g, 4), vr(main + 4 * g, 4), "0" if first else c)
    return "v_mfma_f32_16x16x16_bf16 %s, %s, %s, %s" % (c, vr(vWO + 18 * k + 16, 2), vr(res, 2), "0" if first else c)


def p3_half(a, of, hh, gs, first, part, pend, side=()):
    tiles = (4, 0, 1, 2, 3) if hh == 0 else (0, 1, 2, 3)
    side = list(side)
    def emit(x):
        a(x)
        n = 1
        if side:
            y = side.pop(0)
            if y: a(y); n += 1
        for p_ in pend: p_[0] -= n
        if pend and pend[0][0] <= 0:
            a(pend.pop(0)[1])
            for p_ in pend: p_[0] -= 1
    if 4 in gs:
        n0 = len(a.l)
        for k in tiles: emit(p3_mm(of, hh, k, 4, first))
        first = False
        gap = 6 - (len(a.l) - n0 - 1)
        if gap > 0:
            a("s_nop %d" % (gap - 1))
            for p_ in pend: p_[0] -= gap
    for k in tiles:
        for n, g in enumerate([g for g in gs if g < 4]): emit(p3_mm(of, hh, k, g, first and n == 0))
        if part is not None:
            if k == 4: w = "ds_write_b128 v%d, %s offset:%d" % (vP3 + 1, vr(vAC4, 4), P3_OFF[part])
            else: w = "ds_write_b128 v%d, %s offset:%d" % (vP3, vr(vAC[hh] + 4 * k, 4), P3_OFF[part] + 4 * P3_PART * hh + 64 * k)
            pend.append([8, w])
    a(side)


def p3_last(a, of, pend, side, br):
    T = [(0, k) for k in (4, 0, 1, 2, 3)] + [(1, k) for k in range(4)]
    side = list(side)
    def emit(x):
        a(x); n = 1
        if side:
            y = side.pop(0)
            if y: a(y); n += 1
        for p_ in pend: p_[0] -= n
        if pend and pend[0][0] <= 0:
            a(pend.pop(0)[1])
            for p_ in pend: p_[0] -= 1
    n0 = len(a.l)
    for i in range(3): emit(p3_mm(of, T[i][0], T[i][1], 4, False))
    gap = 6 - (len(a.l) - n0 - 1)
    if gap > 0: a("s_nop %d" % (gap - 1))
    for i, (hh, k) in enumerate(T):
        for g in (2, 3): emit(p3_mm(of, hh, k, g, False))
        if k == 4: w = "ds_write_b128 v%d, %s offset:%d" % (vP3 + 1, vr(vAC4, 4), P3_OFF[1])
        else: w = "ds_write_b128 v%d, %s offset:%d" % (vP3, vr(vAC[hh] + 4 * k, 4), P3_OFF[1] + 4 * P3_PART * hh + 64 * k)
        pend.append([8, w])
        if i + 3 < len(T):
            if i + 3 == 5:
                a([y for y in side if y], br); side = []
            emit(p3_mm(of, T[i + 3][0], T[i + 3][1], 4, False))


def p3_flush(a, pend):
    while pend:
        n = pend[0][0]
        if n > 0:
            a("s_nop %d" % (n - 1))
            for p_ in pend: p_[0] -= n
        a(pend.pop(0)[1])
        for p_ in pend: p_[0] -= 1


P3_ROW, P3_PART = 272, 16 * 272
P3_SH = 8 * P3_PART


def p3_addr(a, t):
    L = vLANE
    a("v_and_b32 v24, 15, v%d" % L, "v_lshrrev_b32 v%d, 4, v%d" % (t + 5, L),
      "s_mul_i32 s%d, s%d, %d" % (sT0, sKQ, P3_PART), "s_add_u32 s%d, s%d, %d" % (sT0, sT0, P3_BASE),
      "v_lshl_add_u32 v%d, v%d, 4, s%d" % (t, t + 5, sT0), "v_mad_u32_u24 v%d, v24, s%d, v%d" % (t, sC272, t),
      "s_mul_i32 s%d, s%d, 1280" % (sT0, sKQ), "s_add_u32 s%d, s%d, %d" % (sT0, sT0, P3_BASE + P3_SH),
      "v_lshl_add_u32 v%d, v%d, 4, s%d" % (t + 1, t + 5, sT0), "v_mad_u32_u24 v%d, v24, s%d, v%d" % (t + 1, sC80, t + 1),
      "s_lshl4_add_u32 s%d, s%d, s%d" % (sT0, sKH, sKQ), "s_mul_i32 s%d, s%d, %d" % (sT0, sT0, 4 * P3_ROW), "s_add_u32 s%d, s%d, %d" % (sT0, sT0, P3_BASE),
      "v_lshl_add_u32 v%d, v24, 4, s%d" % (t + 2, sT0), "v_mad_u32_u24 v%d, v%d, s%d, v%d" % (t + 2, t + 5, sC272, t + 2),
      "v_mul_u32_u24 v%d, 1152, v%d" % (t + 4, t + 5), "v_lshl_add_u32 v%d, v24, 3, v%d" % (t + 4, t + 4),
      "v_lshrrev_b32 v24, 2, v%d" % L, "v_and_b32 v%d, 3, v%d" % (t + 5, L),
      "v_mul_u32_u24 v%d, 80, v24" % (t + 3), "v_lshl_add_u32 v%d, v%d, 4, v%d" % (t + 3, t + 5, t + 3), "v_add_u32 v%d, %d, v%d" % (t + 3, P3_BASE + P3_SH, t + 3),
      "v_mul_u32_u24 v24, 1152, v24", "v_lshl_add_u32 v%d, v%d, 3, v24" % (t + 5, t + 5))


def p3_finish(a, part, cls, halves, d, pk, colds):
    t = vP3
    def rd(src, off, step, x):
        for k in range(4): a("ds_read_b128 %s, v%d offset:%d" % (vr(x + 4 * k, 4), src, P3_OFF[part] + off + step * k))
    def fin(x, va, so, left):
        for k in range(1, 4):
            if left is not None: a("s_waitcnt lgkmcnt(%d)" % (left + 3 - k))
            if pk: a(["v_pk_add_f32 %s, %s, %s" % (vr(x + i, 2), vr(x + i, 2), vr(x + 4 * k + i, 2)) for i in (0, 2)])
            else: a(["v_add_f32 v%d, v%d, v%d" % (x + i, x + i, x + 4 * k + i) for i in range(4)])
        a("v_cvt_pk_bf16_f32 v%d, v%d, v%d" % (x, x, x + 1), "v_cvt_pk_bf16_f32 v%d, v%d, v%d" % (x + 1, x + 2, x + 3),
          "buffer_store_dwordx2 %s, v%d, %s, s%d offen" % (vr(x, 2), va, srd(sOUT), so))
    def body(shared):
        for n, hh in enumerate(halves): rd(t + 2, 4 * P3_PART * (hh - cls), P3_PART, d + 16 * n)
        if shared: rd(t + 3, 0, 1280, d + 32)
        for n, hh in enumerate(halves): fin(d + 16 * n, t + 4, sOCOL + hh, 4 * (len(halves) - 1 - n + shared))
        if shared: fin(d + 32, t + 5, sOCOL + 2, 0)
    return body


KDX = []


def kd(name, lds=False):
    return """.amdhsa_kernel %s
  .amdhsa_next_free_vgpr 256
  .amdhsa_next_free_sgpr 96
  .amdhsa_accum_offset 256
  .amdhsa_group_segment_fixed_size 0
  .amdhsa_kernarg_size 48
  .amdhsa_user_sgpr_count 2
  .amdhsa_user_sgpr_kernarg_segment_ptr 1
  .amdhsa_system_sgpr_workgroup_id_x 1
%s.end_amdhsa_kernel""" % (name, "".join("  .amdhsa_%s\n" % x for x in KDX))


def head(a, name):
    a(".globl %s" % name, ".p2align 12", ".p2align 8", ".type %s,@function" % name, "%s:" % name)


def plan2(wb, xb, pre="w0 x0 x1 w1 x2", xfirst=False):
    p = [(-1, t[0], int(t[1:])) for t in pre.split()]
    w0, x0 = 9 - len(wb), 18 - len(xb)
    for b in range(18):
        w = [(b, "w", s) for s in range(w0, 9) if wb[s - w0] == b]
        x = [(b, "x", s) for s in range(x0, 18) if xb[s - x0] == b]
        p += x + w if xfirst else w + x
    return p


DEF = dict(plan=plan2([0, 0, 1, 2, 3, 4, 5], [0, 1, 2, 3, 4, 5, 6, 6, 7, 7, 8, 8, 12, 13, 13]), early0=1, npre=4, dmapos=0, p1prio=0, ftmaj=0, rotx=0, align=1, tag_step=4, flag_step=12, flag_pos='side0',
           poll_step=16, check_step=16, init_steps=(15, 3), e_sleep=0, pf_code=1, pf_x=1, idle_sleep=2, canary=1, per0=2, per1=1,
           nsolo=6, pos=[2, 6, 14, 18, 22, 26, 30],
           w0=[(1, 0), (1, 2)], kv1=['fill', (0, 1)], st1=[(0, 3), (0, 3)], w1=[(1, 6), (2, 3)], f1=[(2, 1), (2, 5), (2, 6)], pollL=[(5, 0), (6, 2)], kv2=[(6, 2), (6, 2), (6, 3), (6, 3), (6, 3)], w2=[(8, 2), (8, 3)], uswap=1, age=None, qdma=1, tagc=9, k2=0,
           kv3=[(8, 5), (8, 6), (9, 0), (9, 1), (9, 2)], w3=[(13, 2), (16, 3)], wo=[(11, 2), (13, 3), 14, (2, 3, 5)], poison=[0, (10, 2), (26, 2)],
           opoll=[(30, 5), (31, 1), (31, 1)], two=(31, 3), both=1, rsleep=1, emark=0, c1lag=4, pipe3=0, near=1, shift=42.5, one=0, bias=0, wall=0, kdx=['float_denorm_mode_32 3'], expop='v_exp_f32', snake=0, w7early=0, hint=(31, 4), h_sleep=0, e_pipe=0, i_pipe=0, h_pipe=0, warm=1, nopk=[0, 0], xw_sleep=0, try1=0, res4=0, yprio=0, fpk=[0, 1], full=0, xprio2=0, outmod=['', ''],
           prio={(0, 4): 2, (2, 2): 1, (6, 3): 0, (7, 5): 3, (26, 0): 2, (30, 5): 1, (31, 2): 0}, priox={(22, 0): 2})


sF0, sF1 = 57, 58
sIDLE = 83
OOB = 0x7ffff000
MASTER = 242


def spin_guard(a, out):
    a("s_add_u32 s%d, s%d, 1" % (sSPIN, sSPIN), "s_cmp_gt_u32 s%d, 0x80000" % sSPIN, "s_cbranch_scc1 %s" % out)


def tag_issue(a):
    a.vmem("buffer_load_dword v%d, off, %s, 0 sc1" % (vTAG, srd(sDBG)), "tag")


def tag_check(a, colds):
    lp = a.uid("tag")
    a.wait(vm="tag")
    a("%s:" % lp, "v_readfirstlane_b32 s%d, v%d" % (sTAG, vTAG), "s_cmp_eq_u32 s%d, 0" % sTAG, "s_cbranch_scc1 %s_r" % lp, "%s_k:" % lp)
    def cold():
        a("%s_r:" % lp); spin_guard(a, lp + "_k")
        a("s_sleep 4", "buffer_load_dword v%d, off, %s, 0 sc1" % (vTAG, srd(sDBG)), "s_waitcnt vmcnt(0)", "s_branch %s" % lp)
    colds.append(cold)


FULL = [1]


def flag_store(a, soff, level, track=True, word=False):
    if word or (level and not FULL[0]):
        a("s_mov_b64 exec, 1")
        x = "buffer_store_dword v%d, off, %s, s%d offset:%d sc1" % (vTAG, srd(sWS), soff, 4 * (level - 1))
    else:
        if level == 0: a("v_mov_b64 %s, 0" % vr(vT, 2))
        if level == 2: a("v_mov_b32 v%d, v%d" % (vT, vTAG), "v_mov_b32 v%d, v%d" % (vT + 1, vTAG))
        a("s_mov_b64 exec, 0xff")
        x = "buffer_store_dwordx4 %s, v%d, %s, s%d offen sc1" % (vr(vTAG if level == 1 else vT, 4), vL16, srd(sWS), soff)
    if track: a.vmem(x, "flag")
    else: a(x)
    a("s_mov_b64 exec, -1")


def poll(a, va, colds, sleep=2, off=0):
    x = "buffer_load_dword v%d, v%d, %s, 0 offen offset:%d sc1" % (vPD, va, srd(sWS), off)
    def issue(): a.vmem(x, "poll")
    def check(mask=None):
        lp = a.uid("poll")
        a.wait(vm="poll")
        a("%s:" % lp, "v_cmp_ne_u32 vcc, s%d, v%d" % (sTAG, vPD))
        if mask is None: a("s_cbranch_vccnz %s_r" % lp)
        else: a("s_and_b32 vcc_lo, vcc_lo, %s" % mask, "s_cbranch_scc1 %s_r" % lp)
        a("%s_k:" % lp)
        def cold():
            a("%s_r:" % lp); spin_guard(a, lp + "_k")
            if sleep: a("s_sleep %d" % sleep)
            a(x, "s_waitcnt vmcnt(0)", "s_branch %s" % lp)
        colds.append(cold)
    return issue, check


def fused_setup(a):
    L = vLANE
    a("s_lshr_b32 s%d, s%d, 1" % (sT0, sHEAD), "s_mul_i32 s%d, s%d, 36" % (sT0, sT0), "s_and_b32 s%d, s%d, 1" % (sT1, sHEAD),
      "s_lshl_b32 s%d, s%d, 4" % (sT1, sT1), "s_add_u32 s%d, s%d, s%d" % (sT0, sT0, sT1),
      "v_min_u32 v%d, 11, v%d" % (vL16, L),
      "v_and_b32 v%d, 1, v%d" % (vPA, vL16), "v_mul_u32_u24 v%d, 19, v%d" % (vPA, vPA), "v_add_u32 v%d, s%d, v%d" % (vPA, sT0, vPA),
      "v_lshrrev_b32 v%d, 2, v%d" % (vL8, vL16), "v_sub_u32 v%d, 2, v%d" % (vL8, vL8), "v_mul_u32_u24 v%d, 576, v%d" % (vL8, vL8),
      "v_add_u32 v%d, v%d, v%d" % (vPA, vPA, vL8), "v_lshrrev_b32 v%d, 7, v%d" % (vPA, vPA),
      "s_lshl1_add_u32 s%d, s%d, s%d" % (sT0, sP, sKH), "s_lshr_b32 s%d, s%d, 1" % (sT1, sP), "s_lshl1_add_u32 s%d, s%d, s%d" % (sT1, sQI, sT1),
      "v_and_b32 v%d, 2, v%d" % (vL16, vL16), "v_lshl_add_u32 v%d, v%d, 2, s%d" % (vL16, vL16, sT0), "v_mov_b32 v%d, s%d" % (vL8, sT1),
      "v_cmp_le_u32 vcc, 8, v%d" % L, "v_lshlrev_b32 v%d, 11, v%d" % (vPA, vPA), "v_add_u32 v%d, %d, v%d" % (vPA, F01, vPA),
      "v_cndmask_b32 v%d, v%d, v%d, vcc" % (vL16, vL16, vL8),
      "v_lshl_add_u32 v%d, v%d, 7, v%d" % (vPA, vL16, vPA),
      "v_lshlrev_b32 v%d, 4, v%d" % (vL16, L), "v_lshlrev_b32 v%d, 3, v%d" % (vL8, L), "v_add_u32 v%d, 4096, v%d" % (vL8, vL8))
    late_setup(a); p3_addr(a, vP3)
    a("v_min_u32 v%d, 17, v%d" % (vPW, L), "v_lshlrev_b32 v%d, 2, v%d" % (vPW, vPW), "v_add_u32 v%d, %d, v%d" % (vPW, FW, vPW),
      "s_lshl2_add_u32 s%d, s%d, s%d" % (sT0, sXCD, sRT), "s_lshl2_add_u32 s%d, s%d, s%d" % (sT0, sT0, sKQ),
      "s_lshl_b32 s%d, s%d, 10" % (sT0, sT0), "s_add_u32 s%d, s%d, %d" % (sT0, sT0, FO),
      "v_min_u32 v%d, 7, v%d" % (vPO, L), "v_lshl_add_u32 v%d, v%d, 7, s%d" % (vPO, vPO, sT0),
      "s_lshl2_add_u32 s%d, s%d, s%d" % (sT0, sQI, sP), "s_lshl_b32 s%d, s%d, 5" % (sT0, sT0),
      "s_add_u32 s%d, s%d, s%d" % (sT0, sT0, sHEAD), "s_lshl_b32 s%d, s%d, 7" % (sT0, sT0),
      "s_add_u32 s%d, s%d, %d" % (sPF, sT0, FO))


def tlb_touch(a, cfg):
    l = a.uid("tlb")
    a("s_cmp_lg_u32 s%d, 7" % sWAVE, "s_cbranch_scc1 %s" % l,
      "v_and_b32 v2, 7, v%d" % vLANE, "v_mul_u32_u24 v2, %d, v2" % (4 * PITCH), "v_add_u32 v2, %d, v2" % (PITCH - 128),
      "v_and_b32 v3, 3, v%d" % vLANE, "v_mul_u32_u24 v3, %d, v3" % (16 * OTILE), "v_add_u32 v3, %d, v3" % (OBASE + OTILE - 128),
      "v_cmp_gt_u32 vcc, 8, v%d" % vLANE, "v_mov_b32 v4, %d" % (FW + 1024), "v_cmp_gt_u32 s[%d:%d], 12, v%d" % (sSAVE, sSAVE + 1, vLANE),
      "v_cndmask_b32 v2, v3, v2, vcc", "s_nop 0", "v_cndmask_b32 v2, v4, v2, s[%d:%d]" % (sSAVE, sSAVE + 1),
      "buffer_load_dword v44, v2, %s, 0 offen" % srd(sWS),
      "v_and_b32 v2, 3, v%d" % vLANE, "v_mul_u32_u24 v2, %d, v2" % (786432 - 128),
      "buffer_load_dword v45, v2, %s, 0 offen" % srd(sOUT), "%s:" % l)


vWW, vWC = 158, 159


def word_setup(a):
    a("s_and_b32 s%d, s%d, 1" % (sT0, sHEAD), "s_mul_i32 s%d, s%d, %d" % (sT0, sT0, (-2052) & 0xffffffff), "s_add_u32 s%d, s%d, 2052" % (sT0, sT0),
      "s_lshl3_add_u32 s%d, s%d, s%d" % (sT1, sWAVE, sT0), "v_mov_b32 v%d, s%d" % (vWW, sT1),
      "s_lshl_b32 s%d, s%d, 5" % (sT1, sKH), "s_add_u32 s%d, s%d, s%d" % (sT1, sT1, sT0),
      "v_and_b32 v%d, 3, v%d" % (vWC, vLANE), "v_lshl_add_u32 v%d, v%d, 3, s%d" % (vWC, vWC, sT1))


def word_set(a, stage, track=True, twice=False):
    a("s_mov_b64 exec, 1")
    x = "ds_write_b32 v%d, v0 offset:%d" % (vWW, 64 * stage)
    if twice: x = "ds_write2_b32 v%d, v0, v0 offset0:%d offset1:%d" % (vWW, 16 * stage, 16 * stage + 16)
    if track: a.lds(x)
    else: a(x)
    a("s_mov_b64 exec, -1")


def word_check(a, offs, colds, t=vT):
    xs = ["ds_read_b32 v%d, v%d offset:%d" % (t + k, vWC, o) for k, o in enumerate(offs)]
    def issue():
        for x in xs: a.lds(x, "word")
    def check(track=True):
        l = a.uid("word")
        if track: a.wait(lg="word")
        a("%s:" % l)
        for k in range(len(offs)): a("v_cmp_ne_u32 vcc, s%d, v%d" % (sTAG, t + k), "s_cbranch_vccnz %s_r" % l)
        a("%s_k:" % l)
        def cold():
            a("%s_r:" % l); spin_guard(a, l + "_k"); a("s_sleep 1", xs, "s_waitcnt lgkmcnt(0)", "s_branch %s" % l)
        colds.append(cold)
    return issue, check, xs


def gen_fused(cfg):
    NOPK[:] = cfg["nopk"]; FULL[0] = cfg["full"]; RES4[0] = cfg["res4"]; RSLEEP[0] = cfg["rsleep"]; ONE[0] = cfg["one"]; BIAS[0] = cfg["bias"]; KDX[:] = cfg["kdx"]
    SHIFT[0] = struct.unpack("<I", struct.pack("<f", cfg["shift"]))[0] >> 16
    a = Asm()
    name = NAME + "_kernel"
    head(a, name)
    prologue(a, "L_exit"); a(";STAMP 0")
    a("s_mov_b32 s%d, 0" % sSPIN, "s_mov_b32 s%d, 0x%x" % (sF1, OOB))
    a("s_mov_b32 s%d, 0" % sIDLE)
    p1_roles(a, "L_idle")
    def setup():
        a("L_setup:")
        p2_setup(a); p3_setup(a); fused_setup(a)
        a("s_cmp_lg_u32 s%d, 0" % sIDLE, "s_cbranch_scc1 L_idle2")
        a("s_lshl_b32 s%d, s%d, 11" % (sT0, sLINE), "s_lshl_b32 s%d, s%d, 7" % (sT1, sG), "s_add_u32 s%d, s%d, s%d" % (sT0, sT0, sT1),
          "s_add_u32 s%d, s%d, %d" % (sT0, sT0, F01),
          "s_cmp_eq_u32 s%d, 0" % sWAVE, "s_cselect_b32 s%d, s%d, s%d" % (sF1, sT0, sF1))
    p1_head(a, cfg, {"setup": setup, "setup2": lambda: flag_store(a, sF1, 0)})
    a("s_cmp_ge_u32 s%d, 9" % sLINE, "s_cbranch_scc1 L_p1v", "s_branch L_p1q")
    vm_head = list(a.vm)
    a("L_idle:"); a.vm = []; a.lg = []
    a("s_waitcnt lgkmcnt(0)")
    a("s_cmp_lg_u32 s2, %d" % MASTER, "s_cbranch_scc1 L_nomaster", "s_cmp_lg_u32 s%d, 0" % sWAVE, "s_cbranch_scc1 L_nomaster",
      "s_mov_b32 s%d, %d" % (sT0, FEPOCH), "buffer_load_dword v2, off, %s, s%d sc1" % (srd(sWS), sT0), "s_waitcnt vmcnt(0)",
      "v_readfirstlane_b32 s%d, v2" % sT1, "s_mul_i32 s%d, s%d, 0x41c64e6d" % (sT1, sT1), "s_add_u32 s%d, s%d, 12345" % (sT1, sT1),
      "s_cmp_eq_u32 s%d, 0" % sT1, "s_cselect_b32 s%d, 12345, s%d" % (sT1, sT1), "v_mov_b32 v2, s%d" % sT1, "s_mov_b64 exec, 1",
      "buffer_store_dword v2, off, %s, 0 sc1" % srd(sDBG), "buffer_store_dword v2, off, %s, s%d sc1" % (srd(sWS), sT0), "s_mov_b64 exec, -1",
      "L_nomaster:")
    if cfg["pf_code"]:
        a("s_getpc_b64 s[%d:%d]" % (sRET, sRET + 1), "L_pc:", "s_sub_u32 s%d, s%d, L_pc-%s" % (sRET, sRET, name), "s_subb_u32 s%d, s%d, 0" % (sRET + 1, sRET + 1),
          "s_cmp_lt_u32 s%d, 6" % sWAVE, "s_cbranch_scc1 L_nopf",
          "s_and_b32 s%d, s%d, 3" % (sT0, sJ), "v_and_b32 v2, 127, v0", "v_lshl_add_u32 v2, v2, 2, s%d" % sT0,
          "v_lshlrev_b32 v2, 7, v2", "v_min_u32 v2, L_pfend-%s-4, v2" % name, "global_load_dword v47, v2, s[%d:%d]" % (sRET, sRET + 1), "L_nopf:")
    if cfg["pf_x"]:
        l = a.uid("pf")
        a("s_and_b32 s%d, s%d, 3" % (sT0, sJ), "s_cmp_ge_u32 s%d, 4" % sWAVE, "s_cbranch_scc1 %s" % l,
          "s_lshr_b32 s%d, s%d, 1" % (sT1, sWAVE), "s_lshl1_add_u32 s%d, s%d, s%d" % (sT1, sT0, sT1),
          "s_lshr_b32 s%d, s%d, 2" % (sT2, sXCD), "s_mul_i32 s%d, s%d, 7" % (sT2, sT2), "s_and_b32 s%d, s%d, 2" % (sT3, sXCD),
          "s_lshl1_add_u32 s%d, s%d, s%d" % (sT3, sT3, sT1),
          "s_sub_u32 s%d, s%d, 5" % (sT4, sT3), "s_add_u32 s%d, s%d, 4" % (sT3, sT3), "s_cmp_lt_u32 s%d, 5" % sT1,
          "s_cselect_b32 s%d, 3, s%d" % (sT4, sT4), "s_cselect_b32 s%d, s%d, 8" % (sT3, sT3), "s_add_u32 s%d, s%d, s%d" % (sT2, sT2, sT4),
          "s_mul_i32 s%d, s%d, 3" % (sT4, sT2), "s_add_u32 s%d, s%d, s%d" % (sT3, sT3, sT4))
        rot_die(a, cfg, sT3, sT4)
        mod9(a, sT3, sT4)
        a("s_mul_i32 s%d, s%d, %d" % (sT3, sT3, 64 * 3456), "s_and_b32 s%d, s%d, 1" % (sT4, sWAVE), "s_lshl1_add_u32 s%d, s%d, s%d" % (sT2, sT2, sT4),
          "s_lshl_b32 s%d, s%d, 7" % (sT2, sT2), "s_add_u32 s%d, s%d, s%d" % (sT3, sT3, sT2),
          "v_mul_u32_u24 v2, 3456, v%d" % vLANE, "buffer_load_dword v47, v2, %s, s%d offen" % (srd(sW), sT3), "%s:" % l)
        a("s_barrier",
          "s_and_b32 s%d, s%d, 6" % (sT1, sXCD), "s_lshl1_add_u32 s%d, s%d, s%d" % (sT0, sT1, sT0), "s_and_b32 s%d, s%d, 1" % (sT1, sXCD),
          "s_lshl4_add_u32 s%d, s%d, s%d" % (sT0, sT1, sT0), "s_add_u32 s%d, s%d, 32" % (sT0, sT0), "s_mul_i32 s%d, s%d, %d" % (sT0, sT0, 32 * 1152),
          "s_cmp_ge_u32 s%d, 5" % sWAVE, "s_cselect_b32 s%d, 0x40000000, s%d" % (sT0, sT0),
          "v_min_u32 v2, 287, v0", "v_lshlrev_b32 v2, 7, v2", "buffer_load_dword v47, v2, %s, s%d offen" % (srd(sX), sT0))
    a("s_mov_b64 %s, %s" % (sr(sW, 2), sr(sWO, 2)), "s_mov_b32 s%d, 663552" % (sW + 2))
    a("s_mov_b32 s%d, 1" % sIDLE, "s_branch L_setup")
    def idle2():
      tag_issue(a); p2_init(a)
      wo_role(a, "L_nowo")
      a("s_lshl_b32 s%d, s%d, 2" % (sT0, sLINE), "s_add_u32 s%d, s%d, %d" % (sT0, sT0, FW - 4), "s_cmp_eq_u32 s%d, 0" % sWAVE, "s_cselect_b32 s%d, s%d, s%d" % (sF1, sT0, sF1))
      a("L_nowo:"); a.vm = ["tag"]; a.lg = []
    sF, sPo = cfg["flag_step"], cfg["poll_step"]
    colds = []
    def first_loads(n):
        l = a.uid("fl")
        keep = list(a.vm)
        a("s_cmp_%s_u32 s%d, 3" % (("eq", "lg")[n], sP), "s_cbranch_scc1 %s" % l)
        for k in range(3): kv_piece(a, 0, k)
        if n: a("%s:" % l)
        a("s_cmp_%s_u32 s%d, 2" % (("ge", "lt")[n], sP), "s_cbranch_scc1 %s_e" % l)
        for k in range(3, 5): kv_piece(a, 0, k)
        if n == 0:
            a("s_branch %s_e" % l, "%s:" % l); q_dma(a)
        a("%s_e:" % l)
        a.vm = keep
    for isv in (False, True):
        if cfg["align"]: a(".p2align 12")
        a("L_p1v:" if isv else "L_p1q:")
        a.vm = list(vm_head); a.lg = []
        hooks = {}
        hooks[("side", cfg["tag_step"])] = [lambda: tag_issue(a)]
        hooks[("step", cfg["tagc"])] = lambda: tag_check(a, colds)
        hooks[("waitfor", sF)] = [("st", 0)] + ([("d", 17)] if cfg["wall"] else [])
        hooks[(cfg["flag_pos"], sF)] = [lambda: flag_store(a, sF1, 1)]
        pi, pc = poll(a, vPA, colds, sleep=cfg["e_sleep"])
        tmp = Asm(); p2_init(tmp)
        ini = [x.strip() for x in tmp.l]
        st0, nst = cfg["init_steps"]
        n = -(-len(ini) // nst)
        for k in range(nst): hooks.setdefault(("side", st0 + k), []).extend((lambda x=x: a(x)) for x in ini[k * n:(k + 1) * n])
        if sPo < 18: hooks.setdefault(("side", sPo), []).insert(0, pi)
        else: hooks["pre_epi1"] = pi
        cs = cfg["check_step"]
        hooks[("step", cs)] = lambda: (pc(), a(";STAMP 8"))
        hooks[("bar", cs + 1)] = lambda: (first_loads(0), a(";STAMP 1"))
        hooks["pre_epi1"] = lambda: a(";STAMP 2")
        hooks["mid_epi1"] = lambda stores: (a("s_add_u32 s%d, s%d, %d" % (sST2, sST, 256 if isv else 2048)), first_loads(1))
        p1_body(a, isv, cfg, hooks)
        if cfg["near"]:
            a("s_cmp_lg_u32 s%d, 0" % sKH, "s_cbranch_scc1 L_attn1", "s_branch L_attn0")
            while colds: colds.pop()()
        else: a("s_branch L_attn")
    def idle_rest():
        a("L_idle2:"); a.vm = []; a.lg = []
        idle2()
        pi, pc = poll(a, vPA, colds, sleep=cfg["idle_sleep"])
        tag_check(a, colds); a(";STAMP 16")
        if cfg["canary"]:
            a("s_mov_b64 exec, 0x100"); pi(); pc(); a("s_mov_b64 exec, -1")
            pi, pc = poll(a, vPA, colds, sleep=cfg["e_sleep"])
        pi(); pc(); a(";STAMP 8", "s_barrier"); first_loads(0); a("s_barrier"); first_loads(1)
        a("s_mov_b32 s%d, 0x40000000" % sST, "s_mov_b32 s%d, 0x40000000" % sST2, "v_mov_b32 v%d, 0" % vSTA)
        a("s_branch L_attn")
    if cfg["align"]: a(".p2align 12")
    a("L_attn:", ";STAMP 19", "s_cmp_lg_u32 s%d, 0" % sKH, "s_cbranch_scc1 L_attn1", "L_attn0:")
    slows = []
    def slow(part, back, done):
        lab = a.uid("slowp"); slows.append((part, lab, back, done)); a("s_cbranch_vccnz %s" % lab)
    skip = cfg.get("skip", "")
    st1 = ["buffer_store_dwordx4 %s, v%d, %s, s%d offen sc1" % (vr(vACC[1] + 8 * n, 4), vSTA, srd(sWS), (sST, sST2)[n]) for n in range(2)]
    def run_colds(cs):
        k = 0
        while k < len(cs):
            cs[k](); k += 1

    def attn(cls):
        colds = []
        cf = dict(cfg); cf.update(cfg.get("XY"[cls], {}))
        cf["prio"] = dict(cf["prio"])
        if cls == 0: cf["prio"].update(cf["priox"])
        cf["priox"] = {}
        a.vm = [("kv", 0)]; a.lg = []
        ev = {}
        def at(k, f, name=None):
            if name and name in skip.split(): return
            g = ev.get(k)
            ev[k] = f if g is None else (lambda: (g(), f()))
        for k in range(2): at(cf["st1"][k], lambda k=k: a.vmem(st1[k], "st1"))
        def b0():
            l = a.uid("b0")
            q_addr(a)
            a("s_setprio 3", "s_waitcnt vmcnt(5)", "s_cmp_eq_u32 s%d, 3" % sP, "s_cbranch_scc1 %s" % l, "s_waitcnt vmcnt(2)",
              "s_cmp_eq_u32 s%d, 2" % sP, "s_cbranch_scc1 %s" % l, "s_waitcnt vmcnt(0)", "%s:" % l, ";STAMP 4", "s_barrier", ";STAMP 6")
            q_read(a)
            if BIAS[0]: brd()
        at(("pre", 0), b0)
        brd, binit = o_bias(a, cls)
        if BIAS[0]: at("fill", binit)
        def stage(st, pos_set, pos_rd, pos_chk):
            wi, wc, xs = word_check(a, [64 * st], colds)
            at(pos_set, lambda: (a.wait(vm=("kv", st)), word_set(a, st)))
            at(pos_rd, wi); at(pos_chk, wc)
        def spread(pos, st):
            if len(pos) == 2: pos = [pos[0]] * 3 + [pos[1]] * 2
            for k, p_ in enumerate(pos): at(p_, lambda k=k: kv_piece(a, st, k))
        spread(cf["kv1"], 1)
        stage(0, cf["w0"][0], cf["w0"][1], ("prev", 2))
        stage(1, cf["w1"][0], cf["w1"][1], ("pre", 4))
        at(cf["f1"][0], lambda: (a.wait(vm="st1"), word_set(a, CHUNK // 64)))
        if cls == 0:
            wi, wc, xs = word_check(a, [CHUNK, CHUNK + 32], colds)
            at(cf["f1"][1], wi); at(cf["f1"][2], lambda wc=wc: (wc(), flag_store(a, sF1, 2, word=True)))
        pi, pc = poll(a, vPA, colds, off=4)
        at(cf["pollL"][0], pi)
        at(cf["pollL"][1], lambda: (pc(), a(";STAMP 9"), q_load(a, 1)))
        spread(cf["kv2"], 2)
        ev["ql"] = lambda: a.wait(vm=("q", 1))
        stage(2, cf["w2"][0], cf["w2"][1], ("pre", 8))
        spread(cf["kv3"], 3)
        assert cf["w3"][0] >= (13, 0) and cf["nsolo"] == 6
        stage(3, cf["w3"][0], cf["w3"][1], ("pre", 12))
        def meet():
            if cls == 0: send_partial(a, 0)
            else:
                a.wait(vm="all"); finalize(a, 0, slow, colds); a.lg = []
            a("v_subrev_u32 v%d, %d, v%d" % (vSA, LDS_SPARE - 12 * CHUNK, vSA))
            word_set(a, 4)
        at((25, 3), meet)
        ofe = [(vO[0], vQ[0]), (vS[0], vS[0] + 16)]
        ofl = [(vS[1], vK + 4), (vS[1] + 16, vK + 6)]
        if cls == 1:
            at(cf["poison"][1], lambda: (poison(a, (0, 1) if cf["emark"] else (1,)), flag_store(a, sPF, 0)))
            at(cf["poison"][2], lambda: (cf["emark"] or a.wait(vm="all"), flag_store(a, sPF, 1)))
            at(cf["hint"], lambda: flag_store(a, sPF, 2))
            at((31, 5), lambda: [a.lds(x) for x in fin_reads(1)])
            p2_main(a, cf, ev)
            a(";STAMP 7", "v_subrev_u32 v%d, 32, v%d" % (vWC, vWC))
            if cf["hint"] == (32, 0): flag_store(a, sPF, 2); a("s_nop 2")
            else: a("s_nop 5")
            finalize(a, 1, slow, colds, prefetched=True, before_store=(lambda: word_set(a, 7)) if cf["w7early"] else None)
            if not cf["w7early"]: word_set(a, 7)
            if cf["hint"] == (33, 0): flag_store(a, sPF, 2)
            a(";STAMP 10"); a.lg = []
            wi, wc, xs = word_check(a, [384], colds)
            wi(); wc()
            a("s_cmp_eq_u32 s%d, 0" % sKQ, "s_cbranch_scc1 L_ysh")
            for shared in range(2):
                if shared: a("L_ysh:")
                p3_finish(a, 0, 1, (1, 0), vS[0], cf["fpk"][0], colds)(shared)
                a(";STAMP 12")
                for i in (1, 2): a("s_add_u32 s%d, s%d, %d" % (sOCOL + i, sOCOL + i, 1024 * 1152))
                a("s_setprio %d" % shared, "s_barrier")
                p3_finish(a, 1, 1, (1,), vWO + 2, cf["fpk"][1], colds)(shared)
                a(";STAMP 15", ";STAMPWAIT", ";STAMP 5", ";STAMPEND", "s_endpgm")
        else:
            pi2, pc2 = poll(a, vPW, colds)
            at(cf["wo"][0], pi2, "wo"); at(cf["wo"][1], pc2, "wo")
            for k in range(25):
                n = cf["wo"][3]
                at((cf["wo"][2] + k // len(n), n[k % len(n)]), lambda k=k: wo_load(a, [k // 5], vL16, vL8, only=k % 5), "wo")
            sOM = 35
            at(cf["w3"][0], lambda: a("v_xor_b32 v%d, 0x100, v%d" % (vOA2, vOA), "v_xor_b32 v%d, 64, v%d" % (vOB2, vOB),
                                      ["s_add_u32 s%d, s%d, %d" % (sOM + i, sOL + i, 32 * OTILE) for i in range(3)],
                                      "s_add_u32 s%d, s%d, %d" % (sOCOL, sOCOL, 1024 * 1152)))
            pi3, pc3 = poll(a, vPO, colds)
            G5 = (4, 0, 1, 2, 3)
            at(cf["opoll"][0], pi3)
            at(cf["opoll"][1], lambda: (pc3(), o_load(a, ofe, [(0, g) for g in G5], sOL, "oe")))
            assert cf["opoll"][2] >= (31, 0)
            at(cf["opoll"][2], lambda: o_load(a, ofe, [(1, g) for g in G5], sOL, "oe"))
            wi, wc, xs = word_check(a, [256, 288], colds, t=vQ[0] + 2)
            at((31, 3), wi)
            pi4, pc4 = poll(a, vPO, colds, sleep=cf["h_sleep"], off=4)
            two = cf["two"]
            S1 = [(hh, g) for hh in range(2) for g in (0, 1)]
            S2 = [(hh, g) for hh in range(2) for g in ((4, 2, 3) if two else G5)]
            if two: at(cf["two"], pi4)
            p2_main(a, cf, ev)
            a(";STAMP 7")
            wc(); a("s_nop 7")
            send_partial(a, 1)
            sG1, sG2 = 38, 39
            c0 = c1 = b0_ = b1_ = []
            if cf["emark"]:
                c0, b0_ = o_check(a, ofe, [(0, g) for g in G5], sOL, colds)
                c1, b1_ = o_check(a, ofe, [(1, g) for g in G5], sOL, colds)
            a.wait(vm="all")
            a(c0, b0_)
            if two:
                a("s_mov_b32 s%d, 0" % sG1, "v_cmp_ne_u32 vcc, s%d, v%d" % (sTAG, vPD), "s_and_b32 vcc_lo, vcc_lo, 15", "s_cbranch_scc1 L_xw", "s_mov_b32 s%d, 1" % sG1)
                o_load(a, ofl, S1, sOM, "o1")
            a("L_xw:", "ds_read_b32 v%d, v%d offset:480" % (vT, vWW), "s_waitcnt lgkmcnt(0)",
              "v_cmp_ne_u32 vcc, s%d, v%d" % (sTAG, vT), "s_cbranch_vccnz L_xw2", "L_xw3:", ";STAMP 10")
            colds.append(lambda: (a("L_xw2:"), spin_guard(a, "L_xw3"), a("s_branch L_xw")))
            a.vm = []; pi4()
            pend = []
            p3_half(a, ofe, 0, G5, True, 0, pend, c1)
            a(b1_)
            p3_half(a, ofe, 1, G5, True, 0, pend)
            p3_flush(a, pend)
            word_set(a, 6)
            a(";STAMP 11")
            if two:
                a("s_cmp_eq_u32 s%d, 0" % sG1, "s_cbranch_scc1 L_g1", "s_waitcnt vmcnt(0)", "L_g1k:")
                def g1():
                    a("L_g1:"); a.vm = ["poll"]; pc4("15"); o_load(a, ofl, S1, sOM, "o1"); a("s_branch L_g1k")
                colds.append(g1)
                a("s_mov_b32 s%d, 1" % sG2, "v_cmp_ne_u32 vcc, s%d, v%d" % (sTAG, vPD), "s_cbranch_vccnz L_g2", ";STAMP 13")
                a.vm = []; o_load(a, ofl, S2, sOM, "o2")
                a("s_waitcnt vmcnt(8)", "L_g2k:")
                colds.append(lambda: (a("L_g2:", "s_mov_b32 s%d, 0" % sG2), pi4(), a("s_waitcnt vmcnt(1)", "s_branch L_g2k")))
                c, b = o_check(a, ofl, S1, sOM, colds)
                a(c, b)
                for hh in range(2): p3_half(a, ofl, hh, (0, 1), True, None, pend)
                a("s_cmp_eq_u32 s%d, 0" % sG2, "s_cbranch_scc1 L_g3", "L_g3k:")
                def g3():
                    keep = list(a.vm)
                    a("L_g3:"); a.vm = ["poll"]; pc4(); a(";STAMP 13"); o_load(a, ofl, S2, sOM, "o2"); a("s_branch L_g3k")
                colds.append(g3)
            else:
                pc4(); a(";STAMP 13")
                o_load(a, ofl, S2, sOM, "o2")
            gs = [g for hh, g in S2 if hh == 0]
            c0, b0_ = o_check(a, ofl, [(0, g) for g in gs], sOM, colds, S2 if cf["both"] else None)
            c1, b1_ = o_check(a, ofl, [(1, g) for g in gs], sOM, colds)
            a.wait(vm=("o2", 0)); a(";STAMP 12", c0, b0_)
            nside = cf["c1lag"]
            if two and cf["pipe3"]: p3_last(a, ofl, pend, [None] * nside + ["s_waitcnt vmcnt(0)"] + c1, b1_)
            else:
                p3_half(a, ofl, 0, gs, not two, 1, pend, [None] * nside + ["s_waitcnt vmcnt(0)"] + c1)
                a(b1_)
                p3_half(a, ofl, 1, gs, not two, 1, pend)
            p3_flush(a, pend)
            a(";STAMP 14", "s_waitcnt lgkmcnt(0)", "s_barrier")
            p3_finish(a, 1, 0, (0,), vWO + 2, cf["fpk"][1], colds)(0)
            a("L_end:", ";STAMP 15", ";STAMPWAIT", ";STAMP 5", ";STAMPEND", "L_exit:", "s_endpgm")
        run_colds(colds)

    attn(0)
    if cfg["align"]: a(".p2align 12")
    a("L_attn1:")
    attn(1)
    colds.append(idle_rest)
    run_colds(colds)
    a("L_pfend:")
    for part, lab, back, done in slows: slow_path(a, part, lab, back, done, lambda: None)
    hdr = ["; @launch grid=(256,1,1) block=(512,1,1) lds=%d" % LDS_TOTAL]
    return finish(a, hdr, [name])


def finish(a, hdr, names):
    errs = lint(a.l)
    for e in errs: print("HAZARD", e, file=sys.stderr)
    out = hdr + ['.amdgcn_target "amdgcn-amd-amdhsa--gfx950"', ".text"] + a.l + ['.section .rodata,"a"']
    for n in names: out += [".p2align 6", kd(n)]
    return "\n".join(out) + "\n"


if __name__ == "__main__":
    mode = sys.argv[1] if len(sys.argv) > 1 else "split"
    out = sys.argv[2] if len(sys.argv) > 2 else "cdna_kernels/%s.s" % NAME
    cfg = dict(DEF)
    for kv in sys.argv[3:]:
        k, v = kv.split("=", 1); cfg[k] = eval(v)
    txt = {"fused": gen_fused}[mode](cfg)
    open(out, "w").write(txt)
    print("wrote", out, len(txt.split("\n")), "lines")
```

```python
import sys, struct, math
from hazard import lint

NAME = "standalone__mha_block__prompt"

PITCH = 221184 + 128
SEC = 73728
OBASE = 32 * PITCH
OTILE = 36864 + 128
WOBASE = OBASE + 64 * OTILE
FBASE = WOBASE + 36 * 4 * 4608
F01 = FBASE
FRND = 27 * 8 * 128
FW = FBASE + 57344
FEPOCH = FW + 512
FO = FBASE + 65536
WS_SIZE = FO + 131072
CHUNK = 4864
LDS_SPARE = 32 * CHUNK
LDS_TOTAL = 163840
SCALE = struct.unpack("<I", struct.pack("<f", math.log2(math.e) / math.sqrt(18.0)))[0]

sX, sW, sWO, sOUT, sWS, sDBG = 4, 8, 12, 16, 20, 24
sWAVE, sXCD, sJ = 28, 29, 30
sTAG = 31
sLINE, sG, sSEC = 32, 33, 34
sXOFF, sWOFF, sM0X, sSCALE, sM0W, sST = 35, 36, 37, 38, 39, 40
sHEAD, sQI, sKH, sP = 41, 42, 43, 44
sVMASK = 46
sDMASK = 48
sCH, sQOFF = 50, 51
sCM = 45
sST2 = 39
sRT, sCB, sKQ, sRH = 52, 53, 54, 55
sFIVE = 56
sT0, sT1, sT2, sT3, sT4, sT5 = 60, 61, 62, 63, 64, 65
sRET = 66
sSPIN = 68
sWOF = 70
sOCOL = 75
sLOOP = 79
sSHF, sC272, sC80 = 69, 82, 59
sSAVE = 80

def srd(s): return "s[%d:%d]" % (s, s + 3)
def vr(a, n=1): return "v%d" % a if n == 1 else "v[%d:%d]" % (a, a + n - 1)
def sr(a, n=1): return "s%d" % a if n == 1 else "s[%d:%d]" % (a, a + n - 1)

vLANE = 1
vQ = [2, 8]
vIDX = 14
vAK, vAR, vAV = 15, 16, 17
vDMA = 18
vQA, vQR = 22, 23
vT = 24
vSA, vSB, vOA, vOB = 26, 27, 28, 29
vP3 = 30
vPW, vPO = 36, 37
vPA, vPD, vL16, vL8 = 38, 39, 40, 41
vTAG = 0
vAK1 = 47
vXS = 8
vWS = 9
vXR = 11
vWR = 42
vSTA = 46
vACC = [48, 64]
vXF = [80, 96]
vWF = 112
vWO = 42
vV = 132
vK = 148
vKR = 156
vO = [160, 176]
vS = [192, 224]


class Asm:
    def __init__(self):
        self.l = []
        self.vm = []
        self.lg = []
        self.n = 0
        self.clock = 0
        self.lgt = []
        self.age = None

    def __call__(self, *lines):
        for s in lines:
            if isinstance(s, (list, tuple)):
                self(*s)
            elif s.endswith(":") or s.startswith((".", ";")):
                self.l.append(s)
            else:
                self.l.append("    " + s)

    def uid(self, p):
        self.n += 1
        return "L_%s_%d" % (p, self.n)

    def vmem(self, s, tag):
        self(s); self.vm.append(tag)
        assert len(self.vm) <= 63

    def lds(self, s, tag=None):
        self(s); self.lg.append(tag); self.lgt.append(self.clock)

    def _cnt(self, q, tags):
        if not isinstance(tags, (list, set)): tags = [tags]
        last = max([k for k, t in enumerate(q) if t in tags], default=-1)
        return None if last < 0 else len(q) - 1 - last

    def wait(self, vm=None, lg=None):
        parts = []
        if vm is not None:
            n = 0 if vm == "all" else self._cnt(self.vm, vm)
            if n is not None:
                parts.append("vmcnt(%d)" % n); self.vm = self.vm[len(self.vm) - n:]
        if lg is not None:
            n = 0 if lg == "all" else self._cnt(self.lg, lg)
            if n is not None:
                if self.age is not None:
                    while n > 0 and self.clock - self.lgt[len(self.lgt) - n] >= self.age: n -= 1
                n = min(n, 15)
                parts.append("lgkmcnt(%d)" % n); self.lg = self.lg[len(self.lg) - n:]
        if parts: self("s_waitcnt " + " ".join(parts))


def prologue(a, endlabel):
    a(";STAMPINIT", ";STAMP 3", "s_cmp_ge_u32 s2, 256", "s_cbranch_scc1 %s" % endlabel)
    for k, s in enumerate((sX, sW, sWO, sOUT, sDBG, sWS)):
        a("s_load_dwordx2 %s, s[0:1], %d" % (sr(s, 2), 8 * k))
    for s, n in ((sX, 2359296), (sW, 1990656), (sWO, 663552), (sOUT, 2359296), (sDBG, 256), (sWS, WS_SIZE)):
        a("s_mov_b32 s%d, %d" % (s + 2, n), "s_mov_b32 s%d, 0x00020000" % (s + 3))
    a("v_lshrrev_b32 v2, 6, v0", "v_and_b32 v%d, 63, v0" % vLANE, "v_readfirstlane_b32 s%d, v2" % sWAVE,
      "s_and_b32 s%d, s2, 7" % sXCD, "s_lshr_b32 s%d, s2, 3" % sJ)


def p1_roles(a, idle):
    a("s_cmp_ge_u32 s%d, 28" % sJ, "s_cbranch_scc1 %s" % idle,
      "s_lshr_b32 s%d, s%d, 1" % (sT1, sXCD), "s_mul_i32 s%d, s%d, 28" % (sT1, sT1), "s_add_u32 s%d, s%d, s%d" % (sT1, sT1, sJ),
      "s_lshr_b32 s%d, s%d, 3" % (sLINE, sT1), "s_and_b32 s%d, s%d, 7" % (sT5, sT1),
      "s_and_b32 s%d, s%d, 1" % (sG, sXCD), "s_lshl3_add_u32 s%d, s%d, s%d" % (sG, sG, sT5))


XBASE = 98304
def xslot(s): return XBASE + 8192 * (s % 8)
def wslot(s): return 16384 * (s % 6)


def mod9(a, d, t):
    a("s_mul_i32 s%d, s%d, 57" % (t, d), "s_lshr_b32 s%d, s%d, 9" % (t, t), "s_mul_i32 s%d, s%d, 9" % (t, t), "s_sub_u32 s%d, s%d, s%d" % (d, d, t))


def rot_die(a, cfg, d, t):
    if cfg["rotx"] == 1: a("s_lshr_b32 s%d, s%d, 1" % (t, sXCD), "s_add_u32 s%d, s%d, s%d" % (d, d, t))
    if cfg["rotx"] == 2: a("s_add_u32 s%d, s%d, s%d" % (d, d, sXCD))
    if cfg["rotx"] == 3:
        a("s_lshr_b32 s%d, s%d, 1" % (t, sXCD), "s_add_u32 s%d, s%d, s%d" % (d, d, t), "s_and_b32 s%d, s%d, 1" % (t, sXCD), "s_lshl2_add_u32 s%d, s%d, s%d" % (d, t, d))


def p1_issue(a, kind, s):
    if kind == "w":
        def f0():
            a("s_add_u32 m0, s%d, %d" % (sM0W, wslot(s)))
            if s: a("s_add_u32 s%d, s%d, %d" % (sWOFF, sWOFF, 64 * 3456), "s_cmp_eq_u32 s%d, %d" % (sWOFF, 576 * 3456), "s_cselect_b32 s%d, 0, s%d" % (sWOFF, sWOFF))
            else: a("s_nop 0")
            a.vmem("buffer_load_dwordx4 v%d, %s, s%d offen lds" % (vWS, srd(sW), sWOFF), ("w", s))
        def f1():
            a.vmem("buffer_load_dwordx4 v%d, %s, s%d offen offset:1024 lds" % (vWS + 1, srd(sW), sWOFF), ("w", s))
        return [f0, f1]
    def fx():
        a("s_add_u32 m0, s%d, %d" % (sM0X, xslot(s)))
        if s: a("s_add_u32 s%d, s%d, 128" % (sXOFF, sXOFF), "s_cmpk_eq_u32 s%d, 1152" % sXOFF, "s_cselect_b32 s%d, 0, s%d" % (sXOFF, sXOFF))
        else: a("s_nop 0")
        if s == 9: a("v_add_u32 v%d, %d, v%d" % (vXS, 1024 * 1152, vXS))
        a.vmem("buffer_load_dwordx4 v%d, %s, s%d offen lds" % (vXS, srd(sX), sXOFF), ("d", s))
    return [fx]


def p1_head(a, cfg, hooks):
    L = vLANE
    t0, t1, t2, t3 = 38, 39, 40, 41
    a("s_and_b32 s%d, s%d, 1" % (sT0, sWAVE), "s_lshl_b32 s%d, s%d, 2" % (sT1, sT0),
      "v_lshrrev_b32 v%d, 4, v%d" % (t0, L), "v_add_u32 v%d, s%d, v%d" % (t1, sT1, t0),
      "v_and_b32 v%d, 15, v%d" % (t2, L), "v_lshlrev_b32 v%d, 1, v%d" % (t3, t1), "v_xor_b32 v%d, v%d, v%d" % (t2, t2, t3),
      "s_mul_i32 s%d, s%d, %d" % (sT2, sWAVE, 8 * 3456), "s_lshl_b32 s%d, s%d, 8" % (sT3, sLINE), "s_add_u32 s%d, s%d, s%d" % (sT2, sT2, sT3),
      "v_mul_u32_u24 v%d, 3456, v%d" % (t0, t0), "v_lshl_add_u32 v%d, v%d, 4, s%d" % (vWS, t2, sT2),
      "s_cmp_eq_u32 s%d, 13" % sLINE, "s_cselect_b32 s%d, 8, 0" % sT3, "v_and_b32 v%d, s%d, v%d" % (t2, sT3, t2),
      "v_lshl_add_u32 v%d, v%d, 26, v%d" % (t0, t2, t0), "v_add_u32 v%d, v%d, v%d" % (vWS, vWS, t0),
      "v_add_u32 v%d, %d, v%d" % (vWS + 1, 4 * 3456 - 1024, vWS))
    a("s_mul_i32 s%d, s%d, 3" % (sT2, sLINE), "s_add_u32 s%d, s%d, s%d" % (sT2, sT2, sT5))
    rot_die(a, cfg, sT2, sT3)
    mod9(a, sT2, sT3)
    a("s_lshl_b32 s%d, s%d, 7" % (sXOFF, sT2), "s_mul_i32 s%d, s%d, %d" % (sWOFF, sT2, 64 * 3456),
      "s_lshl_b32 s%d, s%d, 10" % (sM0X, sWAVE), "s_lshl_b32 s%d, s%d, 11" % (sM0W, sWAVE))
    a("v_lshrrev_b32 v%d, 3, v%d" % (t0, L), "v_and_b32 v%d, 7, v%d" % (t2, L), "v_xor_b32 v%d, v%d, v%d" % (t2, t2, t1),
      "s_cmp_ge_u32 s%d, 9" % sLINE, "s_cselect_b32 s%d, 2, 0" % sT3, "s_cselect_b32 s%d, 4, 7" % sT4,
      "s_bfe_u32 s%d, s%d, 0x10001" % (sT1, sWAVE), "s_lshl_b32 s%d, s%d, s%d" % (sT1, sT1, sT3),
      "s_lshl4_add_u32 s%d, s%d, s%d" % (sT1, sT0, sT1), "s_and_b32 s%d, s%d, 4" % (sT2, sWAVE), "s_lshl3_add_u32 s%d, s%d, s%d" % (sT1, sT2, sT1),
      "s_lshl_b32 s%d, s%d, 6" % (sT2, sG), "s_add_u32 s%d, s%d, s%d" % (sT1, sT1, sT2),
      "v_and_b32 v%d, s%d, v%d" % (t3, sT4, t0), "v_add3_u32 v%d, v%d, v%d, s%d" % (t3, t3, t0, sT1),
      "v_mul_u32_u24 v%d, 1152, v%d" % (t3, t3), "v_lshl_add_u32 v%d, v%d, 4, v%d" % (vXS, t2, t3))
    a("s_waitcnt lgkmcnt(0)", ";STAMP 17")

    issue = lambda kind, s: p1_issue(a, kind, s)
    plan = cfg["plan"]
    assert sorted((k, s) for _, k, s in plan) == sorted([("w", s) for s in range(9)] + [("x", s) for s in range(18)])
    for b, kind, s in plan:
        assert b < s and (kind == "w" and (s < 6 or b >= s - 5) or kind == "x" and (s < 8 or b >= s - 7))
    pre = [(kind, s) for b, kind, s in plan if b < 0]
    for kind, s in pre[:cfg["npre"]]:
        for f in issue(kind, s): f()
    t0, t1, t2, t3 = 48, 49, 50, 51
    hooks["setup"]()

    a("s_lshr_b32 s%d, s%d, 2" % (sT0, sWAVE), "s_and_b32 s%d, s%d, 3" % (sT1, sWAVE),
      "s_lshl_b32 s%d, s%d, 12" % (sT2, sT0), "s_add_u32 s%d, s%d, %d" % (sT2, sT2, XBASE),
      "v_and_b32 v%d, 15, v%d" % (t0, L), "v_lshrrev_b32 v%d, 4, v%d" % (t1, L),
      "v_bfe_u32 v%d, v%d, 1, 3" % (t2, L), "v_xor_b32 v%d, v%d, v%d" % (t2, t2, t1),
      "v_lshlrev_b32 v%d, 4, v%d" % (t2, t2),
      "v_lshl_add_u32 v%d, v%d, 7, s%d" % (t3, t0, sT2),
      "v_add_u32 v%d, v%d, v%d" % (vXR, t2, t3), "v_xor_b32 v%d, 64, v%d" % (vXR + 1, vXR))
    a("v_bfe_u32 v%d, v%d, 2, 2" % (t2, L), "v_lshl_add_u32 v%d, v%d, 3, v%d" % (t2, t1, t2),
      "v_lshlrev_b32 v%d, 8, v%d" % (vWR, t2),
      "v_and_b32 v%d, 3, v%d" % (t2, L), "v_lshl_add_u32 v%d, v%d, 3, v%d" % (vWR, t2, vWR),
      "s_lshl_b32 s%d, s%d, 1" % (sT2, sT1),
      "v_bfe_u32 v%d, v%d, 2, 3" % (t2, L), "v_xor_b32 v%d, s%d, v%d" % (t2, sT2, t2),
      "v_lshl_add_u32 v%d, v%d, 5, v%d" % (vWR, t2, vWR),
      "v_xor_b32 v%d, 32, v%d" % (vWR + 1, vWR),
      "v_add_u32 v%d, 0x10000, v%d" % (vWR + 2, vWR), "v_add_u32 v%d, 0x10000, v%d" % (vWR + 3, vWR + 1))
    a("s_mul_i32 s%d, s%d, %d" % (sST, sG, PITCH), "v_lshlrev_b32 v%d, 4, v%d" % (t0, t0),
      "s_lshl2_add_u32 s%d, s%d, s%d" % (sT2, sLINE, sT1),
      "s_cmp_ge_u32 s%d, 54" % sT2, "s_cselect_b32 s%d, 0x40000000, s%d" % (sST, sST),
      "s_mov_b32 s%d, 0x%08x" % (sT4, SCALE), "s_cmp_lt_u32 s%d, 18" % sT2, "s_cselect_b32 s%d, s%d, 1.0" % (sSCALE, sT4),
      "s_movk_i32 s%d, 256" % sT4, "s_movk_i32 s%d, 512" % sT5, "s_cmp_ge_u32 s%d, 9" % sLINE,
      "s_cselect_b32 s%d, %d, s%d" % (sT4, 4 * 9216, sT4), "s_cselect_b32 s%d, 9216, s%d" % (sT5, sT5),
      "s_cselect_b32 s%d, 9, 12" % sT1, "s_cselect_b32 s%d, %d, 0" % (sT3, 2 * SEC - 18 * 1024),
      "s_mul_i32 s%d, s%d, s%d" % (sT0, sT0, sT4), "s_lshl_b32 s%d, s%d, s%d" % (sT2, sT2, sT1),
      "s_add_u32 s%d, s%d, s%d" % (sST, sST, sT3), "s_add_u32 s%d, s%d, s%d" % (sST, sST, sT2), "s_add_u32 s%d, s%d, s%d" % (sST, sST, sT0),
      "v_mad_u32_u24 v%d, v%d, s%d, v%d" % (vSTA, t1, sT5, t0))
    a(";STAMP 18")
    for kind, s in pre[cfg["npre"]:]:
        for f in issue(kind, s): f()
    hooks["setup2"]()
    if cfg["p1prio"]:
        l = a.uid("pp"); a("s_cmp_lt_u32 s%d, 4" % sWAVE, "s_cbranch_scc1 %s" % l, "s_setprio 1", "%s:" % l)


def p1_body(a, isv, cfg, hooks):
    issue = lambda kind, s: p1_issue(a, kind, s)
    plan = cfg["plan"]

    def reads(s):
        r = []
        for m in range(2):
            for t in range(2):
                r.append("ds_read_b128 %s, v%d offset:%d" % (vr(vXF[s % 2] + 8 * m + 4 * t, 4), vXR + m, xslot(s) - XBASE + 2048 * t))
                if s < 9:
                    for h in range(2):
                        r.append("ds_read_b64_tr_b16 %s, v%d offset:%d" % (vr(vWF + 16 * s + 8 * m + 4 * t + 2 * h, 2), vWR + t + 2 * (wslot(s) >> 16),
                                                                           (wslot(s) & 0xffff) + (32 * m + 4 * h) * 256))
        return [(lambda x=x: a.lds(x)) for x in r]

    def mfmas(s):
        r = []
        for m in range(2):
            for ft in range(2):
                for tt in ((1, 0) if cfg["snake"] and ft else (0, 1)):
                    acc = vr(vACC[s // 9] + 8 * ft + 4 * tt, 4)
                    w = vr(vWF + 16 * (s % 9) + 8 * m + 4 * ft, 4); x = vr(vXF[s % 2] + 8 * m + 4 * tt, 4)
                    c = cfg.get("x_c0", "0") if (s % 9 == 0 and m == 0) else acc
                    r.append("v_mfma_f32_16x16x32_bf16 %s, %s, %s, %s" % ((acc, x, w, c) if isv else (acc, w, x, c)))
        return r

    def store(r, n):
        a.vmem("buffer_store_dwordx4 %s, v%d, %s, s%d offen offset:%d sc1" % (vr(vACC[r] + 8 * n, 4), vSTA, srd(sWS), sST, (256 if isv else 2048) * n), ("st", r))

    def epilogue(r):
        acc = vACC[r]
        mid = hooks.get("mid_epi1") if r else None
        for n in range(2):
            if not isv:
                for i in range(8 * n, 8 * n + 8, 2): a("v_pk_mul_f32 %s, %s, %s op_sel_hi:[1,0]" % (vr(acc + i, 2), vr(acc + i, 2), sr(sSCALE, 2)))
            for i in range(4): a("v_cvt_pk_bf16_f32 v%d, v%d, v%d" % (acc + 8 * n + i, acc + 8 * n + 2 * i, acc + 8 * n + 2 * i + 1))
            if not mid: store(r, n)
        if mid: mid(lambda: (store(r, 0), store(r, 1)))
        if r == 0: a("s_add_u32 s%d, s%d, %d" % (sST, sST, 16 * PITCH))

    for s in range(18):
        extra = hooks.get(("waitfor", s), [])
        a.wait(vm=[("d", s)] + [("w", s)] + extra, lg="all")
        a("s_barrier")
        a(";STAMP %d" % (20 + s))
        hooks.get(("bar", s), lambda: None)()
        side = reads(s)
        xp = cfg.get("x_p1", "")
        if "noread" in xp: side = []
        if "nowread" in xp: side = side[0::3] if s < 9 else side
        dm = []
        for b, kind, s2 in plan:
            if b == s and "nodma" not in xp: dm += issue(kind, s2)
        if cfg["dmapos"] == 0 or s >= 9: side += dm
        elif cfg["dmapos"] == 1: side = dm + side
        else:
            k = max(1, len(side) // max(1, len(dm))); mix = []
            while side or dm:
                mix += side[:k] + dm[:1]; side = side[k:]; dm = dm[1:]
            side = mix
        mm = mfmas(s - 1) if s > 0 else []
        if cfg["early0"] and s == 9: mm = []
        if "nomfma" in xp: mm = []
        side = hooks.get(("side0", s), []) + side + hooks.get(("side", s), [])
        per = max(cfg["per1"], -(-len(side) // 8))
        for x in mm:
            a(x)
            for f in side[:per]: f()
            side = side[per:]
        for f in side: f()
        if cfg["ftmaj"] and s == 8:
            a.wait(lg="all")
            mm = mfmas(8); a([mm[i] for i in (0, 1, 4, 5, 2, 3, 6, 7)])
            a("s_nop 3")
            epilogue(0)
            a(";STAMP 39")
        elif cfg["early0"] and s == 8:
            a.wait(lg="all"); a(mfmas(8))
        if s == (8 if cfg["early0"] else 9) and not cfg["ftmaj"]:
            a("s_nop 5")
            epilogue(0)
            a(";STAMP 39")
        hooks.get(("step", s), lambda: None)()
    a.wait(lg="all")
    a(mfmas(17))
    hooks.get("pre_epi1", lambda: None)()
    a("s_nop 5")
    epilogue(1)
    a(";STAMP 38")
    hooks.get("post_epi1", lambda: None)()


def wo_role(a, skip):
    L = vLANE
    t0, t1, t2, t3 = 42, 43, 44, 45
    a("s_sub_u32 s%d, s2, 224" % sLINE, "s_cmp_ge_u32 s%d, 18" % sLINE, "s_cbranch_scc1 %s" % skip)
    a("s_lshl_b32 s%d, s%d, 3" % (sT0, sWAVE), "v_lshrrev_b32 v%d, 3, v%d" % (t0, L), "v_add_u32 v%d, s%d, v%d" % (t0, sT0, t0),
      "v_mul_u32_u24 v%d, 1152, v%d" % (t0, t0), "v_and_b32 v%d, 7, v%d" % (t1, L), "v_lshl_add_u32 v%d, v%d, 4, v%d" % (t0, t1, t0),
      "s_lshr_b32 s%d, s%d, 1" % (sT4, sLINE), "s_lshl_b32 s%d, s%d, 7" % (sT1, sT4), "s_and_b32 s%d, s%d, 1" % (sT5, sLINE),
      "s_mul_i32 s%d, s%d, %d" % (sT2, sT5, 288 * 1152), "s_add_u32 s%d, s%d, s%d" % (sT1, sT1, sT2),
      "s_lshl_b32 s%d, s%d, 10" % (sT2, sWAVE))
    for k in range(5):
        a("s_add_u32 m0, s%d, %d" % (sT2, 8192 * k))
        if k == 4: a("s_cmp_ge_u32 s%d, 4" % sWAVE, "s_cselect_b32 s%d, 0x40000000, s%d" % (sT1, sT1))
        else: a("s_nop 0")
        a.vmem("buffer_load_dwordx4 v%d, %s, s%d offen lds" % (t0, srd(sW), sT1), "wo")
        if k < 4: a("s_add_u32 s%d, s%d, %d" % (sT1, sT1, 64 * 1152))
    a("s_and_b32 s%d, s%d, 3" % (sT0, sWAVE), "s_lshr_b32 s%d, s%d, 2" % (sT1, sWAVE),
      "s_mul_i32 s%d, s%d, 144" % (sT3, sT1), "s_lshl_b32 s%d, s%d, 5" % (sT2, sT0),
      "v_lshrrev_b32 v%d, 5, v%d" % (t0, L), "v_mul_u32_u24 v%d, 18, v%d" % (t0, t0),
      "v_bfe_u32 v%d, v%d, 2, 3" % (t1, L),
      "v_add3_u32 v%d, v%d, v%d, s%d" % (t0, t0, t1, sT3),
      "v_and_b32 v%d, 3, v%d" % (t2, L), "v_lshl_add_u32 v%d, v%d, 3, s%d" % (t2, t2, sT2),
      "v_lshl_add_u32 v%d, v%d, 7, v%d" % (t0, t0, t2),
      "v_lshrrev_b32 v%d, 3, v%d" % (t1, L), "v_mul_u32_u24 v%d, 18, v%d" % (t1, t1),
      "v_bfe_u32 v%d, v%d, 2, 1" % (t3, L), "s_add_u32 s%d, s%d, 16" % (sT3, sT3),
      "v_add3_u32 v%d, v%d, v%d, s%d" % (t1, t1, t3, sT3),
      "v_lshl_add_u32 v%d, v%d, 7, v%d" % (t1, t1, t2))
    a("s_lshl2_add_u32 s%d, s%d, s%d" % (sT2, sT4, sT0), "s_lshl1_add_u32 s%d, s%d, s%d" % (sT2, sT2, sT5), "s_lshl1_add_u32 s%d, s%d, s%d" % (sT2, sT2, sT1),
      "s_mul_i32 s%d, s%d, 4608" % (sT2, sT2), "s_add_u32 s%d, s%d, %d" % (sT2, sT2, WOBASE), "s_add_u32 s%d, s%d, 4096" % (sT4, sT2),
      "v_lshlrev_b32 v%d, 4, v%d" % (t2, L), "v_lshlrev_b32 v%d, 3, v%d" % (t3, L))
    a.wait(vm="all"); a("s_barrier")
    for m in range(4):
        for h in range(2):
            a.lds("ds_read_b64_tr_b16 %s, v%d offset:%d" % (vr(48 + 4 * m + 2 * h, 2), t0, (36 * m + 8 * h) * 128))
    a.lds("ds_read_b64_tr_b16 v[64:65], v%d" % t1)
    a.wait(lg="all")
    for m in range(4):
        a.vmem("buffer_store_dwordx4 %s, v%d, %s, s%d offen offset:%d sc1" % (vr(48 + 4 * m, 4), t2, srd(sWS), sT2, 1024 * m), "st")
    a.vmem("buffer_store_dwordx2 v[64:65], v%d, %s, s%d offen sc1" % (t3, srd(sWS), sT4), "st")


SHIFT = [0]


def p2_setup(a):
    L = vLANE
    t0, t1, t2, t3 = 38, 39, 40, 41
    a("s_lshl_b32 s%d, s%d, 2" % (sHEAD, sXCD), "s_lshr_b32 s%d, s%d, 3" % (sT0, sJ), "s_add_u32 s%d, s%d, s%d" % (sHEAD, sHEAD, sT0),
      "s_and_b32 s%d, s%d, 7" % (sQI, sJ), "s_and_b32 s%d, s%d, 3" % (sP, sWAVE), "s_lshr_b32 s%d, s%d, 2" % (sKH, sWAVE),
      "s_mov_b32 s%d, 0x3ffff" % sVMASK, "s_mov_b32 s%d, 0x3ffff" % (sVMASK + 1),
      "s_mov_b32 s%d, -1" % sDMASK, "s_mov_b32 s%d, 0xffff" % (sDMASK + 1),
      "s_and_b32 s%d, s%d, 1" % (sT0, sHEAD),
      "s_lshr_b32 s%d, s%d, 1" % (sT1, sHEAD), "s_mul_i32 s%d, s%d, %d" % (sT1, sT1, 9 * 512))
    a("v_and_b32 v%d, 31, v%d" % (t0, L), "v_lshrrev_b32 v%d, 5, v%d" % (t1, L))
    a("s_lshl_b32 s%d, s%d, 11" % (sT2, sT0), "s_add_u32 s%d, s%d, s%d" % (sT2, sT2, sT1), "s_add_u32 s%d, s%d, %d" % (sT2, sT2, SEC),
      "v_lshl_add_u32 v%d, v%d, 4, s%d" % (vDMA, L, sT2),
      "s_mul_i32 s%d, s%d, 288" % (sT3, sHEAD))
    for k in (2, 3, 4):
        imm = 1024 * k if k < 4 else 0
        d = vDMA + k - 1
        a("v_add_u32 v%d, %d, v%d" % (t2, (64 * k - 160) & 0xffffffff, L))
        if k == 2: a("v_max_i32 v%d, 0, v%d" % (t2, t2))
        a("v_mul_u32_u24 v%d, 3641, v%d" % (t3, t2), "v_lshrrev_b32 v%d, 16, v%d" % (t3, t3),
          "v_mul_u32_u24 v%d, %d, v%d" % (t3, 9216 - 288, t3),
          "v_lshl_add_u32 v%d, v%d, 4, v%d" % (t3, t2, t3),
          "s_add_u32 s%d, s%d, %d" % (sT4, sT3, 2 * SEC - imm),
          "v_add_u32 v%d, s%d, v%d" % (d, sT4, t3))
        if k == 2:
            a("v_cmp_gt_u32 vcc, 32, v%d" % L, "s_nop 1", "v_cndmask_b32 v%d, v%d, v%d, vcc" % (d, d, vDMA))
    a("s_mul_i32 s%d, s%d, %d" % (sT2, sKH, CHUNK),
      "s_lshl_b32 s%d, s%d, 9" % (sT3, sT0), "s_add_u32 s%d, s%d, s%d" % (sT3, sT3, sT2),
      "v_lshlrev_b32 v%d, 10, v%d" % (t2, t1), "v_lshl_add_u32 v%d, v%d, 3, v%d" % (t2, t0, t2),
      "v_add_u32 v%d, s%d, v%d" % (vAK, sT3, t2),
      "s_mul_i32 s%d, s%d, %d" % (sT3, sT0, (4 - 2048) & 0xffffffff), "s_add_u32 s%d, s%d, 2048" % (sT3, sT3),
      "s_add_u32 s%d, s%d, s%d" % (sT3, sT3, sT2),
      "v_lshl_add_u32 v%d, v%d, 3, s%d" % (vAR, L, sT3),
      "s_add_u32 s%d, s%d, 2560" % (sT3, sT2),
      "v_mul_u32_u24 v%d, 288, v%d" % (t3, t1), "v_lshl_add_u32 v%d, v%d, 4, v%d" % (t3, t0, t3),
      "v_add_u32 v%d, s%d, v%d" % (vAV, sT3, t3))
    a("s_mul_i32 s%d, s%d, %d" % (sT3, sT0, 5 * 512), "s_add_u32 s%d, s%d, s%d" % (sT3, sT3, sT1),
      "v_add_u32 v%d, s%d, v%d" % (vQA, sT3, t2),
      "s_lshl_b32 s%d, s%d, 2" % (sT3, sT0), "s_add_u32 s%d, s%d, s%d" % (sT3, sT3, sT1), "s_add_u32 s%d, s%d, 2048" % (sT3, sT3),
      "v_lshl_add_u32 v%d, v%d, 3, s%d" % (vQR, t0, sT3),
      "s_lshl_b32 s%d, s%d, 1" % (sT3, sQI), "s_lshr_b32 s%d, s%d, 1" % (sT4, sP), "s_add_u32 s%d, s%d, s%d" % (sT3, sT3, sT4),
      "s_mul_i32 s%d, s%d, %d" % (sQOFF, sT3, PITCH), "s_and_b32 s%d, s%d, 1" % (sT4, sP), "s_lshl_b32 s%d, s%d, 8" % (sT4, sT4),
      "s_add_u32 s%d, s%d, s%d" % (sQOFF, sQOFF, sT4),
      "s_lshl1_add_u32 s%d, s%d, s%d" % (sT0, sP, sKH), "s_mul_i32 s%d, s%d, %d" % (sCM, sT0, CHUNK), "s_mul_i32 s%d, s%d, %d" % (sCH, sT0, PITCH),
      "v_mov_b32 v%d, 0xdddddddd" % vIDX, "v_mov_b32 v%d, 0x%x" % (vQ[0] + 5, SHIFT[0]), "v_mov_b32 v%d, 0x%x" % (vQ[1] + 5, SHIFT[0]))


def q_load(a, part):
    so = sQOFF
    if part:
        a("s_add_u32 s%d, s%d, %d" % (sT0, sQOFF, 16 * PITCH)); so = sT0
    q = vQ[part]
    a.vmem("buffer_load_dwordx2 %s, v%d, %s, s%d offen sc1" % (vr(q, 2), vQA, srd(sWS), so), ("q", part))
    a.vmem("buffer_load_dwordx2 %s, v%d, %s, s%d offen offset:512 sc1" % (vr(q + 2, 2), vQA, srd(sWS), so), ("q", part))
    a.vmem("buffer_load_dword v%d, v%d, %s, s%d offen sc1" % (q + 4, vQR, srd(sWS), so), ("q", part))


def kv_piece(a, st, k):
    if k == 0: a("s_add_u32 m0, s%d, %d" % (sCM, 8 * st * CHUNK), "s_add_u32 s%d, s%d, %d" % (sCH, sCH, 8 * PITCH) if st else "s_nop 0")
    if k < 4:
        a.vmem("buffer_load_dwordx4 v%d, %s, s%d offen offset:%d sc1 lds" % (vDMA + max(0, k - 1), srd(sWS), sCH, 1024 * k), ("kv", st))
    else:
        a("s_add_u32 m0, m0, 4096", "s_mov_b64 exec, %s" % sr(sDMASK, 2))
        a.vmem("buffer_load_dwordx4 v%d, %s, s%d offen sc1 lds" % (vDMA + 3, srd(sWS), sCH), ("kv", st))
        a("s_mov_b64 exec, -1")


def kv_dma(a, st):
    for k in range(5): kv_piece(a, st, k)


def q_dma(a):
    a("s_lshl1_add_u32 s%d, s%d, s%d" % (sT1, sQI, sKH), "s_mul_i32 s%d, s%d, %d" % (sT1, sT1, PITCH),
      "s_mul_i32 s%d, s%d, 2560" % (sT0, sKH), "s_add_u32 m0, s%d, %d" % (sT0, LDS_SPARE),
      "v_subrev_u32 v%d, %d, v%d" % (vT, SEC, vDMA))
    for k in range(3):
        if k == 2: a("s_mov_b32 exec_hi, 0")
        a("buffer_load_dwordx4 v%d, %s, s%d offen offset:%d sc1 lds" % (vT, srd(sWS), sT1, 1024 * k))
    a("s_mov_b64 exec, -1")


def q_addr(a):
    a("s_lshr_b32 s%d, s%d, 1" % (sT0, sP), "s_mul_i32 s%d, s%d, 2560" % (sT0, sT0), "s_and_b32 s%d, s%d, 1" % (sT1, sP), "s_lshl_b32 s%d, s%d, 8" % (sT1, sT1),
      "s_add_u32 s%d, s%d, s%d" % (sT0, sT0, sT1), "s_mul_i32 s%d, s%d, %d" % (sT1, sKH, CHUNK), "s_sub_u32 s%d, s%d, s%d" % (sT0, sT0, sT1),
      "s_add_u32 s%d, s%d, %d" % (sT0, sT0, LDS_SPARE),
      "v_add_u32 v%d, s%d, v%d" % (vT, sT0, vAK), "v_and_b32 v%d, 32, v%d" % (vT + 1, vLANE), "v_lshlrev_b32 v%d, 3, v%d" % (vT + 1, vT + 1),
      "v_sub_u32 v%d, v%d, v%d" % (vT + 1, vAR, vT + 1), "v_add_u32 v%d, s%d, v%d" % (vT + 1, sT0, vT + 1))


def q_read(a):
    q = vQ[0]
    a.lds("ds_read_b32 v%d, v%d" % (q + 4, vT + 1), "R")
    for h in range(2): a.lds("ds_read_b64 %s, v%d offset:%d" % (vr(q + 2 * h, 2), vT, 512 * h), ("K", 0))


ONE = [0]


def v_consts(a, base, t):
    m = 0x40000 if ONE[0] else 0x440000
    a("s_mov_b32 s%d, 0x%x" % (sSAVE, m), "s_mov_b32 s%d, 0x%x" % (sSAVE + 1, m), "v_mov_b32 v%d, 0x3f803f80" % t,
      "v_cndmask_b32 v%d, 0, v%d, %s" % (base, t, sr(sSAVE, 2)))
    a("v_mov_b32 v%d, v%d" % (base + 1, base))
    for i in range(1, 8): a("v_mov_b64 %s, %s" % (vr(base + 2 * i, 2), vr(base, 2)))


def p2_init(a):
    word_setup(a)
    v_consts(a, vV, vV + 2)
    a("v_mov_b32 v%d, 0x%x" % (vKR + 1, 0x3f80 if SHIFT[0] else 0))
    for i in range(16): a("v_mov_b64 %s, 0" % vr(vO[0] + 2 * i, 2))


def p2_main(a, cfg, ev):
    ns = cfg["nsolo"]
    U = [(i, 0) for i in range(ns)] + [(i, q) for i in range(ns, 16) for q in range(2)] + [(i, 1) for i in range(ns)]
    if cfg["uswap"]: U[6:10] = [(6, 0), (7, 0), (7, 1), (6, 1)]
    N = len(U)
    base = {"k": 0, "r": 0, "v": 0, "k0": 0, "k1": 0}
    reg = {"k": vAK, "r": vAR, "v": vAV, "k0": vAK, "k1": vAK1}
    seen = set()

    def off(kind, i):
        if i not in seen:
            seen.add(i)
            if ("pre", i) in ev: ev[("pre", i)]()
        want = (i // 6) * 6
        if base[kind] != want:
            a("v_add_u32 v%d, 0x%x, v%d" % (reg[kind], ((want - base[kind]) * 2 * CHUNK) & 0xffffffff, reg[kind]))
            base[kind] = want
        return (i - want) * 2 * CHUNK

    kc = cfg.get("kc") or {}
    have = set()
    kreg = lambda i: kc.get(i, vK)
    def rR(i):
        if (i, "r") in have: return
        o = off("r", i)
        if i in kc:
            have.add((i, "r")); a("v_mov_b32 v%d, v%d" % (kc[i] + 9, vKR + 1))
        a.lds("ds_read_b32 v%d, v%d offset:%d" % (kreg(i) + 8, vAR, o), "R")
    def rK(i, t):
        if cfg["k2"]:
            kind = "k%d" % t
            want = 0 if i < 13 else 13
            if base[kind] != want:
                a("v_add_u32 v%d, 0x%x, v%d" % (reg[kind], ((want - base[kind]) * 2 * CHUNK) & 0xffffffff, reg[kind])); base[kind] = want
            o = (i - want) * 19
            a.lds("ds_read2st64_b64 %s, v%d offset0:%d offset1:%d" % (vr(vK + 4 * t, 4), reg[kind], o, o + 1), ("K", t))
            return
        if (i, t) in have: return
        if i in kc: have.add((i, t))
        o = off("k", i)
        for h in range(2): a.lds("ds_read_b64 %s, v%d offset:%d" % (vr(kreg(i) + 4 * t + 2 * h, 2), vAK, o + 256 * t + 512 * h), ("K", t))
    def rV(i, fs):
        if ("prev", i) in ev: ev.pop(("prev", i))()
        o = off("v", i)
        if not cfg.get("x_nomask"): a("s_mov_b64 exec, %s" % sr(sVMASK, 2))
        for f in fs: a.lds("ds_read_b128 %s, v%d offset:%d" % (vr(vV + 4 * f, 4), vAV, o + 576 * f), ("V", f // 2))
        if not cfg.get("x_nomask"): a("s_mov_b64 exec, -1")
    def R(u):
        a.wait(lg="R")
        if U[u][1] == 1 and "ql" in ev: ev.pop("ql")()
        a("v_mfma_f32_32x32x4_2b_bf16 %s, %s, %s, 0" % (vr(vS[u % 2], 32), vr(kreg(U[u][0]) + 8, 2), vr(vQ[U[u][1]] + 4, 2)))
    def M(u, t):
        a.wait(lg=("K", t))
        s = vr(vS[u % 2] + 16 * t, 16)
        a("v_mfma_f32_32x32x16_bf16 %s, %s, %s, %s" % (s, vr(kreg(U[u][0]) + 4 * t, 4), vr(vQ[U[u][1]], 4), s))
    def P(u, f):
        a.wait(lg=("V", f // 2))
        a("v_smfmac_f32_32x32x32_bf16 %s, %s, %s, v%d" % (vr(vO[U[u][1]], 16), vr(vV + 4 * f, 4), vr(vS[u % 2] + 8 * f, 8), vIDX))
    ch = lambda u: U[u][0]
    newk = lambda u: u < N and ch(u) != ch(u - 1)

    rR(ch(0)); rK(ch(0), 0); rK(ch(0), 1)
    rV(ch(0), (0, 1, 2, 3))
    R(0)
    if newk(1): rR(ch(1))
    n0 = len(a.l)
    if "fill" in ev: ev["fill"]()
    gap = 17 - (len(a.l) - n0)
    while gap > 0:
        a("s_nop %d" % (min(gap, 16) - 1)); gap -= 16
    M(0, 0)
    if newk(1): rK(ch(1), 0)
    M(0, 1)
    if newk(1): rK(ch(1), 1)
    a("s_nop 7")
    pos = cfg["pos"]
    a.age = cfg["age"]
    for u in range(N):
        def op(j):
            if j == 0:
                if u > 0:
                    P(u - 1, 3)
                    if newk(u): rV(ch(u), (2, 3))
            elif j == 1:
                if u + 1 < N:
                    R(u + 1)
            elif j == 2: P(u, 0)
            elif j == 3:
                P(u, 1)
                if newk(u + 1): rV(ch(u + 1), (0, 1))
            elif j == 4 or j == 6:
                if u + 1 < N:
                    M(u + 1, (j - 4) // 2)
                    if newk(u + 2):
                        if j == 4: rR(ch(u + 2))
                        rK(ch(u + 2), (j - 4) // 2)
            elif j == 5: P(u, 2)
            if (u, j) in cfg.get("prio", {}): a("s_setprio %d" % cfg["prio"][(u, j)])
            if (u, j) in cfg.get("priox", {}):
                l = a.uid("px"); a("s_cmp_lg_u32 s%d, 0" % sKH, "s_cbranch_scc1 %s" % l, "s_setprio %d" % cfg["priox"][(u, j)], "%s:" % l)
            if (u, j) in ev: ev[(u, j)]()
        a(";STAMP %d" % (40 + u))
        for e in range(32):
            if e in pos: op(pos.index(e))
            a("%s v%d, v%d" % (cfg["expop"], vS[u % 2] + e, vS[u % 2] + e)); a.clock += 1
    a.age = None
    a("s_nop 1")
    P(N - 1, 3)
    return U


SCR_RES, SCR_ROFF = 12 * CHUNK, (0, 2 * CHUNK)
SCR_MOFF = (0, 0)
P3_BASE, P3_OFF = 15 * CHUNK, (39936, 0)
sOA, sOR = 34, 3
sOL = 12
sPF = 15
vFD = [vWO + 72, vWO + 72]


def late_setup(a):
    L = vLANE
    a("s_lshl_b32 s%d, s%d, 11" % (sT0, sP), "s_add_u32 s%d, s%d, %d" % (sT0, sT0, LDS_SPARE), "v_add_u32 v%d, s%d, v%d" % (vSA, sT0, vL16),
      "s_lshl_b32 s%d, s%d, 10" % (sT0, sP), "s_add_u32 s%d, s%d, %d" % (sT0, sT0, SCR_RES), "v_add_u32 v%d, s%d, v%d" % (vSB, sT0, vL16),
      "s_lshl2_add_u32 s%d, s%d, s%d" % (sT0, sQI, sP), "s_mul_i32 s%d, s%d, %d" % (sT0, sT0, OTILE), "s_add_u32 s%d, s%d, %d" % (sT0, sT0, OBASE),
      "s_lshl_b32 s%d, s%d, 10" % (sT1, sHEAD), "s_add_u32 s%d, s%d, s%d" % (sOA, sT1, sT0),
      "s_lshl_b32 s%d, s%d, 7" % (sT1, sHEAD), "s_add_u32 s%d, s%d, s%d" % (sOR, sT1, sT0), "s_add_u32 s%d, s%d, 32768" % (sOR, sOR),
      "v_lshrrev_b32 v%d, 4, v%d" % (vOB, L), "v_and_b32 v%d, 15, v%d" % (vT, L), "s_lshl_b32 s%d, s%d, 4" % (sT1, sRH), "v_add_u32 v%d, s%d, v%d" % (vT, sT1, vT),
      "v_lshlrev_b32 v%d, 9, v%d" % (vOA, vOB), "v_lshl_add_u32 v%d, v%d, 4, v%d" % (vOA, vT, vOA),
      "v_lshlrev_b32 v%d, 8, v%d" % (vOB, vOB), "v_lshl_add_u32 v%d, v%d, 2, v%d" % (vOB, vT, vOB),
      "s_lshl2_add_u32 s%d, s%d, s%d" % (sT0, sXCD, sRT), "s_mul_i32 s%d, s%d, %d" % (sT0, sT0, OTILE), "s_add_u32 s%d, s%d, %d" % (sT0, sT0, OBASE),
      "s_lshl_b32 s%d, s%d, 13" % (sT1, sKQ), "s_add_u32 s%d, s%d, s%d" % (sOL, sT1, sT0), "s_add_u32 s%d, s%d, 4096" % (sOL + 1, sOL),
      "s_lshl_b32 s%d, s%d, 10" % (sT1, sKQ), "s_add_u32 s%d, s%d, s%d" % (sOL + 2, sT1, sT0), "s_add_u32 s%d, s%d, 32768" % (sOL + 2, sOL + 2))


RES4 = [0]


def o_store(a, d, t, part, em):
    sa, sb = sOA, sOR
    if part:
        a("s_add_u32 s%d, s%d, %d" % (sT1, sOA, 32 * OTILE), "s_add_u32 s%d, s%d, %d" % (sT2, sOR, 32 * OTILE)); sa, sb = sT1, sT2
    em("buffer_store_dwordx4 %s, v%d, %s, s%d offen sc1" % (vr(d, 4), vL16, srd(sWS), sa))
    if RES4[0]:
        a("s_mov_b64 exec, 0xff")
        em("buffer_store_dwordx4 %s, v%d, %s, s%d offen sc1" % (vr(t, 4), vL16, srd(sWS), sb))
        a("s_mov_b64 exec, -1")
        return
    a("s_mov_b32 exec_hi, 0")
    em("buffer_store_dword v%d, v%d, %s, s%d offen sc1" % (d + 4, t, srd(sWS), sb))
    a("s_mov_b64 exec, -1")


def poison(a, parts=(0, 1)):
    d = vFD[0]
    a("v_mov_b64 %s, -1" % vr(d, 2), "v_mov_b64 %s, -1" % vr(d + 2, 2))
    if not RES4[0]: a("v_mov_b32 v%d, -1" % (d + 4), "v_lshlrev_b32 v%d, 2, v%d" % (vT, vLANE))
    for part in parts: o_store(a, d, d if RES4[0] else vT, part, lambda x: a.vmem(x, "poison"))


def send_partial(a, part):
    o = vO[part]
    a("v_mov_b32 v%d, s%d" % (o + 11, sTAG),
      "ds_write_b128 v%d, %s offset:%d" % (vSA, vr(o, 4), SCR_MOFF[part]), "ds_write_b128 v%d, %s offset:%d" % (vSA, vr(o + 4, 4), SCR_MOFF[part] + 1024),
      "ds_write_b128 v%d, %s offset:%d" % (vSB, vr(o + 8, 4), SCR_ROFF[part]))


def fin_reads(part):
    d = vFD[part]
    return ["ds_read_b128 %s, v%d offset:%d" % (vr(d + 8, 4), vSB, SCR_ROFF[part]),
            "ds_read_b128 %s, v%d offset:%d" % (vr(d, 4), vSA, SCR_MOFF[part]), "ds_read_b128 %s, v%d offset:%d" % (vr(d + 4, 4), vSA, SCR_MOFF[part] + 1024)]


NOPK = [0, 0]
BIAS = [0]
vTH = vWO + 88


def o_bias(a, cls):
    x = vWO + 84
    def rd(): a("v_mov_b32 v%d, 2560" % x); a.lds("ds_read_b128 %s, v%d" % (vr(x, 4), x), "bias")
    def init():
        a.wait(lg="bias")
        k = struct.unpack("<I", struct.pack("<f", (1.35 if cls else -1.35) * 2.0 ** BIAS[0]))[0]
        o = vO[0]
        a("v_max3_f32 v%d, abs(v%d), abs(v%d), abs(v%d)" % (x, x, x + 1, x + 2), "v_max_f32 v%d, abs(v%d), v%d" % (x, x + 3, x),
          "v_and_b32 v%d, 0x7f800000, v%d" % (x, x), "v_mul_f32 v%d, 0x%x, v%d" % (o, k, x), "v_mul_f32 v%d, 0x%x, v%d" % (o + 1, k, x))
        if cls: a("v_mul_f32 v%d, 0x3b800000, v%d" % (vTH, o))
        for r in (o + 2, o + 4, o + 6, o + 8) + tuple(range(vO[1], vO[1] + 10, 2)): a("v_mov_b64 %s, %s" % (vr(r, 2), vr(o, 2)))
    return rd, init


def finalize(a, part, slow, colds, prefetched=False, before_store=None):
    o = vO[part]
    t = vT
    d = vFD[part]
    if not prefetched: a(fin_reads(part))
    again = a.uid("meet")
    a("s_mov_b32 s%d, 0" % sT5, "s_mov_b32 s%d, 0x37800000" % sT4,
      "%s:" % again, "s_waitcnt lgkmcnt(0)", "v_cmp_ne_u32 vcc, s%d, v%d" % (sTAG, d + 11), "s_cbranch_vccnz %s_r" % again, "%s_k:" % again)
    def cold():
        a("%s_r:" % again); spin_guard(a, again + "_k"); a("s_sleep 1", fin_reads(part), "s_branch %s" % again)
    colds.append(cold)
    pk = lambda op, x, y, z, m="": "v_pk_%s_f32 %s, %s, %s%s" % (op, vr(x, 2), vr(y, 2), vr(z, 2), m)
    if NOPK[part]: pk = lambda op, x, y, z, m="": ["v_%s_f32 v%d, v%d, v%d" % (op, x + i, y + i, z + (0 if m else i)) for i in range(2)]
    if ONE[0]:
        a("v_add_f32 v%d, v%d, v%d" % (o + 11, o + 10, d + 10), "v_add_f32 v%d, v%d, v%d" % (o + 10, o + 10, d + 10), pk("add", o + 8, o + 8, d + 8), pk("add", o, o, d),
          "v_permlane32_swap_b32 v%d, v%d" % (o + 10, o + 11))
        for i in (2, 4, 6): a(pk("add", o + i, o + i, d + i))
    else:
        a("v_add_f32 v%d, v%d, v%d" % (o + 10, o + 10, d + 10), pk("add", o + 8, o + 8, d + 8))
        for i in (0, 2, 4, 6): a(pk("add", o + i, o + i, d + i))
    back = a.uid("norm")
    done = a.uid("normok")
    a("%s:" % back)
    a("v_rcp_f32 v%d, v%d" % (t, o + 10), "v_mov_b32 v%d, 0x7b800000" % (d + 11))
    for i in range(0, 10, 2): a(pk("mul", d + i, o + i, t, " op_sel_hi:[1,0]"))
    a("v_med3_f32 v%d, v%d, s%d, v%d" % (d + 10, o + 10, sT4, d + 11))
    if BIAS[0]:
        a(["v_add_f32 v%d, abs(v%d), abs(v%d)" % (t + k, o + 2 * k, o + 2 * k + 1) for k in range(2)])
        for i in range(4, 10): a("v_add_f32 v%d, v%d, abs(v%d)" % (t + i % 2, t + i % 2, o + i))
        a("v_add_f32 v%d, v%d, v%d" % (t, t, t + 1), "v_cmp_lt_f32 %s, v%d, v%d" % (sr(sSAVE, 2), t, vTH))
    else:
        a(pk("add", t, d, d + 2))
        for i in (4, 6, 8): a(pk("add", t, t, d + i))
        a("v_add_f32 v%d, v%d, v%d" % (t, t, t + 1))
    a("v_fma_f32 v%d, v%d, 0, v%d" % (t, t, o + 10),
      "v_cmp_neq_f32 vcc, v%d, v%d" % (d + 10, t))
    if before_store: before_store()
    cv = lambda i, x: "v_cvt_pk_bf16_f32 v%d, v%d, v%d" % (x, d + 2 * i, d + 2 * i + 1)
    if RES4[0]:
        a(cv(4, d + 8), cv(0, d), cv(1, d + 1), "v_mov_b32_dpp v%d, v%d row_ror:8 row_mask:0xf bank_mask:0xf" % (d + 9, d + 8), cv(2, d + 2),
          "v_permlane16_swap_b32 v%d, v%d" % (d + 8, d + 10), cv(3, d + 3), "v_permlane16_swap_b32 v%d, v%d" % (d + 9, d + 11))
        slow(part, back, done)
        a("%s:" % done)
        o_store(a, d, d + 8, part, a)
        return
    for i in range(5):
        a(cv(i, d + i))
        if i == 2 and BIAS[0]: a("s_or_b64 vcc, vcc, %s" % sr(sSAVE, 2))
    slow(part, back, done)
    a("%s:" % done, "v_lshlrev_b32 v%d, 2, v%d" % (t, vLANE))
    o_store(a, d, t, part, a)


def slow_path(a, part, label, back, done, after):
    S, K, KR, V, m, ar, av = 44, 76, 84, 88, 104, 105, 106
    q = vQ[part]; o = vO[part]
    a("%s:" % label, "s_cmp_eq_u32 s%d, 0" % sT5, "s_cbranch_scc1 %s_go" % label)
    for i in range(12): a("v_min_u32 v%d, -2, v%d" % (vFD[part] + i, vFD[part] + i))
    a("s_branch %s" % done, "%s_go:" % label, "s_mov_b32 s%d, 1" % sT5)
    a("s_waitcnt vmcnt(0) lgkmcnt(0)")
    v_consts(a, V, m)
    a("v_mov_b32 v%d, 0" % (KR + 1))
    for i in range(16): a("v_mov_b32 v%d, 0" % (o + i))
    a("v_lshrrev_b32 v%d, 5, v%d" % (m, vLANE), "v_lshl_add_u32 v%d, v%d, 8, v%d" % (ar, m, vQR),
      "v_mul_u32_u24 v%d, 9216, v%d" % (av, m), "v_and_b32 v%d, 31, v%d" % (m, vLANE), "v_lshl_add_u32 v%d, v%d, 4, v%d" % (av, m, av),
      "s_mul_i32 s%d, s%d, 288" % (sT3, sHEAD), "s_add_u32 s%d, s%d, %d" % (sT3, sT3, SEC), "v_add_u32 v%d, s%d, v%d" % (av, sT3, av))
    for f in range(1, 4): a("v_add_u32 v%d, 18432, v%d" % (av + f, av + f - 1))
    a("v_mov_b32 v%d, 0xff800000" % m)
    for ps in range(2):
        lp = a.uid("slow")
        a("s_mov_b32 s%d, %d" % (sLOOP, SEC), "%s:" % lp)
        for t in range(2):
            for h in range(2):
                a("buffer_load_dwordx2 %s, v%d, %s, s%d offen offset:%d sc1" % (vr(K + 4 * t + 2 * h, 2), vQA, srd(sWS), sLOOP, 256 * t + 512 * h))
        a("buffer_load_dword v%d, v%d, %s, s%d offen sc1" % (KR, ar, srd(sWS), sLOOP))
        if ps:
            a("s_mov_b64 exec, %s" % sr(sVMASK, 2))
            for f in range(4): a("buffer_load_dwordx4 %s, v%d, %s, s%d offen sc1" % (vr(V + 4 * f, 4), av + f, srd(sWS), sLOOP))
            a("s_mov_b64 exec, -1")
        a("s_waitcnt vmcnt(0)",
          "v_mfma_f32_32x32x4_2b_bf16 %s, %s, %s, 0" % (vr(S, 32), vr(KR, 2), vr(q + 4, 2)), "s_nop 15", "s_nop 1")
        for t in range(2):
            a("v_mfma_f32_32x32x16_bf16 %s, %s, %s, %s" % (vr(S + 16 * t, 16), vr(K + 4 * t, 4), vr(q, 4), vr(S + 16 * t, 16)))
        a("s_nop 11")
        if ps == 0:
            for i in range(16): a("v_max3_f32 v%d, v%d, v%d, v%d" % (m, m, S + 2 * i, S + 2 * i + 1))
        else:
            for i in range(32): a("v_sub_f32 v%d, v%d, v%d" % (S + i, S + i, m))
            for i in range(32): a("v_exp_f32 v%d, v%d" % (S + i, S + i))
            a("s_nop 1")
            for f in range(4): a("v_smfmac_f32_32x32x32_bf16 %s, %s, %s, v%d" % (vr(o, 16), vr(V + 4 * f, 4), vr(S + 8 * f, 8), vIDX))
        a("s_add_u32 s%d, s%d, %d" % (sLOOP, sLOOP, PITCH), "s_cmp_lt_u32 s%d, %d" % (sLOOP, 32 * PITCH), "s_cbranch_scc1 %s" % lp)
        if ps == 0:
            a("v_mov_b32 v%d, v%d" % (S, m), "s_nop 1", "v_permlane32_swap_b32 v%d, v%d" % (S, m), "s_nop 1", "v_max_f32 v%d, v%d, v%d" % (m, m, S))
    a("s_nop 15")
    if ONE[0]: a("v_mov_b32 v%d, v%d" % (o + 11, o + 10), "s_nop 1", "v_permlane32_swap_b32 v%d, v%d" % (o + 10, o + 11), "s_nop 1")
    after()
    a("s_branch %s" % back)


def p3_setup(a):
    a("s_and_b32 s%d, s%d, 3" % (sRT, sJ), "s_lshr_b32 s%d, s%d, 2" % (sCB, sJ),
      "s_and_b32 s%d, s%d, 3" % (sKQ, sWAVE), "s_and_b32 s%d, s%d, 1" % (sRH, sCB),
      "s_lshl_b32 s%d, s%d, 2" % (sT0, sCB), "s_lshr_b32 s%d, s%d, 1" % (sT1, sCB), "s_add_u32 s%d, s%d, 32" % (sT1, sT1),
      "s_mul_i32 s%d, s%d, 4608" % (sT2, sKQ), "s_add_u32 s%d, s%d, %d" % (sT2, sT2, WOBASE),
      "s_mul_i32 s%d, s%d, %d" % (sT3, sT0, 4 * 4608), "s_add_u32 s%d, s%d, s%d" % (sWOF, sT3, sT2))
    for t in range(1, 4): a("s_add_u32 s%d, s%d, %d" % (sWOF + t, sWOF, 4 * 4608 * t))
    a("s_mul_i32 s%d, s%d, %d" % (sT3, sT1, 4 * 4608), "s_add_u32 s%d, s%d, s%d" % (sWOF + 4, sT3, sT2),
      "s_lshl2_add_u32 s%d, s%d, s%d" % (sT2, sXCD, sRT), "s_lshl1_add_u32 s%d, s%d, s%d" % (sT2, sT2, sRH),
      "s_mul_i32 s%d, s%d, %d" % (sT3, sT2, 16 * 1152), "s_lshl_b32 s%d, s%d, 5" % (sT1, sT1), "s_add_u32 s%d, s%d, s%d" % (sOCOL + 2, sT1, sT3),
      "s_mul_i32 s%d, s%d, %d" % (sT4, sKQ, 4 * 1152), "s_lshl_b32 s%d, s%d, 5" % (sT0, sT0), "s_add_u32 s%d, s%d, s%d" % (sT0, sT0, sT4),
      "s_add_u32 s%d, s%d, s%d" % (sOCOL, sT0, sT3),
      "s_xor_b32 s%d, s%d, 1" % (sT2, sT2), "s_mul_i32 s%d, s%d, %d" % (sT3, sT2, 16 * 1152), "s_add_u32 s%d, s%d, s%d" % (sOCOL + 1, sT0, sT3),
      "s_movk_i32 s%d, 272" % sC272, "s_movk_i32 s%d, 80" % sC80)


def wo_load(a, tiles, t16, t8, track=True, only=None):
    em = a.vmem if track else (lambda s, tag: a(s))
    for t in tiles:
        for m in range(4):
            if only in (None, m): em("buffer_load_dwordx4 %s, v%d, %s, s%d offen offset:%d sc1" % (vr(vWO + 18 * t + 4 * m, 4), t16, srd(sWS), sWOF + t, 1024 * m), "wo")
        if only in (None, 4): em("buffer_load_dwordx2 %s, v%d, %s, s%d offen sc1" % (vr(vWO + 18 * t + 16, 2), t8, srd(sWS), sWOF + t), "wo")


vOA2, vOB2 = 18, 19
vAC = [vV, vO[1]]
vAC4 = vV + 16


def o_instr(of, hh, g, so):
    main, res = of[hh]
    if g < 4: return ["buffer_load_dwordx4 %s, v%d, %s, s%d offen offset:%d sc1" % (vr(main + 4 * g, 4), (vOA, vOA2)[hh], srd(sWS), so + g // 2, 2048 * (g % 2))]
    return ["buffer_load_dword v%d, v%d, %s, s%d offen offset:%d sc1" % (res + e, (vOB, vOB2)[hh], srd(sWS), so + 2, 128 * e) for e in range(2)]


def o_load(a, of, items, so, tag):
    for hh, g in items:
        for x in o_instr(of, hh, g, so): a.vmem(x, (tag, hh))


RSLEEP = [2]


def o_check(a, of, items, so, colds, reload=None):
    regs = []
    for hh, g in items: regs += list(range(of[hh][0] + 4 * g, of[hh][0] + 4 * g + 4)) if g < 4 else [of[hh][1], of[hh][1] + 1]
    t = vT
    chk = ["v_max_u32 v%d, v%d, v%d" % (t, regs[0], regs[1])] + ["v_max3_u32 v%d, v%d, v%d, v%d" % (t, t, regs[i], regs[i + 1]) for i in range(2, len(regs), 2)]
    chk.append("v_cmp_eq_u32 vcc, -1, v%d" % t)
    l = a.uid("ochk")
    def cold():
        a("%s_r:" % l); spin_guard(a, l + "_k")
        if RSLEEP[0]: a("s_sleep %d" % RSLEEP[0])
        for hh, g in (reload or items): a(o_instr(of, hh, g, so))
        a("s_waitcnt vmcnt(0)", chk, "s_cbranch_vccnz %s_r" % l, "s_branch %s_k" % l)
    colds.append(cold)
    return chk, ["s_cbranch_vccnz %s_r" % l, "%s_k:" % l]


def p3_mm(of, hh, k, g, first):
    main, res = of[hh]
    c = vr(vAC4 if k == 4 else vAC[hh] + 4 * k, 4)
    if g < 4: return "v_mfma_f32_16x16x32_bf16 %s, %s, %s, %s" % (c, vr(vWO + 18 * k + 4 * g, 4), vr(main + 4 * g, 4), "0" if first else c)
    return "v_mfma_f32_16x16x16_bf16 %s, %s, %s, %s" % (c, vr(vWO + 18 * k + 16, 2), vr(res, 2), "0" if first else c)


def p3_half(a, of, hh, gs, first, part, pend, side=()):
    tiles = (4, 0, 1, 2, 3) if hh == 0 else (0, 1, 2, 3)
    side = list(side)
    def emit(x):
        a(x)
        n = 1
        if side:
            y = side.pop(0)
            if y: a(y); n += 1
        for p_ in pend: p_[0] -= n
        if pend and pend[0][0] <= 0:
            a(pend.pop(0)[1])
            for p_ in pend: p_[0] -= 1
    if 4 in gs:
        n0 = len(a.l)
        for k in tiles: emit(p3_mm(of, hh, k, 4, first))
        first = False
        gap = 6 - (len(a.l) - n0 - 1)
        if gap > 0:
            a("s_nop %d" % (gap - 1))
            for p_ in pend: p_[0] -= gap
    for k in tiles:
        for n, g in enumerate([g for g in gs if g < 4]): emit(p3_mm(of, hh, k, g, first and n == 0))
        if part is not None:
            if k == 4: w = "ds_write_b128 v%d, %s offset:%d" % (vP3 + 1, vr(vAC4, 4), P3_OFF[part])
            else: w = "ds_write_b128 v%d, %s offset:%d" % (vP3, vr(vAC[hh] + 4 * k, 4), P3_OFF[part] + 4 * P3_PART * hh + 64 * k)
            pend.append([8, w])
    a(side)


def p3_last(a, of, pend, side, br):
    T = [(0, k) for k in (4, 0, 1, 2, 3)] + [(1, k) for k in range(4)]
    side = list(side)
    def emit(x):
        a(x); n = 1
        if side:
            y = side.pop(0)
            if y: a(y); n += 1
        for p_ in pend: p_[0] -= n
        if pend and pend[0][0] <= 0:
            a(pend.pop(0)[1])
            for p_ in pend: p_[0] -= 1
    n0 = len(a.l)
    for i in range(3): emit(p3_mm(of, T[i][0], T[i][1], 4, False))
    gap = 6 - (len(a.l) - n0 - 1)
    if gap > 0: a("s_nop %d" % (gap - 1))
    for i, (hh, k) in enumerate(T):
        for g in (2, 3): emit(p3_mm(of, hh, k, g, False))
        if k == 4: w = "ds_write_b128 v%d, %s offset:%d" % (vP3 + 1, vr(vAC4, 4), P3_OFF[1])
        else: w = "ds_write_b128 v%d, %s offset:%d" % (vP3, vr(vAC[hh] + 4 * k, 4), P3_OFF[1] + 4 * P3_PART * hh + 64 * k)
        pend.append([8, w])
        if i + 3 < len(T):
            if i + 3 == 5:
                a([y for y in side if y], br); side = []
            emit(p3_mm(of, T[i + 3][0], T[i + 3][1], 4, False))


def p3_flush(a, pend):
    while pend:
        n = pend[0][0]
        if n > 0:
            a("s_nop %d" % (n - 1))
            for p_ in pend: p_[0] -= n
        a(pend.pop(0)[1])
        for p_ in pend: p_[0] -= 1


P3_ROW, P3_PART = 272, 16 * 272
P3_SH = 8 * P3_PART


def p3_addr(a, t):
    L = vLANE
    a("v_and_b32 v24, 15, v%d" % L, "v_lshrrev_b32 v%d, 4, v%d" % (t + 5, L),
      "s_mul_i32 s%d, s%d, %d" % (sT0, sKQ, P3_PART), "s_add_u32 s%d, s%d, %d" % (sT0, sT0, P3_BASE),
      "v_lshl_add_u32 v%d, v%d, 4, s%d" % (t, t + 5, sT0), "v_mad_u32_u24 v%d, v24, s%d, v%d" % (t, sC272, t),
      "s_mul_i32 s%d, s%d, 1280" % (sT0, sKQ), "s_add_u32 s%d, s%d, %d" % (sT0, sT0, P3_BASE + P3_SH),
      "v_lshl_add_u32 v%d, v%d, 4, s%d" % (t + 1, t + 5, sT0), "v_mad_u32_u24 v%d, v24, s%d, v%d" % (t + 1, sC80, t + 1),
      "s_lshl4_add_u32 s%d, s%d, s%d" % (sT0, sKH, sKQ), "s_mul_i32 s%d, s%d, %d" % (sT0, sT0, 4 * P3_ROW), "s_add_u32 s%d, s%d, %d" % (sT0, sT0, P3_BASE),
      "v_lshl_add_u32 v%d, v24, 4, s%d" % (t + 2, sT0), "v_mad_u32_u24 v%d, v%d, s%d, v%d" % (t + 2, t + 5, sC272, t + 2),
      "v_mul_u32_u24 v%d, 1152, v%d" % (t + 4, t + 5), "v_lshl_add_u32 v%d, v24, 3, v%d" % (t + 4, t + 4),
      "v_lshrrev_b32 v24, 2, v%d" % L, "v_and_b32 v%d, 3, v%d" % (t + 5, L),
      "v_mul_u32_u24 v%d, 80, v24" % (t + 3), "v_lshl_add_u32 v%d, v%d, 4, v%d" % (t + 3, t + 5, t + 3), "v_add_u32 v%d, %d, v%d" % (t + 3, P3_BASE + P3_SH, t + 3),
      "v_mul_u32_u24 v24, 1152, v24", "v_lshl_add_u32 v%d, v%d, 3, v24" % (t + 5, t + 5))


def p3_finish(a, part, cls, halves, d, pk, colds):
    t = vP3
    def rd(src, off, step, x):
        for k in range(4): a("ds_read_b128 %s, v%d offset:%d" % (vr(x + 4 * k, 4), src, P3_OFF[part] + off + step * k))
    def fin(x, va, so, left):
        for k in range(1, 4):
            if left is not None: a("s_waitcnt lgkmcnt(%d)" % (left + 3 - k))
            if pk: a(["v_pk_add_f32 %s, %s, %s" % (vr(x + i, 2), vr(x + i, 2), vr(x + 4 * k + i, 2)) for i in (0, 2)])
            else: a(["v_add_f32 v%d, v%d, v%d" % (x + i, x + i, x + 4 * k + i) for i in range(4)])
        a("v_cvt_pk_bf16_f32 v%d, v%d, v%d" % (x, x, x + 1), "v_cvt_pk_bf16_f32 v%d, v%d, v%d" % (x + 1, x + 2, x + 3),
          "buffer_store_dwordx2 %s, v%d, %s, s%d offen" % (vr(x, 2), va, srd(sOUT), so))
    def body(shared):
        for n, hh in enumerate(halves): rd(t + 2, 4 * P3_PART * (hh - cls), P3_PART, d + 16 * n)
        if shared: rd(t + 3, 0, 1280, d + 32)
        for n, hh in enumerate(halves): fin(d + 16 * n, t + 4, sOCOL + hh, 4 * (len(halves) - 1 - n + shared))
        if shared: fin(d + 32, t + 5, sOCOL + 2, 0)
    return body


KDX = []


def kd(name, lds=False):
    return """.amdhsa_kernel %s
  .amdhsa_next_free_vgpr 256
  .amdhsa_next_free_sgpr 96
  .amdhsa_accum_offset 256
  .amdhsa_group_segment_fixed_size 0
  .amdhsa_kernarg_size 48
  .amdhsa_user_sgpr_count 2
  .amdhsa_user_sgpr_kernarg_segment_ptr 1
  .amdhsa_system_sgpr_workgroup_id_x 1
%s.end_amdhsa_kernel""" % (name, "".join("  .amdhsa_%s\n" % x for x in KDX))


def head(a, name):
    a(".globl %s" % name, ".p2align 12", ".p2align 8", ".type %s,@function" % name, "%s:" % name)


def plan2(wb, xb, pre="w0 x0 x1 w1 x2", xfirst=False):
    p = [(-1, t[0], int(t[1:])) for t in pre.split()]
    w0, x0 = 9 - len(wb), 18 - len(xb)
    for b in range(18):
        w = [(b, "w", s) for s in range(w0, 9) if wb[s - w0] == b]
        x = [(b, "x", s) for s in range(x0, 18) if xb[s - x0] == b]
        p += x + w if xfirst else w + x
    return p


KC = {0: 48, 1: 80, 2: 90, 3: 100, 4: 58, 5: 68}
DEF = dict(plan=plan2([0, 0, 1, 2, 3, 4, 5], [0, 1, 2, 3, 4, 5, 6, 6, 7, 7, 8, 8, 12, 13, 13]), early0=1, npre=4, dmapos=0, p1prio=0, ftmaj=0, rotx=0, align=1, tag_step=4, flag_step=12, flag_pos='side0',
           poll_step=16, check_step=16, init_steps=(15, 3), e_sleep=0, pf_code=1, pf_x=1, idle_sleep=2, canary=1, per0=2, per1=1,
           nsolo=6, pos=[2, 6, 14, 18, 22, 26, 30],
           w0=[(1, 0), (1, 2)], kv1=['fill', (0, 1)], st1=[(0, 3), (0, 3)], w1=[(1, 6), (2, 3)], f1=[(2, 1), (2, 5), (2, 6)], pollL=[(5, 0), (6, 2)], kv2=[(6, 2), (6, 2), (6, 3), (6, 3), (6, 3)], w2=[(8, 2), (8, 3)], uswap=1, age=None, qdma=1, tagc=9, k2=0,
           kv3=[(8, 5), (8, 6), (9, 0), (9, 1), (9, 2)], w3=[(13, 2), (16, 3)], wo=[(11, 2), (13, 3), 14, (2, 3, 5)], poison=[0, (10, 2), (26, 2)],
           opoll=[(30, 5), (31, 1), (31, 1)], two=(31, 3), both=1, rsleep=1, emark=0, c1lag=4, pipe3=0, near=1, shift=42.5, one=0, bias=0, wall=0, split=0, ysleep=1, yfin=0, kc=None, kdx=['float_denorm_mode_32 3'], expop='v_exp_f32', snake=0, w7early=0, hint=(31, 4), h_sleep=0, e_pipe=0, i_pipe=0, h_pipe=0, warm=1, nopk=[0, 0], xw_sleep=0, try1=0, res4=0, yprio=0, fpk=[0, 1], full=0, xprio2=0, outmod=['', ''],
           prio={(0, 4): 2, (2, 2): 1, (6, 3): 0, (7, 5): 3, (26, 0): 2, (30, 5): 1, (31, 2): 0}, priox={(22, 0): 2},
           X={'st1': [(0, 3), (0, 4)], 'f1': [(2, 4), (3, 0), (3, 1)]},
           Y={'st1': [(0, 4), (0, 4)], 'pollL': [(5, 0), (6, 3)], 'kv2': [(6, 3), (6, 4), (6, 4), (6, 5), (6, 5)], 'w2': [(8, 0), (8, 3)],
              'prio': {(0, 3): 2, (2, 2): 1, (6, 2): 0, (7, 4): 3, (26, 0): 2, (30, 5): 1, (31, 2): 0}})


sF0, sF1 = 57, 58
sIDLE = 83
OOB = 0x7ffff000
MASTER = 242


def spin_guard(a, out):
    a("s_add_u32 s%d, s%d, 1" % (sSPIN, sSPIN), "s_cmp_gt_u32 s%d, 0x80000" % sSPIN, "s_cbranch_scc1 %s" % out)


def tag_issue(a):
    a.vmem("buffer_load_dword v%d, off, %s, 0 sc1" % (vTAG, srd(sDBG)), "tag")


def tag_check(a, colds):
    lp = a.uid("tag")
    a.wait(vm="tag")
    a("%s:" % lp, "v_readfirstlane_b32 s%d, v%d" % (sTAG, vTAG), "s_cmp_eq_u32 s%d, 0" % sTAG, "s_cbranch_scc1 %s_r" % lp, "%s_k:" % lp)
    def cold():
        a("%s_r:" % lp); spin_guard(a, lp + "_k")
        a("s_sleep 4", "buffer_load_dword v%d, off, %s, 0 sc1" % (vTAG, srd(sDBG)), "s_waitcnt vmcnt(0)", "s_branch %s" % lp)
    colds.append(cold)


FULL = [1]


def flag_store(a, soff, level, track=True, word=False):
    if word or (level and not FULL[0]):
        a("s_mov_b64 exec, 1")
        x = "buffer_store_dword v%d, off, %s, s%d offset:%d sc1" % (vTAG, srd(sWS), soff, 4 * (level - 1))
    else:
        if level == 0: a("v_mov_b64 %s, 0" % vr(vT, 2))
        if level == 2: a("v_mov_b32 v%d, v%d" % (vT, vTAG), "v_mov_b32 v%d, v%d" % (vT + 1, vTAG))
        a("s_mov_b64 exec, 0xff")
        x = "buffer_store_dwordx4 %s, v%d, %s, s%d offen sc1" % (vr(vTAG if level == 1 else vT, 4), vL16, srd(sWS), soff)
    if track: a.vmem(x, "flag")
    else: a(x)
    a("s_mov_b64 exec, -1")


def poll(a, va, colds, sleep=2, off=0):
    x = "buffer_load_dword v%d, v%d, %s, 0 offen offset:%d sc1" % (vPD, va, srd(sWS), off)
    def issue(): a.vmem(x, "poll")
    def check(mask=None):
        lp = a.uid("poll")
        a.wait(vm="poll")
        a("%s:" % lp, "v_cmp_ne_u32 vcc, s%d, v%d" % (sTAG, vPD))
        if mask is None: a("s_cbranch_vccnz %s_r" % lp)
        else: a("s_and_b32 vcc_lo, vcc_lo, %s" % mask, "s_cbranch_scc1 %s_r" % lp)
        a("%s_k:" % lp)
        def cold():
            a("%s_r:" % lp); spin_guard(a, lp + "_k")
            if sleep: a("s_sleep %d" % sleep)
            a(x, "s_waitcnt vmcnt(0)", "s_branch %s" % lp)
        colds.append(cold)
    return issue, check


def fused_setup(a):
    L = vLANE
    a("s_lshr_b32 s%d, s%d, 1" % (sT0, sHEAD), "s_mul_i32 s%d, s%d, 36" % (sT0, sT0), "s_and_b32 s%d, s%d, 1" % (sT1, sHEAD),
      "s_lshl_b32 s%d, s%d, 4" % (sT1, sT1), "s_add_u32 s%d, s%d, s%d" % (sT0, sT0, sT1),
      "v_min_u32 v%d, 11, v%d" % (vL16, L),
      "v_and_b32 v%d, 1, v%d" % (vPA, vL16), "v_mul_u32_u24 v%d, 19, v%d" % (vPA, vPA), "v_add_u32 v%d, s%d, v%d" % (vPA, sT0, vPA),
      "v_lshrrev_b32 v%d, 2, v%d" % (vL8, vL16), "v_sub_u32 v%d, 2, v%d" % (vL8, vL8), "v_mul_u32_u24 v%d, 576, v%d" % (vL8, vL8),
      "v_add_u32 v%d, v%d, v%d" % (vPA, vPA, vL8), "v_lshrrev_b32 v%d, 7, v%d" % (vPA, vPA),
      "s_lshl1_add_u32 s%d, s%d, s%d" % (sT0, sP, sKH), "s_lshr_b32 s%d, s%d, 1" % (sT1, sP), "s_lshl1_add_u32 s%d, s%d, s%d" % (sT1, sQI, sT1),
      "v_and_b32 v%d, 2, v%d" % (vL16, vL16), "v_lshl_add_u32 v%d, v%d, 2, s%d" % (vL16, vL16, sT0), "v_mov_b32 v%d, s%d" % (vL8, sT1),
      "v_cmp_le_u32 vcc, 8, v%d" % L, "v_lshlrev_b32 v%d, 11, v%d" % (vPA, vPA), "v_add_u32 v%d, %d, v%d" % (vPA, F01, vPA),
      "v_cndmask_b32 v%d, v%d, v%d, vcc" % (vL16, vL16, vL8),
      "v_lshl_add_u32 v%d, v%d, 7, v%d" % (vPA, vL16, vPA),
      "v_lshlrev_b32 v%d, 4, v%d" % (vL16, L), "v_lshlrev_b32 v%d, 3, v%d" % (vL8, L), "v_add_u32 v%d, 4096, v%d" % (vL8, vL8))
    late_setup(a); p3_addr(a, vP3)
    a("v_min_u32 v%d, 17, v%d" % (vPW, L), "v_lshlrev_b32 v%d, 2, v%d" % (vPW, vPW), "v_add_u32 v%d, %d, v%d" % (vPW, FW, vPW),
      "s_lshl2_add_u32 s%d, s%d, s%d" % (sT0, sXCD, sRT), "s_lshl2_add_u32 s%d, s%d, s%d" % (sT0, sT0, sKQ),
      "s_lshl_b32 s%d, s%d, 10" % (sT0, sT0), "s_add_u32 s%d, s%d, %d" % (sT0, sT0, FO),
      "v_min_u32 v%d, 7, v%d" % (vPO, L), "v_lshl_add_u32 v%d, v%d, 7, s%d" % (vPO, vPO, sT0),
      "s_lshl2_add_u32 s%d, s%d, s%d" % (sT0, sQI, sP), "s_lshl_b32 s%d, s%d, 5" % (sT0, sT0),
      "s_add_u32 s%d, s%d, s%d" % (sT0, sT0, sHEAD), "s_lshl_b32 s%d, s%d, 7" % (sT0, sT0),
      "s_add_u32 s%d, s%d, %d" % (sPF, sT0, FO))


def tlb_touch(a, cfg):
    l = a.uid("tlb")
    a("s_cmp_lg_u32 s%d, 7" % sWAVE, "s_cbranch_scc1 %s" % l,
      "v_and_b32 v2, 7, v%d" % vLANE, "v_mul_u32_u24 v2, %d, v2" % (4 * PITCH), "v_add_u32 v2, %d, v2" % (PITCH - 128),
      "v_and_b32 v3, 3, v%d" % vLANE, "v_mul_u32_u24 v3, %d, v3" % (16 * OTILE), "v_add_u32 v3, %d, v3" % (OBASE + OTILE - 128),
      "v_cmp_gt_u32 vcc, 8, v%d" % vLANE, "v_mov_b32 v4, %d" % (FW + 1024), "v_cmp_gt_u32 s[%d:%d], 12, v%d" % (sSAVE, sSAVE + 1, vLANE),
      "v_cndmask_b32 v2, v3, v2, vcc", "s_nop 0", "v_cndmask_b32 v2, v4, v2, s[%d:%d]" % (sSAVE, sSAVE + 1),
      "buffer_load_dword v44, v2, %s, 0 offen" % srd(sWS),
      "v_and_b32 v2, 3, v%d" % vLANE, "v_mul_u32_u24 v2, %d, v2" % (786432 - 128),
      "buffer_load_dword v45, v2, %s, 0 offen" % srd(sOUT), "%s:" % l)


vWW, vWC = 158, 159


def word_setup(a):
    a("s_and_b32 s%d, s%d, 1" % (sT0, sHEAD), "s_mul_i32 s%d, s%d, %d" % (sT0, sT0, (-2052) & 0xffffffff), "s_add_u32 s%d, s%d, 2052" % (sT0, sT0),
      "s_lshl3_add_u32 s%d, s%d, s%d" % (sT1, sWAVE, sT0), "v_mov_b32 v%d, s%d" % (vWW, sT1),
      "s_lshl_b32 s%d, s%d, 5" % (sT1, sKH), "s_add_u32 s%d, s%d, s%d" % (sT1, sT1, sT0),
      "v_and_b32 v%d, 3, v%d" % (vWC, vLANE), "v_lshl_add_u32 v%d, v%d, 3, s%d" % (vWC, vWC, sT1))


def word_set(a, stage, track=True, twice=False):
    a("s_mov_b64 exec, 1")
    x = "ds_write_b32 v%d, v0 offset:%d" % (vWW, 64 * stage)
    if twice: x = "ds_write2_b32 v%d, v0, v0 offset0:%d offset1:%d" % (vWW, 16 * stage, 16 * stage + 16)
    if track: a.lds(x)
    else: a(x)
    a("s_mov_b64 exec, -1")


def word_check(a, offs, colds, t=vT, sleep=1):
    xs = ["ds_read_b32 v%d, v%d offset:%d" % (t + k, vWC, o) for k, o in enumerate(offs)]
    def issue():
        for x in xs: a.lds(x, "word")
    def check(track=True):
        l = a.uid("word")
        if track: a.wait(lg="word")
        a("%s:" % l)
        for k in range(len(offs)): a("v_cmp_ne_u32 vcc, s%d, v%d" % (sTAG, t + k), "s_cbranch_vccnz %s_r" % l)
        a("%s_k:" % l)
        def cold():
            a("%s_r:" % l); spin_guard(a, l + "_k"); a(["s_sleep %d" % sleep] if sleep else [], xs, "s_waitcnt lgkmcnt(0)", "s_branch %s" % l)
        colds.append(cold)
    return issue, check, xs


def gen_fused(cfg):
    NOPK[:] = cfg["nopk"]; FULL[0] = cfg["full"]; RES4[0] = cfg["res4"]; RSLEEP[0] = cfg["rsleep"]; ONE[0] = cfg["one"]; BIAS[0] = cfg["bias"]; KDX[:] = cfg["kdx"]
    SHIFT[0] = struct.unpack("<I", struct.pack("<f", cfg["shift"]))[0] >> 16
    a = Asm()
    name = NAME + "_kernel"
    head(a, name)
    prologue(a, "L_exit"); a(";STAMP 0")
    a("s_mov_b32 s%d, 0" % sSPIN, "s_mov_b32 s%d, 0x%x" % (sF1, OOB))
    a("s_mov_b32 s%d, 0" % sIDLE)
    p1_roles(a, "L_idle")
    def setup():
        a("L_setup:")
        p2_setup(a); p3_setup(a); fused_setup(a)
        a("s_cmp_lg_u32 s%d, 0" % sIDLE, "s_cbranch_scc1 L_idle2")
        a("s_lshl_b32 s%d, s%d, 11" % (sT0, sLINE), "s_lshl_b32 s%d, s%d, 7" % (sT1, sG), "s_add_u32 s%d, s%d, s%d" % (sT0, sT0, sT1),
          "s_add_u32 s%d, s%d, %d" % (sT0, sT0, F01),
          "s_cmp_eq_u32 s%d, 0" % sWAVE, "s_cselect_b32 s%d, s%d, s%d" % (sF1, sT0, sF1))
    p1_head(a, cfg, {"setup": setup, "setup2": lambda: flag_store(a, sF1, 0)})
    a("s_cmp_ge_u32 s%d, 9" % sLINE, "s_cbranch_scc1 L_p1v", "s_branch L_p1q")
    vm_head = list(a.vm)
    a("L_idle:"); a.vm = []; a.lg = []
    a("s_waitcnt lgkmcnt(0)")
    a("s_cmp_lg_u32 s2, %d" % MASTER, "s_cbranch_scc1 L_nomaster", "s_cmp_lg_u32 s%d, 0" % sWAVE, "s_cbranch_scc1 L_nomaster",
      "s_mov_b32 s%d, %d" % (sT0, FEPOCH), "buffer_load_dword v2, off, %s, s%d sc1" % (srd(sWS), sT0), "s_waitcnt vmcnt(0)",
      "v_readfirstlane_b32 s%d, v2" % sT1, "s_mul_i32 s%d, s%d, 0x41c64e6d" % (sT1, sT1), "s_add_u32 s%d, s%d, 12345" % (sT1, sT1),
      "s_cmp_eq_u32 s%d, 0" % sT1, "s_cselect_b32 s%d, 12345, s%d" % (sT1, sT1), "v_mov_b32 v2, s%d" % sT1, "s_mov_b64 exec, 1",
      "buffer_store_dword v2, off, %s, 0 sc1" % srd(sDBG), "buffer_store_dword v2, off, %s, s%d sc1" % (srd(sWS), sT0), "s_mov_b64 exec, -1",
      "L_nomaster:")
    if cfg["pf_code"]:
        a("s_getpc_b64 s[%d:%d]" % (sRET, sRET + 1), "L_pc:", "s_sub_u32 s%d, s%d, L_pc-%s" % (sRET, sRET, name), "s_subb_u32 s%d, s%d, 0" % (sRET + 1, sRET + 1),
          "s_cmp_lt_u32 s%d, 6" % sWAVE, "s_cbranch_scc1 L_nopf",
          "s_and_b32 s%d, s%d, 3" % (sT0, sJ), "v_and_b32 v2, 127, v0", "v_lshl_add_u32 v2, v2, 2, s%d" % sT0,
          "v_lshlrev_b32 v2, 7, v2", "v_min_u32 v2, L_pfend-%s-4, v2" % name, "global_load_dword v47, v2, s[%d:%d]" % (sRET, sRET + 1), "L_nopf:")
    if cfg["pf_x"]:
        l = a.uid("pf")
        a("s_and_b32 s%d, s%d, 3" % (sT0, sJ), "s_cmp_ge_u32 s%d, 4" % sWAVE, "s_cbranch_scc1 %s" % l,
          "s_lshr_b32 s%d, s%d, 1" % (sT1, sWAVE), "s_lshl1_add_u32 s%d, s%d, s%d" % (sT1, sT0, sT1),
          "s_lshr_b32 s%d, s%d, 2" % (sT2, sXCD), "s_mul_i32 s%d, s%d, 7" % (sT2, sT2), "s_and_b32 s%d, s%d, 2" % (sT3, sXCD),
          "s_lshl1_add_u32 s%d, s%d, s%d" % (sT3, sT3, sT1),
          "s_sub_u32 s%d, s%d, 5" % (sT4, sT3), "s_add_u32 s%d, s%d, 4" % (sT3, sT3), "s_cmp_lt_u32 s%d, 5" % sT1,
          "s_cselect_b32 s%d, 3, s%d" % (sT4, sT4), "s_cselect_b32 s%d, s%d, 8" % (sT3, sT3), "s_add_u32 s%d, s%d, s%d" % (sT2, sT2, sT4),
          "s_mul_i32 s%d, s%d, 3" % (sT4, sT2), "s_add_u32 s%d, s%d, s%d" % (sT3, sT3, sT4))
        rot_die(a, cfg, sT3, sT4)
        mod9(a, sT3, sT4)
        a("s_mul_i32 s%d, s%d, %d" % (sT3, sT3, 64 * 3456), "s_and_b32 s%d, s%d, 1" % (sT4, sWAVE), "s_lshl1_add_u32 s%d, s%d, s%d" % (sT2, sT2, sT4),
          "s_lshl_b32 s%d, s%d, 7" % (sT2, sT2), "s_add_u32 s%d, s%d, s%d" % (sT3, sT3, sT2),
          "v_mul_u32_u24 v2, 3456, v%d" % vLANE, "buffer_load_dword v47, v2, %s, s%d offen" % (srd(sW), sT3), "%s:" % l)
        a("s_barrier",
          "s_and_b32 s%d, s%d, 6" % (sT1, sXCD), "s_lshl1_add_u32 s%d, s%d, s%d" % (sT0, sT1, sT0), "s_and_b32 s%d, s%d, 1" % (sT1, sXCD),
          "s_lshl4_add_u32 s%d, s%d, s%d" % (sT0, sT1, sT0), "s_add_u32 s%d, s%d, 32" % (sT0, sT0), "s_mul_i32 s%d, s%d, %d" % (sT0, sT0, 32 * 1152),
          "s_cmp_ge_u32 s%d, 5" % sWAVE, "s_cselect_b32 s%d, 0x40000000, s%d" % (sT0, sT0),
          "v_min_u32 v2, 287, v0", "v_lshlrev_b32 v2, 7, v2", "buffer_load_dword v47, v2, %s, s%d offen" % (srd(sX), sT0))
    a("s_mov_b64 %s, %s" % (sr(sW, 2), sr(sWO, 2)), "s_mov_b32 s%d, 663552" % (sW + 2))
    a("s_mov_b32 s%d, 1" % sIDLE, "s_branch L_setup")
    def idle2():
      tag_issue(a); p2_init(a)
      wo_role(a, "L_nowo")
      a("s_lshl_b32 s%d, s%d, 2" % (sT0, sLINE), "s_add_u32 s%d, s%d, %d" % (sT0, sT0, FW - 4), "s_cmp_eq_u32 s%d, 0" % sWAVE, "s_cselect_b32 s%d, s%d, s%d" % (sF1, sT0, sF1))
      a("L_nowo:"); a.vm = ["tag"]; a.lg = []
    sF, sPo = cfg["flag_step"], cfg["poll_step"]
    colds = []
    def first_loads(n):
        l = a.uid("fl")
        keep = list(a.vm)
        a("s_cmp_%s_u32 s%d, 3" % (("eq", "lg")[n], sP), "s_cbranch_scc1 %s" % l)
        for k in range(3): kv_piece(a, 0, k)
        if n: a("%s:" % l)
        a("s_cmp_%s_u32 s%d, 2" % (("ge", "lt")[n], sP), "s_cbranch_scc1 %s_e" % l)
        for k in range(3, 5): kv_piece(a, 0, k)
        if n == 0:
            a("s_branch %s_e" % l, "%s:" % l); q_dma(a)
        a("%s_e:" % l)
        a.vm = keep
    for isv in (False, True):
        if cfg["align"]: a(".p2align 12")
        a("L_p1v:" if isv else "L_p1q:")
        a.vm = list(vm_head); a.lg = []
        hooks = {}
        hooks[("side", cfg["tag_step"])] = [lambda: tag_issue(a)]
        hooks[("step", cfg["tagc"])] = lambda: tag_check(a, colds)
        hooks[("waitfor", sF)] = [("st", 0)] + ([("d", 17)] if cfg["wall"] else [])
        hooks[(cfg["flag_pos"], sF)] = [lambda: flag_store(a, sF1, 1)]
        pi, pc = poll(a, vPA, colds, sleep=cfg["e_sleep"])
        tmp = Asm(); p2_init(tmp)
        ini = [x.strip() for x in tmp.l]
        st0, nst = cfg["init_steps"]
        n = -(-len(ini) // nst)
        for k in range(nst): hooks.setdefault(("side", st0 + k), []).extend((lambda x=x: a(x)) for x in ini[k * n:(k + 1) * n])
        if sPo < 18: hooks.setdefault(("side", sPo), []).insert(0, pi)
        else: hooks["pre_epi1"] = pi
        cs = cfg["check_step"]
        hooks[("step", cs)] = lambda: (pc(), a(";STAMP 8"))
        hooks[("bar", cs + 1)] = lambda: (first_loads(0), a(";STAMP 1"))
        hooks["pre_epi1"] = lambda: a(";STAMP 2")
        hooks["mid_epi1"] = lambda stores: (a("s_add_u32 s%d, s%d, %d" % (sST2, sST, 256 if isv else 2048)), first_loads(1))
        p1_body(a, isv, cfg, hooks)
        if cfg["near"]:
            a("s_cmp_lg_u32 s%d, 0" % sKH, "s_cbranch_scc1 L_attn1", "s_branch L_attn0")
            while colds: colds.pop()()
        else: a("s_branch L_attn")
    def idle_rest():
        a("L_idle2:"); a.vm = []; a.lg = []
        idle2()
        pi, pc = poll(a, vPA, colds, sleep=cfg["idle_sleep"])
        tag_check(a, colds); a(";STAMP 16")
        if cfg["canary"]:
            a("s_mov_b64 exec, 0x100"); pi(); pc(); a("s_mov_b64 exec, -1")
            pi, pc = poll(a, vPA, colds, sleep=cfg["e_sleep"])
        pi(); pc(); a(";STAMP 8", "s_barrier"); first_loads(0); a("s_barrier"); first_loads(1)
        a("s_mov_b32 s%d, 0x40000000" % sST, "s_mov_b32 s%d, 0x40000000" % sST2, "v_mov_b32 v%d, 0" % vSTA)
        a("s_branch L_attn")
    if cfg["align"]: a(".p2align 12")
    a("L_attn:", ";STAMP 19", "s_cmp_lg_u32 s%d, 0" % sKH, "s_cbranch_scc1 L_attn1", "L_attn0:")
    slows = []
    def slow(part, back, done):
        lab = a.uid("slowp"); slows.append((part, lab, back, done)); a("s_cbranch_vccnz %s" % lab)
    skip = cfg.get("skip", "")
    st1 = ["buffer_store_dwordx4 %s, v%d, %s, s%d offen sc1" % (vr(vACC[1] + 8 * n, 4), vSTA, srd(sWS), (sST, sST2)[n]) for n in range(2)]
    def run_colds(cs):
        k = 0
        while k < len(cs):
            cs[k](); k += 1

    def attn(cls):
        colds = []
        cf = dict(cfg); cf.update(cfg.get("XY"[cls], {}))
        cf["prio"] = dict(cf["prio"])
        if cls == 0: cf["prio"].update(cf["priox"])
        cf["priox"] = {}
        if cls == 0: cf["kc"] = None
        a.vm = [("kv", 0)]; a.lg = []
        ev = {}
        def at(k, f, name=None):
            if name and name in skip.split(): return
            g = ev.get(k)
            ev[k] = f if g is None else (lambda: (g(), f()))
        for k in range(2): at(cf["st1"][k], lambda k=k: a.vmem(st1[k], "st1"))
        def b0():
            l = a.uid("b0")
            q_addr(a)
            a("s_setprio 3", "s_waitcnt vmcnt(5)", "s_cmp_eq_u32 s%d, 3" % sP, "s_cbranch_scc1 %s" % l, "s_waitcnt vmcnt(2)",
              "s_cmp_eq_u32 s%d, 2" % sP, "s_cbranch_scc1 %s" % l, "s_waitcnt vmcnt(0)", "%s:" % l, ";STAMP 4", "s_barrier", ";STAMP 6")
            q_read(a)
            if BIAS[0]: brd()
        at(("pre", 0), b0)
        brd, binit = o_bias(a, cls)
        if BIAS[0]: at("fill", binit)
        def stage(st, pos_set, pos_rd, pos_chk):
            wi, wc, xs = word_check(a, [64 * st], colds)
            at(pos_set, lambda: (a.wait(vm=("kv", st)), word_set(a, st)))
            at(pos_rd, wi); at(pos_chk, wc)
        def spread(pos, st):
            if len(pos) == 2: pos = [pos[0]] * 3 + [pos[1]] * 2
            for k, p_ in enumerate(pos): at(p_, lambda k=k: kv_piece(a, st, k))
        spread(cf["kv1"], 1)
        stage(0, cf["w0"][0], cf["w0"][1], ("prev", 2))
        stage(1, cf["w1"][0], cf["w1"][1], ("pre", 4))
        at(cf["f1"][0], lambda: (a.wait(vm="st1"), word_set(a, CHUNK // 64)))
        if cls == 0:
            wi, wc, xs = word_check(a, [CHUNK, CHUNK + 32], colds)
            at(cf["f1"][1], wi); at(cf["f1"][2], lambda wc=wc: (wc(), flag_store(a, sF1, 2, word=True)))
        pi, pc = poll(a, vPA, colds, off=4)
        at(cf["pollL"][0], pi)
        at(cf["pollL"][1], lambda: (pc(), a(";STAMP 9"), q_load(a, 1)))
        spread(cf["kv2"], 2)
        ev["ql"] = lambda: a.wait(vm=("q", 1))
        stage(2, cf["w2"][0], cf["w2"][1], ("pre", 8))
        spread(cf["kv3"], 3)
        assert cf["w3"][0] >= (13, 0) and cf["nsolo"] == 6
        stage(3, cf["w3"][0], cf["w3"][1], ("pre", 12))
        def meet():
            if cls == 0: send_partial(a, 0)
            else:
                a.wait(vm="all"); finalize(a, 0, slow, colds); a.lg = []
            a("v_subrev_u32 v%d, %d, v%d" % (vSA, LDS_SPARE - 12 * CHUNK, vSA))
            word_set(a, 4)
        at((25, 3), meet)
        ofe = [(vO[0], vQ[0]), (vS[0], vS[0] + 16)]
        ofl = [(vS[1], vK + 4), (vS[1] + 16, vK + 6)]
        if cls == 1:
            at(cf["poison"][1], lambda: (poison(a, (0, 1) if cf["emark"] else (1,)), flag_store(a, sPF, 0)))
            at(cf["poison"][2], lambda: (cf["emark"] or a.wait(vm="all"), flag_store(a, sPF, 1)))
            at(cf["hint"], lambda: flag_store(a, sPF, 2))
            at((31, 5), lambda: [a.lds(x) for x in fin_reads(1)])
            p2_main(a, cf, ev)
            a(";STAMP 7", "v_subrev_u32 v%d, 32, v%d" % (vWC, vWC))
            if cf["yfin"]: a("s_setprio 1")
            if cf["hint"] == (32, 0): flag_store(a, sPF, 2); a("s_nop 2")
            else: a("s_nop 5")
            finalize(a, 1, slow, colds, prefetched=True, before_store=(lambda: word_set(a, 7)) if cf["w7early"] else None)
            if not cf["w7early"]: word_set(a, 7)
            if cf["hint"] == (33, 0): flag_store(a, sPF, 2)
            if cf["yfin"]: a("s_setprio 0")
            a(";STAMP 10"); a.lg = []
            wi, wc, xs = word_check(a, [384], colds, sleep=cf["ysleep"])
            wi(); wc()
            a("s_cmp_eq_u32 s%d, 0" % sKQ, "s_cbranch_scc1 L_ysh")
            for shared in range(2):
                if shared: a("L_ysh:")
                p3_finish(a, 0, 1, (1, 0), vS[0], cf["fpk"][0], colds)(shared)
                a(";STAMP 12")
                if cf["split"]:
                    for i in (0, 2): a("s_add_u32 s%d, s%d, %d" % (sOCOL + i, sOCOL + i, 1024 * 1152))
                    a("v_subrev_u32 v%d, %d, v%d" % (vP3 + 2, 4 * P3_PART, vP3 + 2)); a.lg = []
                    wi, wc, xs = word_check(a, [320], colds, sleep=cf["split"] - 1)
                    wi(); wc()
                    p3_finish(a, 1, 0, (0,), vWO + 2, cf["fpk"][0], colds)(shared)
                    a("s_barrier")
                else:
                    for i in (1, 2): a("s_add_u32 s%d, s%d, %d" % (sOCOL + i, sOCOL + i, 1024 * 1152))
                    a("s_setprio %d" % shared, "s_barrier")
                    p3_finish(a, 1, 1, (1,), vWO + 2, cf["fpk"][1], colds)(shared)
                a(";STAMP 15", ";STAMPWAIT", ";STAMP 5", ";STAMPEND", "s_endpgm")
        else:
            pi2, pc2 = poll(a, vPW, colds)
            at(cf["wo"][0], pi2, "wo"); at(cf["wo"][1], pc2, "wo")
            for k in range(25):
                n = cf["wo"][3]
                at((cf["wo"][2] + k // len(n), n[k % len(n)]), lambda k=k: wo_load(a, [k // 5], vL16, vL8, only=k % 5), "wo")
            sOM = 35
            at(cf["w3"][0], lambda: a("v_xor_b32 v%d, 0x100, v%d" % (vOA2, vOA), "v_xor_b32 v%d, 64, v%d" % (vOB2, vOB),
                                      ["s_add_u32 s%d, s%d, %d" % (sOM + i, sOL + i, 32 * OTILE) for i in range(3)],
                                      "s_add_u32 s%d, s%d, %d" % (sOCOL + bool(cf["split"]), sOCOL + bool(cf["split"]), 1024 * 1152)))
            pi3, pc3 = poll(a, vPO, colds)
            G5 = (4, 0, 1, 2, 3)
            at(cf["opoll"][0], pi3)
            at(cf["opoll"][1], lambda: (pc3(), o_load(a, ofe, [(0, g) for g in G5], sOL, "oe")))
            assert cf["opoll"][2] >= (31, 0)
            at(cf["opoll"][2], lambda: o_load(a, ofe, [(1, g) for g in G5], sOL, "oe"))
            wi, wc, xs = word_check(a, [256, 288], colds, t=vQ[0] + 2)
            at((31, 3), wi)
            pi4, pc4 = poll(a, vPO, colds, sleep=cf["h_sleep"], off=4)
            two = cf["two"]
            S1 = [(hh, g) for hh in range(2) for g in (0, 1)]
            S2 = [(hh, g) for hh in range(2) for g in ((4, 2, 3) if two else G5)]
            if two: at(cf["two"], pi4)
            p2_main(a, cf, ev)
            a(";STAMP 7")
            wc(); a("s_nop 7")
            send_partial(a, 1)
            sG1, sG2 = 38, 39
            c0 = c1 = b0_ = b1_ = []
            if cf["emark"]:
                c0, b0_ = o_check(a, ofe, [(0, g) for g in G5], sOL, colds)
                c1, b1_ = o_check(a, ofe, [(1, g) for g in G5], sOL, colds)
            a.wait(vm="all")
            a(c0, b0_)
            if two:
                a("s_mov_b32 s%d, 0" % sG1, "v_cmp_ne_u32 vcc, s%d, v%d" % (sTAG, vPD), "s_and_b32 vcc_lo, vcc_lo, 15", "s_cbranch_scc1 L_xw", "s_mov_b32 s%d, 1" % sG1)
                o_load(a, ofl, S1, sOM, "o1")
            a("L_xw:", "ds_read_b32 v%d, v%d offset:480" % (vT, vWW), "s_waitcnt lgkmcnt(0)",
              "v_cmp_ne_u32 vcc, s%d, v%d" % (sTAG, vT), "s_cbranch_vccnz L_xw2", "L_xw3:", ";STAMP 10")
            colds.append(lambda: (a("L_xw2:"), spin_guard(a, "L_xw3"), a(["s_sleep %d" % cf["xw_sleep"]] if cf["xw_sleep"] else [], "s_branch L_xw")))
            a.vm = []; pi4()
            pend = []
            p3_half(a, ofe, 0, G5, True, 0, pend, c1)
            a(b1_)
            p3_half(a, ofe, 1, G5, True, 0, pend)
            p3_flush(a, pend)
            word_set(a, 6)
            a(";STAMP 11")
            if two:
                a("s_cmp_eq_u32 s%d, 0" % sG1, "s_cbranch_scc1 L_g1", "s_waitcnt vmcnt(0)", "L_g1k:")
                def g1():
                    a("L_g1:"); a.vm = ["poll"]; pc4("15"); o_load(a, ofl, S1, sOM, "o1"); a("s_branch L_g1k")
                colds.append(g1)
                a("s_mov_b32 s%d, 1" % sG2, "v_cmp_ne_u32 vcc, s%d, v%d" % (sTAG, vPD), "s_cbranch_vccnz L_g2", ";STAMP 13")
                a.vm = []; o_load(a, ofl, S2, sOM, "o2")
                a("s_waitcnt vmcnt(8)", "L_g2k:")
                colds.append(lambda: (a("L_g2:", "s_mov_b32 s%d, 0" % sG2), pi4(), a("s_waitcnt vmcnt(1)", "s_branch L_g2k")))
                c, b = o_check(a, ofl, S1, sOM, colds)
                a(c, b)
                for hh in range(2): p3_half(a, ofl, hh, (0, 1), True, None, pend)
                a("s_cmp_eq_u32 s%d, 0" % sG2, "s_cbranch_scc1 L_g3", "L_g3k:")
                def g3():
                    keep = list(a.vm)
                    a("L_g3:"); a.vm = ["poll"]; pc4(); a(";STAMP 13"); o_load(a, ofl, S2, sOM, "o2"); a("s_branch L_g3k")
                colds.append(g3)
            else:
                pc4(); a(";STAMP 13")
                o_load(a, ofl, S2, sOM, "o2")
            gs = [g for hh, g in S2 if hh == 0]
            c0, b0_ = o_check(a, ofl, [(0, g) for g in gs], sOM, colds, S2 if cf["both"] else None)
            c1, b1_ = o_check(a, ofl, [(1, g) for g in gs], sOM, colds)
            a.wait(vm=("o2", 0)); a(";STAMP 12", c0, b0_)
            nside = cf["c1lag"]
            if two and cf["pipe3"]: p3_last(a, ofl, pend, [None] * nside + ["s_waitcnt vmcnt(0)"] + c1, b1_)
            else:
                p3_half(a, ofl, 0, gs, not two, 1, pend, [None] * nside + ["s_waitcnt vmcnt(0)"] + c1)
                a(b1_)
                if cf["split"]: pend[-1][1] = [pend[-1][1], "s_mov_b64 exec, 1", "ds_write_b32 v%d, v%d offset:320" % (vWW, vTAG), "s_mov_b64 exec, -1"]
                p3_half(a, ofl, 1, gs, not two, 1, pend)
            p3_flush(a, pend)
            a(";STAMP 14", "s_waitcnt lgkmcnt(0)", "s_barrier")
            p3_finish(a, 1, 0, (1 if cf["split"] else 0,), vWO + 2, cf["fpk"][1], colds)(0)
            a("L_end:", ";STAMP 15", ";STAMPWAIT", ";STAMP 5", ";STAMPEND", "L_exit:", "s_endpgm")
        run_colds(colds)

    attn(0)
    if cfg["align"]: a(".p2align 12")
    a("L_attn1:")
    attn(1)
    colds.append(idle_rest)
    run_colds(colds)
    a("L_pfend:")
    def restore():
        kc = cfg["kc"]
        assert sorted(kc) == list(range(6))
        a("v_subrev_u32 v42, %d, v%d" % (24 * CHUNK, vAK), "v_subrev_u32 v43, %d, v%d" % (24 * CHUNK, vAR))
        for i, r in kc.items():
            a("v_mov_b32 v%d, v%d" % (r + 9, vKR + 1), "ds_read_b32 v%d, v43 offset:%d" % (r + 8, 2 * CHUNK * i))
            for k in range(4): a("ds_read_b64 %s, v42 offset:%d" % (vr(r + 2 * k, 2), 2 * CHUNK * i + 256 * (k // 2) + 512 * (k % 2)))
            a("s_waitcnt lgkmcnt(0)")
    for part, lab, back, done in slows: slow_path(a, part, lab, back, done, restore if part == 0 and cfg["kc"] else lambda: None)
    hdr = ["; @launch grid=(256,1,1) block=(512,1,1) lds=%d" % LDS_TOTAL]
    return finish(a, hdr, [name])


def finish(a, hdr, names):
    errs = lint(a.l)
    for e in errs: print("HAZARD", e, file=sys.stderr)
    out = hdr + ['.amdgcn_target "amdgcn-amd-amdhsa--gfx950"', ".text"] + a.l + ['.section .rodata,"a"']
    for n in names: out += [".p2align 6", kd(n)]
    return "\n".join(out) + "\n"


if __name__ == "__main__":
    mode = sys.argv[1] if len(sys.argv) > 1 else "split"
    out = sys.argv[2] if len(sys.argv) > 2 else "cdna_kernels/%s.s" % NAME
    cfg = dict(DEF)
    for kv in sys.argv[3:]:
        k, v = kv.split("=", 1); cfg[k] = eval(v)
    txt = {"fused": gen_fused}[mode](cfg)
    open(out, "w").write(txt)
    print("wrote", out, len(txt.split("\n")), "lines")
```

```python
import sys, struct, math
from hazard import lint

NAME = "standalone__mha_block__prompt"

PITCH = 221184 + 128
SEC = 73728
OBASE = 32 * PITCH
OTILE = 36864 + 128
WOBASE = OBASE + 64 * OTILE
FBASE = WOBASE + 36 * 4 * 4608
F01 = FBASE
FRND = 27 * 8 * 128
FW = FBASE + 57344
FEPOCH = FW + 512
FO = FBASE + 65536
WS_SIZE = FO + 131072
CHUNK = 4864
LDS_SPARE = 32 * CHUNK
LDS_TOTAL = 163840
SCALE = struct.unpack("<I", struct.pack("<f", math.log2(math.e) / math.sqrt(18.0)))[0]

sX, sW, sWO, sOUT, sWS, sDBG = 4, 8, 12, 16, 20, 24
sWAVE, sXCD, sJ = 28, 29, 30
sTAG = 31
sLINE, sG, sSEC = 32, 33, 34
sXOFF, sWOFF, sM0X, sSCALE, sM0W, sST = 35, 36, 37, 38, 39, 40
sHEAD, sQI, sKH, sP = 41, 42, 43, 44
sVMASK = 46
sDMASK = 48
sCH, sQOFF = 50, 51
sCM = 45
sST2 = 39
sRT, sCB, sKQ, sRH = 52, 53, 54, 55
sFIVE = 56
sT0, sT1, sT2, sT3, sT4, sT5 = 60, 61, 62, 63, 64, 65
sRET = 66
sSPIN = 68
sWOF = 70
sOCOL = 75
sLOOP = 79
sSHF, sC272, sC80 = 69, 82, 59
sSAVE = 80

def srd(s): return "s[%d:%d]" % (s, s + 3)
def vr(a, n=1): return "v%d" % a if n == 1 else "v[%d:%d]" % (a, a + n - 1)
def sr(a, n=1): return "s%d" % a if n == 1 else "s[%d:%d]" % (a, a + n - 1)

vLANE = 1
vQ = [2, 8]
vIDX = 14
vAK, vAR, vAV = 15, 16, 17
vDMA = 18
vQA, vQR = 22, 23
vT = 24
vSA, vSB, vOA, vOB = 26, 27, 28, 29
vP3 = 30
vPW, vPO = 36, 37
vPA, vPD, vL16, vL8 = 38, 39, 40, 41
vTAG = 0
vAK1 = 47
vXS = 8
vWS = 9
vXR = 11
vWR = 42
vSTA = 46
vACC = [48, 64]
vXF = [80, 96]
vWF = 112
vWO = 42
vV = 132
vK = 148
vKR = 156
vO = [160, 176]
vS = [192, 224]


class Asm:
    def __init__(self):
        self.l = []
        self.vm = []
        self.lg = []
        self.n = 0
        self.clock = 0
        self.lgt = []
        self.age = None

    def __call__(self, *lines):
        for s in lines:
            if isinstance(s, (list, tuple)):
                self(*s)
            elif s.endswith(":") or s.startswith((".", ";")):
                self.l.append(s)
            else:
                self.l.append("    " + s)

    def uid(self, p):
        self.n += 1
        return "L_%s_%d" % (p, self.n)

    def vmem(self, s, tag):
        self(s); self.vm.append(tag)
        assert len(self.vm) <= 63

    def lds(self, s, tag=None):
        self(s); self.lg.append(tag); self.lgt.append(self.clock)

    def _cnt(self, q, tags):
        if not isinstance(tags, (list, set)): tags = [tags]
        last = max([k for k, t in enumerate(q) if t in tags], default=-1)
        return None if last < 0 else len(q) - 1 - last

    def wait(self, vm=None, lg=None):
        parts = []
        if vm is not None:
            n = 0 if vm == "all" else self._cnt(self.vm, vm)
            if n is not None:
                parts.append("vmcnt(%d)" % n); self.vm = self.vm[len(self.vm) - n:]
        if lg is not None:
            n = 0 if lg == "all" else self._cnt(self.lg, lg)
            if n is not None:
                if self.age is not None:
                    while n > 0 and self.clock - self.lgt[len(self.lgt) - n] >= self.age: n -= 1
                n = min(n, 15)
                parts.append("lgkmcnt(%d)" % n); self.lg = self.lg[len(self.lg) - n:]
        if parts: self("s_waitcnt " + " ".join(parts))


REMAP = [0]
KARG = [0]
LEAN = [0]
PF0 = [0]
SRDS = ((sX, 2359296), (sW, 1990656), (sWO, 663552), (sOUT, 2359296), (sDBG, 256), (sWS, WS_SIZE))


def karg_wait(a, first=True):
    mv = lambda d, k: "s_mov_b64 %s, %s" % (sr(d, 2), sr(44 + 2 * k, 2))
    if first:
        a("s_waitcnt lgkmcnt(0)")
        if KARG[0]: a(mv(sW, 1), mv(sX, 0))
        if KARG[0] >= 2: a("s_load_dwordx8 s[48:55], s[0:1], 16")
    elif KARG[0]:
        if LEAN[0]:
            for s, n in SRDS[2:]: a("s_mov_b32 s%d, %d" % (s + 2, n), "s_mov_b32 s%d, 0x00020000" % (s + 3))
        if KARG[0] >= 2: a("s_waitcnt lgkmcnt(0)")
        a(mv(sWO, 2), mv(sOUT, 3), mv(sDBG, 4), mv(sWS, 5))


def prologue(a, endlabel):
    a(";STAMPINIT", ";STAMP 3")
    if KARG[0] < 3: a("s_cmp_ge_u32 s2, 256", "s_cbranch_scc1 %s" % endlabel)
    if KARG[0] == 0:
        for k, s in enumerate((sX, sW, sWO, sOUT, sDBG, sWS)):
            a("s_load_dwordx2 %s, s[0:1], %d" % (sr(s, 2), 8 * k))
    elif KARG[0] == 1: a("s_load_dwordx8 s[44:51], s[0:1], 0", "s_load_dwordx4 s[52:55], s[0:1], 32")
    else: a("s_load_dwordx4 s[44:47], s[0:1], 0")
    if KARG[0] >= 3: a("s_cmp_ge_u32 s2, 256", "s_cbranch_scc1 %s" % endlabel)
    if PF0[0]:
        name = NAME + "_kernel"
        a("v_cmp_gt_u32 vcc, %d, v0" % PF0[0], "s_getpc_b64 s[%d:%d]" % (sRET, sRET + 1), "L_pc0:", "s_and_saveexec_b64 %s, vcc" % sr(sSAVE, 2), "s_cbranch_execz L_nopf0",
          "s_lshr_b32 s%d, s2, 3" % sT0, "v_lshl_add_u32 v2, v0, 5, s%d" % sT0, "v_lshlrev_b32 v2, 7, v2", "v_min_u32 v2, L_pfend-L_pc0-4, v2",
          "global_load_dword v47, v2, s[%d:%d]" % (sRET, sRET + 1), "L_nopf0:", "s_mov_b64 exec, -1")
    for s, n in SRDS[:2 if LEAN[0] else 6]:
        a("s_mov_b32 s%d, %d" % (s + 2, n), "s_mov_b32 s%d, 0x00020000" % (s + 3))
    if REMAP[0]: a("s_add_u32 s2, s2, %d" % REMAP[0], "s_and_b32 s2, s2, 255")
    a("v_lshrrev_b32 v2, 6, v0", "v_and_b32 v%d, 63, v0" % vLANE, "v_readfirstlane_b32 s%d, v2" % sWAVE,
      "s_and_b32 s%d, s2, 7" % sXCD, "s_lshr_b32 s%d, s2, 3" % sJ)


def p1_roles(a, idle):
    a("s_cmp_ge_u32 s%d, 28" % sJ, "s_cbranch_scc1 %s" % idle,
      "s_lshr_b32 s%d, s%d, 1" % (sT1, sXCD), "s_mul_i32 s%d, s%d, 28" % (sT1, sT1), "s_add_u32 s%d, s%d, s%d" % (sT1, sT1, sJ),
      "s_lshr_b32 s%d, s%d, 3" % (sLINE, sT1), "s_and_b32 s%d, s%d, 7" % (sT5, sT1),
      "s_and_b32 s%d, s%d, 1" % (sG, sXCD), "s_lshl3_add_u32 s%d, s%d, s%d" % (sG, sG, sT5))


XBASE = 98304
def xslot(s): return XBASE + 8192 * (s % 8)
def wslot(s): return 16384 * (s % 6)


def mod9(a, d, t):
    a("s_mul_i32 s%d, s%d, 57" % (t, d), "s_lshr_b32 s%d, s%d, 9" % (t, t), "s_mul_i32 s%d, s%d, 9" % (t, t), "s_sub_u32 s%d, s%d, s%d" % (d, d, t))


def rot_die(a, cfg, d, t):
    if cfg["rotx"] == 1: a("s_lshr_b32 s%d, s%d, 1" % (t, sXCD), "s_add_u32 s%d, s%d, s%d" % (d, d, t))
    if cfg["rotx"] == 2: a("s_add_u32 s%d, s%d, s%d" % (d, d, sXCD))
    if cfg["rotx"] == 3:
        a("s_lshr_b32 s%d, s%d, 1" % (t, sXCD), "s_add_u32 s%d, s%d, s%d" % (d, d, t), "s_and_b32 s%d, s%d, 1" % (t, sXCD), "s_lshl2_add_u32 s%d, s%d, s%d" % (d, t, d))


def p1_issue(a, kind, s):
    if kind == "w":
        def f0():
            a("s_add_u32 m0, s%d, %d" % (sM0W, wslot(s)))
            if s: a("s_add_u32 s%d, s%d, %d" % (sWOFF, sWOFF, 64 * 3456), "s_cmp_eq_u32 s%d, %d" % (sWOFF, 576 * 3456), "s_cselect_b32 s%d, 0, s%d" % (sWOFF, sWOFF))
            else: a("s_nop 0")
            a.vmem("buffer_load_dwordx4 v%d, %s, s%d offen lds" % (vWS, srd(sW), sWOFF), ("w", s))
        def f1():
            a.vmem("buffer_load_dwordx4 v%d, %s, s%d offen offset:1024 lds" % (vWS + 1, srd(sW), sWOFF), ("w", s))
        return [f0, f1]
    def fx():
        a("s_add_u32 m0, s%d, %d" % (sM0X, xslot(s)))
        if s: a("s_add_u32 s%d, s%d, 128" % (sXOFF, sXOFF), "s_cmpk_eq_u32 s%d, 1152" % sXOFF, "s_cselect_b32 s%d, 0, s%d" % (sXOFF, sXOFF))
        else: a("s_nop 0")
        if s == 9: a("v_add_u32 v%d, %d, v%d" % (vXS, 1024 * 1152, vXS))
        a.vmem("buffer_load_dwordx4 v%d, %s, s%d offen lds" % (vXS, srd(sX), sXOFF), ("d", s))
    return [fx]


def p1_head(a, cfg, hooks):
    L = vLANE
    t0, t1, t2, t3 = 38, 39, 40, 41
    a("s_and_b32 s%d, s%d, 1" % (sT0, sWAVE), "s_lshl_b32 s%d, s%d, 2" % (sT1, sT0),
      "v_lshrrev_b32 v%d, 4, v%d" % (t0, L), "v_add_u32 v%d, s%d, v%d" % (t1, sT1, t0),
      "v_and_b32 v%d, 15, v%d" % (t2, L), "v_lshlrev_b32 v%d, 1, v%d" % (t3, t1), "v_xor_b32 v%d, v%d, v%d" % (t2, t2, t3),
      "s_mul_i32 s%d, s%d, %d" % (sT2, sWAVE, 8 * 3456), "s_lshl_b32 s%d, s%d, 8" % (sT3, sLINE), "s_add_u32 s%d, s%d, s%d" % (sT2, sT2, sT3),
      "v_mul_u32_u24 v%d, 3456, v%d" % (t0, t0), "v_lshl_add_u32 v%d, v%d, 4, s%d" % (vWS, t2, sT2),
      "s_cmp_eq_u32 s%d, 13" % sLINE, "s_cselect_b32 s%d, 8, 0" % sT3, "v_and_b32 v%d, s%d, v%d" % (t2, sT3, t2),
      "v_lshl_add_u32 v%d, v%d, 26, v%d" % (t0, t2, t0), "v_add_u32 v%d, v%d, v%d" % (vWS, vWS, t0),
      "v_add_u32 v%d, %d, v%d" % (vWS + 1, 4 * 3456 - 1024, vWS))
    a("s_mul_i32 s%d, s%d, 3" % (sT2, sLINE), "s_add_u32 s%d, s%d, s%d" % (sT2, sT2, sT5))
    rot_die(a, cfg, sT2, sT3)
    mod9(a, sT2, sT3)
    a("s_lshl_b32 s%d, s%d, 7" % (sXOFF, sT2), "s_mul_i32 s%d, s%d, %d" % (sWOFF, sT2, 64 * 3456),
      "s_lshl_b32 s%d, s%d, 10" % (sM0X, sWAVE), "s_lshl_b32 s%d, s%d, 11" % (sM0W, sWAVE))
    skip0 = 0
    if cfg["lean"] == 2:
        assert cfg["plan"][0] == (-1, "w", 0)
        karg_wait(a); a(";STAMP 17")
        for f in p1_issue(a, "w", 0): f()
        skip0 = 1
    a("v_lshrrev_b32 v%d, 3, v%d" % (t0, L), "v_and_b32 v%d, 7, v%d" % (t2, L), "v_xor_b32 v%d, v%d, v%d" % (t2, t2, t1),
      "s_cmp_ge_u32 s%d, 9" % sLINE, "s_cselect_b32 s%d, 2, 0" % sT3, "s_cselect_b32 s%d, 4, 7" % sT4,
      "s_bfe_u32 s%d, s%d, 0x10001" % (sT1, sWAVE), "s_lshl_b32 s%d, s%d, s%d" % (sT1, sT1, sT3),
      "s_lshl4_add_u32 s%d, s%d, s%d" % (sT1, sT0, sT1), "s_and_b32 s%d, s%d, 4" % (sT2, sWAVE), "s_lshl3_add_u32 s%d, s%d, s%d" % (sT1, sT2, sT1),
      "s_lshl_b32 s%d, s%d, 6" % (sT2, sG), "s_add_u32 s%d, s%d, s%d" % (sT1, sT1, sT2),
      "v_and_b32 v%d, s%d, v%d" % (t3, sT4, t0), "v_add3_u32 v%d, v%d, v%d, s%d" % (t3, t3, t0, sT1),
      "v_mul_u32_u24 v%d, 1152, v%d" % (t3, t3), "v_lshl_add_u32 v%d, v%d, 4, v%d" % (vXS, t2, t3))
    def addr_rd():
        t0, t1, t2, t3 = 48, 49, 50, 51
        a("s_lshr_b32 s%d, s%d, 2" % (sT0, sWAVE), "s_and_b32 s%d, s%d, 3" % (sT1, sWAVE),
          "s_lshl_b32 s%d, s%d, 12" % (sT2, sT0), "s_add_u32 s%d, s%d, %d" % (sT2, sT2, XBASE),
          "v_and_b32 v%d, 15, v%d" % (t0, L), "v_lshrrev_b32 v%d, 4, v%d" % (t1, L),
          "v_bfe_u32 v%d, v%d, 1, 3" % (t2, L), "v_xor_b32 v%d, v%d, v%d" % (t2, t2, t1),
          "v_lshlrev_b32 v%d, 4, v%d" % (t2, t2),
          "v_lshl_add_u32 v%d, v%d, 7, s%d" % (t3, t0, sT2),
          "v_add_u32 v%d, v%d, v%d" % (vXR, t2, t3), "v_xor_b32 v%d, 64, v%d" % (vXR + 1, vXR))
        a("v_bfe_u32 v%d, v%d, 2, 2" % (t2, L), "v_lshl_add_u32 v%d, v%d, 3, v%d" % (t2, t1, t2),
          "v_lshlrev_b32 v%d, 8, v%d" % (vWR, t2),
          "v_and_b32 v%d, 3, v%d" % (t2, L), "v_lshl_add_u32 v%d, v%d, 3, v%d" % (vWR, t2, vWR),
          "s_lshl_b32 s%d, s%d, 1" % (sT2, sT1),
          "v_bfe_u32 v%d, v%d, 2, 3" % (t2, L), "v_xor_b32 v%d, s%d, v%d" % (t2, sT2, t2),
          "v_lshl_add_u32 v%d, v%d, 5, v%d" % (vWR, t2, vWR),
          "v_xor_b32 v%d, 32, v%d" % (vWR + 1, vWR),
          "v_add_u32 v%d, 0x10000, v%d" % (vWR + 2, vWR), "v_add_u32 v%d, 0x10000, v%d" % (vWR + 3, vWR + 1))
    def addr_st():
        t0, t1, t2, t3 = 48, 49, 50, 51
        a("s_lshr_b32 s%d, s%d, 2" % (sT0, sWAVE), "s_and_b32 s%d, s%d, 3" % (sT1, sWAVE))
        a("s_mul_i32 s%d, s%d, %d" % (sST, sG, PITCH), "v_lshlrev_b32 v%d, 4, v%d" % (t0, t0),
          "s_lshl2_add_u32 s%d, s%d, s%d" % (sT2, sLINE, sT1),
          "s_cmp_ge_u32 s%d, 54" % sT2, "s_cselect_b32 s%d, 0x40000000, s%d" % (sST, sST),
          "s_mov_b32 s%d, 0x%08x" % (sT4, SCALE), "s_cmp_lt_u32 s%d, 18" % sT2, "s_cselect_b32 s%d, s%d, 1.0" % (sSCALE, sT4),
          "s_movk_i32 s%d, 256" % sT4, "s_movk_i32 s%d, 512" % sT5, "s_cmp_ge_u32 s%d, 9" % sLINE,
          "s_cselect_b32 s%d, %d, s%d" % (sT4, 4 * 9216, sT4), "s_cselect_b32 s%d, 9216, s%d" % (sT5, sT5),
          "s_cselect_b32 s%d, 9, 12" % sT1, "s_cselect_b32 s%d, %d, 0" % (sT3, 2 * SEC - 18 * 1024),
          "s_mul_i32 s%d, s%d, s%d" % (sT0, sT0, sT4), "s_lshl_b32 s%d, s%d, s%d" % (sT2, sT2, sT1),
          "s_add_u32 s%d, s%d, s%d" % (sST, sST, sT3), "s_add_u32 s%d, s%d, s%d" % (sST, sST, sT2), "s_add_u32 s%d, s%d, s%d" % (sST, sST, sT0),
          "v_mad_u32_u24 v%d, v%d, s%d, v%d" % (vSTA, t1, sT5, t0))
    if cfg["fat"] >= 1: addr_rd()
    if cfg["fat"] >= 2: addr_st()
    if not skip0: karg_wait(a); a(";STAMP 17")

    issue = lambda kind, s: p1_issue(a, kind, s)
    plan = cfg["plan"]
    assert sorted((k, s) for _, k, s in plan) == sorted([("w", s) for s in range(9)] + [("x", s) for s in range(18)])
    for b, kind, s in plan:
        assert b < s and (kind == "w" and (s < 6 or b >= s - 5) or kind == "x" and (s < 8 or b >= s - 7))
    pre = [(kind, s) for b, kind, s in plan if b < 0]
    for kind, s in pre[skip0:cfg["npre"]]:
        for f in issue(kind, s): f()
    t0, t1, t2, t3 = 48, 49, 50, 51
    karg_wait(a, False)
    hooks["setup"]()

    if cfg["fat"] < 1: addr_rd()
    if cfg["fat"] < 2: addr_st()
    a(";STAMP 18")
    for kind, s in pre[cfg["npre"]:]:
        for f in issue(kind, s): f()
    hooks["setup2"]()
    if cfg["p1prio"]:
        l = a.uid("pp"); a("s_cmp_lt_u32 s%d, 4" % sWAVE, "s_cbranch_scc1 %s" % l, "s_setprio 1", "%s:" % l)


def p1_body(a, isv, cfg, hooks):
    issue = lambda kind, s: p1_issue(a, kind, s)
    plan = cfg["plan"]

    def reads(s):
        r = []
        for m in range(2):
            for t in range(2):
                r.append("ds_read_b128 %s, v%d offset:%d" % (vr(vXF[s % 2] + 8 * m + 4 * t, 4), vXR + m, xslot(s) - XBASE + 2048 * t))
                if s < 9:
                    for h in range(2):
                        r.append("ds_read_b64_tr_b16 %s, v%d offset:%d" % (vr(vWF + 16 * s + 8 * m + 4 * t + 2 * h, 2), vWR + t + 2 * (wslot(s) >> 16),
                                                                           (wslot(s) & 0xffff) + (32 * m + 4 * h) * 256))
        return [(lambda x=x: a.lds(x)) for x in r]

    def mfmas(s):
        r = []
        for m in range(2):
            for ft in range(2):
                for tt in ((1, 0) if cfg["snake"] and ft else (0, 1)):
                    acc = vr(vACC[s // 9] + 8 * ft + 4 * tt, 4)
                    w = vr(vWF + 16 * (s % 9) + 8 * m + 4 * ft, 4); x = vr(vXF[s % 2] + 8 * m + 4 * tt, 4)
                    c = cfg.get("x_c0", "0") if (s % 9 == 0 and m == 0) else acc
                    r.append("v_mfma_f32_16x16x32_bf16 %s, %s, %s, %s" % ((acc, x, w, c) if isv else (acc, w, x, c)))
        return r

    def store(r, n):
        a.vmem("buffer_store_dwordx4 %s, v%d, %s, s%d offen offset:%d sc1" % (vr(vACC[r] + 8 * n, 4), vSTA, srd(sWS), sST, (256 if isv else 2048) * n), ("st", r))

    def epilogue(r):
        acc = vACC[r]
        mid = hooks.get("mid_epi1") if r else None
        for n in range(2):
            if not isv:
                for i in range(8 * n, 8 * n + 8, 2): a("v_pk_mul_f32 %s, %s, %s op_sel_hi:[1,0]" % (vr(acc + i, 2), vr(acc + i, 2), sr(sSCALE, 2)))
            for i in range(4): a("v_cvt_pk_bf16_f32 v%d, v%d, v%d" % (acc + 8 * n + i, acc + 8 * n + 2 * i, acc + 8 * n + 2 * i + 1))
            if not mid: store(r, n)
        if mid: mid(lambda: (store(r, 0), store(r, 1)))
        if r == 0: a("s_add_u32 s%d, s%d, %d" % (sST, sST, 16 * PITCH))

    for s in range(18):
        extra = hooks.get(("waitfor", s), [])
        a.wait(vm=[("d", s)] + [("w", s)] + extra, lg="all")
        a("s_barrier")
        a(";STAMP %d" % (20 + s))
        hooks.get(("bar", s), lambda: None)()
        side = reads(s)
        xp = cfg.get("x_p1", "")
        if "noread" in xp: side = []
        if "nowread" in xp: side = side[0::3] if s < 9 else side
        dm = []
        for b, kind, s2 in plan:
            if b == s and "nodma" not in xp: dm += issue(kind, s2)
        if cfg["dmapos"] == 0 or s > cfg["dmalast"]: side += dm
        elif cfg["dmapos"] == 1: side = dm + side
        else:
            k = max(1, len(side) // max(1, len(dm))); mix = []
            while side or dm:
                mix += side[:k] + dm[:1]; side = side[k:]; dm = dm[1:]
            side = mix
        mm = mfmas(s - 1) if s > 0 else []
        if cfg["early0"] and s == 9: mm = []
        if "nomfma" in xp: mm = []
        side = hooks.get(("side0", s), []) + side + hooks.get(("side", s), [])
        per = max(cfg["per1"], -(-len(side) // 8))
        for x in mm:
            a(x)
            for f in side[:per]: f()
            side = side[per:]
        for f in side: f()
        if cfg["ftmaj"] and s == 8:
            a.wait(lg="all")
            mm = mfmas(8); a([mm[i] for i in (0, 1, 4, 5, 2, 3, 6, 7)])
            a("s_nop 3")
            epilogue(0)
            a(";STAMP 39")
        elif cfg["early0"] and s == 8:
            a.wait(lg="all"); a(mfmas(8))
        if s == (8 if cfg["early0"] else 9) and not cfg["ftmaj"]:
            a("s_nop 5")
            epilogue(0)
            a(";STAMP 39")
        hooks.get(("step", s), lambda: None)()
    a.wait(lg="all")
    a(mfmas(17))
    hooks.get("pre_epi1", lambda: None)()
    a("s_nop 5")
    epilogue(1)
    a(";STAMP 38")
    hooks.get("post_epi1", lambda: None)()


def wo_role(a, skip):
    L = vLANE
    t0, t1, t2, t3 = 42, 43, 44, 45
    a("s_sub_u32 s%d, s2, 224" % sLINE, "s_cmp_ge_u32 s%d, 18" % sLINE, "s_cbranch_scc1 %s" % skip)
    a("s_lshl_b32 s%d, s%d, 3" % (sT0, sWAVE), "v_lshrrev_b32 v%d, 3, v%d" % (t0, L), "v_add_u32 v%d, s%d, v%d" % (t0, sT0, t0),
      "v_mul_u32_u24 v%d, 1152, v%d" % (t0, t0), "v_and_b32 v%d, 7, v%d" % (t1, L), "v_lshl_add_u32 v%d, v%d, 4, v%d" % (t0, t1, t0),
      "s_lshr_b32 s%d, s%d, 1" % (sT4, sLINE), "s_lshl_b32 s%d, s%d, 7" % (sT1, sT4), "s_and_b32 s%d, s%d, 1" % (sT5, sLINE),
      "s_mul_i32 s%d, s%d, %d" % (sT2, sT5, 288 * 1152), "s_add_u32 s%d, s%d, s%d" % (sT1, sT1, sT2),
      "s_lshl_b32 s%d, s%d, 10" % (sT2, sWAVE))
    for k in range(5):
        a("s_add_u32 m0, s%d, %d" % (sT2, 8192 * k))
        if k == 4: a("s_cmp_ge_u32 s%d, 4" % sWAVE, "s_cselect_b32 s%d, 0x40000000, s%d" % (sT1, sT1))
        else: a("s_nop 0")
        a.vmem("buffer_load_dwordx4 v%d, %s, s%d offen lds" % (t0, srd(sW), sT1), "wo")
        if k < 4: a("s_add_u32 s%d, s%d, %d" % (sT1, sT1, 64 * 1152))
    a("s_and_b32 s%d, s%d, 3" % (sT0, sWAVE), "s_lshr_b32 s%d, s%d, 2" % (sT1, sWAVE),
      "s_mul_i32 s%d, s%d, 144" % (sT3, sT1), "s_lshl_b32 s%d, s%d, 5" % (sT2, sT0),
      "v_lshrrev_b32 v%d, 5, v%d" % (t0, L), "v_mul_u32_u24 v%d, 18, v%d" % (t0, t0),
      "v_bfe_u32 v%d, v%d, 2, 3" % (t1, L),
      "v_add3_u32 v%d, v%d, v%d, s%d" % (t0, t0, t1, sT3),
      "v_and_b32 v%d, 3, v%d" % (t2, L), "v_lshl_add_u32 v%d, v%d, 3, s%d" % (t2, t2, sT2),
      "v_lshl_add_u32 v%d, v%d, 7, v%d" % (t0, t0, t2),
      "v_lshrrev_b32 v%d, 3, v%d" % (t1, L), "v_mul_u32_u24 v%d, 18, v%d" % (t1, t1),
      "v_bfe_u32 v%d, v%d, 2, 1" % (t3, L), "s_add_u32 s%d, s%d, 16" % (sT3, sT3),
      "v_add3_u32 v%d, v%d, v%d, s%d" % (t1, t1, t3, sT3),
      "v_lshl_add_u32 v%d, v%d, 7, v%d" % (t1, t1, t2))
    a("s_lshl2_add_u32 s%d, s%d, s%d" % (sT2, sT4, sT0), "s_lshl1_add_u32 s%d, s%d, s%d" % (sT2, sT2, sT5), "s_lshl1_add_u32 s%d, s%d, s%d" % (sT2, sT2, sT1),
      "s_mul_i32 s%d, s%d, 4608" % (sT2, sT2), "s_add_u32 s%d, s%d, %d" % (sT2, sT2, WOBASE), "s_add_u32 s%d, s%d, 4096" % (sT4, sT2),
      "v_lshlrev_b32 v%d, 4, v%d" % (t2, L), "v_lshlrev_b32 v%d, 3, v%d" % (t3, L))
    a.wait(vm="all"); a("s_barrier")
    for m in range(4):
        for h in range(2):
            a.lds("ds_read_b64_tr_b16 %s, v%d offset:%d" % (vr(48 + 4 * m + 2 * h, 2), t0, (36 * m + 8 * h) * 128))
    a.lds("ds_read_b64_tr_b16 v[64:65], v%d" % t1)
    a.wait(lg="all")
    for m in range(4):
        a.vmem("buffer_store_dwordx4 %s, v%d, %s, s%d offen offset:%d sc1" % (vr(48 + 4 * m, 4), t2, srd(sWS), sT2, 1024 * m), "st")
    a.vmem("buffer_store_dwordx2 v[64:65], v%d, %s, s%d offen sc1" % (t3, srd(sWS), sT4), "st")


SHIFT = [0]


def p2_setup(a):
    L = vLANE
    t0, t1, t2, t3 = 38, 39, 40, 41
    a("s_lshl_b32 s%d, s%d, 2" % (sHEAD, sXCD), "s_lshr_b32 s%d, s%d, 3" % (sT0, sJ), "s_add_u32 s%d, s%d, s%d" % (sHEAD, sHEAD, sT0),
      "s_and_b32 s%d, s%d, 7" % (sQI, sJ), "s_and_b32 s%d, s%d, 3" % (sP, sWAVE), "s_lshr_b32 s%d, s%d, 2" % (sKH, sWAVE),
      "s_mov_b32 s%d, 0x3ffff" % sVMASK, "s_mov_b32 s%d, 0x3ffff" % (sVMASK + 1),
      "s_mov_b32 s%d, -1" % sDMASK, "s_mov_b32 s%d, 0xffff" % (sDMASK + 1),
      "s_and_b32 s%d, s%d, 1" % (sT0, sHEAD),
      "s_lshr_b32 s%d, s%d, 1" % (sT1, sHEAD), "s_mul_i32 s%d, s%d, %d" % (sT1, sT1, 9 * 512))
    a("v_and_b32 v%d, 31, v%d" % (t0, L), "v_lshrrev_b32 v%d, 5, v%d" % (t1, L))
    a("s_lshl_b32 s%d, s%d, 11" % (sT2, sT0), "s_add_u32 s%d, s%d, s%d" % (sT2, sT2, sT1), "s_add_u32 s%d, s%d, %d" % (sT2, sT2, SEC),
      "v_lshl_add_u32 v%d, v%d, 4, s%d" % (vDMA, L, sT2),
      "s_mul_i32 s%d, s%d, 288" % (sT3, sHEAD))
    for k in (2, 3, 4):
        imm = 1024 * k if k < 4 else 0
        d = vDMA + k - 1
        a("v_add_u32 v%d, %d, v%d" % (t2, (64 * k - 160) & 0xffffffff, L))
        if k == 2: a("v_max_i32 v%d, 0, v%d" % (t2, t2))
        a("v_mul_u32_u24 v%d, 3641, v%d" % (t3, t2), "v_lshrrev_b32 v%d, 16, v%d" % (t3, t3),
          "v_mul_u32_u24 v%d, %d, v%d" % (t3, 9216 - 288, t3),
          "v_lshl_add_u32 v%d, v%d, 4, v%d" % (t3, t2, t3),
          "s_add_u32 s%d, s%d, %d" % (sT4, sT3, 2 * SEC - imm),
          "v_add_u32 v%d, s%d, v%d" % (d, sT4, t3))
        if k == 2:
            a("v_cmp_gt_u32 vcc, 32, v%d" % L, "s_nop 1", "v_cndmask_b32 v%d, v%d, v%d, vcc" % (d, d, vDMA))
    a("s_mul_i32 s%d, s%d, %d" % (sT2, sKH, CHUNK),
      "s_lshl_b32 s%d, s%d, 9" % (sT3, sT0), "s_add_u32 s%d, s%d, s%d" % (sT3, sT3, sT2),
      "v_lshlrev_b32 v%d, 10, v%d" % (t2, t1), "v_lshl_add_u32 v%d, v%d, 3, v%d" % (t2, t0, t2),
      "v_add_u32 v%d, s%d, v%d" % (vAK, sT3, t2),
      "s_mul_i32 s%d, s%d, %d" % (sT3, sT0, (4 - 2048) & 0xffffffff), "s_add_u32 s%d, s%d, 2048" % (sT3, sT3),
      "s_add_u32 s%d, s%d, s%d" % (sT3, sT3, sT2),
      "v_lshl_add_u32 v%d, v%d, 3, s%d" % (vAR, L, sT3),
      "s_add_u32 s%d, s%d, 2560" % (sT3, sT2),
      "v_mul_u32_u24 v%d, 288, v%d" % (t3, t1), "v_lshl_add_u32 v%d, v%d, 4, v%d" % (t3, t0, t3),
      "v_add_u32 v%d, s%d, v%d" % (vAV, sT3, t3))
    a("s_mul_i32 s%d, s%d, %d" % (sT3, sT0, 5 * 512), "s_add_u32 s%d, s%d, s%d" % (sT3, sT3, sT1),
      "v_add_u32 v%d, s%d, v%d" % (vQA, sT3, t2),
      "s_lshl_b32 s%d, s%d, 2" % (sT3, sT0), "s_add_u32 s%d, s%d, s%d" % (sT3, sT3, sT1), "s_add_u32 s%d, s%d, 2048" % (sT3, sT3),
      "v_lshl_add_u32 v%d, v%d, 3, s%d" % (vQR, t0, sT3),
      "s_lshl_b32 s%d, s%d, 1" % (sT3, sQI), "s_lshr_b32 s%d, s%d, 1" % (sT4, sP), "s_add_u32 s%d, s%d, s%d" % (sT3, sT3, sT4),
      "s_mul_i32 s%d, s%d, %d" % (sQOFF, sT3, PITCH), "s_and_b32 s%d, s%d, 1" % (sT4, sP), "s_lshl_b32 s%d, s%d, 8" % (sT4, sT4),
      "s_add_u32 s%d, s%d, s%d" % (sQOFF, sQOFF, sT4),
      "s_lshl1_add_u32 s%d, s%d, s%d" % (sT0, sP, sKH), "s_mul_i32 s%d, s%d, %d" % (sCM, sT0, CHUNK), "s_mul_i32 s%d, s%d, %d" % (sCH, sT0, PITCH),
      "v_mov_b32 v%d, 0xdddddddd" % vIDX, "v_mov_b32 v%d, 0x%x" % (vQ[0] + 5, SHIFT[0]), "v_mov_b32 v%d, 0x%x" % (vQ[1] + 5, SHIFT[0]))


def q_load(a, part):
    so = sQOFF
    if part:
        a("s_add_u32 s%d, s%d, %d" % (sT0, sQOFF, 16 * PITCH)); so = sT0
    q = vQ[part]
    a.vmem("buffer_load_dwordx2 %s, v%d, %s, s%d offen sc1" % (vr(q, 2), vQA, srd(sWS), so), ("q", part))
    a.vmem("buffer_load_dwordx2 %s, v%d, %s, s%d offen offset:512 sc1" % (vr(q + 2, 2), vQA, srd(sWS), so), ("q", part))
    a.vmem("buffer_load_dword v%d, v%d, %s, s%d offen sc1" % (q + 4, vQR, srd(sWS), so), ("q", part))


def kv_piece(a, st, k):
    if k == 0: a("s_add_u32 m0, s%d, %d" % (sCM, 8 * st * CHUNK), "s_add_u32 s%d, s%d, %d" % (sCH, sCH, 8 * PITCH) if st else "s_nop 0")
    if k < 4:
        a.vmem("buffer_load_dwordx4 v%d, %s, s%d offen offset:%d sc1 lds" % (vDMA + max(0, k - 1), srd(sWS), sCH, 1024 * k), ("kv", st))
    else:
        a("s_add_u32 m0, m0, 4096", "s_mov_b64 exec, %s" % sr(sDMASK, 2))
        a.vmem("buffer_load_dwordx4 v%d, %s, s%d offen sc1 lds" % (vDMA + 3, srd(sWS), sCH), ("kv", st))
        a("s_mov_b64 exec, -1")


def kv_dma(a, st):
    for k in range(5): kv_piece(a, st, k)


def q_dma(a):
    a("s_lshl1_add_u32 s%d, s%d, s%d" % (sT1, sQI, sKH), "s_mul_i32 s%d, s%d, %d" % (sT1, sT1, PITCH),
      "s_mul_i32 s%d, s%d, 2560" % (sT0, sKH), "s_add_u32 m0, s%d, %d" % (sT0, LDS_SPARE),
      "v_subrev_u32 v%d, %d, v%d" % (vT, SEC, vDMA))
    for k in range(3):
        if k == 2: a("s_mov_b32 exec_hi, 0")
        a("buffer_load_dwordx4 v%d, %s, s%d offen offset:%d sc1 lds" % (vT, srd(sWS), sT1, 1024 * k))
    a("s_mov_b64 exec, -1")


def q_addr(a):
    a("s_lshr_b32 s%d, s%d, 1" % (sT0, sP), "s_mul_i32 s%d, s%d, 2560" % (sT0, sT0), "s_and_b32 s%d, s%d, 1" % (sT1, sP), "s_lshl_b32 s%d, s%d, 8" % (sT1, sT1),
      "s_add_u32 s%d, s%d, s%d" % (sT0, sT0, sT1), "s_mul_i32 s%d, s%d, %d" % (sT1, sKH, CHUNK), "s_sub_u32 s%d, s%d, s%d" % (sT0, sT0, sT1),
      "s_add_u32 s%d, s%d, %d" % (sT0, sT0, LDS_SPARE),
      "v_add_u32 v%d, s%d, v%d" % (vT, sT0, vAK), "v_and_b32 v%d, 32, v%d" % (vT + 1, vLANE), "v_lshlrev_b32 v%d, 3, v%d" % (vT + 1, vT + 1),
      "v_sub_u32 v%d, v%d, v%d" % (vT + 1, vAR, vT + 1), "v_add_u32 v%d, s%d, v%d" % (vT + 1, sT0, vT + 1))


def q_read(a):
    q = vQ[0]
    a.lds("ds_read_b32 v%d, v%d" % (q + 4, vT + 1), "R")
    for h in range(2): a.lds("ds_read_b64 %s, v%d offset:%d" % (vr(q + 2 * h, 2), vT, 512 * h), ("K", 0))


ONE = [0]


def v_consts(a, base, t):
    m = 0x40000 if ONE[0] else 0x440000
    a("s_mov_b32 s%d, 0x%x" % (sSAVE, m), "s_mov_b32 s%d, 0x%x" % (sSAVE + 1, m), "v_mov_b32 v%d, 0x3f803f80" % t,
      "v_cndmask_b32 v%d, 0, v%d, %s" % (base, t, sr(sSAVE, 2)))
    a("v_mov_b32 v%d, v%d" % (base + 1, base))
    for i in range(1, 8): a("v_mov_b64 %s, %s" % (vr(base + 2 * i, 2), vr(base, 2)))


def p2_init(a):
    word_setup(a)
    v_consts(a, vV, vV + 2)
    a("v_mov_b32 v%d, 0x%x" % (vKR + 1, 0x3f80 if SHIFT[0] else 0))
    for i in range(16): a("v_mov_b64 %s, 0" % vr(vO[0] + 2 * i, 2))


def p2_main(a, cfg, ev):
    ns = cfg["nsolo"]
    U = [(i, 0) for i in range(ns)] + [(i, q) for i in range(ns, 16) for q in range(2)] + [(i, 1) for i in range(ns)]
    if cfg["uswap"]: U[6:10] = [(6, 0), (7, 0), (7, 1), (6, 1)]
    N = len(U)
    base = {"k": 0, "r": 0, "v": 0, "k0": 0, "k1": 0}
    reg = {"k": vAK, "r": vAR, "v": vAV, "k0": vAK, "k1": vAK1}
    seen = set()

    def off(kind, i):
        if i not in seen:
            seen.add(i)
            if ("pre", i) in ev: ev[("pre", i)]()
        want = (i // 6) * 6
        if base[kind] != want:
            a("v_add_u32 v%d, 0x%x, v%d" % (reg[kind], ((want - base[kind]) * 2 * CHUNK) & 0xffffffff, reg[kind]))
            base[kind] = want
        return (i - want) * 2 * CHUNK

    kc = cfg.get("kc") or {}
    have = set()
    kreg = lambda i: kc.get(i, vK)
    def rR(i):
        if (i, "r") in have: return
        o = off("r", i)
        if i in kc:
            have.add((i, "r")); a("v_mov_b32 v%d, v%d" % (kc[i] + 9, vKR + 1))
        a.lds("ds_read_b32 v%d, v%d offset:%d" % (kreg(i) + 8, vAR, o), "R")
    def rK(i, t):
        if cfg["k2"]:
            kind = "k%d" % t
            want = 0 if i < 13 else 13
            if base[kind] != want:
                a("v_add_u32 v%d, 0x%x, v%d" % (reg[kind], ((want - base[kind]) * 2 * CHUNK) & 0xffffffff, reg[kind])); base[kind] = want
            o = (i - want) * 19
            a.lds("ds_read2st64_b64 %s, v%d offset0:%d offset1:%d" % (vr(vK + 4 * t, 4), reg[kind], o, o + 1), ("K", t))
            return
        if (i, t) in have: return
        if i in kc: have.add((i, t))
        o = off("k", i)
        for h in range(2): a.lds("ds_read_b64 %s, v%d offset:%d" % (vr(kreg(i) + 4 * t + 2 * h, 2), vAK, o + 256 * t + 512 * h), ("K", t))
    def rV(i, fs):
        if ("prev", i) in ev: ev.pop(("prev", i))()
        o = off("v", i)
        if not cfg.get("x_nomask"): a("s_mov_b64 exec, %s" % sr(sVMASK, 2))
        for f in fs: a.lds("ds_read_b128 %s, v%d offset:%d" % (vr(vV + 4 * f, 4), vAV, o + 576 * f), ("V", f // 2))
        if not cfg.get("x_nomask"): a("s_mov_b64 exec, -1")
    def R(u):
        a.wait(lg="R")
        if U[u][1] == 1 and "ql" in ev: ev.pop("ql")()
        a("v_mfma_f32_32x32x4_2b_bf16 %s, %s, %s, 0" % (vr(vS[u % 2], 32), vr(kreg(U[u][0]) + 8, 2), vr(vQ[U[u][1]] + 4, 2)))
    def M(u, t):
        a.wait(lg=("K", t))
        s = vr(vS[u % 2] + 16 * t, 16)
        a("v_mfma_f32_32x32x16_bf16 %s, %s, %s, %s" % (s, vr(kreg(U[u][0]) + 4 * t, 4), vr(vQ[U[u][1]], 4), s))
    def P(u, f):
        a.wait(lg=("V", f // 2))
        a("v_smfmac_f32_32x32x32_bf16 %s, %s, %s, v%d" % (vr(vO[U[u][1]], 16), vr(vV + 4 * f, 4), vr(vS[u % 2] + 8 * f, 8), vIDX))
    ch = lambda u: U[u][0]
    newk = lambda u: u < N and ch(u) != ch(u - 1)

    rR(ch(0)); rK(ch(0), 0); rK(ch(0), 1)
    rV(ch(0), (0, 1, 2, 3))
    R(0)
    if newk(1): rR(ch(1))
    n0 = len(a.l)
    if "fill" in ev: ev["fill"]()
    gap = 17 - (len(a.l) - n0)
    while gap > 0:
        a("s_nop %d" % (min(gap, 16) - 1)); gap -= 16
    M(0, 0)
    if newk(1): rK(ch(1), 0)
    M(0, 1)
    if newk(1): rK(ch(1), 1)
    a("s_nop 7")
    pos = cfg["pos"]
    a.age = cfg["age"]
    for u in range(N):
        def op(j):
            if j == 0:
                if u > 0:
                    P(u - 1, 3)
                    if newk(u): rV(ch(u), (2, 3))
            elif j == 1:
                if u + 1 < N:
                    R(u + 1)
            elif j == 2: P(u, 0)
            elif j == 3:
                P(u, 1)
                if newk(u + 1): rV(ch(u + 1), (0, 1))
            elif j == 4 or j == 6:
                if u + 1 < N:
                    M(u + 1, (j - 4) // 2)
                    if newk(u + 2):
                        if j == 4: rR(ch(u + 2))
                        rK(ch(u + 2), (j - 4) // 2)
            elif j == 5: P(u, 2)
            if (u, j) in cfg.get("prio", {}): a("s_setprio %d" % cfg["prio"][(u, j)])
            if (u, j) in cfg.get("priox", {}):
                l = a.uid("px"); a("s_cmp_lg_u32 s%d, 0" % sKH, "s_cbranch_scc1 %s" % l, "s_setprio %d" % cfg["priox"][(u, j)], "%s:" % l)
            if (u, j) in ev: ev[(u, j)]()
        a(";STAMP %d" % (40 + u))
        for e in range(32):
            if e in pos: op(pos.index(e))
            a("%s v%d, v%d" % (cfg["expop"], vS[u % 2] + e, vS[u % 2] + e)); a.clock += 1
    a.age = None
    a("s_nop 1")
    P(N - 1, 3)
    return U


SCR_RES, SCR_ROFF = 12 * CHUNK, (0, 2 * CHUNK)
SCR_MOFF = (0, 0)
P3_BASE, P3_OFF = 15 * CHUNK, (39936, 0)
sOA, sOR = 34, 3
sOL = 12
sPF = 15
vFD = [vWO + 72, vWO + 72]


def late_setup(a):
    L = vLANE
    a("s_lshl_b32 s%d, s%d, 11" % (sT0, sP), "s_add_u32 s%d, s%d, %d" % (sT0, sT0, LDS_SPARE), "v_add_u32 v%d, s%d, v%d" % (vSA, sT0, vL16),
      "s_lshl_b32 s%d, s%d, 10" % (sT0, sP), "s_add_u32 s%d, s%d, %d" % (sT0, sT0, SCR_RES), "v_add_u32 v%d, s%d, v%d" % (vSB, sT0, vL16),
      "s_lshl2_add_u32 s%d, s%d, s%d" % (sT0, sQI, sP), "s_mul_i32 s%d, s%d, %d" % (sT0, sT0, OTILE), "s_add_u32 s%d, s%d, %d" % (sT0, sT0, OBASE),
      "s_lshl_b32 s%d, s%d, 10" % (sT1, sHEAD), "s_add_u32 s%d, s%d, s%d" % (sOA, sT1, sT0),
      "s_lshl_b32 s%d, s%d, 7" % (sT1, sHEAD), "s_add_u32 s%d, s%d, s%d" % (sOR, sT1, sT0), "s_add_u32 s%d, s%d, 32768" % (sOR, sOR),
      "v_lshrrev_b32 v%d, 4, v%d" % (vOB, L), "v_and_b32 v%d, 15, v%d" % (vT, L), "s_lshl_b32 s%d, s%d, 4" % (sT1, sRH), "v_add_u32 v%d, s%d, v%d" % (vT, sT1, vT),
      "v_lshlrev_b32 v%d, 9, v%d" % (vOA, vOB), "v_lshl_add_u32 v%d, v%d, 4, v%d" % (vOA, vT, vOA),
      "v_lshlrev_b32 v%d, 8, v%d" % (vOB, vOB), "v_lshl_add_u32 v%d, v%d, 2, v%d" % (vOB, vT, vOB),
      "s_lshl2_add_u32 s%d, s%d, s%d" % (sT0, sXCD, sRT), "s_mul_i32 s%d, s%d, %d" % (sT0, sT0, OTILE), "s_add_u32 s%d, s%d, %d" % (sT0, sT0, OBASE),
      "s_lshl_b32 s%d, s%d, 13" % (sT1, sKQ), "s_add_u32 s%d, s%d, s%d" % (sOL, sT1, sT0), "s_add_u32 s%d, s%d, 4096" % (sOL + 1, sOL),
      "s_lshl_b32 s%d, s%d, 10" % (sT1, sKQ), "s_add_u32 s%d, s%d, s%d" % (sOL + 2, sT1, sT0), "s_add_u32 s%d, s%d, 32768" % (sOL + 2, sOL + 2))


RES4 = [0]


def o_store(a, d, t, part, em):
    sa, sb = sOA, sOR
    if part:
        a("s_add_u32 s%d, s%d, %d" % (sT1, sOA, 32 * OTILE), "s_add_u32 s%d, s%d, %d" % (sT2, sOR, 32 * OTILE)); sa, sb = sT1, sT2
    em("buffer_store_dwordx4 %s, v%d, %s, s%d offen sc1" % (vr(d, 4), vL16, srd(sWS), sa))
    if RES4[0]:
        a("s_mov_b64 exec, 0xff")
        em("buffer_store_dwordx4 %s, v%d, %s, s%d offen sc1" % (vr(t, 4), vL16, srd(sWS), sb))
        a("s_mov_b64 exec, -1")
        return
    a("s_mov_b32 exec_hi, 0")
    em("buffer_store_dword v%d, v%d, %s, s%d offen sc1" % (d + 4, t, srd(sWS), sb))
    a("s_mov_b64 exec, -1")


def poison(a, parts=(0, 1)):
    d = vFD[0]
    a("v_mov_b64 %s, -1" % vr(d, 2), "v_mov_b64 %s, -1" % vr(d + 2, 2))
    if not RES4[0]: a("v_mov_b32 v%d, -1" % (d + 4), "v_lshlrev_b32 v%d, 2, v%d" % (vT, vLANE))
    for part in parts: o_store(a, d, d if RES4[0] else vT, part, lambda x: a.vmem(x, "poison"))


def send_partial(a, part):
    o = vO[part]
    a("v_mov_b32 v%d, s%d" % (o + 11, sTAG),
      "ds_write_b128 v%d, %s offset:%d" % (vSA, vr(o, 4), SCR_MOFF[part]), "ds_write_b128 v%d, %s offset:%d" % (vSA, vr(o + 4, 4), SCR_MOFF[part] + 1024),
      "ds_write_b128 v%d, %s offset:%d" % (vSB, vr(o + 8, 4), SCR_ROFF[part]))


def fin_reads(part):
    d = vFD[part]
    return ["ds_read_b128 %s, v%d offset:%d" % (vr(d + 8, 4), vSB, SCR_ROFF[part]),
            "ds_read_b128 %s, v%d offset:%d" % (vr(d, 4), vSA, SCR_MOFF[part]), "ds_read_b128 %s, v%d offset:%d" % (vr(d + 4, 4), vSA, SCR_MOFF[part] + 1024)]


NOPK = [0, 0]
BIAS = [0]
vTH = vWO + 88


def o_bias(a, cls):
    x = vWO + 84
    def rd(): a("v_mov_b32 v%d, 2560" % x); a.lds("ds_read_b128 %s, v%d" % (vr(x, 4), x), "bias")
    def init():
        a.wait(lg="bias")
        k = struct.unpack("<I", struct.pack("<f", (1.35 if cls else -1.35) * 2.0 ** BIAS[0]))[0]
        o = vO[0]
        a("v_max3_f32 v%d, abs(v%d), abs(v%d), abs(v%d)" % (x, x, x + 1, x + 2), "v_max_f32 v%d, abs(v%d), v%d" % (x, x + 3, x),
          "v_and_b32 v%d, 0x7f800000, v%d" % (x, x), "v_mul_f32 v%d, 0x%x, v%d" % (o, k, x), "v_mul_f32 v%d, 0x%x, v%d" % (o + 1, k, x))
        if cls: a("v_mul_f32 v%d, 0x3b800000, v%d" % (vTH, o))
        for r in (o + 2, o + 4, o + 6, o + 8) + tuple(range(vO[1], vO[1] + 10, 2)): a("v_mov_b64 %s, %s" % (vr(r, 2), vr(o, 2)))
    return rd, init


def finalize(a, part, slow, colds, prefetched=False, before_store=None):
    o = vO[part]
    t = vT
    d = vFD[part]
    if not prefetched: a(fin_reads(part))
    again = a.uid("meet")
    a("s_mov_b32 s%d, 0" % sT5, "s_mov_b32 s%d, 0x37800000" % sT4,
      "%s:" % again, "s_waitcnt lgkmcnt(0)", "v_cmp_ne_u32 vcc, s%d, v%d" % (sTAG, d + 11), "s_cbranch_vccnz %s_r" % again, "%s_k:" % again)
    def cold():
        a("%s_r:" % again); spin_guard(a, again + "_k"); a("s_sleep 1", fin_reads(part), "s_branch %s" % again)
    colds.append(cold)
    pk = lambda op, x, y, z, m="": "v_pk_%s_f32 %s, %s, %s%s" % (op, vr(x, 2), vr(y, 2), vr(z, 2), m)
    if NOPK[part]: pk = lambda op, x, y, z, m="": ["v_%s_f32 v%d, v%d, v%d" % (op, x + i, y + i, z + (0 if m else i)) for i in range(2)]
    if ONE[0]:
        a("v_add_f32 v%d, v%d, v%d" % (o + 11, o + 10, d + 10), "v_add_f32 v%d, v%d, v%d" % (o + 10, o + 10, d + 10), pk("add", o + 8, o + 8, d + 8), pk("add", o, o, d),
          "v_permlane32_swap_b32 v%d, v%d" % (o + 10, o + 11))
        for i in (2, 4, 6): a(pk("add", o + i, o + i, d + i))
    else:
        a("v_add_f32 v%d, v%d, v%d" % (o + 10, o + 10, d + 10), pk("add", o + 8, o + 8, d + 8))
        for i in (0, 2, 4, 6): a(pk("add", o + i, o + i, d + i))
    back = a.uid("norm")
    done = a.uid("normok")
    a("%s:" % back)
    a("v_rcp_f32 v%d, v%d" % (t, o + 10), "v_mov_b32 v%d, 0x7b800000" % (d + 11))
    for i in range(0, 10, 2): a(pk("mul", d + i, o + i, t, " op_sel_hi:[1,0]"))
    a("v_med3_f32 v%d, v%d, s%d, v%d" % (d + 10, o + 10, sT4, d + 11))
    if BIAS[0]:
        a(["v_add_f32 v%d, abs(v%d), abs(v%d)" % (t + k, o + 2 * k, o + 2 * k + 1) for k in range(2)])
        for i in range(4, 10): a("v_add_f32 v%d, v%d, abs(v%d)" % (t + i % 2, t + i % 2, o + i))
        a("v_add_f32 v%d, v%d, v%d" % (t, t, t + 1), "v_cmp_lt_f32 %s, v%d, v%d" % (sr(sSAVE, 2), t, vTH))
    else:
        a(pk("add", t, d, d + 2))
        for i in (4, 6, 8): a(pk("add", t, t, d + i))
        a("v_add_f32 v%d, v%d, v%d" % (t, t, t + 1))
    a("v_fma_f32 v%d, v%d, 0, v%d" % (t, t, o + 10),
      "v_cmp_neq_f32 vcc, v%d, v%d" % (d + 10, t))
    if before_store: before_store()
    cv = lambda i, x: "v_cvt_pk_bf16_f32 v%d, v%d, v%d" % (x, d + 2 * i, d + 2 * i + 1)
    if RES4[0]:
        a(cv(4, d + 8), cv(0, d), cv(1, d + 1), "v_mov_b32_dpp v%d, v%d row_ror:8 row_mask:0xf bank_mask:0xf" % (d + 9, d + 8), cv(2, d + 2),
          "v_permlane16_swap_b32 v%d, v%d" % (d + 8, d + 10), cv(3, d + 3), "v_permlane16_swap_b32 v%d, v%d" % (d + 9, d + 11))
        slow(part, back, done)
        a("%s:" % done)
        o_store(a, d, d + 8, part, a)
        return
    for i in range(5):
        a(cv(i, d + i))
        if i == 2 and BIAS[0]: a("s_or_b64 vcc, vcc, %s" % sr(sSAVE, 2))
    slow(part, back, done)
    a("%s:" % done, "v_lshlrev_b32 v%d, 2, v%d" % (t, vLANE))
    o_store(a, d, t, part, a)


def slow_path(a, part, label, back, done, after):
    S, K, KR, V, m, ar, av = 44, 76, 84, 88, 104, 105, 106
    q = vQ[part]; o = vO[part]
    a("%s:" % label, "s_cmp_eq_u32 s%d, 0" % sT5, "s_cbranch_scc1 %s_go" % label)
    for i in range(12): a("v_min_u32 v%d, -2, v%d" % (vFD[part] + i, vFD[part] + i))
    a("s_branch %s" % done, "%s_go:" % label, "s_mov_b32 s%d, 1" % sT5)
    a("s_waitcnt vmcnt(0) lgkmcnt(0)")
    v_consts(a, V, m)
    a("v_mov_b32 v%d, 0" % (KR + 1))
    for i in range(16): a("v_mov_b32 v%d, 0" % (o + i))
    a("v_lshrrev_b32 v%d, 5, v%d" % (m, vLANE), "v_lshl_add_u32 v%d, v%d, 8, v%d" % (ar, m, vQR),
      "v_mul_u32_u24 v%d, 9216, v%d" % (av, m), "v_and_b32 v%d, 31, v%d" % (m, vLANE), "v_lshl_add_u32 v%d, v%d, 4, v%d" % (av, m, av),
      "s_mul_i32 s%d, s%d, 288" % (sT3, sHEAD), "s_add_u32 s%d, s%d, %d" % (sT3, sT3, SEC), "v_add_u32 v%d, s%d, v%d" % (av, sT3, av))
    for f in range(1, 4): a("v_add_u32 v%d, 18432, v%d" % (av + f, av + f - 1))
    a("v_mov_b32 v%d, 0xff800000" % m)
    for ps in range(2):
        lp = a.uid("slow")
        a("s_mov_b32 s%d, %d" % (sLOOP, SEC), "%s:" % lp)
        for t in range(2):
            for h in range(2):
                a("buffer_load_dwordx2 %s, v%d, %s, s%d offen offset:%d sc1" % (vr(K + 4 * t + 2 * h, 2), vQA, srd(sWS), sLOOP, 256 * t + 512 * h))
        a("buffer_load_dword v%d, v%d, %s, s%d offen sc1" % (KR, ar, srd(sWS), sLOOP))
        if ps:
            a("s_mov_b64 exec, %s" % sr(sVMASK, 2))
            for f in range(4): a("buffer_load_dwordx4 %s, v%d, %s, s%d offen sc1" % (vr(V + 4 * f, 4), av + f, srd(sWS), sLOOP))
            a("s_mov_b64 exec, -1")
        a("s_waitcnt vmcnt(0)",
          "v_mfma_f32_32x32x4_2b_bf16 %s, %s, %s, 0" % (vr(S, 32), vr(KR, 2), vr(q + 4, 2)), "s_nop 15", "s_nop 1")
        for t in range(2):
            a("v_mfma_f32_32x32x16_bf16 %s, %s, %s, %s" % (vr(S + 16 * t, 16), vr(K + 4 * t, 4), vr(q, 4), vr(S + 16 * t, 16)))
        a("s_nop 11")
        if ps == 0:
            for i in range(16): a("v_max3_f32 v%d, v%d, v%d, v%d" % (m, m, S + 2 * i, S + 2 * i + 1))
        else:
            for i in range(32): a("v_sub_f32 v%d, v%d, v%d" % (S + i, S + i, m))
            for i in range(32): a("v_exp_f32 v%d, v%d" % (S + i, S + i))
            a("s_nop 1")
            for f in range(4): a("v_smfmac_f32_32x32x32_bf16 %s, %s, %s, v%d" % (vr(o, 16), vr(V + 4 * f, 4), vr(S + 8 * f, 8), vIDX))
        a("s_add_u32 s%d, s%d, %d" % (sLOOP, sLOOP, PITCH), "s_cmp_lt_u32 s%d, %d" % (sLOOP, 32 * PITCH), "s_cbranch_scc1 %s" % lp)
        if ps == 0:
            a("v_mov_b32 v%d, v%d" % (S, m), "s_nop 1", "v_permlane32_swap_b32 v%d, v%d" % (S, m), "s_nop 1", "v_max_f32 v%d, v%d, v%d" % (m, m, S))
    a("s_nop 15")
    if ONE[0]: a("v_mov_b32 v%d, v%d" % (o + 11, o + 10), "s_nop 1", "v_permlane32_swap_b32 v%d, v%d" % (o + 10, o + 11), "s_nop 1")
    after()
    a("s_branch %s" % back)


def p3_setup(a):
    a("s_and_b32 s%d, s%d, 3" % (sRT, sJ), "s_lshr_b32 s%d, s%d, 2" % (sCB, sJ),
      "s_and_b32 s%d, s%d, 3" % (sKQ, sWAVE), "s_and_b32 s%d, s%d, 1" % (sRH, sCB),
      "s_lshl_b32 s%d, s%d, 2" % (sT0, sCB), "s_lshr_b32 s%d, s%d, 1" % (sT1, sCB), "s_add_u32 s%d, s%d, 32" % (sT1, sT1),
      "s_mul_i32 s%d, s%d, 4608" % (sT2, sKQ), "s_add_u32 s%d, s%d, %d" % (sT2, sT2, WOBASE),
      "s_mul_i32 s%d, s%d, %d" % (sT3, sT0, 4 * 4608), "s_add_u32 s%d, s%d, s%d" % (sWOF, sT3, sT2))
    for t in range(1, 4): a("s_add_u32 s%d, s%d, %d" % (sWOF + t, sWOF, 4 * 4608 * t))
    a("s_mul_i32 s%d, s%d, %d" % (sT3, sT1, 4 * 4608), "s_add_u32 s%d, s%d, s%d" % (sWOF + 4, sT3, sT2),
      "s_lshl2_add_u32 s%d, s%d, s%d" % (sT2, sXCD, sRT), "s_lshl1_add_u32 s%d, s%d, s%d" % (sT2, sT2, sRH),
      "s_mul_i32 s%d, s%d, %d" % (sT3, sT2, 16 * 1152), "s_lshl_b32 s%d, s%d, 5" % (sT1, sT1), "s_add_u32 s%d, s%d, s%d" % (sOCOL + 2, sT1, sT3),
      "s_mul_i32 s%d, s%d, %d" % (sT4, sKQ, 4 * 1152), "s_lshl_b32 s%d, s%d, 5" % (sT0, sT0), "s_add_u32 s%d, s%d, s%d" % (sT0, sT0, sT4),
      "s_add_u32 s%d, s%d, s%d" % (sOCOL, sT0, sT3),
      "s_xor_b32 s%d, s%d, 1" % (sT2, sT2), "s_mul_i32 s%d, s%d, %d" % (sT3, sT2, 16 * 1152), "s_add_u32 s%d, s%d, s%d" % (sOCOL + 1, sT0, sT3),
      "s_movk_i32 s%d, 272" % sC272, "s_movk_i32 s%d, 80" % sC80)


def wo_load(a, tiles, t16, t8, track=True, only=None):
    em = a.vmem if track else (lambda s, tag: a(s))
    for t in tiles:
        for m in range(4):
            if only in (None, m): em("buffer_load_dwordx4 %s, v%d, %s, s%d offen offset:%d sc1" % (vr(vWO + 18 * t + 4 * m, 4), t16, srd(sWS), sWOF + t, 1024 * m), "wo")
        if only in (None, 4): em("buffer_load_dwordx2 %s, v%d, %s, s%d offen sc1" % (vr(vWO + 18 * t + 16, 2), t8, srd(sWS), sWOF + t), "wo")


vOA2, vOB2 = 18, 19
vAC = [vV, vO[1]]
vAC4 = vV + 16


def o_instr(of, hh, g, so):
    main, res = of[hh]
    if g < 4: return ["buffer_load_dwordx4 %s, v%d, %s, s%d offen offset:%d sc1" % (vr(main + 4 * g, 4), (vOA, vOA2)[hh], srd(sWS), so + g // 2, 2048 * (g % 2))]
    return ["buffer_load_dword v%d, v%d, %s, s%d offen offset:%d sc1" % (res + e, (vOB, vOB2)[hh], srd(sWS), so + 2, 128 * e) for e in range(2)]


def o_load(a, of, items, so, tag):
    for hh, g in items:
        for x in o_instr(of, hh, g, so): a.vmem(x, (tag, hh))


RSLEEP = [2]


def o_check(a, of, items, so, colds, reload=None):
    regs = []
    for hh, g in items: regs += list(range(of[hh][0] + 4 * g, of[hh][0] + 4 * g + 4)) if g < 4 else [of[hh][1], of[hh][1] + 1]
    t = vT
    chk = ["v_max_u32 v%d, v%d, v%d" % (t, regs[0], regs[1])] + ["v_max3_u32 v%d, v%d, v%d, v%d" % (t, t, regs[i], regs[i + 1]) for i in range(2, len(regs), 2)]
    chk.append("v_cmp_eq_u32 vcc, -1, v%d" % t)
    l = a.uid("ochk")
    def cold():
        a("%s_r:" % l); spin_guard(a, l + "_k")
        if RSLEEP[0]: a("s_sleep %d" % RSLEEP[0])
        for hh, g in (reload or items): a(o_instr(of, hh, g, so))
        a("s_waitcnt vmcnt(0)", chk, "s_cbranch_vccnz %s_r" % l, "s_branch %s_k" % l)
    colds.append(cold)
    return chk, ["s_cbranch_vccnz %s_r" % l, "%s_k:" % l]


def p3_mm(of, hh, k, g, first):
    main, res = of[hh]
    c = vr(vAC4 if k == 4 else vAC[hh] + 4 * k, 4)
    if g < 4: return "v_mfma_f32_16x16x32_bf16 %s, %s, %s, %s" % (c, vr(vWO + 18 * k + 4 * g, 4), vr(main + 4 * g, 4), "0" if first else c)
    return "v_mfma_f32_16x16x16_bf16 %s, %s, %s, %s" % (c, vr(vWO + 18 * k + 16, 2), vr(res, 2), "0" if first else c)


def p3_half(a, of, hh, gs, first, part, pend, side=()):
    tiles = (4, 0, 1, 2, 3) if hh == 0 else (0, 1, 2, 3)
    side = list(side)
    def emit(x):
        a(x)
        n = 1
        if side:
            y = side.pop(0)
            if y: a(y); n += 1
        for p_ in pend: p_[0] -= n
        if pend and pend[0][0] <= 0:
            a(pend.pop(0)[1])
            for p_ in pend: p_[0] -= 1
    if 4 in gs:
        n0 = len(a.l)
        for k in tiles: emit(p3_mm(of, hh, k, 4, first))
        first = False
        gap = 6 - (len(a.l) - n0 - 1)
        if gap > 0:
            a("s_nop %d" % (gap - 1))
            for p_ in pend: p_[0] -= gap
    for k in tiles:
        for n, g in enumerate([g for g in gs if g < 4]): emit(p3_mm(of, hh, k, g, first and n == 0))
        if part is not None:
            if k == 4: w = "ds_write_b128 v%d, %s offset:%d" % (vP3 + 1, vr(vAC4, 4), P3_OFF[part])
            else: w = "ds_write_b128 v%d, %s offset:%d" % (vP3, vr(vAC[hh] + 4 * k, 4), P3_OFF[part] + 4 * P3_PART * hh + 64 * k)
            pend.append([8, w])
    a(side)


def p3_last(a, of, pend, side, br):
    T = [(0, k) for k in (4, 0, 1, 2, 3)] + [(1, k) for k in range(4)]
    side = list(side)
    def emit(x):
        a(x); n = 1
        if side:
            y = side.pop(0)
            if y: a(y); n += 1
        for p_ in pend: p_[0] -= n
        if pend and pend[0][0] <= 0:
            a(pend.pop(0)[1])
            for p_ in pend: p_[0] -= 1
    n0 = len(a.l)
    for i in range(3): emit(p3_mm(of, T[i][0], T[i][1], 4, False))
    gap = 6 - (len(a.l) - n0 - 1)
    if gap > 0: a("s_nop %d" % (gap - 1))
    for i, (hh, k) in enumerate(T):
        for g in (2, 3): emit(p3_mm(of, hh, k, g, False))
        if k == 4: w = "ds_write_b128 v%d, %s offset:%d" % (vP3 + 1, vr(vAC4, 4), P3_OFF[1])
        else: w = "ds_write_b128 v%d, %s offset:%d" % (vP3, vr(vAC[hh] + 4 * k, 4), P3_OFF[1] + 4 * P3_PART * hh + 64 * k)
        pend.append([8, w])
        if i + 3 < len(T):
            if i + 3 == 5:
                a([y for y in side if y], br); side = []
            emit(p3_mm(of, T[i + 3][0], T[i + 3][1], 4, False))


def p3_flush(a, pend):
    while pend:
        n = pend[0][0]
        if n > 0:
            a("s_nop %d" % (n - 1))
            for p_ in pend: p_[0] -= n
        a(pend.pop(0)[1])
        for p_ in pend: p_[0] -= 1


P3_ROW, P3_PART = 272, 16 * 272
P3_SH = 8 * P3_PART


def p3_addr(a, t):
    L = vLANE
    a("v_and_b32 v24, 15, v%d" % L, "v_lshrrev_b32 v%d, 4, v%d" % (t + 5, L),
      "s_mul_i32 s%d, s%d, %d" % (sT0, sKQ, P3_PART), "s_add_u32 s%d, s%d, %d" % (sT0, sT0, P3_BASE),
      "v_lshl_add_u32 v%d, v%d, 4, s%d" % (t, t + 5, sT0), "v_mad_u32_u24 v%d, v24, s%d, v%d" % (t, sC272, t),
      "s_mul_i32 s%d, s%d, 1280" % (sT0, sKQ), "s_add_u32 s%d, s%d, %d" % (sT0, sT0, P3_BASE + P3_SH),
      "v_lshl_add_u32 v%d, v%d, 4, s%d" % (t + 1, t + 5, sT0), "v_mad_u32_u24 v%d, v24, s%d, v%d" % (t + 1, sC80, t + 1),
      "s_lshl4_add_u32 s%d, s%d, s%d" % (sT0, sKH, sKQ), "s_mul_i32 s%d, s%d, %d" % (sT0, sT0, 4 * P3_ROW), "s_add_u32 s%d, s%d, %d" % (sT0, sT0, P3_BASE),
      "v_lshl_add_u32 v%d, v24, 4, s%d" % (t + 2, sT0), "v_mad_u32_u24 v%d, v%d, s%d, v%d" % (t + 2, t + 5, sC272, t + 2),
      "v_mul_u32_u24 v%d, 1152, v%d" % (t + 4, t + 5), "v_lshl_add_u32 v%d, v24, 3, v%d" % (t + 4, t + 4),
      "v_lshrrev_b32 v24, 2, v%d" % L, "v_and_b32 v%d, 3, v%d" % (t + 5, L),
      "v_mul_u32_u24 v%d, 80, v24" % (t + 3), "v_lshl_add_u32 v%d, v%d, 4, v%d" % (t + 3, t + 5, t + 3), "v_add_u32 v%d, %d, v%d" % (t + 3, P3_BASE + P3_SH, t + 3),
      "v_mul_u32_u24 v24, 1152, v24", "v_lshl_add_u32 v%d, v%d, 3, v24" % (t + 5, t + 5))


def p3_finish(a, part, cls, halves, d, pk, colds):
    t = vP3
    def rd(src, off, step, x):
        for k in range(4): a("ds_read_b128 %s, v%d offset:%d" % (vr(x + 4 * k, 4), src, P3_OFF[part] + off + step * k))
    def fin(x, va, so, left):
        for k in range(1, 4):
            if left is not None: a("s_waitcnt lgkmcnt(%d)" % (left + 3 - k))
            if pk: a(["v_pk_add_f32 %s, %s, %s" % (vr(x + i, 2), vr(x + i, 2), vr(x + 4 * k + i, 2)) for i in (0, 2)])
            else: a(["v_add_f32 v%d, v%d, v%d" % (x + i, x + i, x + 4 * k + i) for i in range(4)])
        a("v_cvt_pk_bf16_f32 v%d, v%d, v%d" % (x, x, x + 1), "v_cvt_pk_bf16_f32 v%d, v%d, v%d" % (x + 1, x + 2, x + 3),
          "buffer_store_dwordx2 %s, v%d, %s, s%d offen" % (vr(x, 2), va, srd(sOUT), so))
    def body(shared):
        for n, hh in enumerate(halves): rd(t + 2, 4 * P3_PART * (hh - cls), P3_PART, d + 16 * n)
        if shared: rd(t + 3, 0, 1280, d + 32)
        for n, hh in enumerate(halves): fin(d + 16 * n, t + 4, sOCOL + hh, 4 * (len(halves) - 1 - n + shared))
        if shared: fin(d + 32, t + 5, sOCOL + 2, 0)
    return body


KDX = []


def kd(name, lds=False):
    return """.amdhsa_kernel %s
  .amdhsa_next_free_vgpr 256
  .amdhsa_next_free_sgpr 96
  .amdhsa_accum_offset 256
  .amdhsa_group_segment_fixed_size 0
  .amdhsa_kernarg_size 48
  .amdhsa_user_sgpr_count 2
  .amdhsa_user_sgpr_kernarg_segment_ptr 1
  .amdhsa_system_sgpr_workgroup_id_x 1
%s.end_amdhsa_kernel""" % (name, "".join("  .amdhsa_%s\n" % x for x in KDX))


def head(a, name):
    a(".globl %s" % name, ".p2align 12", ".p2align 8", ".type %s,@function" % name, "%s:" % name)


def plan2(wb, xb, pre="w0 x0 x1 w1 x2", xfirst=False):
    p = [(-1, t[0], int(t[1:])) for t in pre.split()]
    w0, x0 = 9 - len(wb), 18 - len(xb)
    for b in range(18):
        w = [(b, "w", s) for s in range(w0, 9) if wb[s - w0] == b]
        x = [(b, "x", s) for s in range(x0, 18) if xb[s - x0] == b]
        p += x + w if xfirst else w + x
    return p


KC = {0: 48, 1: 80, 2: 90, 3: 100, 4: 58, 5: 68}
DEF = dict(plan=plan2([0, 1, 2, 3, 4, 5, 6], [1, 2, 3, 4, 5, 6, 7, 7, 7, 8, 8, 11, 12, 13, 13]), early0=1, npre=4, dmapos=1, dmalast=8, p1cls=0, p1prio=0, ftmaj=0, rotx=0, align=1, tag_step=4, flag_step=12, flag_pos='side0',
           poll_step=15, check_step=16, init_steps=(15, 3), e_sleep=0, pf_code=0, pf_x=1, idle_sleep=2, canary=1, per0=2, per1=1,
           nsolo=6, pos=[2, 6, 14, 18, 22, 26, 30],
           w0=[(1, 0), (1, 2)], kv1=['fill', (0, 1)], st1=[(0, 3), (0, 3)], w1=[(1, 6), (2, 3)], f1=[(2, 1), (2, 5), (2, 6)], pollL=[(5, 0), (6, 2)], kv2=[(6, 2), (6, 2), (6, 3), (6, 3), (6, 3)], w2=[(8, 2), (8, 3)], uswap=1, age=None, qdma=1, tagc=9, k2=0,
           kv3=[(8, 5), (8, 6), (9, 0), (9, 1), (9, 2)], w3=[(13, 2), (16, 3)], wo=[(11, 2), (13, 3), 14, (2, 3, 5)], poison=[0, (10, 2), (26, 2)],
           opoll=[(30, 5), (31, 1), (31, 1)], two=(31, 3), both=1, rsleep=1, emark=0, c1lag=4, pipe3=0, near=1, shift=42.5, one=0, bias=0, wall=0, split=0, remap=0, karg=2, lean=0, fat=1, pf0=9, ysleep=1, yfin=0, kc=None, kdx=['float_denorm_mode_32 3'], expop='v_exp_f32', snake=0, w7early=0, hint=(31, 5), h_sleep=0, e_pipe=0, i_pipe=0, h_pipe=0, warm=1, nopk=[0, 0], xw_sleep=0, try1=0, res4=0, yprio=0, fpk=[0, 1], full=0, xprio2=0, outmod=['', ''],
           prio={(0, 4): 2, (2, 2): 1, (6, 3): 0, (7, 5): 3, (26, 0): 2, (30, 5): 1, (31, 2): 0}, priox={(22, 0): 2},
           X={'st1': [(0, 3), (0, 4)], 'f1': [(2, 4), (3, 0), (3, 1)]},
           Y={'st1': [(0, 4), (0, 4)], 'pollL': [(5, 0), (6, 3)], 'kv2': [(6, 3), (6, 4), (6, 4), (6, 5), (6, 5)], 'w2': [(8, 0), (8, 3)],
              'prio': {(0, 3): 2, (2, 2): 1, (6, 2): 0, (7, 4): 3, (26, 0): 2, (30, 5): 1, (31, 2): 0}})


sF0, sF1 = 57, 58
sIDLE = 83
OOB = 0x7ffff000
MASTER = 242


def spin_guard(a, out):
    a("s_add_u32 s%d, s%d, 1" % (sSPIN, sSPIN), "s_cmp_gt_u32 s%d, 0x80000" % sSPIN, "s_cbranch_scc1 %s" % out)


def tag_issue(a):
    a.vmem("buffer_load_dword v%d, off, %s, 0 sc1" % (vTAG, srd(sDBG)), "tag")


def tag_check(a, colds):
    lp = a.uid("tag")
    a.wait(vm="tag")
    a("%s:" % lp, "v_readfirstlane_b32 s%d, v%d" % (sTAG, vTAG), "s_cmp_eq_u32 s%d, 0" % sTAG, "s_cbranch_scc1 %s_r" % lp, "%s_k:" % lp)
    def cold():
        a("%s_r:" % lp); spin_guard(a, lp + "_k")
        a("s_sleep 4", "buffer_load_dword v%d, off, %s, 0 sc1" % (vTAG, srd(sDBG)), "s_waitcnt vmcnt(0)", "s_branch %s" % lp)
    colds.append(cold)


FULL = [1]


def flag_store(a, soff, level, track=True, word=False):
    if word or (level and not FULL[0]):
        a("s_mov_b64 exec, 1")
        x = "buffer_store_dword v%d, off, %s, s%d offset:%d sc1" % (vTAG, srd(sWS), soff, 4 * (level - 1))
    else:
        if level == 0: a("v_mov_b64 %s, 0" % vr(vT, 2))
        if level == 2: a("v_mov_b32 v%d, v%d" % (vT, vTAG), "v_mov_b32 v%d, v%d" % (vT + 1, vTAG))
        a("s_mov_b64 exec, 0xff")
        x = "buffer_store_dwordx4 %s, v%d, %s, s%d offen sc1" % (vr(vTAG if level == 1 else vT, 4), vL16, srd(sWS), soff)
    if track: a.vmem(x, "flag")
    else: a(x)
    a("s_mov_b64 exec, -1")


def poll(a, va, colds, sleep=2, off=0):
    x = "buffer_load_dword v%d, v%d, %s, 0 offen offset:%d sc1" % (vPD, va, srd(sWS), off)
    def issue(): a.vmem(x, "poll")
    def check(mask=None):
        lp = a.uid("poll")
        a.wait(vm="poll")
        a("%s:" % lp, "v_cmp_ne_u32 vcc, s%d, v%d" % (sTAG, vPD))
        if mask is None: a("s_cbranch_vccnz %s_r" % lp)
        else: a("s_and_b32 vcc_lo, vcc_lo, %s" % mask, "s_cbranch_scc1 %s_r" % lp)
        a("%s_k:" % lp)
        def cold():
            a("%s_r:" % lp); spin_guard(a, lp + "_k")
            if sleep: a("s_sleep %d" % sleep)
            a(x, "s_waitcnt vmcnt(0)", "s_branch %s" % lp)
        colds.append(cold)
    return issue, check


def fused_setup(a):
    L = vLANE
    a("s_lshr_b32 s%d, s%d, 1" % (sT0, sHEAD), "s_mul_i32 s%d, s%d, 36" % (sT0, sT0), "s_and_b32 s%d, s%d, 1" % (sT1, sHEAD),
      "s_lshl_b32 s%d, s%d, 4" % (sT1, sT1), "s_add_u32 s%d, s%d, s%d" % (sT0, sT0, sT1),
      "v_min_u32 v%d, 11, v%d" % (vL16, L),
      "v_and_b32 v%d, 1, v%d" % (vPA, vL16), "v_mul_u32_u24 v%d, 19, v%d" % (vPA, vPA), "v_add_u32 v%d, s%d, v%d" % (vPA, sT0, vPA),
      "v_lshrrev_b32 v%d, 2, v%d" % (vL8, vL16), "v_sub_u32 v%d, 2, v%d" % (vL8, vL8), "v_mul_u32_u24 v%d, 576, v%d" % (vL8, vL8),
      "v_add_u32 v%d, v%d, v%d" % (vPA, vPA, vL8), "v_lshrrev_b32 v%d, 7, v%d" % (vPA, vPA),
      "s_lshl1_add_u32 s%d, s%d, s%d" % (sT0, sP, sKH), "s_lshr_b32 s%d, s%d, 1" % (sT1, sP), "s_lshl1_add_u32 s%d, s%d, s%d" % (sT1, sQI, sT1),
      "v_and_b32 v%d, 2, v%d" % (vL16, vL16), "v_lshl_add_u32 v%d, v%d, 2, s%d" % (vL16, vL16, sT0), "v_mov_b32 v%d, s%d" % (vL8, sT1),
      "v_cmp_le_u32 vcc, 8, v%d" % L, "v_lshlrev_b32 v%d, 11, v%d" % (vPA, vPA), "v_add_u32 v%d, %d, v%d" % (vPA, F01, vPA),
      "v_cndmask_b32 v%d, v%d, v%d, vcc" % (vL16, vL16, vL8),
      "v_lshl_add_u32 v%d, v%d, 7, v%d" % (vPA, vL16, vPA),
      "v_lshlrev_b32 v%d, 4, v%d" % (vL16, L), "v_lshlrev_b32 v%d, 3, v%d" % (vL8, L), "v_add_u32 v%d, 4096, v%d" % (vL8, vL8))
    late_setup(a); p3_addr(a, vP3)
    a("v_min_u32 v%d, 17, v%d" % (vPW, L), "v_lshlrev_b32 v%d, 2, v%d" % (vPW, vPW), "v_add_u32 v%d, %d, v%d" % (vPW, FW, vPW),
      "s_lshl2_add_u32 s%d, s%d, s%d" % (sT0, sXCD, sRT), "s_lshl2_add_u32 s%d, s%d, s%d" % (sT0, sT0, sKQ),
      "s_lshl_b32 s%d, s%d, 10" % (sT0, sT0), "s_add_u32 s%d, s%d, %d" % (sT0, sT0, FO),
      "v_min_u32 v%d, 7, v%d" % (vPO, L), "v_lshl_add_u32 v%d, v%d, 7, s%d" % (vPO, vPO, sT0),
      "s_lshl2_add_u32 s%d, s%d, s%d" % (sT0, sQI, sP), "s_lshl_b32 s%d, s%d, 5" % (sT0, sT0),
      "s_add_u32 s%d, s%d, s%d" % (sT0, sT0, sHEAD), "s_lshl_b32 s%d, s%d, 7" % (sT0, sT0),
      "s_add_u32 s%d, s%d, %d" % (sPF, sT0, FO))


def tlb_touch(a, cfg):
    l = a.uid("tlb")
    a("s_cmp_lg_u32 s%d, 7" % sWAVE, "s_cbranch_scc1 %s" % l,
      "v_and_b32 v2, 7, v%d" % vLANE, "v_mul_u32_u24 v2, %d, v2" % (4 * PITCH), "v_add_u32 v2, %d, v2" % (PITCH - 128),
      "v_and_b32 v3, 3, v%d" % vLANE, "v_mul_u32_u24 v3, %d, v3" % (16 * OTILE), "v_add_u32 v3, %d, v3" % (OBASE + OTILE - 128),
      "v_cmp_gt_u32 vcc, 8, v%d" % vLANE, "v_mov_b32 v4, %d" % (FW + 1024), "v_cmp_gt_u32 s[%d:%d], 12, v%d" % (sSAVE, sSAVE + 1, vLANE),
      "v_cndmask_b32 v2, v3, v2, vcc", "s_nop 0", "v_cndmask_b32 v2, v4, v2, s[%d:%d]" % (sSAVE, sSAVE + 1),
      "buffer_load_dword v44, v2, %s, 0 offen" % srd(sWS),
      "v_and_b32 v2, 3, v%d" % vLANE, "v_mul_u32_u24 v2, %d, v2" % (786432 - 128),
      "buffer_load_dword v45, v2, %s, 0 offen" % srd(sOUT), "%s:" % l)


vWW, vWC = 158, 159


def word_setup(a):
    a("s_and_b32 s%d, s%d, 1" % (sT0, sHEAD), "s_mul_i32 s%d, s%d, %d" % (sT0, sT0, (-2052) & 0xffffffff), "s_add_u32 s%d, s%d, 2052" % (sT0, sT0),
      "s_lshl3_add_u32 s%d, s%d, s%d" % (sT1, sWAVE, sT0), "v_mov_b32 v%d, s%d" % (vWW, sT1),
      "s_lshl_b32 s%d, s%d, 5" % (sT1, sKH), "s_add_u32 s%d, s%d, s%d" % (sT1, sT1, sT0),
      "v_and_b32 v%d, 3, v%d" % (vWC, vLANE), "v_lshl_add_u32 v%d, v%d, 3, s%d" % (vWC, vWC, sT1))


def word_set(a, stage, track=True, twice=False):
    a("s_mov_b64 exec, 1")
    x = "ds_write_b32 v%d, v0 offset:%d" % (vWW, 64 * stage)
    if twice: x = "ds_write2_b32 v%d, v0, v0 offset0:%d offset1:%d" % (vWW, 16 * stage, 16 * stage + 16)
    if track: a.lds(x)
    else: a(x)
    a("s_mov_b64 exec, -1")


def word_check(a, offs, colds, t=vT, sleep=1):
    xs = ["ds_read_b32 v%d, v%d offset:%d" % (t + k, vWC, o) for k, o in enumerate(offs)]
    def issue():
        for x in xs: a.lds(x, "word")
    def check(track=True):
        l = a.uid("word")
        if track: a.wait(lg="word")
        a("%s:" % l)
        for k in range(len(offs)): a("v_cmp_ne_u32 vcc, s%d, v%d" % (sTAG, t + k), "s_cbranch_vccnz %s_r" % l)
        a("%s_k:" % l)
        def cold():
            a("%s_r:" % l); spin_guard(a, l + "_k"); a(["s_sleep %d" % sleep] if sleep else [], xs, "s_waitcnt lgkmcnt(0)", "s_branch %s" % l)
        colds.append(cold)
    return issue, check, xs


def gen_fused(cfg):
    NOPK[:] = cfg["nopk"]; FULL[0] = cfg["full"]; RES4[0] = cfg["res4"]; RSLEEP[0] = cfg["rsleep"]; ONE[0] = cfg["one"]; BIAS[0] = cfg["bias"]; KDX[:] = cfg["kdx"]; REMAP[0] = cfg["remap"]; KARG[0] = cfg["karg"]; LEAN[0] = cfg["lean"]; PF0[0] = cfg["pf0"]
    SHIFT[0] = struct.unpack("<I", struct.pack("<f", cfg["shift"]))[0] >> 16
    a = Asm()
    name = NAME + "_kernel"
    head(a, name)
    prologue(a, "L_exit"); a(";STAMP 0")
    a("s_mov_b32 s%d, 0" % sSPIN, "s_mov_b32 s%d, 0x%x" % (sF1, OOB))
    a("s_mov_b32 s%d, 0" % sIDLE)
    p1_roles(a, "L_idle")
    def setup():
        a("L_setup:")
        p2_setup(a); p3_setup(a); fused_setup(a)
        a("s_cmp_lg_u32 s%d, 0" % sIDLE, "s_cbranch_scc1 L_idle2")
        a("s_lshl_b32 s%d, s%d, 11" % (sT0, sLINE), "s_lshl_b32 s%d, s%d, 7" % (sT1, sG), "s_add_u32 s%d, s%d, s%d" % (sT0, sT0, sT1),
          "s_add_u32 s%d, s%d, %d" % (sT0, sT0, F01),
          "s_cmp_eq_u32 s%d, 0" % sWAVE, "s_cselect_b32 s%d, s%d, s%d" % (sF1, sT0, sF1))
    p1_head(a, cfg, {"setup": setup, "setup2": lambda: flag_store(a, sF1, 0)})
    if cfg["p1cls"]:
        a("s_cmp_lg_u32 s%d, 0" % sKH, "s_cbranch_scc0 L_p1x", "s_cmp_ge_u32 s%d, 9" % sLINE, "s_cbranch_scc1 L_p1v1", "s_branch L_p1q1", "L_p1x:")
    a("s_cmp_ge_u32 s%d, 9" % sLINE, "s_cbranch_scc1 L_p1v", "s_branch L_p1q")
    vm_head = list(a.vm)
    a("L_idle:"); a.vm = []; a.lg = []
    karg_wait(a); karg_wait(a, False)
    a("s_cmp_lg_u32 s2, %d" % MASTER, "s_cbranch_scc1 L_nomaster", "s_cmp_lg_u32 s%d, 0" % sWAVE, "s_cbranch_scc1 L_nomaster",
      "s_mov_b32 s%d, %d" % (sT0, FEPOCH), "buffer_load_dword v2, off, %s, s%d sc1" % (srd(sWS), sT0), "s_waitcnt vmcnt(0)",
      "v_readfirstlane_b32 s%d, v2" % sT1, "s_mul_i32 s%d, s%d, 0x41c64e6d" % (sT1, sT1), "s_add_u32 s%d, s%d, 12345" % (sT1, sT1),
      "s_cmp_eq_u32 s%d, 0" % sT1, "s_cselect_b32 s%d, 12345, s%d" % (sT1, sT1), "v_mov_b32 v2, s%d" % sT1, "s_mov_b64 exec, 1",
      "buffer_store_dword v2, off, %s, 0 sc1" % srd(sDBG), "buffer_store_dword v2, off, %s, s%d sc1" % (srd(sWS), sT0), "s_mov_b64 exec, -1",
      "L_nomaster:")
    if cfg["pf_code"]:
        a("s_getpc_b64 s[%d:%d]" % (sRET, sRET + 1), "L_pc:", "s_sub_u32 s%d, s%d, L_pc-%s" % (sRET, sRET, name), "s_subb_u32 s%d, s%d, 0" % (sRET + 1, sRET + 1),
          "s_cmp_lt_u32 s%d, 6" % sWAVE, "s_cbranch_scc1 L_nopf",
          "s_and_b32 s%d, s%d, 3" % (sT0, sJ), "v_and_b32 v2, 127, v0", "v_lshl_add_u32 v2, v2, 2, s%d" % sT0,
          "v_lshlrev_b32 v2, 7, v2", "v_min_u32 v2, L_pfend-%s-4, v2" % name, "global_load_dword v47, v2, s[%d:%d]" % (sRET, sRET + 1), "L_nopf:")
    if cfg["pf_x"]:
        l = a.uid("pf")
        a("s_and_b32 s%d, s%d, 3" % (sT0, sJ), "s_cmp_ge_u32 s%d, 4" % sWAVE, "s_cbranch_scc1 %s" % l,
          "s_lshr_b32 s%d, s%d, 1" % (sT1, sWAVE), "s_lshl1_add_u32 s%d, s%d, s%d" % (sT1, sT0, sT1),
          "s_lshr_b32 s%d, s%d, 2" % (sT2, sXCD), "s_mul_i32 s%d, s%d, 7" % (sT2, sT2), "s_and_b32 s%d, s%d, 2" % (sT3, sXCD),
          "s_lshl1_add_u32 s%d, s%d, s%d" % (sT3, sT3, sT1),
          "s_sub_u32 s%d, s%d, 5" % (sT4, sT3), "s_add_u32 s%d, s%d, 4" % (sT3, sT3), "s_cmp_lt_u32 s%d, 5" % sT1,
          "s_cselect_b32 s%d, 3, s%d" % (sT4, sT4), "s_cselect_b32 s%d, s%d, 8" % (sT3, sT3), "s_add_u32 s%d, s%d, s%d" % (sT2, sT2, sT4),
          "s_mul_i32 s%d, s%d, 3" % (sT4, sT2), "s_add_u32 s%d, s%d, s%d" % (sT3, sT3, sT4))
        rot_die(a, cfg, sT3, sT4)
        mod9(a, sT3, sT4)
        a("s_mul_i32 s%d, s%d, %d" % (sT3, sT3, 64 * 3456), "s_and_b32 s%d, s%d, 1" % (sT4, sWAVE), "s_lshl1_add_u32 s%d, s%d, s%d" % (sT2, sT2, sT4),
          "s_lshl_b32 s%d, s%d, 7" % (sT2, sT2), "s_add_u32 s%d, s%d, s%d" % (sT3, sT3, sT2),
          "v_mul_u32_u24 v2, 3456, v%d" % vLANE, "buffer_load_dword v47, v2, %s, s%d offen" % (srd(sW), sT3), "%s:" % l)
        a("s_barrier",
          "s_and_b32 s%d, s%d, 6" % (sT1, sXCD), "s_lshl1_add_u32 s%d, s%d, s%d" % (sT0, sT1, sT0), "s_and_b32 s%d, s%d, 1" % (sT1, sXCD),
          "s_lshl4_add_u32 s%d, s%d, s%d" % (sT0, sT1, sT0), "s_add_u32 s%d, s%d, 32" % (sT0, sT0), "s_mul_i32 s%d, s%d, %d" % (sT0, sT0, 32 * 1152),
          "s_cmp_ge_u32 s%d, 5" % sWAVE, "s_cselect_b32 s%d, 0x40000000, s%d" % (sT0, sT0),
          "v_min_u32 v2, 287, v0", "v_lshlrev_b32 v2, 7, v2", "buffer_load_dword v47, v2, %s, s%d offen" % (srd(sX), sT0))
    a("s_mov_b64 %s, %s" % (sr(sW, 2), sr(sWO, 2)), "s_mov_b32 s%d, 663552" % (sW + 2))
    a("s_mov_b32 s%d, 1" % sIDLE, "s_branch L_setup")
    def idle2():
      tag_issue(a); p2_init(a)
      wo_role(a, "L_nowo")
      a("s_lshl_b32 s%d, s%d, 2" % (sT0, sLINE), "s_add_u32 s%d, s%d, %d" % (sT0, sT0, FW - 4), "s_cmp_eq_u32 s%d, 0" % sWAVE, "s_cselect_b32 s%d, s%d, s%d" % (sF1, sT0, sF1))
      a("L_nowo:"); a.vm = ["tag"]; a.lg = []
    sF, sPo = cfg["flag_step"], cfg["poll_step"]
    colds = []
    def first_loads(n):
        l = a.uid("fl")
        keep = list(a.vm)
        a("s_cmp_%s_u32 s%d, 3" % (("eq", "lg")[n], sP), "s_cbranch_scc1 %s" % l)
        for k in range(3): kv_piece(a, 0, k)
        if n: a("%s:" % l)
        a("s_cmp_%s_u32 s%d, 2" % (("ge", "lt")[n], sP), "s_cbranch_scc1 %s_e" % l)
        for k in range(3, 5): kv_piece(a, 0, k)
        if n == 0:
            a("s_branch %s_e" % l, "%s:" % l); q_dma(a)
        a("%s_e:" % l)
        a.vm = keep
    cfg0 = cfg
    for isv, pc_ in [(v, c) for c in range(2 if cfg["p1cls"] else 1) for v in (False, True)]:
        cfg = dict(cfg0)
        if pc_: cfg.update(cfg0["p1cls"])
        if cfg["align"]: a(".p2align 12")
        a(("L_p1v" if isv else "L_p1q") + ("1:" if pc_ else ":"))
        a.vm = list(vm_head); a.lg = []
        hooks = {}
        hooks[("side", cfg["tag_step"])] = [lambda: tag_issue(a)]
        hooks[("step", cfg["tagc"])] = lambda: tag_check(a, colds)
        hooks[("waitfor", sF)] = [("st", 0)] + ([("d", 17)] if cfg["wall"] else [])
        hooks[(cfg["flag_pos"], sF)] = [lambda: flag_store(a, sF1, 1)]
        pi, pc = poll(a, vPA, colds, sleep=cfg["e_sleep"])
        tmp = Asm(); p2_init(tmp)
        ini = [x.strip() for x in tmp.l]
        st0, nst = cfg["init_steps"]
        n = -(-len(ini) // nst)
        for k in range(nst): hooks.setdefault(("side", st0 + k), []).extend((lambda x=x: a(x)) for x in ini[k * n:(k + 1) * n])
        if sPo < 18: hooks.setdefault(("side", sPo), []).insert(0, pi)
        else: hooks["pre_epi1"] = pi
        cs = cfg["check_step"]
        hooks[("step", cs)] = lambda: (pc(), a(";STAMP 8"))
        hooks[("bar", cs + 1)] = lambda: (first_loads(0), a(";STAMP 1"))
        hooks["pre_epi1"] = lambda: a(";STAMP 2")
        hooks["mid_epi1"] = lambda stores: (a("s_add_u32 s%d, s%d, %d" % (sST2, sST, 256 if isv else 2048)), first_loads(1))
        p1_body(a, isv, cfg, hooks)
        if cfg["near"]:
            a("s_cmp_lg_u32 s%d, 0" % sKH, "s_cbranch_scc1 L_attn1", "s_branch L_attn0")
            while colds: colds.pop()()
        else: a("s_branch L_attn")
    cfg = cfg0
    def idle_rest():
        a("L_idle2:"); a.vm = []; a.lg = []
        idle2()
        pi, pc = poll(a, vPA, colds, sleep=cfg["idle_sleep"])
        tag_check(a, colds); a(";STAMP 16")
        if cfg["canary"]:
            a("s_mov_b64 exec, 0x100"); pi(); pc(); a("s_mov_b64 exec, -1")
            pi, pc = poll(a, vPA, colds, sleep=cfg["e_sleep"])
        pi(); pc(); a(";STAMP 8", "s_barrier"); first_loads(0); a("s_barrier"); first_loads(1)
        a("s_mov_b32 s%d, 0x40000000" % sST, "s_mov_b32 s%d, 0x40000000" % sST2, "v_mov_b32 v%d, 0" % vSTA)
        a("s_branch L_attn")
    if cfg["align"]: a(".p2align 12")
    a("L_attn:", ";STAMP 19", "s_cmp_lg_u32 s%d, 0" % sKH, "s_cbranch_scc1 L_attn1", "L_attn0:")
    slows = []
    def slow(part, back, done):
        lab = a.uid("slowp"); slows.append((part, lab, back, done)); a("s_cbranch_vccnz %s" % lab)
    skip = cfg.get("skip", "")
    st1 = ["buffer_store_dwordx4 %s, v%d, %s, s%d offen sc1" % (vr(vACC[1] + 8 * n, 4), vSTA, srd(sWS), (sST, sST2)[n]) for n in range(2)]
    def run_colds(cs):
        k = 0
        while k < len(cs):
            cs[k](); k += 1

    def attn(cls):
        colds = []
        cf = dict(cfg); cf.update(cfg.get("XY"[cls], {}))
        cf["prio"] = dict(cf["prio"])
        if cls == 0: cf["prio"].update(cf["priox"])
        cf["priox"] = {}
        if cls == 0: cf["kc"] = None
        a.vm = [("kv", 0)]; a.lg = []
        ev = {}
        def at(k, f, name=None):
            if name and name in skip.split(): return
            g = ev.get(k)
            ev[k] = f if g is None else (lambda: (g(), f()))
        for k in range(2): at(cf["st1"][k], lambda k=k: a.vmem(st1[k], "st1"))
        def b0():
            l = a.uid("b0")
            q_addr(a)
            a("s_setprio 3", "s_waitcnt vmcnt(5)", "s_cmp_eq_u32 s%d, 3" % sP, "s_cbranch_scc1 %s" % l, "s_waitcnt vmcnt(2)",
              "s_cmp_eq_u32 s%d, 2" % sP, "s_cbranch_scc1 %s" % l, "s_waitcnt vmcnt(0)", "%s:" % l, ";STAMP 4", "s_barrier", ";STAMP 6")
            q_read(a)
            if BIAS[0]: brd()
        at(("pre", 0), b0)
        brd, binit = o_bias(a, cls)
        if BIAS[0]: at("fill", binit)
        def stage(st, pos_set, pos_rd, pos_chk):
            wi, wc, xs = word_check(a, [64 * st], colds)
            at(pos_set, lambda: (a.wait(vm=("kv", st)), word_set(a, st)))
            at(pos_rd, wi); at(pos_chk, wc)
        def spread(pos, st):
            if len(pos) == 2: pos = [pos[0]] * 3 + [pos[1]] * 2
            for k, p_ in enumerate(pos): at(p_, lambda k=k: kv_piece(a, st, k))
        spread(cf["kv1"], 1)
        stage(0, cf["w0"][0], cf["w0"][1], ("prev", 2))
        stage(1, cf["w1"][0], cf["w1"][1], ("pre", 4))
        at(cf["f1"][0], lambda: (a.wait(vm="st1"), word_set(a, CHUNK // 64)))
        if cls == 0:
            wi, wc, xs = word_check(a, [CHUNK, CHUNK + 32], colds)
            at(cf["f1"][1], wi); at(cf["f1"][2], lambda wc=wc: (wc(), flag_store(a, sF1, 2, word=True)))
        pi, pc = poll(a, vPA, colds, off=4)
        at(cf["pollL"][0], pi)
        at(cf["pollL"][1], lambda: (pc(), a(";STAMP 9"), q_load(a, 1)))
        spread(cf["kv2"], 2)
        ev["ql"] = lambda: a.wait(vm=("q", 1))
        stage(2, cf["w2"][0], cf["w2"][1], ("pre", 8))
        spread(cf["kv3"], 3)
        assert cf["w3"][0] >= (13, 0) and cf["nsolo"] == 6
        stage(3, cf["w3"][0], cf["w3"][1], ("pre", 12))
        def meet():
            if cls == 0: send_partial(a, 0)
            else:
                a.wait(vm="all"); finalize(a, 0, slow, colds); a.lg = []
            a("v_subrev_u32 v%d, %d, v%d" % (vSA, LDS_SPARE - 12 * CHUNK, vSA))
            word_set(a, 4)
        at((25, 3), meet)
        ofe = [(vO[0], vQ[0]), (vS[0], vS[0] + 16)]
        ofl = [(vS[1], vK + 4), (vS[1] + 16, vK + 6)]
        if cls == 1:
            at(cf["poison"][1], lambda: (poison(a, (0, 1) if cf["emark"] else (1,)), flag_store(a, sPF, 0)))
            at(cf["poison"][2], lambda: (cf["emark"] or a.wait(vm="all"), flag_store(a, sPF, 1)))
            at(cf["hint"], lambda: flag_store(a, sPF, 2))
            at((31, 5), lambda: [a.lds(x) for x in fin_reads(1)])
            p2_main(a, cf, ev)
            a(";STAMP 7", "v_subrev_u32 v%d, 32, v%d" % (vWC, vWC))
            if cf["yfin"]: a("s_setprio 1")
            if cf["hint"] == (32, 0): flag_store(a, sPF, 2); a("s_nop 2")
            else: a("s_nop 5")
            finalize(a, 1, slow, colds, prefetched=True, before_store=(lambda: word_set(a, 7)) if cf["w7early"] else None)
            if not cf["w7early"]: word_set(a, 7)
            if cf["hint"] == (33, 0): flag_store(a, sPF, 2)
            if cf["yfin"]: a("s_setprio 0")
            a(";STAMP 10"); a.lg = []
            wi, wc, xs = word_check(a, [384], colds, sleep=cf["ysleep"])
            wi(); wc()
            a("s_cmp_eq_u32 s%d, 0" % sKQ, "s_cbranch_scc1 L_ysh")
            for shared in range(2):
                if shared: a("L_ysh:")
                p3_finish(a, 0, 1, (1, 0), vS[0], cf["fpk"][0], colds)(shared)
                a(";STAMP 12")
                if cf["split"]:
                    for i in (0, 2): a("s_add_u32 s%d, s%d, %d" % (sOCOL + i, sOCOL + i, 1024 * 1152))
                    a("v_subrev_u32 v%d, %d, v%d" % (vP3 + 2, 4 * P3_PART, vP3 + 2)); a.lg = []
                    wi, wc, xs = word_check(a, [320], colds, sleep=cf["split"] - 1)
                    wi(); wc()
                    p3_finish(a, 1, 0, (0,), vWO + 2, cf["fpk"][0], colds)(shared)
                    a("s_barrier")
                else:
                    for i in (1, 2): a("s_add_u32 s%d, s%d, %d" % (sOCOL + i, sOCOL + i, 1024 * 1152))
                    a("s_setprio %d" % shared, "s_barrier")
                    p3_finish(a, 1, 1, (1,), vWO + 2, cf["fpk"][1], colds)(shared)
                a(";STAMP 15", ";STAMPWAIT", ";STAMP 5", ";STAMPEND", "s_endpgm")
        else:
            pi2, pc2 = poll(a, vPW, colds)
            at(cf["wo"][0], pi2, "wo"); at(cf["wo"][1], pc2, "wo")
            for k in range(25):
                n = cf["wo"][3]
                at((cf["wo"][2] + k // len(n), n[k % len(n)]), lambda k=k: wo_load(a, [k // 5], vL16, vL8, only=k % 5), "wo")
            sOM = 35
            at(cf["w3"][0], lambda: a("v_xor_b32 v%d, 0x100, v%d" % (vOA2, vOA), "v_xor_b32 v%d, 64, v%d" % (vOB2, vOB),
                                      ["s_add_u32 s%d, s%d, %d" % (sOM + i, sOL + i, 32 * OTILE) for i in range(3)],
                                      "s_add_u32 s%d, s%d, %d" % (sOCOL + bool(cf["split"]), sOCOL + bool(cf["split"]), 1024 * 1152)))
            pi3, pc3 = poll(a, vPO, colds)
            G5 = (4, 0, 1, 2, 3)
            at(cf["opoll"][0], pi3)
            at(cf["opoll"][1], lambda: (pc3(), o_load(a, ofe, [(0, g) for g in G5], sOL, "oe")))
            assert cf["opoll"][2] >= (31, 0)
            at(cf["opoll"][2], lambda: o_load(a, ofe, [(1, g) for g in G5], sOL, "oe"))
            wi, wc, xs = word_check(a, [256, 288], colds, t=vQ[0] + 2)
            at((31, 3), wi)
            pi4, pc4 = poll(a, vPO, colds, sleep=cf["h_sleep"], off=4)
            two = cf["two"]
            S1 = [(hh, g) for hh in range(2) for g in (0, 1)]
            S2 = [(hh, g) for hh in range(2) for g in ((4, 2, 3) if two else G5)]
            if two: at(cf["two"], pi4)
            p2_main(a, cf, ev)
            a(";STAMP 7")
            wc(); a("s_nop 7")
            send_partial(a, 1)
            sG1, sG2 = 38, 39
            c0 = c1 = b0_ = b1_ = []
            if cf["emark"]:
                c0, b0_ = o_check(a, ofe, [(0, g) for g in G5], sOL, colds)
                c1, b1_ = o_check(a, ofe, [(1, g) for g in G5], sOL, colds)
            a.wait(vm="all")
            a(c0, b0_)
            if two:
                a("s_mov_b32 s%d, 0" % sG1, "v_cmp_ne_u32 vcc, s%d, v%d" % (sTAG, vPD), "s_and_b32 vcc_lo, vcc_lo, 15", "s_cbranch_scc1 L_xw", "s_mov_b32 s%d, 1" % sG1)
                o_load(a, ofl, S1, sOM, "o1")
            a("L_xw:", "ds_read_b32 v%d, v%d offset:480" % (vT, vWW), "s_waitcnt lgkmcnt(0)",
              "v_cmp_ne_u32 vcc, s%d, v%d" % (sTAG, vT), "s_cbranch_vccnz L_xw2", "L_xw3:", ";STAMP 10")
            colds.append(lambda: (a("L_xw2:"), spin_guard(a, "L_xw3"), a(["s_sleep %d" % cf["xw_sleep"]] if cf["xw_sleep"] else [], "s_branch L_xw")))
            a.vm = []; pi4()
            pend = []
            p3_half(a, ofe, 0, G5, True, 0, pend, c1)
            a(b1_)
            p3_half(a, ofe, 1, G5, True, 0, pend)
            p3_flush(a, pend)
            word_set(a, 6)
            a(";STAMP 11")
            if two:
                a("s_cmp_eq_u32 s%d, 0" % sG1, "s_cbranch_scc1 L_g1", "s_waitcnt vmcnt(0)", "L_g1k:")
                def g1():
                    a("L_g1:"); a.vm = ["poll"]; pc4("15"); o_load(a, ofl, S1, sOM, "o1"); a("s_branch L_g1k")
                colds.append(g1)
                a("s_mov_b32 s%d, 1" % sG2, "v_cmp_ne_u32 vcc, s%d, v%d" % (sTAG, vPD), "s_cbranch_vccnz L_g2", ";STAMP 13")
                a.vm = []; o_load(a, ofl, S2, sOM, "o2")
                a("s_waitcnt vmcnt(8)", "L_g2k:")
                colds.append(lambda: (a("L_g2:", "s_mov_b32 s%d, 0" % sG2), pi4(), a("s_waitcnt vmcnt(1)", "s_branch L_g2k")))
                c, b = o_check(a, ofl, S1, sOM, colds)
                a(c, b)
                for hh in range(2): p3_half(a, ofl, hh, (0, 1), True, None, pend)
                a("s_cmp_eq_u32 s%d, 0" % sG2, "s_cbranch_scc1 L_g3", "L_g3k:")
                def g3():
                    keep = list(a.vm)
                    a("L_g3:"); a.vm = ["poll"]; pc4(); a(";STAMP 13"); o_load(a, ofl, S2, sOM, "o2"); a("s_branch L_g3k")
                colds.append(g3)
            else:
                pc4(); a(";STAMP 13")
                o_load(a, ofl, S2, sOM, "o2")
            gs = [g for hh, g in S2 if hh == 0]
            c0, b0_ = o_check(a, ofl, [(0, g) for g in gs], sOM, colds, S2 if cf["both"] else None)
            c1, b1_ = o_check(a, ofl, [(1, g) for g in gs], sOM, colds)
            a.wait(vm=("o2", 0)); a(";STAMP 12", c0, b0_)
            nside = cf["c1lag"]
            if two and cf["pipe3"]: p3_last(a, ofl, pend, [None] * nside + ["s_waitcnt vmcnt(0)"] + c1, b1_)
            else:
                p3_half(a, ofl, 0, gs, not two, 1, pend, [None] * nside + ["s_waitcnt vmcnt(0)"] + c1)
                a(b1_)
                if cf["split"]: pend[-1][1] = [pend[-1][1], "s_mov_b64 exec, 1", "ds_write_b32 v%d, v%d offset:320" % (vWW, vTAG), "s_mov_b64 exec, -1"]
                p3_half(a, ofl, 1, gs, not two, 1, pend)
            p3_flush(a, pend)
            a(";STAMP 14", "s_waitcnt lgkmcnt(0)", "s_barrier")
            p3_finish(a, 1, 0, (1 if cf["split"] else 0,), vWO + 2, cf["fpk"][1], colds)(0)
            a("L_end:", ";STAMP 15", ";STAMPWAIT", ";STAMP 5", ";STAMPEND", "L_exit:", "s_endpgm")
        run_colds(colds)

    attn(0)
    if cfg["align"]: a(".p2align 12")
    a("L_attn1:")
    attn(1)
    colds.append(idle_rest)
    run_colds(colds)
    a("L_pfend:")
    def restore():
        kc = cfg["kc"]
        assert sorted(kc) == list(range(6))
        a("v_subrev_u32 v42, %d, v%d" % (24 * CHUNK, vAK), "v_subrev_u32 v43, %d, v%d" % (24 * CHUNK, vAR))
        for i, r in kc.items():
            a("v_mov_b32 v%d, v%d" % (r + 9, vKR + 1), "ds_read_b32 v%d, v43 offset:%d" % (r + 8, 2 * CHUNK * i))
            for k in range(4): a("ds_read_b64 %s, v42 offset:%d" % (vr(r + 2 * k, 2), 2 * CHUNK * i + 256 * (k // 2) + 512 * (k % 2)))
            a("s_waitcnt lgkmcnt(0)")
    for part, lab, back, done in slows: slow_path(a, part, lab, back, done, restore if part == 0 and cfg["kc"] else lambda: None)
    hdr = ["; @launch grid=(256,1,1) block=(512,1,1) lds=%d" % LDS_TOTAL]
    return finish(a, hdr, [name])


def finish(a, hdr, names):
    errs = lint(a.l)
    for e in errs: print("HAZARD", e, file=sys.stderr)
    out = hdr + ['.amdgcn_target "amdgcn-amd-amdhsa--gfx950"', ".text"] + a.l + ['.section .rodata,"a"']
    for n in names: out += [".p2align 6", kd(n)]
    return "\n".join(out) + "\n"


if __name__ == "__main__":
    mode = sys.argv[1] if len(sys.argv) > 1 else "split"
    out = sys.argv[2] if len(sys.argv) > 2 else "cdna_kernels/%s.s" % NAME
    cfg = dict(DEF)
    for kv in sys.argv[3:]:
        k, v = kv.split("=", 1); cfg[k] = eval(v)
    txt = {"fused": gen_fused}[mode](cfg)
    open(out, "w").write(txt)
    print("wrote", out, len(txt.split("\n")), "lines")
```

```python
import sys, io, os, contextlib
sys.path.insert(0,'gen')
from stamp import *
import gen as G
from gen import *
b, op, m = int(sys.argv[1]), sys.argv[2], int(sys.argv[3])
for i, l in enumerate(sys.argv[4:]):
    cfg = dict(G.DEF)
    for kv in l.split(";"):
        if kv.strip():
            k, v = kv.strip().split("=", 1); cfg[k] = eval(v)
    open('r%d.s' % i,'w').write(with_report(G.gen_fused(cfg), int(os.environ.get('A', 3)), os.environ.get('AOP', 'min'),b,op,m))
```
